```python
import torch

def _softmax(x, axis=-1):
    return torch.softmax(x, dim=axis)
def _gelu(x):
    return torch.nn.functional.gelu(x, approximate="tanh")
def _silu(x):
    return torch.nn.functional.silu(x)
def _sigmoid(x):
    return torch.sigmoid(x)
def _layernorm(x, axis=-1, eps=1e-5):
    m = x.mean(dim=axis, keepdim=True)
    v = x.var(dim=axis, keepdim=True, unbiased=False)
    return (x - m) / torch.sqrt(v + eps)
def _scatter_add(tgt, idx, src, axis=0):
    return tgt.clone().index_add_(axis, idx, src)
def _segment_sum(src, seg, n):
    out = torch.zeros((n,) + src.shape[1:], dtype=src.dtype)
    return out.index_add_(0, seg, src)
def _pad(x, pw):
    flat = tuple(v for pair in reversed(pw) for v in pair)
    return torch.nn.functional.pad(x, flat)

kernel_name = 'gated_mix__ssm_conv_s5__dense_activation_relu__prompt'

def setup_inputs():

    _w = (lambda a: (lambda t: t.to(torch.bfloat16) if t.is_floating_point() else t)(torch.as_tensor(a)))
    def _A_setup():
        B, S, D = 1, 2048, 512
        P = D
        Lambda_re = -0.5 * (lambda _x: torch.exp(torch.as_tensor(_x)))((lambda *s: torch.randn(*s, dtype=torch.bfloat16) * 0.8)(P))
        Lambda_im = (lambda *s: torch.randn(*s, dtype=torch.bfloat16) * 0.8)(P) * 1.0
        B_re = (lambda *s: torch.randn(*s, dtype=torch.bfloat16) * 0.8)(P, D) * (D ** -0.5)
        B_im = (lambda *s: torch.randn(*s, dtype=torch.bfloat16) * 0.8)(P, D) * (D ** -0.5)
        C_re = (lambda *s: torch.randn(*s, dtype=torch.bfloat16) * 0.8)(D, P) * (P ** -0.5)
        C_im = (lambda *s: torch.randn(*s, dtype=torch.bfloat16) * 0.8)(D, P) * (P ** -0.5)
        log_dt = (lambda *s: torch.randn(*s, dtype=torch.bfloat16) * 0.8)(P) * 0.3 - 2.0
        Dskip = (lambda *s: torch.randn(*s, dtype=torch.bfloat16) * 0.8)(D)
        return {
            "x": _w((lambda *s: torch.randn(*s, dtype=torch.bfloat16) * 0.05)(B, S, D)),
            "Lambda_re": _w(Lambda_re),
            "Lambda_im": _w(Lambda_im),
            "B_re": _w(B_re),
            "B_im": _w(B_im),
            "C_re": _w(C_re),
            "C_im": _w(C_im),
            "log_dt": _w(log_dt),
            "Dskip": _w(Dskip),
        }
    _A_in = _A_setup()

    def _B_setup():
        B, S, D, Dff = 1, 2048, 512, 1792
        return {
            "x": _w((lambda *s: torch.randn(*s, dtype=torch.bfloat16) * 0.05)(B, S, D)),
            "w1": _w((lambda *s: torch.randn(*s, dtype=torch.bfloat16) * 0.05)(D, Dff)),
            "w2": _w((lambda *s: torch.randn(*s, dtype=torch.bfloat16) * 0.05)(Dff, D)),
        }
    _B_in = _B_setup()

    return {
        "A_x": _A_in["x"],
        "A_Lambda_re": _A_in["Lambda_re"],
        "A_Lambda_im": _A_in["Lambda_im"],
        "A_B_re": _A_in["B_re"],
        "A_B_im": _A_in["B_im"],
        "A_C_re": _A_in["C_re"],
        "A_C_im": _A_in["C_im"],
        "A_log_dt": _A_in["log_dt"],
        "A_Dskip": _A_in["Dskip"],
        "B_x": _B_in["x"],
        "B_w1": _B_in["w1"],
        "B_w2": _B_in["w2"],
        "gate_w": _w((lambda *s: torch.randn(*s, dtype=torch.bfloat16) * 0.05)(512) * 16.0),
    }

def reference(A_x, A_Lambda_re, A_Lambda_im, A_B_re, A_B_im, A_C_re, A_C_im, A_log_dt, A_Dskip, B_x, B_w1, B_w2, gate_w):
    def _A_ref(x, Lambda_re, Lambda_im, B_re, B_im, C_re, C_im, log_dt, Dskip):
        Bsz, L, H = x.shape
        Lam = Lambda_re + 1j * Lambda_im
        Bmat = B_re + 1j * B_im
        Cmat = C_re + 1j * C_im
        dt = torch.exp(log_dt)
        Lam_bar = torch.exp(dt * Lam)
        B_bar = ((Lam_bar - 1.0) / Lam)[:, None] * Bmat
        Bu = torch.einsum("bld,pd->blp", x + 0j, B_bar)
        h = torch.zeros_like(Bu[:, 0, :])
        hs = []
        for t in range(L):
            h = Lam_bar[None, :] * h + Bu[:, t, :]
            hs.append(h)
        hseq = torch.stack(hs, 1)
        y = 2.0 * torch.einsum("blp,dp->bld", hseq, Cmat).real + x * Dskip[None, None, :]
        return y

    def _B_ref(x, w1, w2):
        h = torch.einsum("bsd,df->bsf", x, w1)
        zero = torch.zeros_like(h)
        h = torch.maximum(h, zero)
        return torch.einsum("bsf,fd->bsd", h, w2)

    x = A_x
    g = _sigmoid((x * gate_w).sum(-1, keepdims=True))
    a = _A_ref(x, A_Lambda_re, A_Lambda_im, A_B_re, A_B_im, A_C_re, A_C_im, A_log_dt, A_Dskip)
    b = _B_ref(x, B_w1, B_w2)
    return g * a + (1 - g) * b
```

```python
import re

class Asm:
    def __init__(self):
        self.lines = []
        self.vmq = []
        self.lgq = []

    def e(self, s):
        for l in s.split("\n"):
            l = l.strip()
            if l:
                self.lines.append(l)

    def c(self, s):
        self.lines.append("; " + s)

    def label(self, n):
        self.lines.append(n + ":")

    def vm(self, s, tag):
        self.e(s)
        self.vmq.append(tag)
        assert len(self.vmq) <= 63, "vmcnt overflow %d" % len(self.vmq)

    def vm_count(self, tag):
        idx = [i for i, t in enumerate(self.vmq) if t == tag]
        if not idx:
            return None
        return len(self.vmq) - 1 - idx[-1]

    def wait_vm(self, tag, extra=""):
        n = self.vm_count(tag)
        if n is None:
            return False
        self.e("s_waitcnt vmcnt(%d)%s" % (n, extra))
        self.vmq = self.vmq[len(self.vmq) - n:] if n else []
        return True

    def wait_vm_all(self):
        self.e("s_waitcnt vmcnt(0)")
        self.vmq = []

    def ds(self, s, tag):
        self.e(s)
        self.lgq.append(tag)
        assert len(self.lgq) <= 15, "lgkmcnt overflow"

    def wait_lg(self, tag):
        idx = [i for i, t in enumerate(self.lgq) if t == tag]
        if not idx:
            return False
        n = len(self.lgq) - 1 - idx[-1]
        self.e("s_waitcnt lgkmcnt(%d)" % n)
        self.lgq = self.lgq[len(self.lgq) - n:] if n else []
        return True

    def wait_lg_all(self):
        self.e("s_waitcnt lgkmcnt(0)")
        self.lgq = []

    def text(self):
        out = []
        for l in self.lines:
            out.append(l if (l.endswith(":") or l.startswith(".") or l.startswith(";")) else "    " + l)
        return "\n".join(out) + "\n"


def vr(a, n=1):
    return "v%d" % a if n == 1 else "v[%d:%d]" % (a, a + n - 1)
def ar(a, n=1):
    return "a%d" % a if n == 1 else "a[%d:%d]" % (a, a + n - 1)
def sr(a, n=1):
    return "s%d" % a if n == 1 else "s[%d:%d]" % (a, a + n - 1)

_reg = re.compile(r"(?<![\w.])(-?abs\()?-?([vas])(?:(\d+)|\[(\d+):(\d+)\])")
def regs_of(op):
    out = set()
    op = op.strip()
    if op in ("vcc",): return {("s", "vcc")}
    if op in ("exec",): return {("s", "exec")}
    if op in ("m0",): return {("s", "m0")}
    for m in _reg.finditer(op):
        k = m.group(2)
        if m.group(3) is not None:
            out.add((k, int(m.group(3))))
        else:
            for i in range(int(m.group(4)), int(m.group(5)) + 1):
                out.add((k, i))
    return out

TRANS = ("v_exp_f32", "v_log_f32", "v_rcp_f32", "v_rsq_f32", "v_sqrt_f32", "v_sin_f32", "v_cos_f32")

def parse(l):
    l = l.split(";")[0].strip()
    if not l or l.endswith(":") or l.startswith("."):
        return None
    p = l.split(None, 1)
    op = p[0]
    args = [a.strip() for a in p[1].split(",")] if len(p) > 1 else []
    d = dict(op=op, txt=l, defs=set(), uses=set(), kind="other")
    def R(i):
        return regs_of(args[i].split()[0]) if i < len(args) else set()
    if op.startswith("v_mfma"):
        d["kind"] = "mfma"; d["defs"] = R(0); d["A"] = R(1); d["B"] = R(2); d["C"] = R(3); d["uses"] = R(1) | R(2) | R(3)
    elif op.startswith("v_cmpx"):
        d["kind"] = "valu"; d["defs"] = R(0) | {("s", "exec")}; d["uses"] = R(1) | R(2)
    elif op.startswith("v_cmp"):
        d["kind"] = "valu"; d["defs"] = R(0); d["uses"] = R(1) | R(2)
    elif op.startswith("v_readfirstlane") or op.startswith("v_readlane"):
        d["kind"] = "valu"; d["defs"] = R(0); d["uses"] = R(1) | R(2); d["rl"] = True
    elif op.startswith("v_permlane"):
        d["kind"] = "valu"; d["defs"] = R(0) | R(1); d["uses"] = R(0) | R(1); d["pl"] = True
    elif op.startswith("v_"):
        d["kind"] = "valu"; d["defs"] = R(0)
        for i in range(1, len(args)): d["uses"] |= R(i)
        if op.startswith("v_fmac") or "dpp" in op: d["uses"] |= R(0)
        if op.startswith("v_cndmask") and len(args) == 3: d["uses"] |= {("s", "vcc")}
        if "dpp" in op: d["dpp"] = True
        if op.startswith(TRANS): d["trans"] = True
    elif op.startswith("ds_read"):
        d["kind"] = "ds"; d["defs"] = R(0); d["uses"] = R(1)
    elif op.startswith("ds_write"):
        d["kind"] = "ds"; d["uses"] = R(0) | R(1) | R(2)
    elif op.startswith("buffer_load"):
        d["kind"] = "vmem"
        if l.rstrip().endswith("lds") or " lds " in l:
            d["uses"] = R(0) | R(1) | R(2) | {("s", "m0")}; d["dma"] = True
        else:
            d["defs"] = R(0); d["uses"] = R(1) | R(2) | R(3)
    elif op.startswith("buffer_store"):
        d["kind"] = "vmem"; d["uses"] = R(0) | R(1) | R(2) | R(3)
        if "x4" in op or "x3" in op: d["wdata"] = R(0)
    elif op.startswith("global_load"):
        d["kind"] = "vmem"; d["defs"] = R(0); d["uses"] = R(1) | R(2)
    elif op.startswith("global_store"):
        d["kind"] = "vmem"; d["uses"] = R(0) | R(1) | R(2)
        if "x4" in op or "x3" in op: d["wdata"] = R(1)
    elif op.startswith("s_"):
        d["kind"] = "salu"
        if op == "s_nop": d["nop"] = int(args[0]) + 1
        elif op.startswith(("s_cmp", "s_waitcnt", "s_barrier", "s_branch", "s_cbranch", "s_endpgm", "s_setprio", "s_sleep")):
            for i in range(len(args)): d["uses"] |= R(i)
        else:
            d["defs"] = R(0)
            for i in range(1, len(args)): d["uses"] |= R(i)
            if "saveexec" in op: d["defs"] |= {("s", "exec")}
    return d

def check_hazards(lines):
    ins = [(i, parse(l)) for i, l in enumerate(lines)]
    ins = [(i, d) for i, d in ins if d]
    errs = []
    for k, (li, d) in enumerate(ins):
        dist = 0
        j = k - 1
        while j >= 0 and dist < 21:
            p = ins[j][1]
            need = 0
            vdefs = {r for r in p["defs"] if r[0] in "va"}
            sdefs = {r for r in p["defs"] if r[0] == "s"}
            if p["kind"] == "mfma":
                if d["kind"] == "mfma":
                    if p["defs"] & (d["A"] | d["B"]): need = 12
                    if (p["defs"] & d["C"]) and p["defs"] != d["C"]: need = max(need, 10)
                elif d["kind"] in ("valu", "ds", "vmem"):
                    if p["defs"] & (d["uses"] | d["defs"]): need = 12
                    if d["kind"] == "valu" and (p["C"] & d["defs"]): need = max(need, 7)
            elif p["kind"] == "valu":
                if d["kind"] == "mfma" and (vdefs & d["uses"]): need = 2
                if d["kind"] == "mfma" and ("s", "exec") in sdefs: need = max(need, 4)
                if d["kind"] == "valu":
                    if d.get("dpp") and (vdefs & d["uses"]): need = max(need, 2)
                    if d.get("dpp") and ("s", "exec") in sdefs: need = max(need, 5)
                    if d.get("pl") and (vdefs & d["uses"]): need = max(need, 2)
                    if d.get("rl") and (vdefs & d["uses"]): need = max(need, 1)
                    if (d.get("rl") or d.get("pl")) and ("s", "exec") in sdefs: need = max(need, 4)
                    if p.get("trans") and not d.get("trans") and (vdefs & d["uses"]): need = max(need, 1)
                    if (sdefs - {("s", "exec")}) & d["uses"]: need = max(need, 4 if d.get("rl") else 2)
                if d["kind"] == "vmem" and (sdefs & d["uses"]): need = max(need, 5)
                if d["kind"] == "salu" and (sdefs & d["uses"]): need = max(need, 1)
            elif p["kind"] == "salu":
                if d.get("dma") and ("s", "m0") in p["defs"]: need = 1
            if p.get("wdata") and d["kind"] == "valu" and (p["wdata"] & d["defs"]): need = max(need, 2)
            if p.get("wdata") and d["kind"] in ("ds", "vmem") and (p["wdata"] & d["defs"]): need = max(need, 1)
            if need > dist:
                errs.append("line %d: '%s' needs %d states after '%s' (has %d)" % (li, d["txt"], need, p["txt"], dist))
            dist += p.get("nop", 1)
            j -= 1
    return errs
```

```python
import sys
from asmlib import *

NAME = "gated_mix__ssm_conv_s5__dense_activation_relu__prompt"
OPT = dict(stamps=0, p1map=84, p2map=48, ring=12, touch=0)
for a in sys.argv[2:]:
    k, v = a.split("=")
    OPT[k] = int(v)

AGG = 4096
GOFF = AGG + 16 * 8192
FLAGS = GOFF + 2048 * 8
HOFF = 262144
TSTRIDE = 176 * 1024
WS_SIZE = HOFF + 64 * TSTRIDE
OOB = 0x80000000
LX, LW, LB = 0, 65536, 131072
SCR = LB + 2 * 8192
SRD_X, SRD_B, SRD_W1, SRD_W2, SRD_CR, SRD_CI, SRD_WS, SRD_OUT = 4, 8, 12, 16, 20, 24, 28, 32
sW, sR, sJ, sHB, sCB, sTAG, sMASK = 36, 37, 38, 39, 40, 41, 42
sX, sB, sW1 = 43, 44, 45
sMX, sMB, sMW = 46, 47, 48
sT0, sT1, sT2, sT3 = 49, 50, 51, 52
sV0, sV1 = 54, 56
sTP = 58
sCNT = 60
sU = 61
sH = 62
sE = 63
pX, pLRE, pLIM, pBRE, pBIM, pCRE, pCIM, pLDT, pDSK, pBX, pW1, pW2, pGATE, pOUT, pDBG, pWS = range(64, 96, 2)
sST = 96
sODD = 98
sHF, sFL = 99, 100
vLANE, vTID8 = 1, 0
vX = 2; vC = 6; vW1 = 10; vW2 = 14
rdA = 18; rdB = 22; rdW = 26
cL, cL16, cL16q, cL128q, cL1024, cCO = 30, 32, 34, 36, 38, 40
vQ, vL16, vL16d = 42, 43, 44
vTAG = 45
vPRE = 46
FR = 48
ACC_RE, ACC_IM, ACC_F = 104, 120, 136
T = 200
LOG2E = 0x3fb8aa3b
INV2PI = 0x3e22f983

g = Asm()
e = g.e
nstamp = [0]
def stamp():
    if not OPT["stamps"]:
        return
    i = nstamp[0]; nstamp[0] += 1
    e("s_memtime s[%d:%d]" % (sST, sST + 1))
    e("s_waitcnt lgkmcnt(0)")
    g.lgq = []
    e("v_mov_b32 v%d, s%d" % (254, sST))
    e("s_mov_b64 exec, 1")
    g.vm("buffer_store_dword v254, off, s[%d:%d], s101 offset:%d" % (SRD_WS, SRD_WS + 3, 4 * i), "stamp")
    e("s_mov_b64 exec, -1")

def cfma(dr, di, ar_, ai, br, bi, cr, ci):
    e("v_fma_f32 v%d, v%d, v%d, v%d" % (dr, ar_, br, cr))
    e("v_fma_f32 v%d, v%d, v%d, v%d" % (di, ar_, bi, ci))
    e("v_fma_f32 v%d, -v%d, v%d, v%d" % (dr, ai, bi, dr))
    e("v_fma_f32 v%d, v%d, v%d, v%d" % (di, ai, br, di))
def cmul(dr, di, ar_, ai, br, bi):
    e("v_mul_f32 v%d, v%d, v%d" % (dr, ar_, br))
    e("v_mul_f32 v%d, v%d, v%d" % (di, ar_, bi))
    e("v_fma_f32 v%d, -v%d, v%d, v%d" % (dr, ai, bi, dr))
    e("v_fma_f32 v%d, v%d, v%d, v%d" % (di, ai, br, di))

def srd(base, p, size):
    e("s_mov_b32 s%d, s%d" % (base, p))
    e("s_mov_b32 s%d, s%d" % (base + 1, p + 1))

hdr = open("cdna_kernels/%s.s.ref" % NAME).read().split("; Override launch")[0]
out_hdr = hdr + "; @launch grid=(256,1,1) block=(256,1,1) lds=163840\n"
e('.amdgcn_target "amdgcn-amd-amdhsa--gfx950"')
e(".text")
e(".globl %s_kernel" % NAME)
e(".p2align 8")
e(".type %s_kernel,@function" % NAME)
g.label("%s_kernel" % NAME)
e("s_cmp_ge_u32 s2, 256")
e("s_cbranch_scc1 L_end")
e("s_load_dwordx16 s[64:79], s[0:1], 0")
e("s_load_dwordx16 s[80:95], s[0:1], 64")
e("v_lshrrev_b32 v2, 6, v0")
e("v_and_b32 v%d, 63, v0" % vLANE)
e("v_readfirstlane_b32 s%d, v2" % sW)
e("s_and_b32 s%d, s2, 7" % sT0)
e("s_lshr_b32 s%d, s2, 3" % sT1)
if OPT["p1map"] == 84:
    e("s_and_b32 s%d, s%d, 1" % (sR, sT0)); e("s_lshl_b32 s%d, s%d, 3" % (sR, sR))
    e("s_and_b32 s%d, s%d, 7" % (sT2, sT1)); e("s_add_u32 s%d, s%d, s%d" % (sR, sR, sT2))
    e("s_lshr_b32 s%d, s%d, 1" % (sJ, sT0)); e("s_lshl_b32 s%d, s%d, 2" % (sJ, sJ))
    e("s_lshr_b32 s%d, s%d, 3" % (sT2, sT1)); e("s_add_u32 s%d, s%d, s%d" % (sJ, sJ, sT2))
else:
    e("s_and_b32 s%d, s%d, 3" % (sR, sT0)); e("s_lshl_b32 s%d, s%d, 2" % (sR, sR))
    e("s_and_b32 s%d, s%d, 3" % (sT2, sT1)); e("s_add_u32 s%d, s%d, s%d" % (sR, sR, sT2))
    e("s_lshr_b32 s%d, s%d, 2" % (sJ, sT0)); e("s_lshl_b32 s%d, s%d, 3" % (sJ, sJ))
    e("s_lshr_b32 s%d, s%d, 2" % (sT2, sT1)); e("s_add_u32 s%d, s%d, s%d" % (sJ, sJ, sT2))
if OPT["p2map"] == 48:
    e("s_lshl_b32 s%d, s%d, 2" % (sHB, sT0)); e("s_and_b32 s%d, s%d, 3" % (sT2, sT1)); e("s_add_u32 s%d, s%d, s%d" % (sHB, sHB, sT2))
    e("s_lshr_b32 s%d, s%d, 2" % (sCB, sT1))
else:
    e("s_and_b32 s%d, s%d, 3" % (sHB, sT0)); e("s_lshl_b32 s%d, s%d, 3" % (sHB, sHB))
    e("s_and_b32 s%d, s%d, 7" % (sT2, sT1)); e("s_add_u32 s%d, s%d, s%d" % (sHB, sHB, sT2))
    e("s_lshr_b32 s%d, s%d, 2" % (sCB, sT0)); e("s_lshl_b32 s%d, s%d, 2" % (sCB, sCB))
    e("s_lshr_b32 s%d, s%d, 3" % (sT2, sT1)); e("s_add_u32 s%d, s%d, s%d" % (sCB, sCB, sT2))
for b, sz in ((SRD_X, 2048 * 1024), (SRD_B, 512 * 1024), (SRD_W1, 512 * 3584), (SRD_W2, 1792 * 1024), (SRD_CR, 512 * 1024), (SRD_CI, 512 * 1024),
              (SRD_WS, WS_SIZE + (256 * 4 * 128 if OPT["stamps"] else 0)), (SRD_OUT, 2048 * 2048)):
    e("s_mov_b32 s%d, 0x%x" % (b + 2, sz))
    e("s_mov_b32 s%d, 0x20000" % (b + 3))
e("s_mov_b32 s%d, 0xffff0000" % sMASK)
t0, t1, t2, t3 = T, T + 1, T + 2, T + 3
e("v_lshrrev_b32 v%d, 3, v%d" % (t0, vLANE))
e("v_and_b32 v%d, 7, v%d" % (t1, vLANE))
e("v_lshrrev_b32 v%d, 1, v%d" % (t2, t0))
e("v_xor_b32 v%d, v%d, v%d" % (t3, t1, t2))
e("v_lshlrev_b32 v%d, 4, v%d" % (t3, t3))
e("v_lshl_add_u32 v%d, v%d, 10, v%d" % (vC, t0, t3))
e("v_and_b32 v%d, 1, v%d" % (t2, t2))
e("v_lshlrev_b32 v%d, 2, v%d" % (t2, t2))
e("v_xor_b32 v%d, v%d, v%d" % (t2, t2, t1))
e("v_lshlrev_b32 v%d, 4, v%d" % (t2, t2))
e("v_lshl_add_u32 v%d, v%d, 10, v%d" % (vW2, t0, t2))
e("v_lshrrev_b32 v%d, 2, v%d" % (t1, t0))
e("v_and_b32 v%d, 3, v%d" % (t2, t0))
e("v_lshl_add_u32 v%d, v%d, 4, v%d" % (t1, t1, t2))
e("v_lshl_add_u32 v%d, v%d, 10, v%d" % (vX, t1, t3))
e("v_xor_b32 v%d, 64, v%d" % (vX + 1, vX))
e("v_add_u32 v%d, 3072, v%d" % (vX + 1, vX + 1))
e("v_add_u32 v%d, 6144, v%d" % (vX + 2, vX))
e("v_add_u32 v%d, 6144, v%d" % (vX + 3, vX + 1))
e("v_xor_b32 v%d, 64, v%d" % (vC + 1, vC))
e("v_add_u32 v%d, 7168, v%d" % (vC + 1, vC + 1))
e("v_lshrrev_b32 v%d, 4, v%d" % (t0, vLANE))
e("v_and_b32 v%d, 15, v%d" % (t1, vLANE))
e("v_lshlrev_b32 v%d, 2, v%d" % (t2, t0))
e("v_xor_b32 v%d, v%d, v%d" % (t1, t1, t2))
e("v_lshrrev_b32 v%d, 2, v%d" % (t2, t1))
e("v_cmp_eq_u32 vcc, 3, v%d" % t2)
e("v_mul_u32_u24 v%d, 3584, v%d" % (t0, t0))
e("v_lshl_add_u32 v%d, v%d, 4, v%d" % (vW1, t1, t0))
e("s_and_b32 s%d, s%d, 1" % (sODD, sJ))
e("s_cselect_b64 s[%d:%d], vcc, 0" % (sTP, sTP + 1))
e("v_mov_b32 v%d, 0x%x" % (t3, OOB))
e("v_lshlrev_b32 v%d, 4, v%d" % (vL16, vLANE))
e("v_cndmask_b32 v%d, v%d, v%d, s[%d:%d]" % (vW1, vW1, t3, sTP, sTP + 1))
for n in range(1, 4):
    e("v_add_u32 v%d, %d, v%d" % (vW1 + n, 13312 * n, vW1))
e("s_lshl_b32 s%d, s%d, 17" % (sX, sR)); e("s_lshl_b32 s%d, s%d, 15" % (sT0, sW)); e("s_add_u32 s%d, s%d, s%d" % (sX, sX, sT0))
e("s_lshl_b32 s%d, s%d, 15" % (sB, sJ)); e("s_and_b32 s%d, s%d, 1" % (sT0, sW)); e("s_lshl_b32 s%d, s%d, 14" % (sT0, sT0)); e("s_add_u32 s%d, s%d, s%d" % (sB, sB, sT0))
e("s_lshr_b32 s%d, s%d, 1" % (sT0, sJ)); e("s_mul_i32 s%d, s%d, 448" % (sT0, sT0)); e("s_lshl_b32 s%d, s%d, 8" % (sT1, sODD)); e("s_add_u32 s%d, s%d, s%d" % (sT0, sT0, sT1))
e("s_mul_i32 s%d, s%d, %d" % (sW1, sW, 16 * 3584)); e("s_add_u32 s%d, s%d, s%d" % (sW1, sW1, sT0))
e("s_lshl_b32 s%d, s%d, 12" % (sMX, sW))
e("s_lshl_b32 s%d, s%d, 11" % (sMB, sW)); e("s_add_u32 s%d, s%d, %d" % (sMB, sMB, LB))
e("s_add_u32 s%d, s%d, %d" % (sMW, sMX, LW))
e("v_and_b32 v%d, 31, v%d" % (t0, vLANE))
e("v_lshlrev_b32 v%d, 1, v%d" % (t0, t0))
e("s_lshl_b32 s%d, s%d, 6" % (sT0, sJ))
e("v_add_u32 v%d, s%d, v%d" % (t0, sT0, t0))
e("s_lshl_b32 s%d, s%d, 11" % (sT1, sJ)); e("s_add_u32 s%d, s%d, s%d" % (sT1, sT1, sX))
e("v_add_u32 v%d, s%d, v%d" % (t1, sT1, vL16))
e("s_cmp_ge_u32 s%d, 2" % sW)
e("s_waitcnt lgkmcnt(0)")
e("s_cselect_b32 s%d, s%d, s%d" % (SRD_B, pBIM, pBRE))
e("s_cselect_b32 s%d, s%d, s%d" % (SRD_B + 1, pBIM + 1, pBRE + 1))
e("s_load_dword s%d, s[%d:%d], 0" % (sE, pWS, pWS + 1))
srd(SRD_X, pX, 0); srd(SRD_W1, pW1, 0)
PL, PI, PD = T + 4, T + 5, T + 6
GX0, GX1, GW = T + 8, T + 12, T + 16
g.vm("global_load_ushort v%d, v%d, s[%d:%d]" % (PD, t0, pLDT, pLDT + 1), "small")
g.vm("global_load_ushort v%d, v%d, s[%d:%d]" % (PL, t0, pLRE, pLRE + 1), "small")
g.vm("global_load_ushort v%d, v%d, s[%d:%d]" % (PI, t0, pLIM, pLIM + 1), "small")
g.vm("global_load_dwordx4 %s, v%d, s[%d:%d]" % (vr(GW, 4), vL16, pGATE, pGATE + 1), "small2")
g.vm("global_load_dwordx4 %s, v%d, s[%d:%d]" % (vr(GX0, 4), t1, pX, pX + 1), "small2")
g.vm("global_load_dwordx4 %s, v%d, s[%d:%d] offset:1024" % (vr(GX1, 4), t1, pX, pX + 1), "small2")

def dma_chunk(c):
    k = c & 3
    L = []
    def I(s): L.append((s, None))
    def D(s): L.append((s, "ch%d" % c))
    I("s_add_u32 m0, s%d, %d" % (sMX, k * 16384))
    I("s_nop 0")
    for n in range(4): D("buffer_load_dwordx4 v%d, s[%d:%d], s%d offen offset:%d lds" % (vX + n, SRD_X, SRD_X + 3, sX, 1024 * n))
    I("s_add_u32 m0, s%d, %d" % (sMB, k * 8192))
    I("s_add_u32 s%d, s%d, 128" % (sX, sX))
    for n in range(2): D("buffer_load_dwordx4 v%d, s[%d:%d], s%d offen offset:%d lds" % (vC + n, SRD_B, SRD_B + 3, sB, 1024 * n))
    I("s_add_u32 m0, s%d, %d" % (sMW, k * 16384))
    I("s_add_u32 s%d, s%d, 128" % (sB, sB))
    for n in range(4): D("buffer_load_dwordx4 v%d, s[%d:%d], s%d offen offset:%d lds" % (vW1 + n, SRD_W1, SRD_W1 + 3, sW1, 1024 * n))
    I("s_add_u32 s%d, s%d, %d" % (sW1, sW1, 64 * 3584))
    return L
def run(L):
    for s, tag in L:
        if tag is None: e(s)
        elif tag.startswith("ds:"): g.ds(s, tag[3:])
        else: g.vm(s, tag)
for c in range(4):
    run(dma_chunk(c))
if OPT["stamps"]:
    e("s_lshl_b32 s101, s2, 2"); e("s_add_u32 s101, s101, s%d" % sW); e("s_lshl_b32 s101, s101, 7"); e("s_add_u32 s101, s101, %d" % WS_SIZE)
srd(SRD_W2, pW2, 0); srd(SRD_CR, pCRE, 0); srd(SRD_CI, pCIM, 0); srd(SRD_WS, pWS, 0); srd(SRD_OUT, pOUT, 0)
stamp()
e("v_add_u32 v%d, 14336, v%d" % (vC + 2, vC)); e("v_add_u32 v%d, 14336, v%d" % (vC + 3, vC + 1))
for n in range(1, 4):
    e("v_add_u32 v%d, %d, v%d" % (vW2 + n, 7168 * n, vW2))
e("v_and_b32 v%d, 31, v%d" % (t0, vLANE))
e("v_lshrrev_b32 v%d, 5, v%d" % (t1, vLANE))
e("v_bfe_u32 v%d, v%d, 1, 3" % (t2, t0))
e("v_xor_b32 v%d, v%d, v%d" % (t2, t2, t1))
e("v_lshlrev_b32 v%d, 4, v%d" % (t2, t2))
e("v_lshl_add_u32 v%d, v%d, 7, v%d" % (t2, t0, t2))
e("v_add_u32 v%d, s%d, v%d" % (rdA, sMX, t2))
e("v_add_u32 v%d, 0x%x, v%d" % (rdB, LB, t2))
for s in range(1, 4):
    e("v_xor_b32 v%d, %d, v%d" % (rdA + s, 32 * s, rdA))
    e("v_xor_b32 v%d, %d, v%d" % (rdB + s, 32 * s, rdB))
e("s_lshl_b32 s%d, s%d, 1" % (sT0, sW))
e("v_add_u32 v%d, s%d, v%d" % (vQ, sT0, t1))
e("v_bfe_u32 v%d, v%d, 2, 2" % (t0, vLANE))
e("v_lshl_add_u32 v%d, v%d, 3, v%d" % (t2, t1, t0))
e("v_lshlrev_b32 v%d, 8, v%d" % (t2, t2))
e("v_lshl_add_u32 v%d, v%d, 6, v%d" % (t2, t0, t2))
e("v_bfe_u32 v%d, v%d, 4, 1" % (t3, vLANE))
e("v_lshl_add_u32 v%d, v%d, 5, v%d" % (t2, t3, t2))
e("v_and_b32 v%d, 1, v%d" % (t3, vLANE))
e("v_lshl_add_u32 v%d, v%d, 4, v%d" % (t2, t3, t2))
e("v_bfe_u32 v%d, v%d, 1, 1" % (t3, vLANE))
e("v_lshl_add_u32 v%d, v%d, 3, v%d" % (t2, t3, t2))
e("v_add_u32 v%d, 0x%x, v%d" % (rdW, LW, t2))
for s in range(1, 4):
    e("v_xor_b32 v%d, %d, v%d" % (rdW + s, 64 * s, rdW))
e("v_lshlrev_b32 v%d, 3, v0" % vTID8)
e("v_mov_b32 v%d, 0x%x" % (t3, OOB))
e("s_cmp_eq_u32 s%d, 1" % sODD)
e("s_cselect_b64 vcc, -1, 0")
e("v_cndmask_b32 v%d, v%d, v%d, vcc" % (vL16d, vL16, t3))
g.wait_vm("small")
a_, b_ = T + 20, T + 21
e("v_lshlrev_b32 v%d, 16, v%d" % (PD, PD))
e("v_mul_f32 v%d, 0x%x, v%d" % (PD, LOG2E, PD))
e("v_exp_f32 v%d, v%d" % (PD, PD))
e("v_lshlrev_b32 v%d, 16, v%d" % (PL, PL))
e("v_lshlrev_b32 v%d, 16, v%d" % (PI, PI))
e("v_cvt_pk_bf16_f32 v%d, v%d, v%d" % (PD, PD, PD))
e("v_lshlrev_b32 v%d, 16, v%d" % (PD, PD))
e("v_mul_f32 v%d, v%d, v%d" % (a_, PD, PL))
e("v_mul_f32 v%d, v%d, v%d" % (b_, PD, PI))
e("v_mul_f32 v%d, 0x%x, v%d" % (a_, LOG2E, a_))
e("v_mul_f32 v%d, 0x%x, v%d" % (b_, INV2PI, b_))
e("v_cvt_f32_u32 v%d, v%d" % (t3, vQ))
def cpow(d, mul):
    if mul is None:
        e("v_exp_f32 v%d, v%d" % (t0, a_)); e("v_fract_f32 v%d, v%d" % (t1, b_))
    else:
        e("v_mul_f32 v%d, %s, v%d" % (t0, mul, a_)); e("v_mul_f32 v%d, %s, v%d" % (t1, mul, b_))
        e("v_exp_f32 v%d, v%d" % (t0, t0)); e("v_fract_f32 v%d, v%d" % (t1, t1))
    e("v_cos_f32 v%d, v%d" % (d, t1)); e("v_sin_f32 v%d, v%d" % (d + 1, t1))
    e("s_nop 0")
    e("v_mul_f32 v%d, v%d, v%d" % (d, d, t0)); e("v_mul_f32 v%d, v%d, v%d" % (d + 1, d + 1, t0))
cpow(cL, None)
cpow(cL16, "0x41800000")
cpow(cL1024, "0x44800000")
e("v_mul_f32 v%d, 0x41800000, v%d" % (t2, t3)); cpow(cL16q, "v%d" % t2)
e("v_mul_f32 v%d, 0x43000000, v%d" % (t2, t3)); cpow(cL128q, "v%d" % t2)
e("v_mul_f32 v%d, v%d, v%d" % (t0, PL, PL))
e("v_fma_f32 v%d, v%d, v%d, v%d" % (t0, PI, PI, t0))
e("v_rcp_f32 v%d, v%d" % (t0, t0))
e("v_add_f32 v%d, -1.0, v%d" % (t1, cL))
e("v_mul_f32 v%d, v%d, v%d" % (cCO, t1, PL))
e("v_fma_f32 v%d, v%d, v%d, v%d" % (cCO, cL + 1, PI, cCO))
e("v_mul_f32 v%d, v%d, v%d" % (cCO + 1, cL + 1, PL))
e("v_fma_f32 v%d, -v%d, v%d, v%d" % (cCO + 1, t1, PI, cCO + 1))
e("v_add_f32 v%d, v%d, v%d" % (t0, t0, t0))
e("v_mul_f32 v%d, v%d, v%d" % (cCO, cCO, t0))
e("v_mul_f32 v%d, v%d, v%d" % (cCO + 1, cCO + 1, t0))
g.wait_vm("small2", " lgkmcnt(0)")
e("s_mul_i32 s%d, s%d, 0x9e3779b1" % (sTAG, sE))
e("s_add_u32 s%d, s%d, 0x7f4a7c15" % (sTAG, sTAG))
GA0, GA1 = T + 22, T + 24
gl, gh, x0, x1, y0, y1 = T + 26, T + 27, T + 28, T + 29, T + 30, T + 31
for k in range(4):
    e("v_lshlrev_b32 v%d, 16, v%d" % (gl, GW + k)); e("v_and_b32 v%d, s%d, v%d" % (gh, sMASK, GW + k))
    e("v_lshlrev_b32 v%d, 16, v%d" % (x0, GX0 + k)); e("v_and_b32 v%d, s%d, v%d" % (x1, sMASK, GX0 + k))
    e("v_lshlrev_b32 v%d, 16, v%d" % (y0, GX1 + k)); e("v_and_b32 v%d, s%d, v%d" % (y1, sMASK, GX1 + k))
    e("v_mul_f32 v%d, v%d, v%d" % (x0, x0, gl)); e("v_mul_f32 v%d, v%d, v%d" % (x1, x1, gh))
    e("v_mul_f32 v%d, v%d, v%d" % (y0, y0, gl)); e("v_mul_f32 v%d, v%d, v%d" % (y1, y1, gh))
    e("v_cvt_pk_bf16_f32 v%d, v%d, v%d" % (x0, x0, x1)); e("v_cvt_pk_bf16_f32 v%d, v%d, v%d" % (y0, y0, y1))
    e("v_and_b32 v%d, s%d, v%d" % (x1, sMASK, x0)); e("v_lshlrev_b32 v%d, 16, v%d" % (x0, x0))
    e("v_and_b32 v%d, s%d, v%d" % (y1, sMASK, y0)); e("v_lshlrev_b32 v%d, 16, v%d" % (y0, y0))
    if k == 0:
        e("v_add_f32 v%d, v%d, v%d" % (GA0, x0, x1)); e("v_add_f32 v%d, v%d, v%d" % (GA1, y0, y1))
    else:
        e("v_add_f32 v%d, v%d, v%d" % (GA0, GA0, x0)); e("v_add_f32 v%d, v%d, v%d" % (GA1, GA1, y0))
        e("v_add_f32 v%d, v%d, v%d" % (GA0, GA0, x1)); e("v_add_f32 v%d, v%d, v%d" % (GA1, GA1, y1))
e("s_nop 0")
for d in ("row_shr:1 row_mask:0xf", "row_shr:2 row_mask:0xf", "row_shr:4 row_mask:0xf", "row_shr:8 row_mask:0xf", "row_bcast:15 row_mask:0xa", "row_bcast:31 row_mask:0xc"):
    e("v_add_f32_dpp v%d, v%d, v%d %s bank_mask:0xf" % (GA0, GA0, GA0, d))
    e("v_add_f32_dpp v%d, v%d, v%d %s bank_mask:0xf" % (GA1, GA1, GA1, d))
    e("s_nop 0")
e("v_cvt_pk_bf16_f32 v%d, v%d, v%d" % (x0, GA0, GA1))
e("v_and_b32 v%d, s%d, v%d" % (GA1, sMASK, x0)); e("v_lshlrev_b32 v%d, 16, v%d" % (GA0, x0))
e("v_mul_f32 v%d, 0x%x, v%d" % (GA0, LOG2E | 0x80000000, GA0)); e("v_mul_f32 v%d, 0x%x, v%d" % (GA1, LOG2E | 0x80000000, GA1))
e("v_exp_f32 v%d, v%d" % (GA0, GA0)); e("v_exp_f32 v%d, v%d" % (GA1, GA1))
e("s_nop 0")
e("v_add_f32 v%d, 1.0, v%d" % (GA0, GA0)); e("v_add_f32 v%d, 1.0, v%d" % (GA1, GA1))
e("v_rcp_f32 v%d, v%d" % (GA0, GA0)); e("v_rcp_f32 v%d, v%d" % (GA1, GA1))
e("v_mov_b32 v%d, s%d" % (vTAG, sTAG))
e("v_cvt_pk_bf16_f32 v%d, v%d, v%d" % (x0, GA0, GA1))
e("v_mov_b32 v%d, s%d" % (GA0 + 1, sTAG)); e("v_mov_b32 v%d, s%d" % (GA1 + 1, sTAG))
e("v_and_b32 v%d, s%d, v%d" % (GA1, sMASK, x0)); e("v_lshlrev_b32 v%d, 16, v%d" % (GA0, x0))
e("s_lshl_b32 s%d, s%d, 10" % (sT0, sR)); e("s_lshl_b32 s%d, s%d, 8" % (sT1, sW)); e("s_add_u32 s%d, s%d, s%d" % (sT0, sT0, sT1))
e("s_lshl_b32 s%d, s%d, 4" % (sT1, sJ)); e("s_add_u32 s%d, s%d, s%d" % (sT0, sT0, sT1)); e("s_add_u32 s%d, s%d, %d" % (sT0, sT0, GOFF))
e("s_mov_b32 exec_lo, 0"); e("s_mov_b32 exec_hi, 0x80000000")
g.vm("buffer_store_dwordx4 %s, off, s[%d:%d], s%d sc1" % (vr(GA0, 4), SRD_WS, SRD_WS + 3, sT0), "gst")
e("s_mov_b64 exec, -1")
stamp()

def frag(setn, idx):
    return FR + 28 * setn + 4 * idx
def reads(n):
    c, s = n >> 2, n & 3
    k = c & 3; st = n & 1
    L = []
    L.append(("ds_read_b128 %s, v%d offset:%d" % (vr(frag(st, 0), 4), rdA + s, k * 16384), "ds:r%d_0" % n))
    L.append(("ds_read_b128 %s, v%d offset:%d" % (vr(frag(st, 1), 4), rdB + s, k * 8192), "ds:r%d_1" % n))
    L.append(("ds_read_b128 %s, v%d offset:%d" % (vr(frag(st, 2), 4), rdB + s, k * 8192 + 4096), "ds:r%d_2" % n))
    for t in range(4):
        for e2 in range(2):
            L.append(("ds_read_b64_tr_b16 %s, v%d offset:%d" % (vr(frag(st, 3 + t) + 2 * e2, 2), rdW + t, k * 16384 + s * 4096 + 1024 * e2), "ds:r%d_%d" % (n, 3 + t)))
    return L
def mfma1(n, m):
    st = n & 1
    A = vr(frag(st, 0), 4)
    if m < 2:
        acc = (ACC_RE, ACC_IM)[m]
        e("v_mfma_f32_32x32x16_bf16 %s, %s, %s, %s" % (vr(acc, 16), A, vr(frag(st, 1 + m), 4), "0" if n == 0 else vr(acc, 16)))
    else:
        acc = ACC_F + 16 * (m - 2)
        e("v_mfma_f32_32x32x16_bf16 %s, %s, %s, %s" % (vr(acc, 16), vr(frag(st, 1 + m), 4), A, "0" if n == 0 else vr(acc, 16)))

def stage_unit(kind, u, slot):
    L = []
    tag = "%s%d" % (kind, u)
    if kind == "w2":
        L.append(("s_add_u32 s%d, s%d, %d" % (sT3, sU, u * 65536), None)); sd, vo = SRD_W2, vW2
    else:
        L.append(("s_add_u32 s%d, s%d, %d" % (sT3, sH, (u & 1) * 128), None)); sd, vo = (SRD_CR if u < 2 else SRD_CI), vC
    for half in range(2):
        L.append(("s_add_u32 m0, s%d, %d" % (sMX if half == 0 else sMW, slot * 16384), None))
        L.append(("s_nop 0" if half == 0 else "s_add_u32 s%d, s%d, 32768" % (sT3, sT3), None))
        for n in range(4):
            L.append(("buffer_load_dwordx4 v%d, s[%d:%d], s%d offen offset:%d lds" % (vo + n, sd, sd + 3, sT3, 1024 * n), tag))
    return L

e("s_mul_i32 s%d, s%d, %d" % (sU, sW, 448 * 1024)); e("s_lshl_b32 s%d, s%d, 7" % (sT0, sCB)); e("s_add_u32 s%d, s%d, s%d" % (sU, sU, sT0))
e("s_lshl_b32 s%d, s%d, 16" % (sH, sCB)); e("s_lshl_b32 s%d, s%d, 8" % (sT0, sW)); e("s_add_u32 s%d, s%d, s%d" % (sH, sH, sT0))
g.wait_vm("ch0")
e("s_barrier")
stamp()
run(reads(0))
for n in range(32):
    c, s = n >> 2, n & 3
    nxt = reads(n + 1) if n < 31 else []
    fill = []
    if s == 3:
        fill = dma_chunk(c + 4) if c < 4 else stage_unit("w2", c - 4, c - 4)
    per = [3, 3, 3, 2, 0, 0] if s == 2 else [2, 2, 2, 2, 2, 1]
    if s == 3: per = [0, 3, 2, 2, 2, 2]
    for m in range(6):
        if s == 3 and m == 0:
            g.wait_lg_all()
        else:
            g.wait_lg("r%d_%d" % (n, m + 1))
        mfma1(n, m)
        if s == 3 and m == 0:
            if c < 7: g.wait_vm("ch%d" % (c + 1))
            e("s_barrier")
        run(nxt[:per[m]]); nxt = nxt[per[m]:]
        if s == 3 and m >= 1:
            k = (len(fill) + (5 - m)) // (6 - m)
            run(fill[:k]); fill = fill[k:]
    assert not nxt and not fill
stamp()

rdU = 22
def svc_w2(u, slot):
    g.wait_vm("w2%d" % u)
    cnt = 0
    for sg in range(4):
        half = sg >> 1
        for dt in range(2):
            for e2 in range(2):
                if len(g.lgq) >= 14: g.wait_lg(g.lgq[7])
                g.ds("ds_read_b64_tr_b16 %s, v%d offset:%d" % (ar(32 * u + 8 * sg + 4 * dt + 2 * e2, 2), rdU + dt + 2 * half, slot * 16384 + (sg & 1) * 2048 + e2 * 512), "u%d_%d" % (u, cnt))
                cnt += 1
    g.wait_lg_all()

e("v_bfe_u32 v%d, v%d, 2, 2" % (t0, vLANE))
e("v_lshrrev_b32 v%d, 5, v%d" % (t1, vLANE))
e("v_lshl_add_u32 v%d, v%d, 3, v%d" % (t2, t1, t0))
e("v_lshlrev_b32 v%d, 7, v%d" % (t2, t2))
e("v_lshrrev_b32 v%d, 1, v%d" % (t0, t0))
e("v_lshl_add_u32 v%d, v%d, 6, v%d" % (t2, t0, t2))
e("v_bfe_u32 v%d, v%d, 4, 1" % (t3, vLANE))
e("v_lshl_add_u32 v%d, v%d, 5, v%d" % (t2, t3, t2))
e("v_and_b32 v%d, 3, v%d" % (t3, vLANE))
e("v_lshl_add_u32 v%d, v%d, 3, v%d" % (t2, t3, t2))
e("v_add_u32 v%d, s%d, v%d" % (rdU, sMX, t2))
e("v_xor_b32 v%d, 64, v%d" % (rdU + 1, rdU))
e("v_add_u32 v%d, 0x%x, v%d" % (rdU + 2, LW, rdU))
e("v_add_u32 v%d, 0x%x, v%d" % (rdU + 3, LW, rdU + 1))
H0, H1 = T + 4, T + 6
pr, pi = ACC_RE, ACC_IM
for t in range(1, 16):
    d = (H0, H1)[t & 1]
    cfma(d, d + 1, cL, cL + 1, pr, pi, ACC_RE + t, ACC_IM + t)
    pr, pi = d, d + 1
OWN = pr
e("v_add_u32 v%d, 0x%x, v%d" % (t0, SCR, vTID8))
g.ds("ds_write_b64 v%d, %s" % (t0, vr(OWN, 2)), "agg")
e("v_and_b32 v%d, 31, v%d" % (t1, vLANE))
e("v_lshlrev_b32 v%d, 3, v%d" % (t1, t1))
e("v_add_u32 v%d, 0x%x, v%d" % (t1, SCR, t1))
vSEG = T + 40
e("v_mov_b32 v%d, v%d" % (vSEG, t1))
e("v_add_u32 v%d, 2048, v%d" % (vSEG + 1, t0))
g.wait_lg_all()
e("s_barrier")
SG = T + 8
for s in range(7):
    g.ds("ds_read_b64 %s, v%d offset:%d" % (vr(SG + 2 * s, 2), vSEG, 256 * s), "sg%d" % s)
vPUB, vLB0, vLB1 = T + 24, T + 42, T + 43
e("v_and_b32 v%d, 31, v%d" % (t0, vLANE))
e("v_lshlrev_b32 v%d, 4, v%d" % (t0, t0))
e("s_lshl_b32 s%d, s%d, 9" % (sT0, sJ)); e("s_lshl_b32 s%d, s%d, 13" % (sT1, sR)); e("s_add_u32 s%d, s%d, s%d" % (sT0, sT0, sT1)); e("s_add_u32 s%d, s%d, %d" % (sT0, sT0, AGG))
e("v_add_u32 v%d, s%d, v%d" % (t0, sT0, t0))
e("v_mov_b32 v%d, 0x%x" % (t3, OOB))
e("v_cmp_eq_u32 vcc, 7, v%d" % vQ)
e("v_add_u32 v%d, 1, v%d" % (t2, vQ))
e("v_cmp_ge_u32 s[%d:%d], s%d, v%d" % (sV0, sV0 + 1, sR, t2))
e("v_cndmask_b32 v%d, v%d, v%d, vcc" % (vPUB, t3, t0))
e("v_lshlrev_b32 v%d, 13, v%d" % (t1, t2))
e("v_sub_u32 v%d, v%d, v%d" % (t1, t0, t1))
e("v_add_u32 v%d, 8, v%d" % (t2, t2))
e("v_cmp_ge_u32 s[%d:%d], s%d, v%d" % (sV1, sV1 + 1, sR, t2))
e("v_cndmask_b32 v%d, v%d, v%d, s[%d:%d]" % (vLB0, t3, t1, sV0, sV0 + 1))
e("v_subrev_u32 v%d, 0x10000, v%d" % (t1, t1))
e("v_mov_b32 v%d, 0" % vPRE); e("v_mov_b32 v%d, 0" % (vPRE + 1))
e("v_cndmask_b32 v%d, v%d, v%d, s[%d:%d]" % (vLB1, t3, t1, sV1, sV1 + 1))
for s in range(7):
    g.wait_lg("sg%d" % s)
    e("v_cmpx_lt_u32 vcc, %d, v%d" % (s, vQ))
    a = SG + 2 * s
    if s == 0:
        e("v_mov_b32 v%d, v%d" % (vPRE, a)); e("v_mov_b32 v%d, v%d" % (vPRE + 1, a + 1))
    else:
        e("v_fma_f32 v%d, v%d, v%d, v%d" % (a, cL16, vPRE, a))
        e("v_fma_f32 v%d, v%d, v%d, v%d" % (a + 1, cL16, vPRE + 1, a + 1))
        e("v_fma_f32 v%d, -v%d, v%d, v%d" % (a, cL16 + 1, vPRE + 1, a))
        e("v_fma_f32 v%d, v%d, v%d, v%d" % (vPRE + 1, cL16 + 1, vPRE, a + 1))
        e("v_mov_b32 v%d, v%d" % (vPRE, a))
e("s_mov_b64 exec, -1")
PB = T + 28
cfma(PB, PB + 1, cL16, cL16 + 1, vPRE, vPRE + 1, OWN, OWN + 1)
e("v_mov_b32 v%d, s%d" % (PB + 2, sTAG)); e("v_mov_b32 v%d, s%d" % (PB + 3, sTAG))
g.vm("buffer_store_dwordx4 %s, v%d, s[%d:%d], 0 offen sc1" % (vr(PB, 4), vPUB, SRD_WS, SRD_WS + 3), "pub")
stamp()
svc_w2(0, 0); run(stage_unit("w2", 4, 0))
e("s_lshl_b32 s%d, s%d, 2" % (sT0, sR)); e("s_add_u32 s%d, s%d, s%d" % (sT0, sT0, sW))
e("s_mul_i32 s%d, s%d, %d" % (sHF, sT0, TSTRIDE)); e("s_add_u32 s%d, s%d, %d" % (sHF, sHF, HOFF))
e("s_lshl_b32 s%d, s%d, 9" % (sFL, sT0)); e("s_lshr_b32 s%d, s%d, 2" % (sT1, sJ)); e("s_lshl_b32 s%d, s%d, 7" % (sT1, sT1)); e("s_add_u32 s%d, s%d, s%d" % (sFL, sFL, sT1))
e("s_and_b32 s%d, s%d, 3" % (sT1, sJ)); e("s_lshl_b32 s%d, s%d, 2" % (sT1, sT1)); e("s_add_u32 s%d, s%d, s%d" % (sFL, sFL, sT1)); e("s_add_u32 s%d, s%d, %d" % (sFL, sFL, FLAGS))
e("s_lshr_b32 s%d, s%d, 1" % (sT1, sJ)); e("s_mul_i32 s%d, s%d, %d" % (sT1, sT1, 14 * 1024)); e("s_lshl_b32 s%d, s%d, 13" % (sT2, sODD))
e("s_add_u32 s%d, s%d, s%d" % (sT1, sT1, sT2)); e("s_add_u32 s%d, s%d, s%d" % (sT1, sT1, sHF))
def ffn_tile(t):
    f = ACC_F + 16 * t
    for k in range(8):
        e("v_cvt_pk_bf16_f32 v%d, v%d, v%d" % (f + k, f + 2 * k, f + 2 * k + 1))
    for k in range(8):
        e("v_pk_max_i16 v%d, v%d, 0" % (f + k, f + k))
    if t == 2: e("s_add_u32 s%d, s%d, 4096" % (sT1, sT1))
    for fr in range(2):
        g.vm("buffer_store_dwordx4 %s, v%d, s[%d:%d], s%d offen offset:%d sc1" % (vr(f + 4 * fr, 4), vL16d if t == 3 else vL16, SRD_WS, SRD_WS + 3, sT1, 2048 * (t & 1) + 1024 * fr), "hf")
ffn_tile(0); ffn_tile(1)
svc_w2(1, 1); run(stage_unit("w2", 5, 1))
ffn_tile(2); ffn_tile(3)
for t in range(16):
    ur, ui = ACC_RE + t, ACC_IM + t
    tt = T + 32 + (t & 1)
    e("v_mul_f32 v%d, v%d, v%d" % (tt, ur, cCO + 1))
    e("v_mul_f32 v%d, v%d, v%d" % (ur, ur, cCO))
    e("v_fma_f32 v%d, -v%d, v%d, v%d" % (ur, ui, cCO + 1, ur))
    e("v_fma_f32 v%d, v%d, v%d, v%d" % (ui, ui, cCO, tt))
svc_w2(2, 2); run(stage_unit("w2", 6, 2))
svc_w2(3, 3); run(stage_unit("c", 3, 3))
stamp()
A0, A1 = T + 8, T + 12
def lb_loads(tag):
    g.vm("buffer_load_dwordx4 %s, v%d, s[%d:%d], 0 offen sc1" % (vr(A0, 4), vLB0, SRD_WS, SRD_WS + 3), tag)
    g.vm("buffer_load_dwordx4 %s, v%d, s[%d:%d], 0 offen sc1" % (vr(A1, 4), vLB1, SRD_WS, SRD_WS + 3), tag)
lb_loads("lb")
g.wait_vm("hf")
e("s_mov_b64 exec, 1")
g.vm("buffer_store_dword v%d, off, s[%d:%d], s%d sc1" % (vTAG, SRD_WS, SRD_WS + 3, sFL), "fl0")
e("s_mov_b64 exec, -1")
e("s_mov_b32 s%d, 0" % sCNT)
g.wait_vm("lb")
g.label("L_lb_chk")
e("v_cmp_ne_u32 vcc, s%d, v%d" % (sTAG, A0 + 2))
e("v_cmp_ne_u32 s[%d:%d], s%d, v%d" % (sTP, sTP + 1, sTAG, A1 + 2))
e("s_and_b64 vcc, vcc, s[%d:%d]" % (sV0, sV0 + 1))
e("s_and_b64 s[%d:%d], s[%d:%d], s[%d:%d]" % (sTP, sTP + 1, sTP, sTP + 1, sV1, sV1 + 1))
e("s_or_b64 vcc, vcc, s[%d:%d]" % (sTP, sTP + 1))
e("s_cbranch_scc0 L_lb_ok")
e("s_add_u32 s%d, s%d, 1" % (sCNT, sCNT))
e("s_cmp_ge_u32 s%d, 0x8000" % sCNT)
e("s_cbranch_scc1 L_lb_ok")
sv = list(g.vmq); lb_loads("x"); g.vmq = sv
e("s_waitcnt vmcnt(0)")
e("s_branch L_lb_chk")
g.label("L_lb_ok")
cfma(A0, A0 + 1, cL1024, cL1024 + 1, A1, A1 + 1, A0, A0 + 1)
cmul(A1, A1 + 1, cL128q, cL128q + 1, A0, A0 + 1)
g.ds("ds_write_b64 v%d, %s" % (vSEG + 1, vr(A1, 2)), "pw")
g.wait_lg_all()
e("s_barrier")
stamp()
for s in range(8):
    g.ds("ds_read_b64 %s, v%d offset:%d" % (vr(SG + 2 * s, 2), vSEG, 2048 + 256 * s), "pp%d" % s)
vTW, vTR = T + 32, T + 34
e("v_and_b32 v%d, 31, v%d" % (t0, vLANE))
e("v_bfe_u32 v%d, v%d, 1, 2" % (t1, vLANE))
e("v_lshrrev_b32 v%d, 5, v%d" % (t2, vLANE))
e("v_lshlrev_b32 v%d, 1, v%d" % (t3, t2))
e("v_xor_b32 v%d, v%d, v%d" % (t1, t1, t3))
e("v_lshlrev_b32 v%d, 4, v%d" % (t1, t1))
e("v_lshl_add_u32 v%d, v%d, 6, v%d" % (t1, t0, t1))
e("v_add_u32 v%d, s%d, v%d" % (vTW, sMB, t1))
e("v_xor_b32 v%d, 16, v%d" % (vTW + 1, vTW))
e("v_bfe_u32 v%d, v%d, 2, 2" % (t0, vLANE))
e("v_lshl_add_u32 v%d, v%d, 3, v%d" % (t2, t2, t0))
e("v_lshrrev_b32 v%d, 1, v%d" % (t0, t0))
e("v_and_b32 v%d, 1, v%d" % (t1, vLANE))
e("v_lshlrev_b32 v%d, 1, v%d" % (t1, t1))
e("v_bfe_u32 v%d, v%d, 4, 1" % (t3, vLANE))
e("v_add_u32 v%d, v%d, v%d" % (t1, t1, t3))
e("v_xor_b32 v%d, v%d, v%d" % (t1, t1, t0))
e("v_lshlrev_b32 v%d, 4, v%d" % (t1, t1))
e("v_lshl_add_u32 v%d, v%d, 6, v%d" % (t1, t2, t1))
e("v_bfe_u32 v%d, v%d, 1, 1" % (t3, vLANE))
e("v_lshl_add_u32 v%d, v%d, 3, v%d" % (t1, t3, t1))
e("v_add_u32 v%d, s%d, v%d" % (vTR, sMB, t1))
e("v_xor_b32 v%d, 32, v%d" % (vTR + 1, vTR))
e("v_add_u32 v%d, 256, v%d" % (vTR + 1, vTR + 1))
for s in range(1, 8):
    g.wait_lg("pp%d" % s)
    e("v_pk_add_f32 %s, %s, %s" % (vr(SG, 2), vr(SG, 2), vr(SG + 2 * s, 2)))
cfma(vPRE, vPRE + 1, cL16q, cL16q + 1, SG, SG + 1, vPRE, vPRE + 1)
cmul(SG, SG + 1, cCO, cCO + 1, vPRE, vPRE + 1)
pr, pi = SG, SG + 1
for t in range(16):
    cfma(ACC_RE + t, ACC_IM + t, cL, cL + 1, pr, pi, ACC_RE + t, ACC_IM + t)
    pr, pi = ACC_RE + t, ACC_IM + t
PK = ACC_F
for k in range(8):
    e("v_cvt_pk_bf16_f32 v%d, v%d, v%d" % (PK + k, ACC_RE + 2 * k, ACC_RE + 2 * k + 1))
for k in range(8):
    e("v_cvt_pk_bf16_f32 v%d, -v%d, -v%d" % (PK + 8 + k, ACC_IM + 2 * k, ACC_IM + 2 * k + 1))
for x in range(2):
    for p in range(2):
        g.ds("ds_write_b128 v%d, %s offset:%d" % (vTW + p, vr(PK + 8 * x + 4 * p, 4), 8192 * x), "tw")
e("s_lshr_b32 s%d, s%d, 2" % (sT0, sJ)); e("s_lshl_b32 s%d, s%d, 14" % (sT0, sT0)); e("s_and_b32 s%d, s%d, 3" % (sT1, sJ)); e("s_lshl_b32 s%d, s%d, 11" % (sT1, sT1))
e("s_add_u32 s%d, s%d, s%d" % (sT0, sT0, sT1)); e("s_add_u32 s%d, s%d, s%d" % (sT0, sT0, sHF)); e("s_add_u32 s%d, s%d, %d" % (sT0, sT0, 112 * 1024))
e("s_add_u32 s%d, s%d, 8192" % (sT1, sT0))
g.wait_lg_all()
TF = ACC_F + 16
for x in range(2):
    for f in range(2):
        for e2 in range(2):
            g.ds("ds_read_b64_tr_b16 %s, v%d offset:%d" % (vr(TF + 8 * x + 4 * f + 2 * e2, 2), vTR + e2, 8192 * x + 1024 * f), "tr%d%d" % (x, f))
for x in range(2):
    for f in range(2):
        g.wait_lg("tr%d%d" % (x, f))
        g.vm("buffer_store_dwordx4 %s, v%d, s[%d:%d], s%d offen offset:%d sc1" % (vr(TF + 8 * x + 4 * f, 4), vL16, SRD_WS, SRD_WS + 3, sT1 if x else sT0, 1024 * f), "hs")
stamp()
svc_w2(4, 0); run(stage_unit("c", 0, 0))
svc_w2(5, 1); run(stage_unit("c", 1, 1))
g.wait_vm("hs")
e("s_add_u32 s%d, s%d, 32768" % (sT0, sFL))
e("s_mov_b64 exec, 1")
g.vm("buffer_store_dword v%d, off, s[%d:%d], s%d sc1" % (vTAG, SRD_WS, SRD_WS + 3, sT0), "fl1")
e("s_mov_b64 exec, -1")
svc_w2(6, 2); run(stage_unit("c", 2, 2))
stamp()

RING = OPT["ring"]
RV = 48
ACCB, ACCA, CF = 112, 176, 240
vFLG, vH1, vGA = 2, 3, 4
FLD = 5
GG = 10
OMG = 14
XD = 26
XR = T + 40
rdC1 = 6
def ring(i, tt):
    i %= RING
    return (vr(RV + 8 * i + 4 * tt, 4) if i < 8 else ar(224 + 8 * (i - 8) + 4 * tt, 4))
e("v_bfe_u32 v%d, v%d, 2, 1" % (t0, vLANE))
e("v_lshlrev_b32 v%d, 9, v%d" % (t0, t0))
e("v_and_b32 v%d, 3, v%d" % (t1, vLANE))
e("v_lshl_add_u32 v%d, v%d, 2, v%d" % (t0, t1, t0))
e("s_lshl_b32 s%d, s%d, 10" % (sT0, sHB)); e("s_lshl_b32 s%d, s%d, 7" % (sT1, sW)); e("s_add_u32 s%d, s%d, s%d" % (sT0, sT0, sT1)); e("s_add_u32 s%d, s%d, %d" % (sT0, sT0, FLAGS))
e("v_add_u32 v%d, s%d, v%d" % (vFLG, sT0, t0))
def flag_load(kind, tag):
    g.vm("buffer_load_dword v%d, v%d, s[%d:%d], %s offen sc1" % (FLD, vFLG, SRD_WS, SRD_WS + 3, "s%d" % sT3 if kind else "0"), tag)
flag_load(0, "pf0")
e("v_add_u32 v%d, 0x%x, v%d" % (vH1, TSTRIDE, vL16))
e("v_lshrrev_b32 v%d, 4, v%d" % (t0, vLANE))
e("v_and_b32 v%d, 15, v%d" % (t1, vLANE))
e("v_lshlrev_b32 v%d, 3, v%d" % (t1, t1))
e("v_lshl_add_u32 v%d, v%d, 10, v%d" % (t0, t0, t1))
e("s_lshl_b32 s%d, s%d, 16" % (sT0, sHB)); e("s_lshl_b32 s%d, s%d, 14" % (sT1, sW)); e("s_add_u32 s%d, s%d, s%d" % (sT0, sT0, sT1))
e("s_lshl_b32 s%d, s%d, 7" % (sT1, sCB)); e("s_add_u32 s%d, s%d, s%d" % (sT0, sT0, sT1))
e("v_add_u32 v%d, s%d, v%d" % (t1, sT1, t1))
vOUT = 16
e("v_add_u32 v%d, s%d, v%d" % (t0, sT0, t0))
e("v_lshlrev_b32 v%d, 1, v%d" % (vOUT, t0))
for it in range(4):
    e("s_mov_b32 s%d, %d" % (sT2, 4096 * it))
    g.vm("buffer_load_dwordx2 %s, v%d, s[%d:%d], s%d offen" % (vr(XR + 2 * it, 2), t0, SRD_X, SRD_X + 3, sT2), "xd")
g.vm("global_load_dwordx2 %s, v%d, s[%d:%d]" % (vr(XR + 8, 2), t1, pDSK, pDSK + 1), "xd")
e("v_bfe_u32 v%d, v%d, 2, 1" % (t0, vLANE))
e("v_bfe_u32 v%d, v%d, 3, 2" % (t1, vLANE))
e("v_and_b32 v%d, 3, v%d" % (t2, vLANE))
e("v_lshl_add_u32 v%d, v%d, 2, v%d" % (t1, t1, t2))
vTJ = 17
e("v_lshl_add_u32 v%d, v%d, 4, v%d" % (vTJ, t0, t1))
e("s_lshl_b32 s%d, s%d, 9" % (sT0, sHB)); e("s_add_u32 s%d, s%d, %d" % (sT0, sT0, GOFF))
e("v_lshl_add_u32 v%d, v%d, 3, s%d" % (vGA, vTJ, sT0))
def g_loads(tag):
    g.vm("buffer_load_dwordx2 %s, v%d, s[%d:%d], 0 offen sc1" % (vr(GG, 2), vGA, SRD_WS, SRD_WS + 3), tag)
    g.vm("buffer_load_dwordx2 %s, v%d, s[%d:%d], 0 offen offset:256 sc1" % (vr(GG + 2, 2), vGA, SRD_WS, SRD_WS + 3), tag)
g_loads("gl")
for s in range(4):
    e("v_add_u32 v%d, 0x%x, v%d" % (rdC1 + s, LW, rdA + s))
e("s_mul_i32 s%d, s%d, %d" % (sH, sHB, 2 * TSTRIDE)); e("s_add_u32 s%d, s%d, %d" % (sH, sH, HOFF))
e("s_lshl_b32 s%d, s%d, 14" % (sU, sW)); e("s_add_u32 s%d, s%d, s%d" % (sU, sU, sH)); e("s_add_u32 s%d, s%d, %d" % (sU, sU, 112 * 1024))
e("s_mul_i32 s%d, s%d, %d" % (sT0, sW, 28 * 1024)); e("s_add_u32 s%d, s%d, s%d" % (sH, sH, sT0))
e("s_mov_b32 s%d, 32768" % sT3)
e("s_mov_b32 s%d, 0" % sCNT)
def flag_check(kind, lbl):
    g.label(lbl + "_chk")
    e("v_cmp_ne_u32 vcc, s%d, v%d" % (sTAG, FLD))
    e("s_add_u32 s%d, s%d, 1" % (sCNT, sCNT))
    e("s_cbranch_vccz %s_ok" % lbl)
    e("s_cmp_ge_u32 s%d, 0x8000" % sCNT)
    e("s_cbranch_scc1 %s_ok" % lbl)
    sv = list(g.vmq); flag_load(kind, "x"); g.vmq = sv
    e("s_waitcnt vmcnt(0)")
    e("s_branch %s_chk" % lbl)
    g.label(lbl + "_ok")
g.wait_vm("pf0")
flag_check(0, "L_f0")
stamp()
def hload(n):
    L = []
    if n == 28: L.append(("s_mov_b32 s%d, s%d" % (sH, sU), None))
    elif n and n % 4 == 0: L.append(("s_add_u32 s%d, s%d, 4096" % (sH, sH), None))
    for tt in range(2):
        L.append(("buffer_load_dwordx4 %s, v%d, s[%d:%d], s%d offen offset:%d sc1" % (ring(n, tt), vH1 if tt else vL16, SRD_WS, SRD_WS + 3, sH, 1024 * (n & 3)), "h%d" % n))
    return L
for n in range(RING):
    run(hload(n))
g.wait_vm("gl")
DS = XR + 10
e("v_lshlrev_b32 v%d, 16, v%d" % (DS, XR + 8)); e("v_and_b32 v%d, s%d, v%d" % (DS + 1, sMASK, XR + 8))
e("v_lshlrev_b32 v%d, 16, v%d" % (DS + 2, XR + 9)); e("v_and_b32 v%d, s%d, v%d" % (DS + 3, sMASK, XR + 9))
for it in range(4):
    for k in range(2):
        d = XD + 4 * it + 2 * k
        e("v_lshlrev_b32 v%d, 16, v%d" % (d, XR + 2 * it + k)); e("v_and_b32 v%d, s%d, v%d" % (d + 1, sMASK, XR + 2 * it + k))
        e("v_mul_f32 v%d, v%d, v%d" % (d, d, DS + 2 * k)); e("v_mul_f32 v%d, v%d, v%d" % (d + 1, d + 1, DS + 2 * k + 1))
        e("v_cvt_pk_bf16_f32 v%d, v%d, v%d" % (d, d, d + 1))
        e("v_and_b32 v%d, s%d, v%d" % (d + 1, sMASK, d)); e("v_lshlrev_b32 v%d, 16, v%d" % (d, d))
e("s_mov_b32 s%d, 0" % sCNT)
g.label("L_g_chk")
e("v_cmp_ne_u32 vcc, s%d, v%d" % (sTAG, GG + 1))
e("v_cmp_ne_u32 s[%d:%d], s%d, v%d" % (sTP, sTP + 1, sTAG, GG + 3))
e("s_add_u32 s%d, s%d, 1" % (sCNT, sCNT))
e("s_or_b64 vcc, vcc, s[%d:%d]" % (sTP, sTP + 1))
e("s_cbranch_scc0 L_g_ok")
e("s_cmp_ge_u32 s%d, 0x8000" % sCNT)
e("s_cbranch_scc1 L_g_ok")
sv = list(g.vmq); g_loads("x"); g.vmq = sv
e("s_waitcnt vmcnt(0)")
e("s_branch L_g_chk")
g.label("L_g_ok")
e("v_sub_f32 v%d, 1.0, v%d" % (OMG, GG)); e("v_sub_f32 v%d, 1.0, v%d" % (OMG + 1, GG + 2))
e("v_cvt_pk_bf16_f32 v%d, v%d, v%d" % (OMG, OMG, OMG + 1))
e("v_and_b32 v%d, s%d, v%d" % (OMG + 1, sMASK, OMG)); e("v_lshlrev_b32 v%d, 16, v%d" % (OMG, OMG))
e("v_lshlrev_b32 v%d, 2, v%d" % (t0, vTJ))
e("v_add_u32 v%d, 0x%x, v%d" % (t0, SCR + 4096, t0))
g.ds("ds_write_b32 v%d, v%d" % (t0, GG), "gt"); g.ds("ds_write_b32 v%d, v%d offset:128" % (t0, GG + 2), "gt")
e("s_mov_b32 s%d, 0" % sCNT)
def creads(n):
    m = n - 28
    b, sg = m >> 2, m & 3
    st = m & 1
    return [("ds_read_b128 %s, v%d offset:%d" % (vr(CF + 8 * st + 4 * dt, 4), (rdC1 if dt else rdA) + sg, b * 16384), "ds:c%d" % n) for dt in range(2)]
PF1 = 28 - RING
scale = [(ACCB + i) for i in range(64)]
for n in range(44):
    if n == PF1 - 2: flag_load(1, "pf1")
    if n == 26:
        for b in range(4): g.wait_vm("c%d" % b)
    g.wait_vm("h%d" % n)
    if n >= 28: g.wait_lg("c%d" % n)
    acc0 = ACCB if n < 28 else ACCA
    first = n == 0 or n == 28
    k = 0
    for dt in range(2):
        for tt in range(2):
            A = ar(8 * n + 4 * dt, 4) if n < 28 else vr(CF + 8 * ((n - 28) & 1) + 4 * dt, 4)
            acc = vr(acc0 + 16 * (2 * dt + tt), 16)
            e("v_mfma_f32_32x32x16_bf16 %s, %s, %s, %s" % (acc, A, ring(n, tt), "0" if first else acc))
            if k == 0 and 27 <= n < 43: run(creads(n + 1))
            if n >= 30 and scale:
                for _ in range(2):
                    if scale:
                        r = scale.pop(0)
                        e("v_mul_f32 v%d, v%d, v%d" % (r, r, OMG + (((r - ACCB) >> 4) & 1)))
            k += 1
    if n + RING < 44:
        if n == PF1:
            g.wait_vm("pf1")
            flag_check(1, "L_f1")
        run(hload(n + RING))
assert not scale
stamp()
t0, t1, t2, t3 = 48, 49, 50, 51
vPW = 18
e("v_and_b32 v%d, 3, v%d" % (t0, vTJ))
e("v_lshrrev_b32 v%d, 4, v%d" % (t1, vTJ))
e("v_lshl_add_u32 v%d, v%d, 2, v%d" % (t0, t1, t0))
e("v_lshrrev_b32 v%d, 5, v%d" % (t1, vLANE))
e("v_xor_b32 v%d, v%d, v%d" % (t0, t0, t1))
e("v_lshlrev_b32 v%d, 4, v%d" % (t0, t0))
e("v_lshl_add_u32 v%d, v%d, 7, v%d" % (t0, vTJ, t0))
e("v_add_u32 v%d, s%d, v%d" % (vPW, sMX, t0))
for a in range(1, 4):
    e("v_xor_b32 v%d, %d, v%d" % (vPW + a, 32 * a, vPW))
vPR = 22
e("v_lshrrev_b32 v%d, 4, v%d" % (t0, vLANE))
e("s_and_b32 s%d, s%d, 1" % (sT0, sW))
e("s_lshl_b32 s%d, s%d, 2" % (sT1, sT0))
e("v_add_u32 v%d, s%d, v%d" % (t1, sT1, t0))
e("v_and_b32 v%d, 7, v%d" % (t2, vLANE))
e("v_xor_b32 v%d, v%d, v%d" % (t1, t1, t2))
e("v_lshlrev_b32 v%d, 4, v%d" % (t1, t1))
e("v_lshl_add_u32 v%d, v%d, 7, v%d" % (t1, t0, t1))
e("v_bfe_u32 v%d, v%d, 3, 1" % (t2, vLANE))
e("v_lshl_add_u32 v%d, v%d, 15, v%d" % (t1, t2, t1))
e("s_lshl_b32 s%d, s%d, 11" % (sT0, sT0)); e("s_lshr_b32 s%d, s%d, 1" % (sT1, sW)); e("s_lshl_b32 s%d, s%d, 14" % (sT1, sT1)); e("s_add_u32 s%d, s%d, s%d" % (sT0, sT0, sT1))
e("v_add_u32 v%d, s%d, v%d" % (vPR, sT0, t1))
e("s_lshl_b32 s%d, s%d, 6" % (sT0, sW)); e("s_add_u32 s%d, s%d, %d" % (sT0, sT0, SCR + 4096))
e("v_lshl_add_u32 v%d, v%d, 2, s%d" % (vPR + 1, t0, sT0))
for tile in range(4):
    tt = tile & 1
    for a in range(4):
        r = 16 * tile + 4 * a
        for k in range(4):
            e("v_fma_f32 v%d, v%d, v%d, v%d" % (ACCB + r + k, ACCA + r + k, GG + 2 * tt, ACCB + r + k))
        if len(g.lgq) >= 14: g.wait_lg(g.lgq[5])
        g.ds("ds_write_b128 v%d, %s offset:%d" % (vPW + a, vr(ACCB + r, 4), tile * 16384), "pw%d" % r)
g.wait_lg_all()
e("s_barrier")
RB = RV
GR = ACCA
for it in range(4):
    g.ds("ds_read_b32 v%d, v%d offset:%d" % (GR + it, vPR + 1, 16 * it), "gr")
for it in range(4):
    for src in range(4):
        if len(g.lgq) >= 15: g.wait_lg(g.lgq[3])
        g.ds("ds_read_b128 %s, v%d offset:%d" % (vr(RB + 16 * it + 4 * src, 4), vPR, src * 4096 + it * 512), "rb%d" % it)
e("s_cmp_eq_u32 s%d, 31" % sHB); e("s_cselect_b32 s%d, s%d, 1" % (sT0, sCB)); e("s_or_b32 s%d, s%d, s%d" % (sT0, sT0, sW))
for it in range(4):
    g.wait_lg("rb%d" % it)
    b = RB + 16 * it
    for k in range(4):
        e("v_fma_f32 v%d, v%d, v%d, v%d" % (b + k, XD + 4 * it + k, GR + it, b + k))
    for k in (0, 2):
        e("v_pk_add_f32 %s, %s, %s" % (vr(b + 8 + k, 2), vr(b + 8 + k, 2), vr(b + 12 + k, 2)))
        e("v_pk_add_f32 %s, %s, %s" % (vr(b + k, 2), vr(b + k, 2), vr(b + 4 + k, 2)))
    for k in (0, 2):
        e("v_pk_add_f32 %s, %s, %s" % (vr(b + k, 2), vr(b + k, 2), vr(b + 8 + k, 2)))
    e("s_mov_b32 s%d, %d" % (sT1, 8192 * it))
    g.vm("buffer_store_dwordx4 %s, v%d, s[%d:%d], s%d offen" % (vr(b, 4), vOUT, SRD_OUT, SRD_OUT + 3, sT1), "out")
stamp()
e("s_cmp_lg_u32 s%d, 0" % sT0)
e("s_cbranch_scc1 L_end")
e("s_mov_b64 exec, 1")
e("buffer_store_dword v%d, off, s[%d:%d], 0 sc1" % (vTAG, SRD_WS, SRD_WS + 3))
g.label("L_end")
e("s_endpgm")
e('.section .rodata,"a"')
e(".p2align 6")
e(".amdhsa_kernel %s_kernel" % NAME)
for l in ("next_free_vgpr 512", "next_free_sgpr 102", "accum_offset 256", "group_segment_fixed_size 0", "kernarg_size 128", "user_sgpr_count 2",
          "user_sgpr_kernarg_segment_ptr 1", "system_sgpr_workgroup_id_x 1"):
    g.lines.append("  .amdhsa_" + l)
e(".end_amdhsa_kernel")

errs = check_hazards(g.lines)
for x in errs:
    print("HAZARD", x)
open(sys.argv[1], "w").write(out_hdr + g.text())
print("lines", len(g.lines), "stamps", nstamp[0], "hazards", len(errs))
```

```python
import re
TRANS = ("v_exp_f32", "v_log_f32", "v_rcp_f32", "v_rsq_f32", "v_sqrt_f32", "v_sin_f32", "v_cos_f32")

class Asm:
    def __init__(self):
        self.lines = []
        self.vmq = []
        self.lgq = []

    def e(self, s):
        for l in s.split("\n"):
            l = l.strip()
            if l:
                self.lines.append(l)

    def c(self, s):
        self.lines.append("; " + s)

    def label(self, n):
        self.lines.append(n + ":")

    def vm(self, s, tag):
        self.e(s)
        self.vmq.append(tag)
        assert len(self.vmq) <= 63, "vmcnt overflow %d" % len(self.vmq)

    def vm_count(self, tag):
        idx = [i for i, t in enumerate(self.vmq) if t == tag]
        if not idx:
            return None
        return len(self.vmq) - 1 - idx[-1]

    def wait_vm(self, tag, extra=""):
        n = self.vm_count(tag)
        if n is None:
            return False
        self.e("s_waitcnt vmcnt(%d)%s" % (n, extra))
        self.vmq = self.vmq[len(self.vmq) - n:] if n else []
        return True

    def wait_vm_all(self):
        self.e("s_waitcnt vmcnt(0)")
        self.vmq = []

    def ds(self, s, tag):
        self.e(s)
        self.lgq.append(tag)
        assert len(self.lgq) <= 15, "lgkmcnt overflow"

    def wait_lg(self, tag):
        idx = [i for i, t in enumerate(self.lgq) if t == tag]
        if not idx:
            return False
        n = len(self.lgq) - 1 - idx[-1]
        self.e("s_waitcnt lgkmcnt(%d)" % n)
        self.lgq = self.lgq[len(self.lgq) - n:] if n else []
        return True

    def wait_lg_all(self):
        self.e("s_waitcnt lgkmcnt(0)")
        self.lgq = []

    def text(self):
        out = []
        for l in self.lines:
            out.append(l if (l.endswith(":") or l.startswith(".") or l.startswith(";")) else "    " + l)
        return "\n".join(out) + "\n"


class Rec:
    def __init__(self):
        self.items = []
    def e(self, s):
        for l in s.split("\n"):
            l = l.strip()
            if l:
                cost = 2 if l.startswith(TRANS) else 1
                self.items.append((cost, lambda g, l=l: g.e(l)))
    def vm(self, s, tag):
        self.items.append((1, lambda g: g.vm(s, tag)))
    def ds(self, s, tag):
        self.items.append((1, lambda g: g.ds(s, tag)))
    def wait_vm(self, tag, extra=""):
        self.items.append((1, lambda g: g.wait_vm(tag, extra)))
    def play(self, g, budget):
        while self.items and budget > 0:
            c, f = self.items.pop(0)
            f(g)
            budget -= c
    def flush(self, g):
        self.play(g, 1 << 30)

def vr(a, n=1):
    return "v%d" % a if n == 1 else "v[%d:%d]" % (a, a + n - 1)
def ar(a, n=1):
    return "a%d" % a if n == 1 else "a[%d:%d]" % (a, a + n - 1)
def sr(a, n=1):
    return "s%d" % a if n == 1 else "s[%d:%d]" % (a, a + n - 1)

_reg = re.compile(r"(?<![\w.])(-?abs\()?-?([vas])(?:(\d+)|\[(\d+):(\d+)\])")
def regs_of(op):
    out = set()
    op = op.strip()
    if op in ("vcc",): return {("s", "vcc")}
    if op in ("exec",): return {("s", "exec")}
    if op in ("m0",): return {("s", "m0")}
    for m in _reg.finditer(op):
        k = m.group(2)
        if m.group(3) is not None:
            out.add((k, int(m.group(3))))
        else:
            for i in range(int(m.group(4)), int(m.group(5)) + 1):
                out.add((k, i))
    return out

TRANS = ("v_exp_f32", "v_log_f32", "v_rcp_f32", "v_rsq_f32", "v_sqrt_f32", "v_sin_f32", "v_cos_f32")

def parse(l):
    l = l.split(";")[0].strip()
    if not l or l.endswith(":") or l.startswith("."):
        return None
    p = l.split(None, 1)
    op = p[0]
    args = [a.strip() for a in p[1].split(",")] if len(p) > 1 else []
    d = dict(op=op, txt=l, defs=set(), uses=set(), kind="other")
    def R(i):
        return regs_of(args[i].split()[0]) if i < len(args) else set()
    if op.startswith("v_mfma"):
        d["kind"] = "mfma"; d["defs"] = R(0); d["A"] = R(1); d["B"] = R(2); d["C"] = R(3); d["uses"] = R(1) | R(2) | R(3)
    elif op.startswith("v_cmpx"):
        d["kind"] = "valu"; d["defs"] = R(0) | {("s", "exec")}; d["uses"] = R(1) | R(2)
    elif op.startswith("v_cmp"):
        d["kind"] = "valu"; d["defs"] = R(0); d["uses"] = R(1) | R(2)
    elif op.startswith("v_readfirstlane") or op.startswith("v_readlane"):
        d["kind"] = "valu"; d["defs"] = R(0); d["uses"] = R(1) | R(2); d["rl"] = True
    elif op.startswith("v_permlane"):
        d["kind"] = "valu"; d["defs"] = R(0) | R(1); d["uses"] = R(0) | R(1); d["pl"] = True
    elif op.startswith("v_"):
        d["kind"] = "valu"; d["defs"] = R(0)
        for i in range(1, len(args)): d["uses"] |= R(i)
        if op.startswith("v_fmac") or "dpp" in op: d["uses"] |= R(0)
        if op.startswith("v_cndmask") and len(args) == 3: d["uses"] |= {("s", "vcc")}
        if "dpp" in op: d["dpp"] = True
        if op.startswith(TRANS): d["trans"] = True
    elif op.startswith("ds_read"):
        d["kind"] = "ds"; d["defs"] = R(0); d["uses"] = R(1)
    elif op.startswith("ds_write"):
        d["kind"] = "ds"; d["uses"] = R(0) | R(1) | R(2)
    elif op.startswith("buffer_load"):
        d["kind"] = "vmem"
        if l.rstrip().endswith("lds") or " lds " in l:
            d["uses"] = R(0) | R(1) | R(2) | {("s", "m0")}; d["dma"] = True
        else:
            d["defs"] = R(0); d["uses"] = R(1) | R(2) | R(3)
    elif op.startswith("buffer_store"):
        d["kind"] = "vmem"; d["uses"] = R(0) | R(1) | R(2) | R(3)
        if "x4" in op or "x3" in op: d["wdata"] = R(0)
    elif op.startswith("global_load"):
        d["kind"] = "vmem"; d["defs"] = R(0); d["uses"] = R(1) | R(2)
    elif op.startswith("global_store"):
        d["kind"] = "vmem"; d["uses"] = R(0) | R(1) | R(2)
        if "x4" in op or "x3" in op: d["wdata"] = R(1)
    elif op.startswith("s_"):
        d["kind"] = "salu"
        if op == "s_nop": d["nop"] = int(args[0]) + 1
        elif op.startswith(("s_cmp", "s_waitcnt", "s_barrier", "s_branch", "s_cbranch", "s_endpgm", "s_setprio", "s_sleep")):
            for i in range(len(args)): d["uses"] |= R(i)
        else:
            d["defs"] = R(0)
            for i in range(1, len(args)): d["uses"] |= R(i)
            if "saveexec" in op: d["defs"] |= {("s", "exec")}
    return d

def check_hazards(lines):
    ins = [(i, parse(l)) for i, l in enumerate(lines)]
    ins = [(i, d) for i, d in ins if d]
    errs = []
    for k, (li, d) in enumerate(ins):
        dist = 0
        j = k - 1
        while j >= 0 and dist < 21:
            p = ins[j][1]
            need = 0
            vdefs = {r for r in p["defs"] if r[0] in "va"}
            sdefs = {r for r in p["defs"] if r[0] == "s"}
            if p["kind"] == "mfma":
                if d["kind"] == "mfma":
                    if p["defs"] & (d["A"] | d["B"]): need = 12
                    if (p["defs"] & d["C"]) and p["defs"] != d["C"]: need = max(need, 10)
                elif d["kind"] in ("valu", "ds", "vmem"):
                    if p["defs"] & (d["uses"] | d["defs"]): need = 12
                    if d["kind"] == "valu" and (p["C"] & d["defs"]): need = max(need, 7)
            elif p["kind"] == "valu":
                if d["kind"] == "mfma" and (vdefs & d["uses"]): need = 2
                if d["kind"] == "mfma" and ("s", "exec") in sdefs: need = max(need, 4)
                if d["kind"] == "valu":
                    if d.get("dpp") and (vdefs & d["uses"]): need = max(need, 2)
                    if d.get("dpp") and ("s", "exec") in sdefs: need = max(need, 5)
                    if d.get("pl") and (vdefs & d["uses"]): need = max(need, 2)
                    if d.get("rl") and (vdefs & d["uses"]): need = max(need, 1)
                    if (d.get("rl") or d.get("pl")) and ("s", "exec") in sdefs: need = max(need, 4)
                    if p.get("trans") and not d.get("trans") and (vdefs & d["uses"]): need = max(need, 1)
                    if (sdefs - {("s", "exec")}) & d["uses"]: need = max(need, 4 if d.get("rl") else 2)
                if d["kind"] == "vmem" and (sdefs & d["uses"]): need = max(need, 5)
                if d["kind"] == "salu" and (sdefs & d["uses"]): need = max(need, 1)
            elif p["kind"] == "salu":
                if d.get("dma") and ("s", "m0") in p["defs"]: need = 1
            if p.get("wdata") and d["kind"] == "valu" and (p["wdata"] & d["defs"]): need = max(need, 2)
            if p.get("wdata") and d["kind"] in ("ds", "vmem") and (p["wdata"] & d["defs"]): need = max(need, 1)
            if need > dist:
                errs.append("line %d: '%s' needs %d states after '%s' (has %d)" % (li, d["txt"], need, p["txt"], dist))
            dist += p.get("nop", 1)
            j -= 1
    return errs
```

```python
import sys
from asmlib import *

NAME = "gated_mix__ssm_conv_s5__dense_activation_relu__prompt"
OPT = dict(stamps=0, p1map=84, p2map=48, ring=12, touch=0, rot=1, fillb=2)
for a in sys.argv[2:]:
    k, v = a.split("=")
    OPT[k] = int(v)

AGG = 4096
GOFF = AGG + 16 * 8192
FLAGS = GOFF + 2048 * 8
HOFF = 262144
TSTRIDE = 176 * 1024
WS_SIZE = HOFF + 64 * TSTRIDE
OOB = 0x80000000
LX, LW, LB = 0, 65536, 131072
SCR = LB + 2 * 8192
SRD_X, SRD_B, SRD_W1, SRD_W2, SRD_CR, SRD_CI, SRD_WS, SRD_OUT = 4, 8, 12, 16, 20, 24, 28, 32
sW, sR, sJ, sHB, sCB, sTAG, sMASK = 36, 37, 38, 39, 40, 41, 42
sX, sB, sW1 = 43, 44, 45
sMX, sMB, sMW = 46, 47, 48
sT0, sT1, sT2, sT3 = 49, 50, 51, 52
sV0, sV1 = 54, 56
sTP = 58
sCNT = 60
sU = 61
sH = 62
sE = 63
pX, pLRE, pLIM, pBRE, pBIM, pCRE, pCIM, pLDT, pDSK, pBX, pW1, pW2, pGATE, pOUT, pDBG, pWS = range(64, 96, 2)
sST = 96
sODD = 98
sHF, sFL = 99, 100
sXb, sBb, sW1b, sCI = 54, 55, 56, 57
sROT, sUI, sROT2 = 53, 3, 82
vLANE, vTID8 = 1, 0
vX = 2; vC = 6; vW1 = 10; vW2 = 14
rdA = 18; rdB = 22; rdW = 26
cL, cL16, cL16q, cL128q, cL1024, cCO = 30, 32, 34, 36, 38, 40
vQ, vL16, vL16d = 42, 43, 44
vTAG = 45
vPRE = 46
FR = 48
ACC_RE, ACC_IM, ACC_F = 104, 120, 136
T = 200
LOG2E = 0x3fb8aa3b
INV2PI = 0x3e22f983

g = Asm()
e = g.e
nstamp = [0]
def stamp():
    if not OPT["stamps"]:
        return
    i = nstamp[0]; nstamp[0] += 1
    e("s_memtime s[%d:%d]" % (sST, sST + 1))
    e("s_waitcnt lgkmcnt(0)")
    g.lgq = []
    e("v_mov_b32 v%d, s%d" % (254, sST))
    e("s_mov_b64 exec, 1")
    g.vm("buffer_store_dword v254, off, s[%d:%d], s101 offset:%d" % (SRD_WS, SRD_WS + 3, 4 * i), "stamp")
    e("s_mov_b64 exec, -1")

def cfma(dr, di, ar_, ai, br, bi, cr, ci):
    e("v_fma_f32 v%d, v%d, v%d, v%d" % (dr, ar_, br, cr))
    e("v_fma_f32 v%d, v%d, v%d, v%d" % (di, ar_, bi, ci))
    e("v_fma_f32 v%d, -v%d, v%d, v%d" % (dr, ai, bi, dr))
    e("v_fma_f32 v%d, v%d, v%d, v%d" % (di, ai, br, di))
def cmul(dr, di, ar_, ai, br, bi):
    e("v_mul_f32 v%d, v%d, v%d" % (dr, ar_, br))
    e("v_mul_f32 v%d, v%d, v%d" % (di, ar_, bi))
    e("v_fma_f32 v%d, -v%d, v%d, v%d" % (dr, ai, bi, dr))
    e("v_fma_f32 v%d, v%d, v%d, v%d" % (di, ai, br, di))

def srd(base, p, size):
    e("s_mov_b32 s%d, s%d" % (base, p))
    e("s_mov_b32 s%d, s%d" % (base + 1, p + 1))

hdr = open("cdna_kernels/%s.s.ref" % NAME).read().split("; Override launch")[0]
out_hdr = hdr + "; @launch grid=(256,1,1) block=(256,1,1) lds=163840\n"
e('.amdgcn_target "amdgcn-amd-amdhsa--gfx950"')
e(".text")
e(".globl %s_kernel" % NAME)
e(".p2align 8")
e(".type %s_kernel,@function" % NAME)
g.label("%s_kernel" % NAME)
e("s_cmp_ge_u32 s2, 256")
e("s_cbranch_scc1 L_end")
if OPT["stamps"]:
    e("s_memrealtime s[82:83]"); e("s_memtime s[96:97]"); e("s_waitcnt lgkmcnt(0)"); e("v_mov_b32 v252, s82"); e("v_mov_b32 v253, s96")
e("s_load_dwordx16 s[64:79], s[0:1], 0")
e("s_load_dwordx16 s[80:95], s[0:1], 64")
e("v_lshrrev_b32 v2, 6, v0")
e("v_and_b32 v%d, 63, v0" % vLANE)
e("v_readfirstlane_b32 s%d, v2" % sW)
e("s_and_b32 s%d, s2, 7" % sT0)
e("s_lshr_b32 s%d, s2, 3" % sT1)
if OPT["p1map"] == 84:
    e("s_and_b32 s%d, s%d, 1" % (sR, sT0)); e("s_lshl_b32 s%d, s%d, 3" % (sR, sR))
    e("s_and_b32 s%d, s%d, 7" % (sT2, sT1)); e("s_add_u32 s%d, s%d, s%d" % (sR, sR, sT2))
    e("s_lshr_b32 s%d, s%d, 1" % (sJ, sT0)); e("s_lshl_b32 s%d, s%d, 2" % (sJ, sJ))
    e("s_lshr_b32 s%d, s%d, 3" % (sT2, sT1)); e("s_add_u32 s%d, s%d, s%d" % (sJ, sJ, sT2))
else:
    e("s_and_b32 s%d, s%d, 3" % (sR, sT0)); e("s_lshl_b32 s%d, s%d, 2" % (sR, sR))
    e("s_and_b32 s%d, s%d, 3" % (sT2, sT1)); e("s_add_u32 s%d, s%d, s%d" % (sR, sR, sT2))
    e("s_lshr_b32 s%d, s%d, 2" % (sJ, sT0)); e("s_lshl_b32 s%d, s%d, 3" % (sJ, sJ))
    e("s_lshr_b32 s%d, s%d, 2" % (sT2, sT1)); e("s_add_u32 s%d, s%d, s%d" % (sJ, sJ, sT2))
if OPT["p2map"] == 48:
    e("s_lshl_b32 s%d, s%d, 2" % (sHB, sT0)); e("s_and_b32 s%d, s%d, 3" % (sT2, sT1)); e("s_add_u32 s%d, s%d, s%d" % (sHB, sHB, sT2))
    e("s_lshr_b32 s%d, s%d, 2" % (sCB, sT1))
else:
    e("s_and_b32 s%d, s%d, 3" % (sHB, sT0)); e("s_lshl_b32 s%d, s%d, 3" % (sHB, sHB))
    e("s_and_b32 s%d, s%d, 7" % (sT2, sT1)); e("s_add_u32 s%d, s%d, s%d" % (sHB, sHB, sT2))
    e("s_lshr_b32 s%d, s%d, 2" % (sCB, sT0)); e("s_lshl_b32 s%d, s%d, 2" % (sCB, sCB))
    e("s_lshr_b32 s%d, s%d, 3" % (sT2, sT1)); e("s_add_u32 s%d, s%d, s%d" % (sCB, sCB, sT2))
for b, sz in ((SRD_X, 2048 * 1024), (SRD_B, 512 * 1024), (SRD_W1, 512 * 3584), (SRD_W2, 1792 * 1024), (SRD_CR, 512 * 1024),
              (SRD_WS, WS_SIZE + (256 * 4 * 128 if OPT["stamps"] else 0)), (SRD_OUT, 2048 * 2048)):
    e("s_mov_b32 s%d, 0x%x" % (b + 2, sz))
    e("s_mov_b32 s%d, 0x20000" % (b + 3))
e("s_mov_b32 s%d, 0xffff0000" % sMASK)
t0, t1, t2, t3 = T, T + 1, T + 2, T + 3
e("v_lshrrev_b32 v%d, 3, v%d" % (t0, vLANE))
e("v_and_b32 v%d, 7, v%d" % (t1, vLANE))
e("v_lshrrev_b32 v%d, 1, v%d" % (t2, t0))
e("v_xor_b32 v%d, v%d, v%d" % (t3, t1, t2))
e("v_lshlrev_b32 v%d, 4, v%d" % (t3, t3))
e("v_lshl_add_u32 v%d, v%d, 10, v%d" % (vC, t0, t3))
e("v_and_b32 v%d, 1, v%d" % (t2, t2))
e("v_lshlrev_b32 v%d, 2, v%d" % (t2, t2))
e("v_xor_b32 v%d, v%d, v%d" % (t2, t2, t1))
e("v_lshlrev_b32 v%d, 4, v%d" % (t2, t2))
e("v_lshl_add_u32 v%d, v%d, 10, v%d" % (vW2, t0, t2))
e("v_lshrrev_b32 v%d, 2, v%d" % (t1, t0))
e("v_and_b32 v%d, 3, v%d" % (t2, t0))
e("v_lshl_add_u32 v%d, v%d, 4, v%d" % (t1, t1, t2))
e("v_lshl_add_u32 v%d, v%d, 10, v%d" % (vX, t1, t3))
e("v_xor_b32 v%d, 64, v%d" % (vX + 1, vX))
e("v_add_u32 v%d, 3072, v%d" % (vX + 1, vX + 1))
e("v_add_u32 v%d, 6144, v%d" % (vX + 2, vX))
e("v_add_u32 v%d, 6144, v%d" % (vX + 3, vX + 1))
e("v_xor_b32 v%d, 64, v%d" % (vC + 1, vC))
e("v_add_u32 v%d, 7168, v%d" % (vC + 1, vC + 1))
e("v_lshrrev_b32 v%d, 4, v%d" % (t0, vLANE))
e("v_and_b32 v%d, 15, v%d" % (t1, vLANE))
e("v_lshlrev_b32 v%d, 2, v%d" % (t2, t0))
e("v_xor_b32 v%d, v%d, v%d" % (t1, t1, t2))
e("v_lshrrev_b32 v%d, 2, v%d" % (t2, t1))
e("v_cmp_eq_u32 vcc, 3, v%d" % t2)
e("v_mul_u32_u24 v%d, 3584, v%d" % (t0, t0))
e("v_lshl_add_u32 v%d, v%d, 4, v%d" % (vW1, t1, t0))
e("s_and_b32 s%d, s%d, 1" % (sODD, sJ))
e("s_cselect_b64 s[%d:%d], vcc, 0" % (sTP, sTP + 1))
e("v_mov_b32 v%d, 0x%x" % (t3, OOB))
e("v_lshlrev_b32 v%d, 4, v%d" % (vL16, vLANE))
e("v_cndmask_b32 v%d, v%d, v%d, s[%d:%d]" % (vW1, vW1, t3, sTP, sTP + 1))
for n in range(1, 4):
    e("v_add_u32 v%d, %d, v%d" % (vW1 + n, 13312 * n, vW1))
e("s_lshl_b32 s%d, s%d, 17" % (sXb, sR)); e("s_lshl_b32 s%d, s%d, 15" % (sT0, sW)); e("s_add_u32 s%d, s%d, s%d" % (sXb, sXb, sT0))
e("s_lshl_b32 s%d, s%d, 15" % (sBb, sJ)); e("s_and_b32 s%d, s%d, 1" % (sT0, sW)); e("s_lshl_b32 s%d, s%d, 14" % (sT0, sT0)); e("s_add_u32 s%d, s%d, s%d" % (sBb, sBb, sT0))
e("s_lshr_b32 s%d, s%d, 1" % (sT0, sJ)); e("s_mul_i32 s%d, s%d, 448" % (sT0, sT0)); e("s_lshl_b32 s%d, s%d, 8" % (sT1, sODD)); e("s_add_u32 s%d, s%d, s%d" % (sT0, sT0, sT1))
e("s_mul_i32 s%d, s%d, %d" % (sW1b, sW, 16 * 3584)); e("s_add_u32 s%d, s%d, s%d" % (sW1b, sW1b, sT0))
if OPT["rot"]:
    if OPT["p1map"] == 84:
        e("s_lshl_b32 s%d, s%d, 1" % (sCI, sJ)); e("s_add_u32 s%d, s%d, s%d" % (sCI, sCI, sR))
    else:
        e("s_lshl_b32 s%d, s%d, 1" % (sCI, sR)); e("s_add_u32 s%d, s%d, s%d" % (sCI, sCI, sJ))
    e("s_and_b32 s%d, s%d, 7" % (sCI, sCI))
else:
    e("s_mov_b32 s%d, 0" % sCI)
e("s_lshl_b32 s%d, s%d, 12" % (sMX, sW))
e("s_lshl_b32 s%d, s%d, 11" % (sMB, sW)); e("s_add_u32 s%d, s%d, %d" % (sMB, sMB, LB))
e("s_add_u32 s%d, s%d, %d" % (sMW, sMX, LW))
e("v_and_b32 v%d, 31, v%d" % (t0, vLANE))
e("v_lshlrev_b32 v%d, 1, v%d" % (t0, t0))
e("s_lshl_b32 s%d, s%d, 6" % (sT0, sJ))
e("v_add_u32 v%d, s%d, v%d" % (t0, sT0, t0))
e("s_lshl_b32 s%d, s%d, 11" % (sT1, sJ)); e("s_add_u32 s%d, s%d, s%d" % (sT1, sT1, sXb))
e("v_add_u32 v%d, s%d, v%d" % (t1, sT1, vL16))
e("s_cmp_ge_u32 s%d, 2" % sW)
e("s_waitcnt lgkmcnt(0)")
e("s_cselect_b32 s%d, s%d, s%d" % (SRD_B, pBIM, pBRE))
e("s_cselect_b32 s%d, s%d, s%d" % (SRD_B + 1, pBIM + 1, pBRE + 1))
e("s_load_dword s%d, s[%d:%d], 0" % (sE, pWS, pWS + 1))
srd(SRD_X, pX, 0); srd(SRD_W1, pW1, 0)
PL, PI, PD = T + 4, T + 5, T + 6
GX0, GX1, GW = T + 8, T + 12, T + 16
g.vm("global_load_ushort v%d, v%d, s[%d:%d]" % (PD, t0, pLDT, pLDT + 1), "small")
g.vm("global_load_ushort v%d, v%d, s[%d:%d]" % (PL, t0, pLRE, pLRE + 1), "small")
g.vm("global_load_ushort v%d, v%d, s[%d:%d]" % (PI, t0, pLIM, pLIM + 1), "small")
g.vm("global_load_dwordx4 %s, v%d, s[%d:%d]" % (vr(GW, 4), vL16, pGATE, pGATE + 1), "small2")
g.vm("global_load_dwordx4 %s, v%d, s[%d:%d]" % (vr(GX0, 4), t1, pX, pX + 1), "small2")
g.vm("global_load_dwordx4 %s, v%d, s[%d:%d] offset:1024" % (vr(GX1, 4), t1, pX, pX + 1), "small2")

def dma_chunk(c):
    k = c & 3
    L = []
    def I(s): L.append((s, None))
    def D(s): L.append((s, "ch%d" % c))
    I("s_lshl_b32 s%d, s%d, 7" % (sB, sCI))
    I("s_add_u32 m0, s%d, %d" % (sMX, k * 16384))
    I("s_add_u32 s%d, s%d, s%d" % (sX, sXb, sB))
    for n in range(4): D("buffer_load_dwordx4 v%d, s[%d:%d], s%d offen offset:%d lds" % (vX + n, SRD_X, SRD_X + 3, sX, 1024 * n))
    I("s_add_u32 m0, s%d, %d" % (sMB, k * 8192))
    I("s_add_u32 s%d, s%d, s%d" % (sB, sBb, sB))
    for n in range(2): D("buffer_load_dwordx4 v%d, s[%d:%d], s%d offen offset:%d lds" % (vC + n, SRD_B, SRD_B + 3, sB, 1024 * n))
    I("s_mul_i32 s%d, s%d, %d" % (sW1, sCI, 64 * 3584))
    I("s_add_u32 m0, s%d, %d" % (sMW, k * 16384))
    I("s_add_u32 s%d, s%d, s%d" % (sW1, sW1, sW1b))
    for n in range(4): D("buffer_load_dwordx4 v%d, s[%d:%d], s%d offen offset:%d lds" % (vW1 + n, SRD_W1, SRD_W1 + 3, sW1, 1024 * n))
    I("s_add_u32 s%d, s%d, 1" % (sCI, sCI))
    I("s_and_b32 s%d, s%d, 7" % (sCI, sCI))
    return L
def run(L):
    for s, tag in L:
        if tag is None: e(s)
        elif tag.startswith("ds:"): g.ds(s, tag[3:])
        else: g.vm(s, tag)
for c in range(4):
    run(dma_chunk(c))
if OPT["stamps"]:
    e("s_lshl_b32 s101, s2, 2"); e("s_add_u32 s101, s101, s%d" % sW); e("s_lshl_b32 s101, s101, 7"); e("s_add_u32 s101, s101, %d" % WS_SIZE)
srd(SRD_W2, pW2, 0); srd(SRD_WS, pWS, 0); srd(SRD_OUT, pOUT, 0)
if OPT["stamps"]:
    e("s_mov_b64 exec, 1")
    g.vm("buffer_store_dword v253, off, s[%d:%d], s101 offset:0" % (SRD_WS, SRD_WS + 3), "stamp")
    g.vm("buffer_store_dword v252, off, s[%d:%d], s101 offset:120" % (SRD_WS, SRD_WS + 3), "stamp")
    e("s_mov_b64 exec, -1")
    nstamp[0] = 1
stamp()
e("v_add_u32 v%d, 14336, v%d" % (vC + 2, vC)); e("v_add_u32 v%d, 14336, v%d" % (vC + 3, vC + 1))
for n in range(1, 4):
    e("v_add_u32 v%d, %d, v%d" % (vW2 + n, 7168 * n, vW2))
e("v_and_b32 v%d, 31, v%d" % (t0, vLANE))
e("v_lshrrev_b32 v%d, 5, v%d" % (t1, vLANE))
e("v_bfe_u32 v%d, v%d, 1, 3" % (t2, t0))
e("v_xor_b32 v%d, v%d, v%d" % (t2, t2, t1))
e("v_lshlrev_b32 v%d, 4, v%d" % (t2, t2))
e("v_lshl_add_u32 v%d, v%d, 7, v%d" % (t2, t0, t2))
e("v_add_u32 v%d, s%d, v%d" % (rdA, sMX, t2))
e("v_add_u32 v%d, 0x%x, v%d" % (rdB, LB, t2))
for s in range(1, 4):
    e("v_xor_b32 v%d, %d, v%d" % (rdA + s, 32 * s, rdA))
    e("v_xor_b32 v%d, %d, v%d" % (rdB + s, 32 * s, rdB))
e("s_lshl_b32 s%d, s%d, 1" % (sT0, sW))
e("v_add_u32 v%d, s%d, v%d" % (vQ, sT0, t1))
e("v_bfe_u32 v%d, v%d, 2, 2" % (t0, vLANE))
e("v_lshl_add_u32 v%d, v%d, 3, v%d" % (t2, t1, t0))
e("v_lshlrev_b32 v%d, 8, v%d" % (t2, t2))
e("v_lshl_add_u32 v%d, v%d, 6, v%d" % (t2, t0, t2))
e("v_bfe_u32 v%d, v%d, 4, 1" % (t3, vLANE))
e("v_lshl_add_u32 v%d, v%d, 5, v%d" % (t2, t3, t2))
e("v_and_b32 v%d, 1, v%d" % (t3, vLANE))
e("v_lshl_add_u32 v%d, v%d, 4, v%d" % (t2, t3, t2))
e("v_bfe_u32 v%d, v%d, 1, 1" % (t3, vLANE))
e("v_lshl_add_u32 v%d, v%d, 3, v%d" % (t2, t3, t2))
e("v_add_u32 v%d, 0x%x, v%d" % (rdW, LW, t2))
for s in range(1, 4):
    e("v_xor_b32 v%d, %d, v%d" % (rdW + s, 64 * s, rdW))
e("v_lshlrev_b32 v%d, 3, v0" % vTID8)
e("v_mov_b32 v%d, 0x%x" % (t3, OOB))
e("s_cmp_eq_u32 s%d, 1" % sODD)
e("s_cselect_b64 vcc, -1, 0")
e("v_cndmask_b32 v%d, v%d, v%d, vcc" % (vL16d, vL16, t3))
F = Rec()
e = F.e
F.wait_vm("small")
a_, b_ = T + 20, T + 21
e("v_lshlrev_b32 v%d, 16, v%d" % (PD, PD))
e("v_mul_f32 v%d, 0x%x, v%d" % (PD, LOG2E, PD))
e("v_exp_f32 v%d, v%d" % (PD, PD))
e("v_lshlrev_b32 v%d, 16, v%d" % (PL, PL))
e("v_lshlrev_b32 v%d, 16, v%d" % (PI, PI))
e("v_cvt_pk_bf16_f32 v%d, v%d, v%d" % (PD, PD, PD))
e("v_lshlrev_b32 v%d, 16, v%d" % (PD, PD))
e("v_mul_f32 v%d, v%d, v%d" % (a_, PD, PL))
e("v_mul_f32 v%d, v%d, v%d" % (b_, PD, PI))
e("v_mul_f32 v%d, 0x%x, v%d" % (a_, LOG2E, a_))
e("v_mul_f32 v%d, 0x%x, v%d" % (b_, INV2PI, b_))
e("v_cvt_f32_u32 v%d, v%d" % (t3, vQ))
def cpow(d, mul):
    if mul is None:
        e("v_exp_f32 v%d, v%d" % (t0, a_)); e("v_fract_f32 v%d, v%d" % (t1, b_))
    else:
        e("v_mul_f32 v%d, %s, v%d" % (t0, mul, a_)); e("v_mul_f32 v%d, %s, v%d" % (t1, mul, b_))
        e("v_exp_f32 v%d, v%d" % (t0, t0)); e("v_fract_f32 v%d, v%d" % (t1, t1))
    e("v_cos_f32 v%d, v%d" % (d, t1)); e("v_sin_f32 v%d, v%d" % (d + 1, t1))
    e("s_nop 0")
    e("v_mul_f32 v%d, v%d, v%d" % (d, d, t0)); e("v_mul_f32 v%d, v%d, v%d" % (d + 1, d + 1, t0))
cpow(cL, None)
cpow(cL16, "0x41800000")
cpow(cL1024, "0x44800000")
e("v_mul_f32 v%d, 0x41800000, v%d" % (t2, t3)); cpow(cL16q, "v%d" % t2)
e("v_mul_f32 v%d, 0x43000000, v%d" % (t2, t3)); cpow(cL128q, "v%d" % t2)
e("v_mul_f32 v%d, v%d, v%d" % (t0, PL, PL))
e("v_fma_f32 v%d, v%d, v%d, v%d" % (t0, PI, PI, t0))
e("v_rcp_f32 v%d, v%d" % (t0, t0))
e("v_add_f32 v%d, -1.0, v%d" % (t1, cL))
e("v_mul_f32 v%d, v%d, v%d" % (cCO, t1, PL))
e("v_fma_f32 v%d, v%d, v%d, v%d" % (cCO, cL + 1, PI, cCO))
e("v_mul_f32 v%d, v%d, v%d" % (cCO + 1, cL + 1, PL))
e("v_fma_f32 v%d, -v%d, v%d, v%d" % (cCO + 1, t1, PI, cCO + 1))
e("v_add_f32 v%d, v%d, v%d" % (t0, t0, t0))
e("v_mul_f32 v%d, v%d, v%d" % (cCO, cCO, t0))
e("v_mul_f32 v%d, v%d, v%d" % (cCO + 1, cCO + 1, t0))
F.wait_vm("small2")
GA0, GA1 = T + 22, T + 24
gl, gh, x0, x1, y0, y1 = T + 26, T + 27, T + 28, T + 29, T + 30, T + 31
for k in range(4):
    e("v_lshlrev_b32 v%d, 16, v%d" % (gl, GW + k)); e("v_and_b32 v%d, s%d, v%d" % (gh, sMASK, GW + k))
    e("v_lshlrev_b32 v%d, 16, v%d" % (x0, GX0 + k)); e("v_and_b32 v%d, s%d, v%d" % (x1, sMASK, GX0 + k))
    e("v_lshlrev_b32 v%d, 16, v%d" % (y0, GX1 + k)); e("v_and_b32 v%d, s%d, v%d" % (y1, sMASK, GX1 + k))
    e("v_mul_f32 v%d, v%d, v%d" % (x0, x0, gl)); e("v_mul_f32 v%d, v%d, v%d" % (x1, x1, gh))
    e("v_mul_f32 v%d, v%d, v%d" % (y0, y0, gl)); e("v_mul_f32 v%d, v%d, v%d" % (y1, y1, gh))
    e("v_cvt_pk_bf16_f32 v%d, v%d, v%d" % (x0, x0, x1)); e("v_cvt_pk_bf16_f32 v%d, v%d, v%d" % (y0, y0, y1))
    e("v_and_b32 v%d, s%d, v%d" % (x1, sMASK, x0)); e("v_lshlrev_b32 v%d, 16, v%d" % (x0, x0))
    e("v_and_b32 v%d, s%d, v%d" % (y1, sMASK, y0)); e("v_lshlrev_b32 v%d, 16, v%d" % (y0, y0))
    if k == 0:
        e("v_add_f32 v%d, v%d, v%d" % (GA0, x0, x1)); e("v_add_f32 v%d, v%d, v%d" % (GA1, y0, y1))
    else:
        e("v_add_f32 v%d, v%d, v%d" % (GA0, GA0, x0)); e("v_add_f32 v%d, v%d, v%d" % (GA1, GA1, y0))
        e("v_add_f32 v%d, v%d, v%d" % (GA0, GA0, x1)); e("v_add_f32 v%d, v%d, v%d" % (GA1, GA1, y1))
e("s_nop 0")
for d in ("row_shr:1 row_mask:0xf", "row_shr:2 row_mask:0xf", "row_shr:4 row_mask:0xf", "row_shr:8 row_mask:0xf", "row_bcast:15 row_mask:0xa", "row_bcast:31 row_mask:0xc"):
    e("v_add_f32_dpp v%d, v%d, v%d %s bank_mask:0xf" % (GA0, GA0, GA0, d))
    e("v_add_f32_dpp v%d, v%d, v%d %s bank_mask:0xf" % (GA1, GA1, GA1, d))
    e("s_nop 0")
e("v_cvt_pk_bf16_f32 v%d, v%d, v%d" % (x0, GA0, GA1))
e("v_and_b32 v%d, s%d, v%d" % (GA1, sMASK, x0)); e("v_lshlrev_b32 v%d, 16, v%d" % (GA0, x0))
e("v_mul_f32 v%d, 0x%x, v%d" % (GA0, LOG2E | 0x80000000, GA0)); e("v_mul_f32 v%d, 0x%x, v%d" % (GA1, LOG2E | 0x80000000, GA1))
e("v_exp_f32 v%d, v%d" % (GA0, GA0)); e("v_exp_f32 v%d, v%d" % (GA1, GA1))
e("s_nop 0")
e("v_add_f32 v%d, 1.0, v%d" % (GA0, GA0)); e("v_add_f32 v%d, 1.0, v%d" % (GA1, GA1))
e("v_rcp_f32 v%d, v%d" % (GA0, GA0)); e("v_rcp_f32 v%d, v%d" % (GA1, GA1))
e("v_mov_b32 v%d, s%d" % (vTAG, sTAG))
e("v_cvt_pk_bf16_f32 v%d, v%d, v%d" % (x0, GA0, GA1))
e("v_mov_b32 v%d, s%d" % (GA0 + 1, sTAG)); e("v_mov_b32 v%d, s%d" % (GA1 + 1, sTAG))
e("v_and_b32 v%d, s%d, v%d" % (GA1, sMASK, x0)); e("v_lshlrev_b32 v%d, 16, v%d" % (GA0, x0))
e("s_lshl_b32 s%d, s%d, 10" % (sT0, sR)); e("s_lshl_b32 s%d, s%d, 8" % (sT1, sW)); e("s_add_u32 s%d, s%d, s%d" % (sT0, sT0, sT1))
e("s_lshl_b32 s%d, s%d, 4" % (sT1, sJ)); e("s_add_u32 s%d, s%d, s%d" % (sT0, sT0, sT1)); e("s_add_u32 s%d, s%d, %d" % (sT0, sT0, GOFF))
e("v_cmp_eq_u32 vcc, 63, v%d" % vLANE)
e("v_mov_b32 v%d, 0x%x" % (x1, OOB))
e("v_mov_b32 v%d, s%d" % (y0, sT0))
e("v_cndmask_b32 v%d, v%d, v%d, vcc" % (y0, x1, y0))
F.vm("buffer_store_dwordx4 %s, v%d, s[%d:%d], 0 offen sc1" % (vr(GA0, 4), y0, SRD_WS, SRD_WS + 3), "gst")
e = g.e

def frag(setn, idx):
    return FR + 28 * setn + 4 * idx
def reads(n):
    c, s = n >> 2, n & 3
    k = c & 3; st = n & 1
    L = []
    L.append(("ds_read_b128 %s, v%d offset:%d" % (vr(frag(st, 0), 4), rdA + s, k * 16384), "ds:r%d_0" % n))
    L.append(("ds_read_b128 %s, v%d offset:%d" % (vr(frag(st, 1), 4), rdB + s, k * 8192), "ds:r%d_1" % n))
    L.append(("ds_read_b128 %s, v%d offset:%d" % (vr(frag(st, 2), 4), rdB + s, k * 8192 + 4096), "ds:r%d_2" % n))
    for t in range(4):
        for e2 in range(2):
            L.append(("ds_read_b64_tr_b16 %s, v%d offset:%d" % (vr(frag(st, 3 + t) + 2 * e2, 2), rdW + t, k * 16384 + s * 4096 + 1024 * e2), "ds:r%d_%d" % (n, 3 + t)))
    return L
def mfma1(n, m):
    st = n & 1
    A = vr(frag(st, 0), 4)
    if m < 2:
        acc = (ACC_RE, ACC_IM)[m]
        e("v_mfma_f32_32x32x16_bf16 %s, %s, %s, %s" % (vr(acc, 16), A, vr(frag(st, 1 + m), 4), "0" if n == 0 else vr(acc, 16)))
    else:
        acc = ACC_F + 16 * (m - 2)
        e("v_mfma_f32_32x32x16_bf16 %s, %s, %s, %s" % (vr(acc, 16), vr(frag(st, 1 + m), 4), A, "0" if n == 0 else vr(acc, 16)))

def stage_unit(kind, u, slot):
    L = []
    tag = "%s%d" % (kind, u)
    if kind == "w2":
        L.append(("s_lshl_b32 s%d, s%d, 16" % (sT3, sUI), None))
        L.append(("s_add_u32 s%d, s%d, s%d" % (sT3, sT3, sU), None))
        L.append(("s_add_u32 s%d, s%d, 1" % (sUI, sUI), None))
        L.append(("s_cmp_eq_u32 s%d, 7" % sUI, None))
        L.append(("s_cselect_b32 s%d, 0, s%d" % (sUI, sUI), None))
        sd, vo = SRD_W2, vW2
    else:
        L.append(("s_add_u32 s%d, s%d, %d" % (sT3, sROT2, u), None))
        L.append(("s_bitcmp1_b32 s%d, 1" % sT3, None))
        L.append(("s_cselect_b32 s%d, s%d, s%d" % (SRD_CR, pCIM, pCRE), None))
        L.append(("s_cselect_b32 s%d, s%d, s%d" % (SRD_CR + 1, pCIM + 1, pCRE + 1), None))
        L.append(("s_and_b32 s%d, s%d, 1" % (sT3, sT3), None))
        L.append(("s_lshl_b32 s%d, s%d, 7" % (sT3, sT3), None))
        L.append(("s_add_u32 s%d, s%d, s%d" % (sT3, sT3, sH), None))
        sd, vo = SRD_CR, vC
    for half in range(2):
        L.append(("s_add_u32 m0, s%d, %d" % (sMX if half == 0 else sMW, slot * 16384), None))
        L.append(("s_nop 0" if half == 0 else "s_add_u32 s%d, s%d, 32768" % (sT3, sT3), None))
        for n in range(4):
            L.append(("buffer_load_dwordx4 v%d, s[%d:%d], s%d offen offset:%d lds" % (vo + n, sd, sd + 3, sT3, 1024 * n), tag))
    return L

e("s_mul_i32 s%d, s%d, %d" % (sU, sW, 448 * 1024)); e("s_lshl_b32 s%d, s%d, 7" % (sT0, sCB)); e("s_add_u32 s%d, s%d, s%d" % (sU, sU, sT0))
e("s_lshl_b32 s%d, s%d, 16" % (sH, sCB)); e("s_lshl_b32 s%d, s%d, 8" % (sT0, sW)); e("s_add_u32 s%d, s%d, s%d" % (sH, sH, sT0))
if OPT["rot"]:
    if OPT["p2map"] == 48:
        e("s_and_b32 s%d, s%d, 3" % (sROT, sHB)); e("s_lshl_b32 s%d, s%d, 1" % (sROT, sROT)); e("s_add_u32 s%d, s%d, s%d" % (sROT, sROT, sCB))
    else:
        e("s_and_b32 s%d, s%d, 3" % (sROT, sCB)); e("s_lshl_b32 s%d, s%d, 1" % (sROT, sROT)); e("s_and_b32 s%d, s%d, 7" % (sT0, sHB)); e("s_add_u32 s%d, s%d, s%d" % (sROT, sROT, sT0))
    e("s_sub_u32 s%d, s%d, 7" % (sT0, sROT)); e("s_cmp_ge_u32 s%d, 7" % sROT); e("s_cselect_b32 s%d, s%d, s%d" % (sROT, sT0, sROT))
    e("s_add_u32 s%d, s%d, s%d" % (sROT2, sHB, sCB)); e("s_and_b32 s%d, s%d, 3" % (sROT2, sROT2))
else:
    e("s_mov_b32 s%d, 0" % sROT); e("s_mov_b32 s%d, 0" % sROT2)
e("s_mov_b32 s%d, s%d" % (sUI, sROT))
e("s_waitcnt lgkmcnt(0)")
e("s_mul_i32 s%d, s%d, 0x9e3779b1" % (sTAG, sE))
e("s_add_u32 s%d, s%d, 0x7f4a7c15" % (sTAG, sTAG))
stamp()
g.wait_vm("ch0")
e("s_barrier")
stamp()
run(reads(0))
fill = []
for n in range(32):
    c, s = n >> 2, n & 3
    nxt = reads(n + 1) if n < 31 else []
    per = [3, 3, 3, 2, 0, 0] if s == 2 else [2, 2, 2, 2, 2, 1]
    if s == 3: per = [0, 3, 2, 2, 2, 2]
    for m in range(6):
        if s == 3 and m == 0:
            g.wait_lg_all()
        else:
            g.wait_lg("r%d_%d" % (n, m + 1))
        mfma1(n, m)
        if s == 3 and m == 0:
            assert not fill
            if OPT["stamps"] == 2: stamp()
            if c < 7: g.wait_vm("ch%d" % (c + 1))
            e("s_barrier")
            if OPT["stamps"] == 2: stamp()
            fill = dma_chunk(c + 4) if c < 4 else stage_unit("w2", c - 4, c - 4)
            gaps = 23 if c < 7 else 5
            ndm = sum(1 for x in fill if x[1])
            dsched = [int((i + 0.5) * gaps / ndm) for i in range(ndm)]
            gi = 0
            continue
        run(nxt[:per[m]]); nxt = nxt[per[m]:]
        used = 0
        if fill:
            while dsched and dsched[0] <= gi:
                dsched.pop(0)
                while True:
                    it = fill.pop(0); run([it]); used += 1
                    if it[1]: break
                if not dsched:
                    run(fill); used += len(fill); fill = []
            gi += 1
        if n >= 2:
            F.play(g, max(0, OPT["fillb"] + (2 - per[m]) - used))
    assert not nxt
assert not fill
F.flush(g)
stamp()

rdU = 22
def svc_w2(u, slot):
    g.wait_vm("w2%d" % u)
    cnt = 0
    for sg in range(4):
        half = sg >> 1
        for dt in range(2):
            for e2 in range(2):
                if len(g.lgq) >= 14: g.wait_lg(g.lgq[7])
                g.ds("ds_read_b64_tr_b16 %s, v%d offset:%d" % (ar(32 * u + 8 * sg + 4 * dt + 2 * e2, 2), rdU + dt + 2 * half, slot * 16384 + (sg & 1) * 2048 + e2 * 512), "u%d_%d" % (u, cnt))
                cnt += 1
    g.wait_lg_all()

e("v_bfe_u32 v%d, v%d, 2, 2" % (t0, vLANE))
e("v_lshrrev_b32 v%d, 5, v%d" % (t1, vLANE))
e("v_lshl_add_u32 v%d, v%d, 3, v%d" % (t2, t1, t0))
e("v_lshlrev_b32 v%d, 7, v%d" % (t2, t2))
e("v_lshrrev_b32 v%d, 1, v%d" % (t0, t0))
e("v_lshl_add_u32 v%d, v%d, 6, v%d" % (t2, t0, t2))
e("v_bfe_u32 v%d, v%d, 4, 1" % (t3, vLANE))
e("v_lshl_add_u32 v%d, v%d, 5, v%d" % (t2, t3, t2))
e("v_and_b32 v%d, 3, v%d" % (t3, vLANE))
e("v_lshl_add_u32 v%d, v%d, 3, v%d" % (t2, t3, t2))
e("v_add_u32 v%d, s%d, v%d" % (rdU, sMX, t2))
e("v_xor_b32 v%d, 64, v%d" % (rdU + 1, rdU))
e("v_add_u32 v%d, 0x%x, v%d" % (rdU + 2, LW, rdU))
e("v_add_u32 v%d, 0x%x, v%d" % (rdU + 3, LW, rdU + 1))
H0, H1 = T + 4, T + 6
pr, pi = ACC_RE, ACC_IM
for t in range(1, 16):
    d = (H0, H1)[t & 1]
    cfma(d, d + 1, cL, cL + 1, pr, pi, ACC_RE + t, ACC_IM + t)
    pr, pi = d, d + 1
OWN = pr
e("v_add_u32 v%d, 0x%x, v%d" % (t0, SCR, vTID8))
g.ds("ds_write_b64 v%d, %s" % (t0, vr(OWN, 2)), "agg")
e("v_and_b32 v%d, 31, v%d" % (t1, vLANE))
e("v_lshlrev_b32 v%d, 3, v%d" % (t1, t1))
e("v_add_u32 v%d, 0x%x, v%d" % (t1, SCR, t1))
vSEG = T + 40
e("v_mov_b32 v%d, v%d" % (vSEG, t1))
e("v_add_u32 v%d, 2048, v%d" % (vSEG + 1, t0))
g.wait_lg_all()
e("s_barrier")
SG = T + 8
for s in range(7):
    g.ds("ds_read_b64 %s, v%d offset:%d" % (vr(SG + 2 * s, 2), vSEG, 256 * s), "sg%d" % s)
vPUB, vLB0, vLB1 = T + 24, T + 42, T + 43
e("v_and_b32 v%d, 31, v%d" % (t0, vLANE))
e("v_lshlrev_b32 v%d, 4, v%d" % (t0, t0))
e("s_lshl_b32 s%d, s%d, 9" % (sT0, sJ)); e("s_lshl_b32 s%d, s%d, 13" % (sT1, sR)); e("s_add_u32 s%d, s%d, s%d" % (sT0, sT0, sT1)); e("s_add_u32 s%d, s%d, %d" % (sT0, sT0, AGG))
e("v_add_u32 v%d, s%d, v%d" % (t0, sT0, t0))
e("v_mov_b32 v%d, 0x%x" % (t3, OOB))
e("v_cmp_eq_u32 vcc, 7, v%d" % vQ)
e("v_add_u32 v%d, 1, v%d" % (t2, vQ))
e("v_cmp_ge_u32 s[%d:%d], s%d, v%d" % (sV0, sV0 + 1, sR, t2))
e("v_cndmask_b32 v%d, v%d, v%d, vcc" % (vPUB, t3, t0))
e("v_lshlrev_b32 v%d, 13, v%d" % (t1, t2))
e("v_sub_u32 v%d, v%d, v%d" % (t1, t0, t1))
e("v_add_u32 v%d, 8, v%d" % (t2, t2))
e("v_cmp_ge_u32 s[%d:%d], s%d, v%d" % (sV1, sV1 + 1, sR, t2))
e("v_cndmask_b32 v%d, v%d, v%d, s[%d:%d]" % (vLB0, t3, t1, sV0, sV0 + 1))
e("v_subrev_u32 v%d, 0x10000, v%d" % (t1, t1))
e("v_mov_b32 v%d, 0" % vPRE); e("v_mov_b32 v%d, 0" % (vPRE + 1))
e("v_cndmask_b32 v%d, v%d, v%d, s[%d:%d]" % (vLB1, t3, t1, sV1, sV1 + 1))
for s in range(7):
    g.wait_lg("sg%d" % s)
    e("v_cmpx_lt_u32 vcc, %d, v%d" % (s, vQ))
    a = SG + 2 * s
    if s == 0:
        e("v_mov_b32 v%d, v%d" % (vPRE, a)); e("v_mov_b32 v%d, v%d" % (vPRE + 1, a + 1))
    else:
        e("v_fma_f32 v%d, v%d, v%d, v%d" % (a, cL16, vPRE, a))
        e("v_fma_f32 v%d, v%d, v%d, v%d" % (a + 1, cL16, vPRE + 1, a + 1))
        e("v_fma_f32 v%d, -v%d, v%d, v%d" % (a, cL16 + 1, vPRE + 1, a))
        e("v_fma_f32 v%d, v%d, v%d, v%d" % (vPRE + 1, cL16 + 1, vPRE, a + 1))
        e("v_mov_b32 v%d, v%d" % (vPRE, a))
e("s_mov_b64 exec, -1")
PB = T + 28
cfma(PB, PB + 1, cL16, cL16 + 1, vPRE, vPRE + 1, OWN, OWN + 1)
e("v_mov_b32 v%d, s%d" % (PB + 2, sTAG)); e("v_mov_b32 v%d, s%d" % (PB + 3, sTAG))
g.vm("buffer_store_dwordx4 %s, v%d, s[%d:%d], 0 offen sc1" % (vr(PB, 4), vPUB, SRD_WS, SRD_WS + 3), "pub")
stamp()
svc_w2(0, 0); run(stage_unit("w2", 4, 0))
e("s_lshl_b32 s%d, s%d, 2" % (sT0, sR)); e("s_add_u32 s%d, s%d, s%d" % (sT0, sT0, sW))
e("s_mul_i32 s%d, s%d, %d" % (sHF, sT0, TSTRIDE)); e("s_add_u32 s%d, s%d, %d" % (sHF, sHF, HOFF))
e("s_lshl_b32 s%d, s%d, 9" % (sFL, sT0)); e("s_lshr_b32 s%d, s%d, 2" % (sT1, sJ)); e("s_lshl_b32 s%d, s%d, 7" % (sT1, sT1)); e("s_add_u32 s%d, s%d, s%d" % (sFL, sFL, sT1))
e("s_and_b32 s%d, s%d, 3" % (sT1, sJ)); e("s_lshl_b32 s%d, s%d, 2" % (sT1, sT1)); e("s_add_u32 s%d, s%d, s%d" % (sFL, sFL, sT1)); e("s_add_u32 s%d, s%d, %d" % (sFL, sFL, FLAGS))
e("s_lshr_b32 s%d, s%d, 1" % (sT1, sJ)); e("s_mul_i32 s%d, s%d, %d" % (sT1, sT1, 14 * 1024)); e("s_lshl_b32 s%d, s%d, 13" % (sT2, sODD))
e("s_add_u32 s%d, s%d, s%d" % (sT1, sT1, sT2)); e("s_add_u32 s%d, s%d, s%d" % (sT1, sT1, sHF))
def ffn_tile(t):
    f = ACC_F + 16 * t
    for k in range(8):
        e("v_cvt_pk_bf16_f32 v%d, v%d, v%d" % (f + k, f + 2 * k, f + 2 * k + 1))
    for k in range(8):
        e("v_pk_max_i16 v%d, v%d, 0" % (f + k, f + k))
    if t == 2: e("s_add_u32 s%d, s%d, 4096" % (sT1, sT1))
    for fr in range(2):
        g.vm("buffer_store_dwordx4 %s, v%d, s[%d:%d], s%d offen offset:%d sc1" % (vr(f + 4 * fr, 4), vL16d if t == 3 else vL16, SRD_WS, SRD_WS + 3, sT1, 2048 * (t & 1) + 1024 * fr), "hf")
ffn_tile(0); ffn_tile(1)
svc_w2(1, 1); run(stage_unit("w2", 5, 1))
ffn_tile(2); ffn_tile(3)
for t in range(16):
    ur, ui = ACC_RE + t, ACC_IM + t
    tt = T + 32 + (t & 1)
    e("v_mul_f32 v%d, v%d, v%d" % (tt, ur, cCO + 1))
    e("v_mul_f32 v%d, v%d, v%d" % (ur, ur, cCO))
    e("v_fma_f32 v%d, -v%d, v%d, v%d" % (ur, ui, cCO + 1, ur))
    e("v_fma_f32 v%d, v%d, v%d, v%d" % (ui, ui, cCO, tt))
svc_w2(2, 2); run(stage_unit("w2", 6, 2))
svc_w2(3, 3); run(stage_unit("c", 3, 3))
stamp()
A0, A1 = T + 8, T + 12
def lb_loads(tag):
    g.vm("buffer_load_dwordx4 %s, v%d, s[%d:%d], 0 offen sc1" % (vr(A0, 4), vLB0, SRD_WS, SRD_WS + 3), tag)
    g.vm("buffer_load_dwordx4 %s, v%d, s[%d:%d], 0 offen sc1" % (vr(A1, 4), vLB1, SRD_WS, SRD_WS + 3), tag)
lb_loads("lb")
g.wait_vm("hf")
e("s_mov_b64 exec, 1")
g.vm("buffer_store_dword v%d, off, s[%d:%d], s%d sc1" % (vTAG, SRD_WS, SRD_WS + 3, sFL), "fl0")
e("s_mov_b64 exec, -1")
e("s_mov_b32 s%d, 0" % sCNT)
g.wait_vm("lb")
g.label("L_lb_chk")
e("v_cmp_ne_u32 vcc, s%d, v%d" % (sTAG, A0 + 2))
e("v_cmp_ne_u32 s[%d:%d], s%d, v%d" % (sTP, sTP + 1, sTAG, A1 + 2))
e("s_and_b64 vcc, vcc, s[%d:%d]" % (sV0, sV0 + 1))
e("s_and_b64 s[%d:%d], s[%d:%d], s[%d:%d]" % (sTP, sTP + 1, sTP, sTP + 1, sV1, sV1 + 1))
e("s_or_b64 vcc, vcc, s[%d:%d]" % (sTP, sTP + 1))
e("s_cbranch_scc0 L_lb_ok")
e("s_add_u32 s%d, s%d, 1" % (sCNT, sCNT))
e("s_cmp_ge_u32 s%d, 0x8000" % sCNT)
e("s_cbranch_scc1 L_lb_ok")
sv = list(g.vmq); lb_loads("x"); g.vmq = sv
e("s_waitcnt vmcnt(0)")
e("s_branch L_lb_chk")
g.label("L_lb_ok")
cfma(A0, A0 + 1, cL1024, cL1024 + 1, A1, A1 + 1, A0, A0 + 1)
cmul(A1, A1 + 1, cL128q, cL128q + 1, A0, A0 + 1)
g.ds("ds_write_b64 v%d, %s" % (vSEG + 1, vr(A1, 2)), "pw")
g.wait_lg_all()
e("s_barrier")
stamp()
for s in range(8):
    g.ds("ds_read_b64 %s, v%d offset:%d" % (vr(SG + 2 * s, 2), vSEG, 2048 + 256 * s), "pp%d" % s)
vTW, vTR = T + 32, T + 34
e("v_and_b32 v%d, 31, v%d" % (t0, vLANE))
e("v_bfe_u32 v%d, v%d, 1, 2" % (t1, vLANE))
e("v_lshrrev_b32 v%d, 5, v%d" % (t2, vLANE))
e("v_lshlrev_b32 v%d, 1, v%d" % (t3, t2))
e("v_xor_b32 v%d, v%d, v%d" % (t1, t1, t3))
e("v_lshlrev_b32 v%d, 4, v%d" % (t1, t1))
e("v_lshl_add_u32 v%d, v%d, 6, v%d" % (t1, t0, t1))
e("v_add_u32 v%d, s%d, v%d" % (vTW, sMB, t1))
e("v_xor_b32 v%d, 16, v%d" % (vTW + 1, vTW))
e("v_bfe_u32 v%d, v%d, 2, 2" % (t0, vLANE))
e("v_lshl_add_u32 v%d, v%d, 3, v%d" % (t2, t2, t0))
e("v_lshrrev_b32 v%d, 1, v%d" % (t0, t0))
e("v_and_b32 v%d, 1, v%d" % (t1, vLANE))
e("v_lshlrev_b32 v%d, 1, v%d" % (t1, t1))
e("v_bfe_u32 v%d, v%d, 4, 1" % (t3, vLANE))
e("v_add_u32 v%d, v%d, v%d" % (t1, t1, t3))
e("v_xor_b32 v%d, v%d, v%d" % (t1, t1, t0))
e("v_lshlrev_b32 v%d, 4, v%d" % (t1, t1))
e("v_lshl_add_u32 v%d, v%d, 6, v%d" % (t1, t2, t1))
e("v_bfe_u32 v%d, v%d, 1, 1" % (t3, vLANE))
e("v_lshl_add_u32 v%d, v%d, 3, v%d" % (t1, t3, t1))
e("v_add_u32 v%d, s%d, v%d" % (vTR, sMB, t1))
e("v_xor_b32 v%d, 32, v%d" % (vTR + 1, vTR))
e("v_add_u32 v%d, 256, v%d" % (vTR + 1, vTR + 1))
for s in range(1, 8):
    g.wait_lg("pp%d" % s)
    e("v_pk_add_f32 %s, %s, %s" % (vr(SG, 2), vr(SG, 2), vr(SG + 2 * s, 2)))
cfma(vPRE, vPRE + 1, cL16q, cL16q + 1, SG, SG + 1, vPRE, vPRE + 1)
cmul(SG, SG + 1, cCO, cCO + 1, vPRE, vPRE + 1)
pr, pi = SG, SG + 1
for t in range(16):
    cfma(ACC_RE + t, ACC_IM + t, cL, cL + 1, pr, pi, ACC_RE + t, ACC_IM + t)
    pr, pi = ACC_RE + t, ACC_IM + t
PK = ACC_F
for k in range(8):
    e("v_cvt_pk_bf16_f32 v%d, v%d, v%d" % (PK + k, ACC_RE + 2 * k, ACC_RE + 2 * k + 1))
for k in range(8):
    e("v_cvt_pk_bf16_f32 v%d, -v%d, -v%d" % (PK + 8 + k, ACC_IM + 2 * k, ACC_IM + 2 * k + 1))
for x in range(2):
    for p in range(2):
        g.ds("ds_write_b128 v%d, %s offset:%d" % (vTW + p, vr(PK + 8 * x + 4 * p, 4), 8192 * x), "tw")
e("s_lshr_b32 s%d, s%d, 2" % (sT0, sJ)); e("s_lshl_b32 s%d, s%d, 14" % (sT0, sT0)); e("s_and_b32 s%d, s%d, 3" % (sT1, sJ)); e("s_lshl_b32 s%d, s%d, 11" % (sT1, sT1))
e("s_add_u32 s%d, s%d, s%d" % (sT0, sT0, sT1)); e("s_add_u32 s%d, s%d, s%d" % (sT0, sT0, sHF)); e("s_add_u32 s%d, s%d, %d" % (sT0, sT0, 112 * 1024))
e("s_add_u32 s%d, s%d, 8192" % (sT1, sT0))
g.wait_lg_all()
TF = ACC_F + 16
for x in range(2):
    for f in range(2):
        for e2 in range(2):
            g.ds("ds_read_b64_tr_b16 %s, v%d offset:%d" % (vr(TF + 8 * x + 4 * f + 2 * e2, 2), vTR + e2, 8192 * x + 1024 * f), "tr%d%d" % (x, f))
for x in range(2):
    for f in range(2):
        g.wait_lg("tr%d%d" % (x, f))
        g.vm("buffer_store_dwordx4 %s, v%d, s[%d:%d], s%d offen offset:%d sc1" % (vr(TF + 8 * x + 4 * f, 4), vL16, SRD_WS, SRD_WS + 3, sT1 if x else sT0, 1024 * f), "hs")
stamp()
svc_w2(4, 0); run(stage_unit("c", 0, 0))
svc_w2(5, 1); run(stage_unit("c", 1, 1))
g.wait_vm("hs")
e("s_add_u32 s%d, s%d, 32768" % (sT0, sFL))
e("s_mov_b64 exec, 1")
g.vm("buffer_store_dword v%d, off, s[%d:%d], s%d sc1" % (vTAG, SRD_WS, SRD_WS + 3, sT0), "fl1")
e("s_mov_b64 exec, -1")
svc_w2(6, 2); run(stage_unit("c", 2, 2))
stamp()

RING = OPT["ring"]
RV = 48
ACCB, ACCA, CF = 112, 176, 240
vFLG, vH1, vGA = 2, 3, 4
FLD = 5
GG = 10
OMG = 14
XD = 26
XR = T + 40
rdC1 = 6
def ring(i, tt):
    i %= RING
    return (vr(RV + 8 * i + 4 * tt, 4) if i < 8 else ar(224 + 8 * (i - 8) + 4 * tt, 4))
e("v_bfe_u32 v%d, v%d, 2, 1" % (t0, vLANE))
e("v_lshlrev_b32 v%d, 9, v%d" % (t0, t0))
e("v_and_b32 v%d, 3, v%d" % (t1, vLANE))
e("v_lshl_add_u32 v%d, v%d, 2, v%d" % (t0, t1, t0))
e("s_lshl_b32 s%d, s%d, 10" % (sT0, sHB)); e("s_lshl_b32 s%d, s%d, 7" % (sT1, sW)); e("s_add_u32 s%d, s%d, s%d" % (sT0, sT0, sT1)); e("s_add_u32 s%d, s%d, %d" % (sT0, sT0, FLAGS))
e("v_add_u32 v%d, s%d, v%d" % (vFLG, sT0, t0))
def flag_load(kind, tag):
    g.vm("buffer_load_dword v%d, v%d, s[%d:%d], %s offen sc1" % (FLD, vFLG, SRD_WS, SRD_WS + 3, "s%d" % sT3 if kind else "0"), tag)
flag_load(0, "pf0")
e("v_add_u32 v%d, 0x%x, v%d" % (vH1, TSTRIDE, vL16))
e("v_lshrrev_b32 v%d, 4, v%d" % (t0, vLANE))
e("v_and_b32 v%d, 15, v%d" % (t1, vLANE))
e("v_lshlrev_b32 v%d, 3, v%d" % (t1, t1))
e("v_lshl_add_u32 v%d, v%d, 10, v%d" % (t0, t0, t1))
e("s_lshl_b32 s%d, s%d, 16" % (sT0, sHB)); e("s_lshl_b32 s%d, s%d, 14" % (sT1, sW)); e("s_add_u32 s%d, s%d, s%d" % (sT0, sT0, sT1))
e("s_lshl_b32 s%d, s%d, 7" % (sT1, sCB)); e("s_add_u32 s%d, s%d, s%d" % (sT0, sT0, sT1))
e("v_add_u32 v%d, s%d, v%d" % (t1, sT1, t1))
vOUT = 16
e("v_add_u32 v%d, s%d, v%d" % (t0, sT0, t0))
e("v_lshlrev_b32 v%d, 1, v%d" % (vOUT, t0))
for it in range(4):
    e("s_mov_b32 s%d, %d" % (sT2, 4096 * it))
    g.vm("buffer_load_dwordx2 %s, v%d, s[%d:%d], s%d offen" % (vr(XR + 2 * it, 2), t0, SRD_X, SRD_X + 3, sT2), "xd")
g.vm("global_load_dwordx2 %s, v%d, s[%d:%d]" % (vr(XR + 8, 2), t1, pDSK, pDSK + 1), "xd")
e("v_bfe_u32 v%d, v%d, 2, 1" % (t0, vLANE))
e("v_bfe_u32 v%d, v%d, 3, 2" % (t1, vLANE))
e("v_and_b32 v%d, 3, v%d" % (t2, vLANE))
e("v_lshl_add_u32 v%d, v%d, 2, v%d" % (t1, t1, t2))
vTJ = 17
e("v_lshl_add_u32 v%d, v%d, 4, v%d" % (vTJ, t0, t1))
e("s_lshl_b32 s%d, s%d, 9" % (sT0, sHB)); e("s_add_u32 s%d, s%d, %d" % (sT0, sT0, GOFF))
e("v_lshl_add_u32 v%d, v%d, 3, s%d" % (vGA, vTJ, sT0))
def g_loads(tag):
    g.vm("buffer_load_dwordx2 %s, v%d, s[%d:%d], 0 offen sc1" % (vr(GG, 2), vGA, SRD_WS, SRD_WS + 3), tag)
    g.vm("buffer_load_dwordx2 %s, v%d, s[%d:%d], 0 offen offset:256 sc1" % (vr(GG + 2, 2), vGA, SRD_WS, SRD_WS + 3), tag)
g_loads("gl")
for s in range(4):
    e("v_add_u32 v%d, 0x%x, v%d" % (rdC1 + s, LW, rdA + s))
e("s_mul_i32 s%d, s%d, %d" % (sH, sHB, 2 * TSTRIDE)); e("s_add_u32 s%d, s%d, %d" % (sH, sH, HOFF))
e("s_lshl_b32 s%d, s%d, 14" % (sU, sW)); e("s_add_u32 s%d, s%d, s%d" % (sU, sU, sH)); e("s_add_u32 s%d, s%d, %d" % (sU, sU, 112 * 1024))
e("s_mul_i32 s%d, s%d, %d" % (sT0, sW, 28 * 1024)); e("s_add_u32 s%d, s%d, s%d" % (sH, sH, sT0))
e("s_mov_b32 s%d, 32768" % sT3)
e("s_mov_b32 s%d, 0" % sCNT)
def flag_check(kind, lbl):
    g.label(lbl + "_chk")
    e("v_cmp_ne_u32 vcc, s%d, v%d" % (sTAG, FLD))
    e("s_add_u32 s%d, s%d, 1" % (sCNT, sCNT))
    e("s_cbranch_vccz %s_ok" % lbl)
    e("s_cmp_ge_u32 s%d, 0x8000" % sCNT)
    e("s_cbranch_scc1 %s_ok" % lbl)
    sv = list(g.vmq); flag_load(kind, "x"); g.vmq = sv
    e("s_waitcnt vmcnt(0)")
    e("s_branch %s_chk" % lbl)
    g.label(lbl + "_ok")
g.wait_vm("pf0")
flag_check(0, "L_f0")
stamp()
def hload(n):
    L = []
    if n % 4 == 0:
        if n < 28:
            L.append(("s_lshl_b32 s%d, s%d, 12" % (sT2, sUI), None))
            L.append(("s_add_u32 s%d, s%d, s%d" % (sT2, sT2, sH), None))
            L.append(("s_add_u32 s%d, s%d, 1" % (sUI, sUI), None))
            L.append(("s_cmp_eq_u32 s%d, 7" % sUI, None))
            L.append(("s_cselect_b32 s%d, 0, s%d" % (sUI, sUI), None))
        else:
            L.append(("s_add_u32 s%d, s%d, %d" % (sT2, sROT2, (n - 28) // 4), None))
            L.append(("s_and_b32 s%d, s%d, 3" % (sT2, sT2), None))
            L.append(("s_lshl_b32 s%d, s%d, 12" % (sT2, sT2), None))
            L.append(("s_add_u32 s%d, s%d, s%d" % (sT2, sT2, sU), None))
    for tt in range(2):
        L.append(("buffer_load_dwordx4 %s, v%d, s[%d:%d], s%d offen offset:%d sc1" % (ring(n, tt), vH1 if tt else vL16, SRD_WS, SRD_WS + 3, sT2, 1024 * (n & 3)), "h%d" % n))
    return L
for n in range(RING):
    run(hload(n))
g.wait_vm("gl")
DS = XR + 10
e("v_lshlrev_b32 v%d, 16, v%d" % (DS, XR + 8)); e("v_and_b32 v%d, s%d, v%d" % (DS + 1, sMASK, XR + 8))
e("v_lshlrev_b32 v%d, 16, v%d" % (DS + 2, XR + 9)); e("v_and_b32 v%d, s%d, v%d" % (DS + 3, sMASK, XR + 9))
for it in range(4):
    for k in range(2):
        d = XD + 4 * it + 2 * k
        e("v_lshlrev_b32 v%d, 16, v%d" % (d, XR + 2 * it + k)); e("v_and_b32 v%d, s%d, v%d" % (d + 1, sMASK, XR + 2 * it + k))
        e("v_mul_f32 v%d, v%d, v%d" % (d, d, DS + 2 * k)); e("v_mul_f32 v%d, v%d, v%d" % (d + 1, d + 1, DS + 2 * k + 1))
        e("v_cvt_pk_bf16_f32 v%d, v%d, v%d" % (d, d, d + 1))
        e("v_and_b32 v%d, s%d, v%d" % (d + 1, sMASK, d)); e("v_lshlrev_b32 v%d, 16, v%d" % (d, d))
e("s_mov_b32 s%d, 0" % sCNT)
g.label("L_g_chk")
e("v_cmp_ne_u32 vcc, s%d, v%d" % (sTAG, GG + 1))
e("v_cmp_ne_u32 s[%d:%d], s%d, v%d" % (sTP, sTP + 1, sTAG, GG + 3))
e("s_add_u32 s%d, s%d, 1" % (sCNT, sCNT))
e("s_or_b64 vcc, vcc, s[%d:%d]" % (sTP, sTP + 1))
e("s_cbranch_scc0 L_g_ok")
e("s_cmp_ge_u32 s%d, 0x8000" % sCNT)
e("s_cbranch_scc1 L_g_ok")
sv = list(g.vmq); g_loads("x"); g.vmq = sv
e("s_waitcnt vmcnt(0)")
e("s_branch L_g_chk")
g.label("L_g_ok")
e("v_sub_f32 v%d, 1.0, v%d" % (OMG, GG)); e("v_sub_f32 v%d, 1.0, v%d" % (OMG + 1, GG + 2))
e("v_cvt_pk_bf16_f32 v%d, v%d, v%d" % (OMG, OMG, OMG + 1))
e("v_and_b32 v%d, s%d, v%d" % (OMG + 1, sMASK, OMG)); e("v_lshlrev_b32 v%d, 16, v%d" % (OMG, OMG))
e("v_lshlrev_b32 v%d, 2, v%d" % (t0, vTJ))
e("v_add_u32 v%d, 0x%x, v%d" % (t0, SCR + 4096, t0))
g.ds("ds_write_b32 v%d, v%d" % (t0, GG), "gt"); g.ds("ds_write_b32 v%d, v%d offset:128" % (t0, GG + 2), "gt")
e("s_mov_b32 s%d, 0" % sCNT)
def creads(n):
    m = n - 28
    b, sg = m >> 2, m & 3
    st = m & 1
    return [("ds_read_b128 %s, v%d offset:%d" % (vr(CF + 8 * st + 4 * dt, 4), (rdC1 if dt else rdA) + sg, b * 16384), "ds:c%d" % n) for dt in range(2)]
PF1 = 28 - RING
scale = [(ACCB + i) for i in range(64)]
for n in range(44):
    if n == PF1 - 2: flag_load(1, "pf1")
    if n == 26:
        for b in range(4): g.wait_vm("c%d" % b)
    g.wait_vm("h%d" % n)
    if n >= 28: g.wait_lg("c%d" % n)
    acc0 = ACCB if n < 28 else ACCA
    first = n == 0 or n == 28
    k = 0
    for dt in range(2):
        for tt in range(2):
            A = ar(8 * n + 4 * dt, 4) if n < 28 else vr(CF + 8 * ((n - 28) & 1) + 4 * dt, 4)
            acc = vr(acc0 + 16 * (2 * dt + tt), 16)
            e("v_mfma_f32_32x32x16_bf16 %s, %s, %s, %s" % (acc, A, ring(n, tt), "0" if first else acc))
            if k == 0 and 27 <= n < 43: run(creads(n + 1))
            if n >= 30 and scale:
                for _ in range(2):
                    if scale:
                        r = scale.pop(0)
                        e("v_mul_f32 v%d, v%d, v%d" % (r, r, OMG + (((r - ACCB) >> 4) & 1)))
            k += 1
    if n + RING < 44:
        if n == PF1:
            g.wait_vm("pf1")
            flag_check(1, "L_f1")
        run(hload(n + RING))
assert not scale
stamp()
t0, t1, t2, t3 = 48, 49, 50, 51
vPW = 18
e("v_and_b32 v%d, 3, v%d" % (t0, vTJ))
e("v_lshrrev_b32 v%d, 4, v%d" % (t1, vTJ))
e("v_lshl_add_u32 v%d, v%d, 2, v%d" % (t0, t1, t0))
e("v_lshrrev_b32 v%d, 5, v%d" % (t1, vLANE))
e("v_xor_b32 v%d, v%d, v%d" % (t0, t0, t1))
e("v_lshlrev_b32 v%d, 4, v%d" % (t0, t0))
e("v_lshl_add_u32 v%d, v%d, 7, v%d" % (t0, vTJ, t0))
e("v_add_u32 v%d, s%d, v%d" % (vPW, sMX, t0))
for a in range(1, 4):
    e("v_xor_b32 v%d, %d, v%d" % (vPW + a, 32 * a, vPW))
vPR = 22
e("v_lshrrev_b32 v%d, 4, v%d" % (t0, vLANE))
e("s_and_b32 s%d, s%d, 1" % (sT0, sW))
e("s_lshl_b32 s%d, s%d, 2" % (sT1, sT0))
e("v_add_u32 v%d, s%d, v%d" % (t1, sT1, t0))
e("v_and_b32 v%d, 7, v%d" % (t2, vLANE))
e("v_xor_b32 v%d, v%d, v%d" % (t1, t1, t2))
e("v_lshlrev_b32 v%d, 4, v%d" % (t1, t1))
e("v_lshl_add_u32 v%d, v%d, 7, v%d" % (t1, t0, t1))
e("v_bfe_u32 v%d, v%d, 3, 1" % (t2, vLANE))
e("v_lshl_add_u32 v%d, v%d, 15, v%d" % (t1, t2, t1))
e("s_lshl_b32 s%d, s%d, 11" % (sT0, sT0)); e("s_lshr_b32 s%d, s%d, 1" % (sT1, sW)); e("s_lshl_b32 s%d, s%d, 14" % (sT1, sT1)); e("s_add_u32 s%d, s%d, s%d" % (sT0, sT0, sT1))
e("v_add_u32 v%d, s%d, v%d" % (vPR, sT0, t1))
e("s_lshl_b32 s%d, s%d, 6" % (sT0, sW)); e("s_add_u32 s%d, s%d, %d" % (sT0, sT0, SCR + 4096))
e("v_lshl_add_u32 v%d, v%d, 2, s%d" % (vPR + 1, t0, sT0))
for tile in range(4):
    tt = tile & 1
    for a in range(4):
        r = 16 * tile + 4 * a
        for k in range(4):
            e("v_fma_f32 v%d, v%d, v%d, v%d" % (ACCB + r + k, ACCA + r + k, GG + 2 * tt, ACCB + r + k))
        if len(g.lgq) >= 14: g.wait_lg(g.lgq[5])
        g.ds("ds_write_b128 v%d, %s offset:%d" % (vPW + a, vr(ACCB + r, 4), tile * 16384), "pw%d" % r)
g.wait_lg_all()
e("s_barrier")
RB = RV
GR = ACCA
for it in range(4):
    g.ds("ds_read_b32 v%d, v%d offset:%d" % (GR + it, vPR + 1, 16 * it), "gr")
for it in range(4):
    for src in range(4):
        if len(g.lgq) >= 15: g.wait_lg(g.lgq[3])
        g.ds("ds_read_b128 %s, v%d offset:%d" % (vr(RB + 16 * it + 4 * src, 4), vPR, src * 4096 + it * 512), "rb%d" % it)
e("s_cmp_eq_u32 s%d, 31" % sHB); e("s_cselect_b32 s%d, s%d, 1" % (sT0, sCB)); e("s_or_b32 s%d, s%d, s%d" % (sT0, sT0, sW))
for it in range(4):
    g.wait_lg("rb%d" % it)
    b = RB + 16 * it
    for k in range(4):
        e("v_fma_f32 v%d, v%d, v%d, v%d" % (b + k, XD + 4 * it + k, GR + it, b + k))
    for k in (0, 2):
        e("v_pk_add_f32 %s, %s, %s" % (vr(b + 8 + k, 2), vr(b + 8 + k, 2), vr(b + 12 + k, 2)))
        e("v_pk_add_f32 %s, %s, %s" % (vr(b + k, 2), vr(b + k, 2), vr(b + 4 + k, 2)))
    for k in (0, 2):
        e("v_pk_add_f32 %s, %s, %s" % (vr(b + k, 2), vr(b + k, 2), vr(b + 8 + k, 2)))
    e("s_mov_b32 s%d, %d" % (sT1, 8192 * it))
    g.vm("buffer_store_dwordx4 %s, v%d, s[%d:%d], s%d offen" % (vr(b, 4), vOUT, SRD_OUT, SRD_OUT + 3, sT1), "out")
stamp()
if OPT["stamps"]:
    e("s_waitcnt vmcnt(0)")
    stamp()
    e("s_memrealtime s[82:83]"); e("s_waitcnt lgkmcnt(0)"); e("v_mov_b32 v252, s82"); e("s_mov_b64 exec, 1")
    e("buffer_store_dword v252, off, s[%d:%d], s101 offset:124" % (SRD_WS, SRD_WS + 3))
    e("s_mov_b64 exec, -1")
e("s_cmp_lg_u32 s%d, 0" % sT0)
e("s_cbranch_scc1 L_end")
e("s_mov_b64 exec, 1")
e("buffer_store_dword v%d, off, s[%d:%d], 0 sc1" % (vTAG, SRD_WS, SRD_WS + 3))
g.label("L_end")
e("s_endpgm")
e('.section .rodata,"a"')
e(".p2align 6")
e(".amdhsa_kernel %s_kernel" % NAME)
for l in ("next_free_vgpr 512", "next_free_sgpr 102", "accum_offset 256", "group_segment_fixed_size 0", "kernarg_size 128", "user_sgpr_count 2",
          "user_sgpr_kernarg_segment_ptr 1", "system_sgpr_workgroup_id_x 1"):
    g.lines.append("  .amdhsa_" + l)
e(".end_amdhsa_kernel")

errs = check_hazards(g.lines)
for x in errs:
    print("HAZARD", x)
open(sys.argv[1], "w").write(out_hdr + g.text())
print("lines", len(g.lines), "stamps", nstamp[0], "hazards", len(errs))
```

```python
import sys
from asmlib import *

NAME = "gated_mix__ssm_conv_s5__dense_activation_relu__prompt"
OPT = dict(stamps=0, p1map=84, p2map=48, ring=12, touch=0, rot=1, fillb=2, diag=-1, diagcyc=0)
for a in sys.argv[2:]:
    k, v = a.split("=")
    OPT[k] = int(v)

AGG = 4096
GOFF = AGG + 16 * 8192
FLAGS = GOFF + 2048 * 8
HOFF = 262144
TSTRIDE = 176 * 1024
WS_SIZE = HOFF + 64 * TSTRIDE
OOB = 0x80000000
LX, LW, LB = 0, 65536, 131072
SCR = LB + 2 * 8192
SRD_X, SRD_B, SRD_W1, SRD_W2, SRD_CR, SRD_CI, SRD_WS, SRD_OUT = 4, 8, 12, 16, 20, 24, 28, 32
sW, sR, sJ, sHB, sCB, sTAG, sMASK = 36, 37, 38, 39, 40, 41, 42
sX, sB, sW1 = 43, 44, 45
sMX, sMB, sMW = 46, 47, 48
sT0, sT1, sT2, sT3 = 49, 50, 51, 52
sV0, sV1 = 54, 56
sTP = 58
sCNT = 60
sU = 61
sH = 62
sE = 63
pX, pLRE, pLIM, pBRE, pBIM, pCRE, pCIM, pLDT, pDSK, pBX, pW1, pW2, pGATE, pOUT, pDBG, pWS = range(64, 96, 2)
sST = 96
sODD = 98
sHF, sFL = 99, 100
sXb, sBb, sW1b, sCI = 54, 55, 56, 57
sROT, sUI, sROT2 = 53, 3, 82
vLANE, vTID8 = 1, 0
vX = 2; vC = 6; vW1 = 10; vW2 = 14
rdA = 18; rdB = 22; rdW = 26
cL, cL16, cL16q, cL128q, cL1024, cCO = 30, 32, 34, 36, 38, 40
vQ, vL16, vL16d = 42, 43, 44
vTAG = 45
vPRE = 46
FR = 48
ACC_RE, ACC_IM, ACC_F = 104, 120, 136
T = 200
LOG2E = 0x3fb8aa3b
INV2PI = 0x3e22f983

g = Asm()
e = g.e
nstamp = [0]
ndiag = [1]
def stamp():
    if OPT["diag"] >= 0:
        if ndiag[0] == OPT["diag"]:
            e("%s s[26:27]" % ("s_memtime" if OPT["diagcyc"] else "s_memrealtime")); e("s_waitcnt lgkmcnt(0)"); g.lgq = []
        ndiag[0] += 1
    if not OPT["stamps"]:
        return
    i = nstamp[0]; nstamp[0] += 1
    e("s_memtime s[%d:%d]" % (sST, sST + 1))
    e("s_waitcnt lgkmcnt(0)")
    g.lgq = []
    e("v_mov_b32 v%d, s%d" % (254, sST))
    e("s_mov_b64 exec, 1")
    g.vm("buffer_store_dword v254, off, s[%d:%d], s101 offset:%d" % (SRD_WS, SRD_WS + 3, 4 * i), "stamp")
    e("s_mov_b64 exec, -1")

def cfma(dr, di, ar_, ai, br, bi, cr, ci):
    e("v_fma_f32 v%d, v%d, v%d, v%d" % (dr, ar_, br, cr))
    e("v_fma_f32 v%d, v%d, v%d, v%d" % (di, ar_, bi, ci))
    e("v_fma_f32 v%d, -v%d, v%d, v%d" % (dr, ai, bi, dr))
    e("v_fma_f32 v%d, v%d, v%d, v%d" % (di, ai, br, di))
def cmul(dr, di, ar_, ai, br, bi):
    e("v_mul_f32 v%d, v%d, v%d" % (dr, ar_, br))
    e("v_mul_f32 v%d, v%d, v%d" % (di, ar_, bi))
    e("v_fma_f32 v%d, -v%d, v%d, v%d" % (dr, ai, bi, dr))
    e("v_fma_f32 v%d, v%d, v%d, v%d" % (di, ai, br, di))

def srd(base, p, size):
    e("s_mov_b32 s%d, s%d" % (base, p))
    e("s_mov_b32 s%d, s%d" % (base + 1, p + 1))

hdr = open("cdna_kernels/%s.s.ref" % NAME).read().split("; Override launch")[0]
out_hdr = hdr + "; @launch grid=(256,1,1) block=(256,1,1) lds=163840\n"
e('.amdgcn_target "amdgcn-amd-amdhsa--gfx950"')
e(".text")
e(".globl %s_kernel" % NAME)
e(".p2align 8")
e(".type %s_kernel,@function" % NAME)
g.label("%s_kernel" % NAME)
e("s_cmp_ge_u32 s2, 256")
e("s_cbranch_scc1 L_end")
if OPT["stamps"]:
    e("s_memrealtime s[82:83]"); e("s_memtime s[96:97]"); e("s_waitcnt lgkmcnt(0)"); e("v_mov_b32 v252, s82"); e("v_mov_b32 v253, s96")
if OPT["diag"] >= 0:
    e("%s s[24:25]" % ("s_memtime" if OPT["diagcyc"] else "s_memrealtime"))
e("s_load_dwordx16 s[64:79], s[0:1], 0")
e("s_load_dwordx16 s[80:95], s[0:1], 64")
e("v_lshrrev_b32 v2, 6, v0")
e("v_and_b32 v%d, 63, v0" % vLANE)
e("v_readfirstlane_b32 s%d, v2" % sW)
e("s_and_b32 s%d, s2, 7" % sT0)
e("s_lshr_b32 s%d, s2, 3" % sT1)
if OPT["p1map"] == 84:
    e("s_and_b32 s%d, s%d, 1" % (sR, sT0)); e("s_lshl_b32 s%d, s%d, 3" % (sR, sR))
    e("s_and_b32 s%d, s%d, 7" % (sT2, sT1)); e("s_add_u32 s%d, s%d, s%d" % (sR, sR, sT2))
    e("s_lshr_b32 s%d, s%d, 1" % (sJ, sT0)); e("s_lshl_b32 s%d, s%d, 2" % (sJ, sJ))
    e("s_lshr_b32 s%d, s%d, 3" % (sT2, sT1)); e("s_add_u32 s%d, s%d, s%d" % (sJ, sJ, sT2))
else:
    e("s_and_b32 s%d, s%d, 3" % (sR, sT0)); e("s_lshl_b32 s%d, s%d, 2" % (sR, sR))
    e("s_and_b32 s%d, s%d, 3" % (sT2, sT1)); e("s_add_u32 s%d, s%d, s%d" % (sR, sR, sT2))
    e("s_lshr_b32 s%d, s%d, 2" % (sJ, sT0)); e("s_lshl_b32 s%d, s%d, 3" % (sJ, sJ))
    e("s_lshr_b32 s%d, s%d, 2" % (sT2, sT1)); e("s_add_u32 s%d, s%d, s%d" % (sJ, sJ, sT2))
if OPT["p2map"] == 48:
    e("s_lshl_b32 s%d, s%d, 2" % (sHB, sT0)); e("s_and_b32 s%d, s%d, 3" % (sT2, sT1)); e("s_add_u32 s%d, s%d, s%d" % (sHB, sHB, sT2))
    e("s_lshr_b32 s%d, s%d, 2" % (sCB, sT1))
else:
    e("s_and_b32 s%d, s%d, 3" % (sHB, sT0)); e("s_lshl_b32 s%d, s%d, 3" % (sHB, sHB))
    e("s_and_b32 s%d, s%d, 7" % (sT2, sT1)); e("s_add_u32 s%d, s%d, s%d" % (sHB, sHB, sT2))
    e("s_lshr_b32 s%d, s%d, 2" % (sCB, sT0)); e("s_lshl_b32 s%d, s%d, 2" % (sCB, sCB))
    e("s_lshr_b32 s%d, s%d, 3" % (sT2, sT1)); e("s_add_u32 s%d, s%d, s%d" % (sCB, sCB, sT2))
for b, sz in ((SRD_X, 2048 * 1024), (SRD_B, 512 * 1024), (SRD_W1, 512 * 3584), (SRD_W2, 1792 * 1024), (SRD_CR, 512 * 1024),
              (SRD_WS, WS_SIZE + (256 * 4 * 128 if OPT["stamps"] else 0)), (SRD_OUT, 2048 * 2048)):
    e("s_mov_b32 s%d, 0x%x" % (b + 2, sz))
    e("s_mov_b32 s%d, 0x20000" % (b + 3))
e("s_mov_b32 s%d, 0xffff0000" % sMASK)
t0, t1, t2, t3 = T, T + 1, T + 2, T + 3
e("v_lshrrev_b32 v%d, 3, v%d" % (t0, vLANE))
e("v_and_b32 v%d, 7, v%d" % (t1, vLANE))
e("v_lshrrev_b32 v%d, 1, v%d" % (t2, t0))
e("v_xor_b32 v%d, v%d, v%d" % (t3, t1, t2))
e("v_lshlrev_b32 v%d, 4, v%d" % (t3, t3))
e("v_lshl_add_u32 v%d, v%d, 10, v%d" % (vC, t0, t3))
e("v_and_b32 v%d, 1, v%d" % (t2, t2))
e("v_lshlrev_b32 v%d, 2, v%d" % (t2, t2))
e("v_xor_b32 v%d, v%d, v%d" % (t2, t2, t1))
e("v_lshlrev_b32 v%d, 4, v%d" % (t2, t2))
e("v_lshl_add_u32 v%d, v%d, 10, v%d" % (vW2, t0, t2))
e("v_lshrrev_b32 v%d, 2, v%d" % (t1, t0))
e("v_and_b32 v%d, 3, v%d" % (t2, t0))
e("v_lshl_add_u32 v%d, v%d, 4, v%d" % (t1, t1, t2))
e("v_lshl_add_u32 v%d, v%d, 10, v%d" % (vX, t1, t3))
e("v_xor_b32 v%d, 64, v%d" % (vX + 1, vX))
e("v_add_u32 v%d, 3072, v%d" % (vX + 1, vX + 1))
e("v_add_u32 v%d, 6144, v%d" % (vX + 2, vX))
e("v_add_u32 v%d, 6144, v%d" % (vX + 3, vX + 1))
e("v_xor_b32 v%d, 64, v%d" % (vC + 1, vC))
e("v_add_u32 v%d, 7168, v%d" % (vC + 1, vC + 1))
e("v_lshrrev_b32 v%d, 4, v%d" % (t0, vLANE))
e("v_and_b32 v%d, 15, v%d" % (t1, vLANE))
e("v_lshlrev_b32 v%d, 2, v%d" % (t2, t0))
e("v_xor_b32 v%d, v%d, v%d" % (t1, t1, t2))
e("v_lshrrev_b32 v%d, 2, v%d" % (t2, t1))
e("v_cmp_eq_u32 vcc, 3, v%d" % t2)
e("v_mul_u32_u24 v%d, 3584, v%d" % (t0, t0))
e("v_lshl_add_u32 v%d, v%d, 4, v%d" % (vW1, t1, t0))
e("s_and_b32 s%d, s%d, 1" % (sODD, sJ))
e("s_cselect_b64 s[%d:%d], vcc, 0" % (sTP, sTP + 1))
e("v_mov_b32 v%d, 0x%x" % (t3, OOB))
e("v_lshlrev_b32 v%d, 4, v%d" % (vL16, vLANE))
e("v_cndmask_b32 v%d, v%d, v%d, s[%d:%d]" % (vW1, vW1, t3, sTP, sTP + 1))
for n in range(1, 4):
    e("v_add_u32 v%d, %d, v%d" % (vW1 + n, 13312 * n, vW1))
e("s_lshl_b32 s%d, s%d, 17" % (sXb, sR)); e("s_lshl_b32 s%d, s%d, 15" % (sT0, sW)); e("s_add_u32 s%d, s%d, s%d" % (sXb, sXb, sT0))
e("s_lshl_b32 s%d, s%d, 15" % (sBb, sJ)); e("s_and_b32 s%d, s%d, 1" % (sT0, sW)); e("s_lshl_b32 s%d, s%d, 14" % (sT0, sT0)); e("s_add_u32 s%d, s%d, s%d" % (sBb, sBb, sT0))
e("s_lshr_b32 s%d, s%d, 1" % (sT0, sJ)); e("s_mul_i32 s%d, s%d, 448" % (sT0, sT0)); e("s_lshl_b32 s%d, s%d, 8" % (sT1, sODD)); e("s_add_u32 s%d, s%d, s%d" % (sT0, sT0, sT1))
e("s_mul_i32 s%d, s%d, %d" % (sW1b, sW, 16 * 3584)); e("s_add_u32 s%d, s%d, s%d" % (sW1b, sW1b, sT0))
if OPT["rot"]:
    if OPT["p1map"] == 84:
        e("s_lshl_b32 s%d, s%d, 1" % (sCI, sJ)); e("s_add_u32 s%d, s%d, s%d" % (sCI, sCI, sR))
    else:
        e("s_lshl_b32 s%d, s%d, 1" % (sCI, sR)); e("s_add_u32 s%d, s%d, s%d" % (sCI, sCI, sJ))
    e("s_and_b32 s%d, s%d, 7" % (sCI, sCI))
else:
    e("s_mov_b32 s%d, 0" % sCI)
e("s_lshl_b32 s%d, s%d, 12" % (sMX, sW))
e("s_lshl_b32 s%d, s%d, 11" % (sMB, sW)); e("s_add_u32 s%d, s%d, %d" % (sMB, sMB, LB))
e("s_add_u32 s%d, s%d, %d" % (sMW, sMX, LW))
e("v_and_b32 v%d, 31, v%d" % (t0, vLANE))
e("v_lshlrev_b32 v%d, 1, v%d" % (t0, t0))
e("s_lshl_b32 s%d, s%d, 6" % (sT0, sJ))
e("v_add_u32 v%d, s%d, v%d" % (t0, sT0, t0))
e("s_lshl_b32 s%d, s%d, 11" % (sT1, sJ)); e("s_add_u32 s%d, s%d, s%d" % (sT1, sT1, sXb))
e("v_add_u32 v%d, s%d, v%d" % (t1, sT1, vL16))
e("s_cmp_ge_u32 s%d, 2" % sW)
e("s_waitcnt lgkmcnt(0)")
e("s_cselect_b32 s%d, s%d, s%d" % (SRD_B, pBIM, pBRE))
e("s_cselect_b32 s%d, s%d, s%d" % (SRD_B + 1, pBIM + 1, pBRE + 1))
e("s_load_dword s%d, s[%d:%d], 0" % (sE, pWS, pWS + 1))
srd(SRD_X, pX, 0); srd(SRD_W1, pW1, 0)
PL, PI, PD = T + 4, T + 5, T + 6
GX0, GX1, GW = T + 8, T + 12, T + 16
g.vm("global_load_ushort v%d, v%d, s[%d:%d]" % (PD, t0, pLDT, pLDT + 1), "small")
g.vm("global_load_ushort v%d, v%d, s[%d:%d]" % (PL, t0, pLRE, pLRE + 1), "small")
g.vm("global_load_ushort v%d, v%d, s[%d:%d]" % (PI, t0, pLIM, pLIM + 1), "small")
g.vm("global_load_dwordx4 %s, v%d, s[%d:%d]" % (vr(GW, 4), vL16, pGATE, pGATE + 1), "small2")
g.vm("global_load_dwordx4 %s, v%d, s[%d:%d]" % (vr(GX0, 4), t1, pX, pX + 1), "small2")
g.vm("global_load_dwordx4 %s, v%d, s[%d:%d] offset:1024" % (vr(GX1, 4), t1, pX, pX + 1), "small2")

def dma_chunk(c):
    k = c & 3
    L = []
    def I(s): L.append((s, None))
    def D(s): L.append((s, "ch%d" % c))
    I("s_lshl_b32 s%d, s%d, 7" % (sB, sCI))
    I("s_add_u32 m0, s%d, %d" % (sMX, k * 16384))
    I("s_add_u32 s%d, s%d, s%d" % (sX, sXb, sB))
    for n in range(4): D("buffer_load_dwordx4 v%d, s[%d:%d], s%d offen offset:%d lds" % (vX + n, SRD_X, SRD_X + 3, sX, 1024 * n))
    I("s_add_u32 m0, s%d, %d" % (sMB, k * 8192))
    I("s_add_u32 s%d, s%d, s%d" % (sB, sBb, sB))
    for n in range(2): D("buffer_load_dwordx4 v%d, s[%d:%d], s%d offen offset:%d lds" % (vC + n, SRD_B, SRD_B + 3, sB, 1024 * n))
    I("s_mul_i32 s%d, s%d, %d" % (sW1, sCI, 64 * 3584))
    I("s_add_u32 m0, s%d, %d" % (sMW, k * 16384))
    I("s_add_u32 s%d, s%d, s%d" % (sW1, sW1, sW1b))
    for n in range(4): D("buffer_load_dwordx4 v%d, s[%d:%d], s%d offen offset:%d lds" % (vW1 + n, SRD_W1, SRD_W1 + 3, sW1, 1024 * n))
    I("s_add_u32 s%d, s%d, 1" % (sCI, sCI))
    I("s_and_b32 s%d, s%d, 7" % (sCI, sCI))
    return L
def run(L):
    for s, tag in L:
        if tag is None: e(s)
        elif tag.startswith("ds:"): g.ds(s, tag[3:])
        else: g.vm(s, tag)
for c in range(4):
    run(dma_chunk(c))
if OPT["stamps"]:
    e("s_lshl_b32 s101, s2, 2"); e("s_add_u32 s101, s101, s%d" % sW); e("s_lshl_b32 s101, s101, 7"); e("s_add_u32 s101, s101, %d" % WS_SIZE)
srd(SRD_W2, pW2, 0); srd(SRD_WS, pWS, 0); srd(SRD_OUT, pOUT, 0)
if OPT["stamps"]:
    e("s_mov_b64 exec, 1")
    g.vm("buffer_store_dword v253, off, s[%d:%d], s101 offset:0" % (SRD_WS, SRD_WS + 3), "stamp")
    g.vm("buffer_store_dword v252, off, s[%d:%d], s101 offset:120" % (SRD_WS, SRD_WS + 3), "stamp")
    e("s_mov_b64 exec, -1")
    nstamp[0] = 1
stamp()
e("v_add_u32 v%d, 14336, v%d" % (vC + 2, vC)); e("v_add_u32 v%d, 14336, v%d" % (vC + 3, vC + 1))
for n in range(1, 4):
    e("v_add_u32 v%d, %d, v%d" % (vW2 + n, 7168 * n, vW2))
e("v_and_b32 v%d, 31, v%d" % (t0, vLANE))
e("v_lshrrev_b32 v%d, 5, v%d" % (t1, vLANE))
e("v_bfe_u32 v%d, v%d, 1, 3" % (t2, t0))
e("v_xor_b32 v%d, v%d, v%d" % (t2, t2, t1))
e("v_lshlrev_b32 v%d, 4, v%d" % (t2, t2))
e("v_lshl_add_u32 v%d, v%d, 7, v%d" % (t2, t0, t2))
e("v_add_u32 v%d, s%d, v%d" % (rdA, sMX, t2))
e("v_add_u32 v%d, 0x%x, v%d" % (rdB, LB, t2))
for s in range(1, 4):
    e("v_xor_b32 v%d, %d, v%d" % (rdA + s, 32 * s, rdA))
    e("v_xor_b32 v%d, %d, v%d" % (rdB + s, 32 * s, rdB))
e("s_lshl_b32 s%d, s%d, 1" % (sT0, sW))
e("v_add_u32 v%d, s%d, v%d" % (vQ, sT0, t1))
e("v_bfe_u32 v%d, v%d, 2, 2" % (t0, vLANE))
e("v_lshl_add_u32 v%d, v%d, 3, v%d" % (t2, t1, t0))
e("v_lshlrev_b32 v%d, 8, v%d" % (t2, t2))
e("v_lshl_add_u32 v%d, v%d, 6, v%d" % (t2, t0, t2))
e("v_bfe_u32 v%d, v%d, 4, 1" % (t3, vLANE))
e("v_lshl_add_u32 v%d, v%d, 5, v%d" % (t2, t3, t2))
e("v_and_b32 v%d, 1, v%d" % (t3, vLANE))
e("v_lshl_add_u32 v%d, v%d, 4, v%d" % (t2, t3, t2))
e("v_bfe_u32 v%d, v%d, 1, 1" % (t3, vLANE))
e("v_lshl_add_u32 v%d, v%d, 3, v%d" % (t2, t3, t2))
e("v_add_u32 v%d, 0x%x, v%d" % (rdW, LW, t2))
for s in range(1, 4):
    e("v_xor_b32 v%d, %d, v%d" % (rdW + s, 64 * s, rdW))
e("v_lshlrev_b32 v%d, 3, v0" % vTID8)
e("v_mov_b32 v%d, 0x%x" % (t3, OOB))
e("s_cmp_eq_u32 s%d, 1" % sODD)
e("s_cselect_b64 vcc, -1, 0")
e("v_cndmask_b32 v%d, v%d, v%d, vcc" % (vL16d, vL16, t3))
F = Rec()
e = F.e
F.wait_vm("small")
a_, b_ = T + 20, T + 21
e("v_lshlrev_b32 v%d, 16, v%d" % (PD, PD))
e("v_mul_f32 v%d, 0x%x, v%d" % (PD, LOG2E, PD))
e("v_exp_f32 v%d, v%d" % (PD, PD))
e("v_lshlrev_b32 v%d, 16, v%d" % (PL, PL))
e("v_lshlrev_b32 v%d, 16, v%d" % (PI, PI))
e("v_cvt_pk_bf16_f32 v%d, v%d, v%d" % (PD, PD, PD))
e("v_lshlrev_b32 v%d, 16, v%d" % (PD, PD))
e("v_mul_f32 v%d, v%d, v%d" % (a_, PD, PL))
e("v_mul_f32 v%d, v%d, v%d" % (b_, PD, PI))
e("v_mul_f32 v%d, 0x%x, v%d" % (a_, LOG2E, a_))
e("v_mul_f32 v%d, 0x%x, v%d" % (b_, INV2PI, b_))
e("v_cvt_f32_u32 v%d, v%d" % (t3, vQ))
def cpow(d, mul):
    if mul is None:
        e("v_exp_f32 v%d, v%d" % (t0, a_)); e("v_fract_f32 v%d, v%d" % (t1, b_))
    else:
        e("v_mul_f32 v%d, %s, v%d" % (t0, mul, a_)); e("v_mul_f32 v%d, %s, v%d" % (t1, mul, b_))
        e("v_exp_f32 v%d, v%d" % (t0, t0)); e("v_fract_f32 v%d, v%d" % (t1, t1))
    e("v_cos_f32 v%d, v%d" % (d, t1)); e("v_sin_f32 v%d, v%d" % (d + 1, t1))
    e("s_nop 0")
    e("v_mul_f32 v%d, v%d, v%d" % (d, d, t0)); e("v_mul_f32 v%d, v%d, v%d" % (d + 1, d + 1, t0))
cpow(cL, None)
cpow(cL16, "0x41800000")
cpow(cL1024, "0x44800000")
e("v_mul_f32 v%d, 0x41800000, v%d" % (t2, t3)); cpow(cL16q, "v%d" % t2)
e("v_mul_f32 v%d, 0x43000000, v%d" % (t2, t3)); cpow(cL128q, "v%d" % t2)
e("v_mul_f32 v%d, v%d, v%d" % (t0, PL, PL))
e("v_fma_f32 v%d, v%d, v%d, v%d" % (t0, PI, PI, t0))
e("v_rcp_f32 v%d, v%d" % (t0, t0))
e("v_add_f32 v%d, -1.0, v%d" % (t1, cL))
e("v_mul_f32 v%d, v%d, v%d" % (cCO, t1, PL))
e("v_fma_f32 v%d, v%d, v%d, v%d" % (cCO, cL + 1, PI, cCO))
e("v_mul_f32 v%d, v%d, v%d" % (cCO + 1, cL + 1, PL))
e("v_fma_f32 v%d, -v%d, v%d, v%d" % (cCO + 1, t1, PI, cCO + 1))
e("v_add_f32 v%d, v%d, v%d" % (t0, t0, t0))
e("v_mul_f32 v%d, v%d, v%d" % (cCO, cCO, t0))
e("v_mul_f32 v%d, v%d, v%d" % (cCO + 1, cCO + 1, t0))
F.wait_vm("small2")
GA0, GA1 = T + 22, T + 24
gl, gh, x0, x1, y0, y1 = T + 26, T + 27, T + 28, T + 29, T + 30, T + 31
for k in range(4):
    e("v_lshlrev_b32 v%d, 16, v%d" % (gl, GW + k)); e("v_and_b32 v%d, s%d, v%d" % (gh, sMASK, GW + k))
    e("v_lshlrev_b32 v%d, 16, v%d" % (x0, GX0 + k)); e("v_and_b32 v%d, s%d, v%d" % (x1, sMASK, GX0 + k))
    e("v_lshlrev_b32 v%d, 16, v%d" % (y0, GX1 + k)); e("v_and_b32 v%d, s%d, v%d" % (y1, sMASK, GX1 + k))
    e("v_mul_f32 v%d, v%d, v%d" % (x0, x0, gl)); e("v_mul_f32 v%d, v%d, v%d" % (x1, x1, gh))
    e("v_mul_f32 v%d, v%d, v%d" % (y0, y0, gl)); e("v_mul_f32 v%d, v%d, v%d" % (y1, y1, gh))
    e("v_cvt_pk_bf16_f32 v%d, v%d, v%d" % (x0, x0, x1)); e("v_cvt_pk_bf16_f32 v%d, v%d, v%d" % (y0, y0, y1))
    e("v_and_b32 v%d, s%d, v%d" % (x1, sMASK, x0)); e("v_lshlrev_b32 v%d, 16, v%d" % (x0, x0))
    e("v_and_b32 v%d, s%d, v%d" % (y1, sMASK, y0)); e("v_lshlrev_b32 v%d, 16, v%d" % (y0, y0))
    if k == 0:
        e("v_add_f32 v%d, v%d, v%d" % (GA0, x0, x1)); e("v_add_f32 v%d, v%d, v%d" % (GA1, y0, y1))
    else:
        e("v_add_f32 v%d, v%d, v%d" % (GA0, GA0, x0)); e("v_add_f32 v%d, v%d, v%d" % (GA1, GA1, y0))
        e("v_add_f32 v%d, v%d, v%d" % (GA0, GA0, x1)); e("v_add_f32 v%d, v%d, v%d" % (GA1, GA1, y1))
e("s_nop 0")
for d in ("row_shr:1 row_mask:0xf", "row_shr:2 row_mask:0xf", "row_shr:4 row_mask:0xf", "row_shr:8 row_mask:0xf", "row_bcast:15 row_mask:0xa", "row_bcast:31 row_mask:0xc"):
    e("v_add_f32_dpp v%d, v%d, v%d %s bank_mask:0xf" % (GA0, GA0, GA0, d))
    e("v_add_f32_dpp v%d, v%d, v%d %s bank_mask:0xf" % (GA1, GA1, GA1, d))
    e("s_nop 0")
e("v_cvt_pk_bf16_f32 v%d, v%d, v%d" % (x0, GA0, GA1))
e("v_and_b32 v%d, s%d, v%d" % (GA1, sMASK, x0)); e("v_lshlrev_b32 v%d, 16, v%d" % (GA0, x0))
e("v_mul_f32 v%d, 0x%x, v%d" % (GA0, LOG2E | 0x80000000, GA0)); e("v_mul_f32 v%d, 0x%x, v%d" % (GA1, LOG2E | 0x80000000, GA1))
e("v_exp_f32 v%d, v%d" % (GA0, GA0)); e("v_exp_f32 v%d, v%d" % (GA1, GA1))
e("s_nop 0")
e("v_add_f32 v%d, 1.0, v%d" % (GA0, GA0)); e("v_add_f32 v%d, 1.0, v%d" % (GA1, GA1))
e("v_rcp_f32 v%d, v%d" % (GA0, GA0)); e("v_rcp_f32 v%d, v%d" % (GA1, GA1))
e("v_mov_b32 v%d, s%d" % (vTAG, sTAG))
e("v_cvt_pk_bf16_f32 v%d, v%d, v%d" % (x0, GA0, GA1))
e("v_mov_b32 v%d, s%d" % (GA0 + 1, sTAG)); e("v_mov_b32 v%d, s%d" % (GA1 + 1, sTAG))
e("v_and_b32 v%d, s%d, v%d" % (GA1, sMASK, x0)); e("v_lshlrev_b32 v%d, 16, v%d" % (GA0, x0))
e("s_lshl_b32 s%d, s%d, 10" % (sT0, sR)); e("s_lshl_b32 s%d, s%d, 8" % (sT1, sW)); e("s_add_u32 s%d, s%d, s%d" % (sT0, sT0, sT1))
e("s_lshl_b32 s%d, s%d, 4" % (sT1, sJ)); e("s_add_u32 s%d, s%d, s%d" % (sT0, sT0, sT1)); e("s_add_u32 s%d, s%d, %d" % (sT0, sT0, GOFF))
e("v_cmp_eq_u32 vcc, 63, v%d" % vLANE)
e("v_mov_b32 v%d, 0x%x" % (x1, OOB))
e("v_mov_b32 v%d, s%d" % (y0, sT0))
e("v_cndmask_b32 v%d, v%d, v%d, vcc" % (y0, x1, y0))
F.vm("buffer_store_dwordx4 %s, v%d, s[%d:%d], 0 offen sc1" % (vr(GA0, 4), y0, SRD_WS, SRD_WS + 3), "gst")
e = g.e

def frag(setn, idx):
    return FR + 28 * setn + 4 * idx
def reads(n):
    c, s = n >> 2, n & 3
    k = c & 3; st = n & 1
    L = []
    L.append(("ds_read_b128 %s, v%d offset:%d" % (vr(frag(st, 0), 4), rdA + s, k * 16384), "ds:r%d_0" % n))
    L.append(("ds_read_b128 %s, v%d offset:%d" % (vr(frag(st, 1), 4), rdB + s, k * 8192), "ds:r%d_1" % n))
    L.append(("ds_read_b128 %s, v%d offset:%d" % (vr(frag(st, 2), 4), rdB + s, k * 8192 + 4096), "ds:r%d_2" % n))
    for t in range(4):
        for e2 in range(2):
            L.append(("ds_read_b64_tr_b16 %s, v%d offset:%d" % (vr(frag(st, 3 + t) + 2 * e2, 2), rdW + t, k * 16384 + s * 4096 + 1024 * e2), "ds:r%d_%d" % (n, 3 + t)))
    return L
def mfma1(n, m):
    st = n & 1
    A = vr(frag(st, 0), 4)
    if m < 2:
        acc = (ACC_RE, ACC_IM)[m]
        e("v_mfma_f32_32x32x16_bf16 %s, %s, %s, %s" % (vr(acc, 16), A, vr(frag(st, 1 + m), 4), "0" if n == 0 else vr(acc, 16)))
    else:
        acc = ACC_F + 16 * (m - 2)
        e("v_mfma_f32_32x32x16_bf16 %s, %s, %s, %s" % (vr(acc, 16), vr(frag(st, 1 + m), 4), A, "0" if n == 0 else vr(acc, 16)))

def stage_unit(kind, u, slot):
    L = []
    tag = "%s%d" % (kind, u)
    if kind == "w2":
        L.append(("s_lshl_b32 s%d, s%d, 16" % (sT3, sUI), None))
        L.append(("s_add_u32 s%d, s%d, s%d" % (sT3, sT3, sU), None))
        L.append(("s_add_u32 s%d, s%d, 1" % (sUI, sUI), None))
        L.append(("s_cmp_eq_u32 s%d, 7" % sUI, None))
        L.append(("s_cselect_b32 s%d, 0, s%d" % (sUI, sUI), None))
        sd, vo = SRD_W2, vW2
    else:
        L.append(("s_add_u32 s%d, s%d, %d" % (sT3, sROT2, u), None))
        L.append(("s_bitcmp1_b32 s%d, 1" % sT3, None))
        L.append(("s_cselect_b32 s%d, s%d, s%d" % (SRD_CR, pCIM, pCRE), None))
        L.append(("s_cselect_b32 s%d, s%d, s%d" % (SRD_CR + 1, pCIM + 1, pCRE + 1), None))
        L.append(("s_and_b32 s%d, s%d, 1" % (sT3, sT3), None))
        L.append(("s_lshl_b32 s%d, s%d, 7" % (sT3, sT3), None))
        L.append(("s_add_u32 s%d, s%d, s%d" % (sT3, sT3, sH), None))
        sd, vo = SRD_CR, vC
    for half in range(2):
        L.append(("s_add_u32 m0, s%d, %d" % (sMX if half == 0 else sMW, slot * 16384), None))
        L.append(("s_nop 0" if half == 0 else "s_add_u32 s%d, s%d, 32768" % (sT3, sT3), None))
        for n in range(4):
            L.append(("buffer_load_dwordx4 v%d, s[%d:%d], s%d offen offset:%d lds" % (vo + n, sd, sd + 3, sT3, 1024 * n), tag))
    return L

e("s_mul_i32 s%d, s%d, %d" % (sU, sW, 448 * 1024)); e("s_lshl_b32 s%d, s%d, 7" % (sT0, sCB)); e("s_add_u32 s%d, s%d, s%d" % (sU, sU, sT0))
e("s_lshl_b32 s%d, s%d, 16" % (sH, sCB)); e("s_lshl_b32 s%d, s%d, 8" % (sT0, sW)); e("s_add_u32 s%d, s%d, s%d" % (sH, sH, sT0))
if OPT["rot"]:
    if OPT["p2map"] == 48:
        e("s_and_b32 s%d, s%d, 3" % (sROT, sHB)); e("s_lshl_b32 s%d, s%d, 1" % (sROT, sROT)); e("s_add_u32 s%d, s%d, s%d" % (sROT, sROT, sCB))
    else:
        e("s_and_b32 s%d, s%d, 3" % (sROT, sCB)); e("s_lshl_b32 s%d, s%d, 1" % (sROT, sROT)); e("s_and_b32 s%d, s%d, 7" % (sT0, sHB)); e("s_add_u32 s%d, s%d, s%d" % (sROT, sROT, sT0))
    e("s_sub_u32 s%d, s%d, 7" % (sT0, sROT)); e("s_cmp_ge_u32 s%d, 7" % sROT); e("s_cselect_b32 s%d, s%d, s%d" % (sROT, sT0, sROT))
    e("s_add_u32 s%d, s%d, s%d" % (sROT2, sHB, sCB)); e("s_and_b32 s%d, s%d, 3" % (sROT2, sROT2))
else:
    e("s_mov_b32 s%d, 0" % sROT); e("s_mov_b32 s%d, 0" % sROT2)
e("s_mov_b32 s%d, s%d" % (sUI, sROT))
e("s_waitcnt lgkmcnt(0)")
e("s_mul_i32 s%d, s%d, 0x9e3779b1" % (sTAG, sE))
e("s_add_u32 s%d, s%d, 0x7f4a7c15" % (sTAG, sTAG))
stamp()
g.wait_vm("ch0")
e("s_barrier")
stamp()
run(reads(0))
fill = []
for n in range(32):
    c, s = n >> 2, n & 3
    nxt = reads(n + 1) if n < 31 else []
    per = [3, 3, 3, 2, 0, 0] if s == 2 else [2, 2, 2, 2, 2, 1]
    if s == 3: per = [0, 3, 2, 2, 2, 2]
    for m in range(6):
        if s == 3 and m == 0:
            g.wait_lg_all()
        else:
            g.wait_lg("r%d_%d" % (n, m + 1))
        mfma1(n, m)
        if s == 3 and m == 0:
            assert not fill
            if OPT["stamps"] == 2: stamp()
            if c < 7: g.wait_vm("ch%d" % (c + 1))
            e("s_barrier")
            if OPT["stamps"] == 2: stamp()
            fill = dma_chunk(c + 4) if c < 4 else stage_unit("w2", c - 4, c - 4)
            gaps = 23 if c < 7 else 5
            ndm = sum(1 for x in fill if x[1])
            dsched = [int((i + 0.5) * gaps / ndm) for i in range(ndm)]
            gi = 0
            continue
        run(nxt[:per[m]]); nxt = nxt[per[m]:]
        used = 0
        if fill:
            while dsched and dsched[0] <= gi:
                dsched.pop(0)
                while True:
                    it = fill.pop(0); run([it]); used += 1
                    if it[1]: break
                if not dsched:
                    run(fill); used += len(fill); fill = []
            gi += 1
        if n >= 2:
            F.play(g, max(0, OPT["fillb"] + (2 - per[m]) - used))
    assert not nxt
assert not fill
F.flush(g)
stamp()

rdU = 22
def svc_w2(u, slot):
    g.wait_vm("w2%d" % u)
    cnt = 0
    for sg in range(4):
        half = sg >> 1
        for dt in range(2):
            for e2 in range(2):
                if len(g.lgq) >= 14: g.wait_lg(g.lgq[7])
                g.ds("ds_read_b64_tr_b16 %s, v%d offset:%d" % (ar(32 * u + 8 * sg + 4 * dt + 2 * e2, 2), rdU + dt + 2 * half, slot * 16384 + (sg & 1) * 2048 + e2 * 512), "u%d_%d" % (u, cnt))
                cnt += 1
    g.wait_lg_all()

e("v_bfe_u32 v%d, v%d, 2, 2" % (t0, vLANE))
e("v_lshrrev_b32 v%d, 5, v%d" % (t1, vLANE))
e("v_lshl_add_u32 v%d, v%d, 3, v%d" % (t2, t1, t0))
e("v_lshlrev_b32 v%d, 7, v%d" % (t2, t2))
e("v_lshrrev_b32 v%d, 1, v%d" % (t0, t0))
e("v_lshl_add_u32 v%d, v%d, 6, v%d" % (t2, t0, t2))
e("v_bfe_u32 v%d, v%d, 4, 1" % (t3, vLANE))
e("v_lshl_add_u32 v%d, v%d, 5, v%d" % (t2, t3, t2))
e("v_and_b32 v%d, 3, v%d" % (t3, vLANE))
e("v_lshl_add_u32 v%d, v%d, 3, v%d" % (t2, t3, t2))
e("v_add_u32 v%d, s%d, v%d" % (rdU, sMX, t2))
e("v_xor_b32 v%d, 64, v%d" % (rdU + 1, rdU))
e("v_add_u32 v%d, 0x%x, v%d" % (rdU + 2, LW, rdU))
e("v_add_u32 v%d, 0x%x, v%d" % (rdU + 3, LW, rdU + 1))
H0, H1 = T + 4, T + 6
pr, pi = ACC_RE, ACC_IM
for t in range(1, 16):
    d = (H0, H1)[t & 1]
    cfma(d, d + 1, cL, cL + 1, pr, pi, ACC_RE + t, ACC_IM + t)
    pr, pi = d, d + 1
OWN = pr
e("v_add_u32 v%d, 0x%x, v%d" % (t0, SCR, vTID8))
g.ds("ds_write_b64 v%d, %s" % (t0, vr(OWN, 2)), "agg")
e("v_and_b32 v%d, 31, v%d" % (t1, vLANE))
e("v_lshlrev_b32 v%d, 3, v%d" % (t1, t1))
e("v_add_u32 v%d, 0x%x, v%d" % (t1, SCR, t1))
vSEG = T + 40
e("v_mov_b32 v%d, v%d" % (vSEG, t1))
e("v_add_u32 v%d, 2048, v%d" % (vSEG + 1, t0))
g.wait_lg_all()
e("s_barrier")
SG = T + 8
for s in range(7):
    g.ds("ds_read_b64 %s, v%d offset:%d" % (vr(SG + 2 * s, 2), vSEG, 256 * s), "sg%d" % s)
vPUB, vLB0, vLB1 = T + 24, T + 42, T + 43
e("v_and_b32 v%d, 31, v%d" % (t0, vLANE))
e("v_lshlrev_b32 v%d, 4, v%d" % (t0, t0))
e("s_lshl_b32 s%d, s%d, 9" % (sT0, sJ)); e("s_lshl_b32 s%d, s%d, 13" % (sT1, sR)); e("s_add_u32 s%d, s%d, s%d" % (sT0, sT0, sT1)); e("s_add_u32 s%d, s%d, %d" % (sT0, sT0, AGG))
e("v_add_u32 v%d, s%d, v%d" % (t0, sT0, t0))
e("v_mov_b32 v%d, 0x%x" % (t3, OOB))
e("v_cmp_eq_u32 vcc, 7, v%d" % vQ)
e("v_add_u32 v%d, 1, v%d" % (t2, vQ))
e("v_cmp_ge_u32 s[%d:%d], s%d, v%d" % (sV0, sV0 + 1, sR, t2))
e("v_cndmask_b32 v%d, v%d, v%d, vcc" % (vPUB, t3, t0))
e("v_lshlrev_b32 v%d, 13, v%d" % (t1, t2))
e("v_sub_u32 v%d, v%d, v%d" % (t1, t0, t1))
e("v_add_u32 v%d, 8, v%d" % (t2, t2))
e("v_cmp_ge_u32 s[%d:%d], s%d, v%d" % (sV1, sV1 + 1, sR, t2))
e("v_cndmask_b32 v%d, v%d, v%d, s[%d:%d]" % (vLB0, t3, t1, sV0, sV0 + 1))
e("v_subrev_u32 v%d, 0x10000, v%d" % (t1, t1))
e("v_mov_b32 v%d, 0" % vPRE); e("v_mov_b32 v%d, 0" % (vPRE + 1))
e("v_cndmask_b32 v%d, v%d, v%d, s[%d:%d]" % (vLB1, t3, t1, sV1, sV1 + 1))
for s in range(7):
    g.wait_lg("sg%d" % s)
    e("v_cmpx_lt_u32 vcc, %d, v%d" % (s, vQ))
    a = SG + 2 * s
    if s == 0:
        e("v_mov_b32 v%d, v%d" % (vPRE, a)); e("v_mov_b32 v%d, v%d" % (vPRE + 1, a + 1))
    else:
        e("v_fma_f32 v%d, v%d, v%d, v%d" % (a, cL16, vPRE, a))
        e("v_fma_f32 v%d, v%d, v%d, v%d" % (a + 1, cL16, vPRE + 1, a + 1))
        e("v_fma_f32 v%d, -v%d, v%d, v%d" % (a, cL16 + 1, vPRE + 1, a))
        e("v_fma_f32 v%d, v%d, v%d, v%d" % (vPRE + 1, cL16 + 1, vPRE, a + 1))
        e("v_mov_b32 v%d, v%d" % (vPRE, a))
e("s_mov_b64 exec, -1")
PB = T + 28
cfma(PB, PB + 1, cL16, cL16 + 1, vPRE, vPRE + 1, OWN, OWN + 1)
e("v_mov_b32 v%d, s%d" % (PB + 2, sTAG)); e("v_mov_b32 v%d, s%d" % (PB + 3, sTAG))
g.vm("buffer_store_dwordx4 %s, v%d, s[%d:%d], 0 offen sc1" % (vr(PB, 4), vPUB, SRD_WS, SRD_WS + 3), "pub")
stamp()
svc_w2(0, 0); run(stage_unit("w2", 4, 0))
e("s_lshl_b32 s%d, s%d, 2" % (sT0, sR)); e("s_add_u32 s%d, s%d, s%d" % (sT0, sT0, sW))
e("s_mul_i32 s%d, s%d, %d" % (sHF, sT0, TSTRIDE)); e("s_add_u32 s%d, s%d, %d" % (sHF, sHF, HOFF))
e("s_lshl_b32 s%d, s%d, 9" % (sFL, sT0)); e("s_lshr_b32 s%d, s%d, 2" % (sT1, sJ)); e("s_lshl_b32 s%d, s%d, 7" % (sT1, sT1)); e("s_add_u32 s%d, s%d, s%d" % (sFL, sFL, sT1))
e("s_and_b32 s%d, s%d, 3" % (sT1, sJ)); e("s_lshl_b32 s%d, s%d, 2" % (sT1, sT1)); e("s_add_u32 s%d, s%d, s%d" % (sFL, sFL, sT1)); e("s_add_u32 s%d, s%d, %d" % (sFL, sFL, FLAGS))
e("s_lshr_b32 s%d, s%d, 1" % (sT1, sJ)); e("s_mul_i32 s%d, s%d, %d" % (sT1, sT1, 14 * 1024)); e("s_lshl_b32 s%d, s%d, 13" % (sT2, sODD))
e("s_add_u32 s%d, s%d, s%d" % (sT1, sT1, sT2)); e("s_add_u32 s%d, s%d, s%d" % (sT1, sT1, sHF))
def ffn_tile(t):
    f = ACC_F + 16 * t
    for k in range(8):
        e("v_cvt_pk_bf16_f32 v%d, v%d, v%d" % (f + k, f + 2 * k, f + 2 * k + 1))
    for k in range(8):
        e("v_pk_max_i16 v%d, v%d, 0" % (f + k, f + k))
    if t == 2: e("s_add_u32 s%d, s%d, 4096" % (sT1, sT1))
    for fr in range(2):
        g.vm("buffer_store_dwordx4 %s, v%d, s[%d:%d], s%d offen offset:%d sc1" % (vr(f + 4 * fr, 4), vL16d if t == 3 else vL16, SRD_WS, SRD_WS + 3, sT1, 2048 * (t & 1) + 1024 * fr), "hf")
ffn_tile(0); ffn_tile(1)
svc_w2(1, 1); run(stage_unit("w2", 5, 1))
ffn_tile(2); ffn_tile(3)
for t in range(16):
    ur, ui = ACC_RE + t, ACC_IM + t
    tt = T + 32 + (t & 1)
    e("v_mul_f32 v%d, v%d, v%d" % (tt, ur, cCO + 1))
    e("v_mul_f32 v%d, v%d, v%d" % (ur, ur, cCO))
    e("v_fma_f32 v%d, -v%d, v%d, v%d" % (ur, ui, cCO + 1, ur))
    e("v_fma_f32 v%d, v%d, v%d, v%d" % (ui, ui, cCO, tt))
svc_w2(2, 2); run(stage_unit("w2", 6, 2))
svc_w2(3, 3); run(stage_unit("c", 3, 3))
stamp()
A0, A1 = T + 8, T + 12
def lb_loads(tag):
    g.vm("buffer_load_dwordx4 %s, v%d, s[%d:%d], 0 offen sc1" % (vr(A0, 4), vLB0, SRD_WS, SRD_WS + 3), tag)
    g.vm("buffer_load_dwordx4 %s, v%d, s[%d:%d], 0 offen sc1" % (vr(A1, 4), vLB1, SRD_WS, SRD_WS + 3), tag)
lb_loads("lb")
g.wait_vm("hf")
e("s_mov_b64 exec, 1")
g.vm("buffer_store_dword v%d, off, s[%d:%d], s%d sc1" % (vTAG, SRD_WS, SRD_WS + 3, sFL), "fl0")
e("s_mov_b64 exec, -1")
e("s_mov_b32 s%d, 0" % sCNT)
g.wait_vm("lb")
g.label("L_lb_chk")
e("v_cmp_ne_u32 vcc, s%d, v%d" % (sTAG, A0 + 2))
e("v_cmp_ne_u32 s[%d:%d], s%d, v%d" % (sTP, sTP + 1, sTAG, A1 + 2))
e("s_and_b64 vcc, vcc, s[%d:%d]" % (sV0, sV0 + 1))
e("s_and_b64 s[%d:%d], s[%d:%d], s[%d:%d]" % (sTP, sTP + 1, sTP, sTP + 1, sV1, sV1 + 1))
e("s_or_b64 vcc, vcc, s[%d:%d]" % (sTP, sTP + 1))
e("s_cbranch_scc0 L_lb_ok")
e("s_add_u32 s%d, s%d, 1" % (sCNT, sCNT))
e("s_cmp_ge_u32 s%d, 0x8000" % sCNT)
e("s_cbranch_scc1 L_lb_ok")
sv = list(g.vmq); lb_loads("x"); g.vmq = sv
e("s_waitcnt vmcnt(0)")
e("s_branch L_lb_chk")
g.label("L_lb_ok")
cfma(A0, A0 + 1, cL1024, cL1024 + 1, A1, A1 + 1, A0, A0 + 1)
cmul(A1, A1 + 1, cL128q, cL128q + 1, A0, A0 + 1)
g.ds("ds_write_b64 v%d, %s" % (vSEG + 1, vr(A1, 2)), "pw")
g.wait_lg_all()
e("s_barrier")
stamp()
for s in range(8):
    g.ds("ds_read_b64 %s, v%d offset:%d" % (vr(SG + 2 * s, 2), vSEG, 2048 + 256 * s), "pp%d" % s)
vTW, vTR = T + 32, T + 34
e("v_and_b32 v%d, 31, v%d" % (t0, vLANE))
e("v_bfe_u32 v%d, v%d, 1, 2" % (t1, vLANE))
e("v_lshrrev_b32 v%d, 5, v%d" % (t2, vLANE))
e("v_lshlrev_b32 v%d, 1, v%d" % (t3, t2))
e("v_xor_b32 v%d, v%d, v%d" % (t1, t1, t3))
e("v_lshlrev_b32 v%d, 4, v%d" % (t1, t1))
e("v_lshl_add_u32 v%d, v%d, 6, v%d" % (t1, t0, t1))
e("v_add_u32 v%d, s%d, v%d" % (vTW, sMB, t1))
e("v_xor_b32 v%d, 16, v%d" % (vTW + 1, vTW))
e("v_bfe_u32 v%d, v%d, 2, 2" % (t0, vLANE))
e("v_lshl_add_u32 v%d, v%d, 3, v%d" % (t2, t2, t0))
e("v_lshrrev_b32 v%d, 1, v%d" % (t0, t0))
e("v_and_b32 v%d, 1, v%d" % (t1, vLANE))
e("v_lshlrev_b32 v%d, 1, v%d" % (t1, t1))
e("v_bfe_u32 v%d, v%d, 4, 1" % (t3, vLANE))
e("v_add_u32 v%d, v%d, v%d" % (t1, t1, t3))
e("v_xor_b32 v%d, v%d, v%d" % (t1, t1, t0))
e("v_lshlrev_b32 v%d, 4, v%d" % (t1, t1))
e("v_lshl_add_u32 v%d, v%d, 6, v%d" % (t1, t2, t1))
e("v_bfe_u32 v%d, v%d, 1, 1" % (t3, vLANE))
e("v_lshl_add_u32 v%d, v%d, 3, v%d" % (t1, t3, t1))
e("v_add_u32 v%d, s%d, v%d" % (vTR, sMB, t1))
e("v_xor_b32 v%d, 32, v%d" % (vTR + 1, vTR))
e("v_add_u32 v%d, 256, v%d" % (vTR + 1, vTR + 1))
for s in range(1, 8):
    g.wait_lg("pp%d" % s)
    e("v_pk_add_f32 %s, %s, %s" % (vr(SG, 2), vr(SG, 2), vr(SG + 2 * s, 2)))
cfma(vPRE, vPRE + 1, cL16q, cL16q + 1, SG, SG + 1, vPRE, vPRE + 1)
cmul(SG, SG + 1, cCO, cCO + 1, vPRE, vPRE + 1)
pr, pi = SG, SG + 1
for t in range(16):
    cfma(ACC_RE + t, ACC_IM + t, cL, cL + 1, pr, pi, ACC_RE + t, ACC_IM + t)
    pr, pi = ACC_RE + t, ACC_IM + t
PK = ACC_F
for k in range(8):
    e("v_cvt_pk_bf16_f32 v%d, v%d, v%d" % (PK + k, ACC_RE + 2 * k, ACC_RE + 2 * k + 1))
for k in range(8):
    e("v_cvt_pk_bf16_f32 v%d, -v%d, -v%d" % (PK + 8 + k, ACC_IM + 2 * k, ACC_IM + 2 * k + 1))
for x in range(2):
    for p in range(2):
        g.ds("ds_write_b128 v%d, %s offset:%d" % (vTW + p, vr(PK + 8 * x + 4 * p, 4), 8192 * x), "tw")
e("s_lshr_b32 s%d, s%d, 2" % (sT0, sJ)); e("s_lshl_b32 s%d, s%d, 14" % (sT0, sT0)); e("s_and_b32 s%d, s%d, 3" % (sT1, sJ)); e("s_lshl_b32 s%d, s%d, 11" % (sT1, sT1))
e("s_add_u32 s%d, s%d, s%d" % (sT0, sT0, sT1)); e("s_add_u32 s%d, s%d, s%d" % (sT0, sT0, sHF)); e("s_add_u32 s%d, s%d, %d" % (sT0, sT0, 112 * 1024))
e("s_add_u32 s%d, s%d, 8192" % (sT1, sT0))
g.wait_lg_all()
TF = ACC_F + 16
for x in range(2):
    for f in range(2):
        for e2 in range(2):
            g.ds("ds_read_b64_tr_b16 %s, v%d offset:%d" % (vr(TF + 8 * x + 4 * f + 2 * e2, 2), vTR + e2, 8192 * x + 1024 * f), "tr%d%d" % (x, f))
for x in range(2):
    for f in range(2):
        g.wait_lg("tr%d%d" % (x, f))
        g.vm("buffer_store_dwordx4 %s, v%d, s[%d:%d], s%d offen offset:%d sc1" % (vr(TF + 8 * x + 4 * f, 4), vL16, SRD_WS, SRD_WS + 3, sT1 if x else sT0, 1024 * f), "hs")
stamp()
svc_w2(4, 0); run(stage_unit("c", 0, 0))
svc_w2(5, 1); run(stage_unit("c", 1, 1))
g.wait_vm("hs")
e("s_add_u32 s%d, s%d, 32768" % (sT0, sFL))
e("s_mov_b64 exec, 1")
g.vm("buffer_store_dword v%d, off, s[%d:%d], s%d sc1" % (vTAG, SRD_WS, SRD_WS + 3, sT0), "fl1")
e("s_mov_b64 exec, -1")
svc_w2(6, 2); run(stage_unit("c", 2, 2))
stamp()

RING = OPT["ring"]
RV = 48
ACCB, ACCA, CF = 112, 176, 240
vFLG, vH1, vGA = 2, 3, 4
FLD = 5
GG = 10
OMG = 14
XD = 26
XR = T + 40
rdC1 = 6
def ring(i, tt):
    i %= RING
    return (vr(RV + 8 * i + 4 * tt, 4) if i < 8 else ar(224 + 8 * (i - 8) + 4 * tt, 4))
e("v_bfe_u32 v%d, v%d, 2, 1" % (t0, vLANE))
e("v_lshlrev_b32 v%d, 9, v%d" % (t0, t0))
e("v_and_b32 v%d, 3, v%d" % (t1, vLANE))
e("v_lshl_add_u32 v%d, v%d, 2, v%d" % (t0, t1, t0))
e("s_lshl_b32 s%d, s%d, 10" % (sT0, sHB)); e("s_lshl_b32 s%d, s%d, 7" % (sT1, sW)); e("s_add_u32 s%d, s%d, s%d" % (sT0, sT0, sT1)); e("s_add_u32 s%d, s%d, %d" % (sT0, sT0, FLAGS))
e("v_add_u32 v%d, s%d, v%d" % (vFLG, sT0, t0))
def flag_load(kind, tag):
    g.vm("buffer_load_dword v%d, v%d, s[%d:%d], %s offen sc1" % (FLD, vFLG, SRD_WS, SRD_WS + 3, "s%d" % sT3 if kind else "0"), tag)
flag_load(0, "pf0")
e("v_add_u32 v%d, 0x%x, v%d" % (vH1, TSTRIDE, vL16))
e("v_lshrrev_b32 v%d, 4, v%d" % (t0, vLANE))
e("v_and_b32 v%d, 15, v%d" % (t1, vLANE))
e("v_lshlrev_b32 v%d, 3, v%d" % (t1, t1))
e("v_lshl_add_u32 v%d, v%d, 10, v%d" % (t0, t0, t1))
e("s_lshl_b32 s%d, s%d, 16" % (sT0, sHB)); e("s_lshl_b32 s%d, s%d, 14" % (sT1, sW)); e("s_add_u32 s%d, s%d, s%d" % (sT0, sT0, sT1))
e("s_lshl_b32 s%d, s%d, 7" % (sT1, sCB)); e("s_add_u32 s%d, s%d, s%d" % (sT0, sT0, sT1))
e("v_add_u32 v%d, s%d, v%d" % (t1, sT1, t1))
vOUT = 16
e("v_add_u32 v%d, s%d, v%d" % (t0, sT0, t0))
e("v_lshlrev_b32 v%d, 1, v%d" % (vOUT, t0))
for it in range(4):
    e("s_mov_b32 s%d, %d" % (sT2, 4096 * it))
    g.vm("buffer_load_dwordx2 %s, v%d, s[%d:%d], s%d offen" % (vr(XR + 2 * it, 2), t0, SRD_X, SRD_X + 3, sT2), "xd")
g.vm("global_load_dwordx2 %s, v%d, s[%d:%d]" % (vr(XR + 8, 2), t1, pDSK, pDSK + 1), "xd")
e("v_bfe_u32 v%d, v%d, 2, 1" % (t0, vLANE))
e("v_bfe_u32 v%d, v%d, 3, 2" % (t1, vLANE))
e("v_and_b32 v%d, 3, v%d" % (t2, vLANE))
e("v_lshl_add_u32 v%d, v%d, 2, v%d" % (t1, t1, t2))
vTJ = 17
e("v_lshl_add_u32 v%d, v%d, 4, v%d" % (vTJ, t0, t1))
e("s_lshl_b32 s%d, s%d, 9" % (sT0, sHB)); e("s_add_u32 s%d, s%d, %d" % (sT0, sT0, GOFF))
e("v_lshl_add_u32 v%d, v%d, 3, s%d" % (vGA, vTJ, sT0))
def g_loads(tag):
    g.vm("buffer_load_dwordx2 %s, v%d, s[%d:%d], 0 offen sc1" % (vr(GG, 2), vGA, SRD_WS, SRD_WS + 3), tag)
    g.vm("buffer_load_dwordx2 %s, v%d, s[%d:%d], 0 offen offset:256 sc1" % (vr(GG + 2, 2), vGA, SRD_WS, SRD_WS + 3), tag)
g_loads("gl")
for s in range(4):
    e("v_add_u32 v%d, 0x%x, v%d" % (rdC1 + s, LW, rdA + s))
e("s_mul_i32 s%d, s%d, %d" % (sH, sHB, 2 * TSTRIDE)); e("s_add_u32 s%d, s%d, %d" % (sH, sH, HOFF))
e("s_lshl_b32 s%d, s%d, 14" % (sU, sW)); e("s_add_u32 s%d, s%d, s%d" % (sU, sU, sH)); e("s_add_u32 s%d, s%d, %d" % (sU, sU, 112 * 1024))
e("s_mul_i32 s%d, s%d, %d" % (sT0, sW, 28 * 1024)); e("s_add_u32 s%d, s%d, s%d" % (sH, sH, sT0))
e("s_mov_b32 s%d, 32768" % sT3)
e("s_mov_b32 s%d, 0" % sCNT)
def flag_check(kind, lbl):
    g.label(lbl + "_chk")
    e("v_cmp_ne_u32 vcc, s%d, v%d" % (sTAG, FLD))
    e("s_add_u32 s%d, s%d, 1" % (sCNT, sCNT))
    e("s_cbranch_vccz %s_ok" % lbl)
    e("s_cmp_ge_u32 s%d, 0x8000" % sCNT)
    e("s_cbranch_scc1 %s_ok" % lbl)
    sv = list(g.vmq); flag_load(kind, "x"); g.vmq = sv
    e("s_waitcnt vmcnt(0)")
    e("s_branch %s_chk" % lbl)
    g.label(lbl + "_ok")
g.wait_vm("pf0")
flag_check(0, "L_f0")
stamp()
def hload(n):
    L = []
    if n % 4 == 0:
        if n < 28:
            L.append(("s_lshl_b32 s%d, s%d, 12" % (sT2, sUI), None))
            L.append(("s_add_u32 s%d, s%d, s%d" % (sT2, sT2, sH), None))
            L.append(("s_add_u32 s%d, s%d, 1" % (sUI, sUI), None))
            L.append(("s_cmp_eq_u32 s%d, 7" % sUI, None))
            L.append(("s_cselect_b32 s%d, 0, s%d" % (sUI, sUI), None))
        else:
            L.append(("s_add_u32 s%d, s%d, %d" % (sT2, sROT2, (n - 28) // 4), None))
            L.append(("s_and_b32 s%d, s%d, 3" % (sT2, sT2), None))
            L.append(("s_lshl_b32 s%d, s%d, 12" % (sT2, sT2), None))
            L.append(("s_add_u32 s%d, s%d, s%d" % (sT2, sT2, sU), None))
    for tt in range(2):
        L.append(("buffer_load_dwordx4 %s, v%d, s[%d:%d], s%d offen offset:%d sc1" % (ring(n, tt), vH1 if tt else vL16, SRD_WS, SRD_WS + 3, sT2, 1024 * (n & 3)), "h%d" % n))
    return L
for n in range(RING):
    run(hload(n))
g.wait_vm("gl")
DS = XR + 10
e("v_lshlrev_b32 v%d, 16, v%d" % (DS, XR + 8)); e("v_and_b32 v%d, s%d, v%d" % (DS + 1, sMASK, XR + 8))
e("v_lshlrev_b32 v%d, 16, v%d" % (DS + 2, XR + 9)); e("v_and_b32 v%d, s%d, v%d" % (DS + 3, sMASK, XR + 9))
for it in range(4):
    for k in range(2):
        d = XD + 4 * it + 2 * k
        e("v_lshlrev_b32 v%d, 16, v%d" % (d, XR + 2 * it + k)); e("v_and_b32 v%d, s%d, v%d" % (d + 1, sMASK, XR + 2 * it + k))
        e("v_mul_f32 v%d, v%d, v%d" % (d, d, DS + 2 * k)); e("v_mul_f32 v%d, v%d, v%d" % (d + 1, d + 1, DS + 2 * k + 1))
        e("v_cvt_pk_bf16_f32 v%d, v%d, v%d" % (d, d, d + 1))
        e("v_and_b32 v%d, s%d, v%d" % (d + 1, sMASK, d)); e("v_lshlrev_b32 v%d, 16, v%d" % (d, d))
e("s_mov_b32 s%d, 0" % sCNT)
g.label("L_g_chk")
e("v_cmp_ne_u32 vcc, s%d, v%d" % (sTAG, GG + 1))
e("v_cmp_ne_u32 s[%d:%d], s%d, v%d" % (sTP, sTP + 1, sTAG, GG + 3))
e("s_add_u32 s%d, s%d, 1" % (sCNT, sCNT))
e("s_or_b64 vcc, vcc, s[%d:%d]" % (sTP, sTP + 1))
e("s_cbranch_scc0 L_g_ok")
e("s_cmp_ge_u32 s%d, 0x8000" % sCNT)
e("s_cbranch_scc1 L_g_ok")
sv = list(g.vmq); g_loads("x"); g.vmq = sv
e("s_waitcnt vmcnt(0)")
e("s_branch L_g_chk")
g.label("L_g_ok")
e("v_sub_f32 v%d, 1.0, v%d" % (OMG, GG)); e("v_sub_f32 v%d, 1.0, v%d" % (OMG + 1, GG + 2))
e("v_cvt_pk_bf16_f32 v%d, v%d, v%d" % (OMG, OMG, OMG + 1))
e("v_and_b32 v%d, s%d, v%d" % (OMG + 1, sMASK, OMG)); e("v_lshlrev_b32 v%d, 16, v%d" % (OMG, OMG))
e("v_lshlrev_b32 v%d, 2, v%d" % (t0, vTJ))
e("v_add_u32 v%d, 0x%x, v%d" % (t0, SCR + 4096, t0))
g.ds("ds_write_b32 v%d, v%d" % (t0, GG), "gt"); g.ds("ds_write_b32 v%d, v%d offset:128" % (t0, GG + 2), "gt")
e("s_mov_b32 s%d, 0" % sCNT)
def creads(n):
    m = n - 28
    b, sg = m >> 2, m & 3
    st = m & 1
    return [("ds_read_b128 %s, v%d offset:%d" % (vr(CF + 8 * st + 4 * dt, 4), (rdC1 if dt else rdA) + sg, b * 16384), "ds:c%d" % n) for dt in range(2)]
PF1 = 28 - RING
scale = [(ACCB + i) for i in range(64)]
for n in range(44):
    if n == PF1 - 2: flag_load(1, "pf1")
    if n == 26:
        for b in range(4): g.wait_vm("c%d" % b)
    g.wait_vm("h%d" % n)
    if n >= 28: g.wait_lg("c%d" % n)
    acc0 = ACCB if n < 28 else ACCA
    first = n == 0 or n == 28
    k = 0
    for dt in range(2):
        for tt in range(2):
            A = ar(8 * n + 4 * dt, 4) if n < 28 else vr(CF + 8 * ((n - 28) & 1) + 4 * dt, 4)
            acc = vr(acc0 + 16 * (2 * dt + tt), 16)
            e("v_mfma_f32_32x32x16_bf16 %s, %s, %s, %s" % (acc, A, ring(n, tt), "0" if first else acc))
            if k == 0 and 27 <= n < 43: run(creads(n + 1))
            if n >= 30 and scale:
                for _ in range(2):
                    if scale:
                        r = scale.pop(0)
                        e("v_mul_f32 v%d, v%d, v%d" % (r, r, OMG + (((r - ACCB) >> 4) & 1)))
            k += 1
    if n + RING < 44:
        if n == PF1:
            g.wait_vm("pf1")
            flag_check(1, "L_f1")
        run(hload(n + RING))
assert not scale
stamp()
t0, t1, t2, t3 = 48, 49, 50, 51
vPW = 18
e("v_and_b32 v%d, 3, v%d" % (t0, vTJ))
e("v_lshrrev_b32 v%d, 4, v%d" % (t1, vTJ))
e("v_lshl_add_u32 v%d, v%d, 2, v%d" % (t0, t1, t0))
e("v_lshrrev_b32 v%d, 5, v%d" % (t1, vLANE))
e("v_xor_b32 v%d, v%d, v%d" % (t0, t0, t1))
e("v_lshlrev_b32 v%d, 4, v%d" % (t0, t0))
e("v_lshl_add_u32 v%d, v%d, 7, v%d" % (t0, vTJ, t0))
e("v_add_u32 v%d, s%d, v%d" % (vPW, sMX, t0))
for a in range(1, 4):
    e("v_xor_b32 v%d, %d, v%d" % (vPW + a, 32 * a, vPW))
vPR = 22
e("v_lshrrev_b32 v%d, 4, v%d" % (t0, vLANE))
e("s_and_b32 s%d, s%d, 1" % (sT0, sW))
e("s_lshl_b32 s%d, s%d, 2" % (sT1, sT0))
e("v_add_u32 v%d, s%d, v%d" % (t1, sT1, t0))
e("v_and_b32 v%d, 7, v%d" % (t2, vLANE))
e("v_xor_b32 v%d, v%d, v%d" % (t1, t1, t2))
e("v_lshlrev_b32 v%d, 4, v%d" % (t1, t1))
e("v_lshl_add_u32 v%d, v%d, 7, v%d" % (t1, t0, t1))
e("v_bfe_u32 v%d, v%d, 3, 1" % (t2, vLANE))
e("v_lshl_add_u32 v%d, v%d, 15, v%d" % (t1, t2, t1))
e("s_lshl_b32 s%d, s%d, 11" % (sT0, sT0)); e("s_lshr_b32 s%d, s%d, 1" % (sT1, sW)); e("s_lshl_b32 s%d, s%d, 14" % (sT1, sT1)); e("s_add_u32 s%d, s%d, s%d" % (sT0, sT0, sT1))
e("v_add_u32 v%d, s%d, v%d" % (vPR, sT0, t1))
e("s_lshl_b32 s%d, s%d, 6" % (sT0, sW)); e("s_add_u32 s%d, s%d, %d" % (sT0, sT0, SCR + 4096))
e("v_lshl_add_u32 v%d, v%d, 2, s%d" % (vPR + 1, t0, sT0))
for tile in range(4):
    tt = tile & 1
    for a in range(4):
        r = 16 * tile + 4 * a
        for k in range(4):
            e("v_fma_f32 v%d, v%d, v%d, v%d" % (ACCB + r + k, ACCA + r + k, GG + 2 * tt, ACCB + r + k))
        if len(g.lgq) >= 14: g.wait_lg(g.lgq[5])
        g.ds("ds_write_b128 v%d, %s offset:%d" % (vPW + a, vr(ACCB + r, 4), tile * 16384), "pw%d" % r)
g.wait_lg_all()
e("s_barrier")
RB = RV
GR = ACCA
for it in range(4):
    g.ds("ds_read_b32 v%d, v%d offset:%d" % (GR + it, vPR + 1, 16 * it), "gr")
for it in range(4):
    for src in range(4):
        if len(g.lgq) >= 15: g.wait_lg(g.lgq[3])
        g.ds("ds_read_b128 %s, v%d offset:%d" % (vr(RB + 16 * it + 4 * src, 4), vPR, src * 4096 + it * 512), "rb%d" % it)
e("s_cmp_eq_u32 s%d, 31" % sHB); e("s_cselect_b32 s%d, s%d, 1" % (sT0, sCB)); e("s_or_b32 s%d, s%d, s%d" % (sT0, sT0, sW))
for it in range(4):
    g.wait_lg("rb%d" % it)
    b = RB + 16 * it
    for k in range(4):
        e("v_fma_f32 v%d, v%d, v%d, v%d" % (b + k, XD + 4 * it + k, GR + it, b + k))
    for k in (0, 2):
        e("v_pk_add_f32 %s, %s, %s" % (vr(b + 8 + k, 2), vr(b + 8 + k, 2), vr(b + 12 + k, 2)))
        e("v_pk_add_f32 %s, %s, %s" % (vr(b + k, 2), vr(b + k, 2), vr(b + 4 + k, 2)))
    for k in (0, 2):
        e("v_pk_add_f32 %s, %s, %s" % (vr(b + k, 2), vr(b + k, 2), vr(b + 8 + k, 2)))
    e("s_mov_b32 s%d, %d" % (sT1, 8192 * it))
    g.vm("buffer_store_dwordx4 %s, v%d, s[%d:%d], s%d offen" % (vr(b, 4), vOUT, SRD_OUT, SRD_OUT + 3, sT1), "out")
stamp()
if OPT["stamps"]:
    e("s_waitcnt vmcnt(0)")
    stamp()
    e("s_memrealtime s[82:83]"); e("s_waitcnt lgkmcnt(0)"); e("v_mov_b32 v252, s82"); e("s_mov_b64 exec, 1")
    e("buffer_store_dword v252, off, s[%d:%d], s101 offset:124" % (SRD_WS, SRD_WS + 3))
    e("s_mov_b64 exec, -1")
e("s_cmp_lg_u32 s%d, 0" % sT0)
e("s_cbranch_scc1 L_end2")
e("s_mov_b64 exec, 1")
e("buffer_store_dword v%d, off, s[%d:%d], 0 sc1" % (vTAG, SRD_WS, SRD_WS + 3))
g.label("L_end2")
if OPT["diag"] > 0:
    e("s_sub_u32 s26, s26, s24")
    if OPT["diagcyc"]:
        e("s_lshr_b32 s26, s26, 1")
    else:
        e("s_mul_i32 s26, s26, 10")
    e("s_memrealtime s[24:25]"); e("s_waitcnt lgkmcnt(0)"); e("s_add_u32 s26, s26, s24")
    g.label("L_spin")
    e("s_memrealtime s[24:25]"); e("s_waitcnt lgkmcnt(0)"); e("s_sub_u32 s27, s26, s24"); e("s_cmp_gt_i32 s27, 0"); e("s_cbranch_scc1 L_spin")
g.label("L_end")
e("s_endpgm")
e('.section .rodata,"a"')
e(".p2align 6")
e(".amdhsa_kernel %s_kernel" % NAME)
for l in ("next_free_vgpr 512", "next_free_sgpr 102", "accum_offset 256", "group_segment_fixed_size 0", "kernarg_size 128", "user_sgpr_count 2",
          "user_sgpr_kernarg_segment_ptr 1", "system_sgpr_workgroup_id_x 1"):
    g.lines.append("  .amdhsa_" + l)
e(".end_amdhsa_kernel")

errs = check_hazards(g.lines)
for x in errs:
    print("HAZARD", x)
open(sys.argv[1], "w").write(out_hdr + g.text())
print("lines", len(g.lines), "stamps", nstamp[0], "hazards", len(errs))
```

```python
import sys
from asmlib import *

NAME = "gated_mix__ssm_conv_s5__dense_activation_relu__prompt"
OPT = dict(stamps=0, p1map=84, rot1=2, pre=1, fillb=2, diag=-1, diagcyc=0, fwait=25, nh0=8, pfs=18, hsc=1, psc=1)
for a in sys.argv[2:]:
    k, v = a.split("=")
    assert k in OPT, k
    OPT[k] = int(v)

AGG = 4096
GOFF = AGG + 16 * 8192
FLAGS = GOFF + 2048 * 8
FLAGS2 = FLAGS + 65536
HOFF = 393216
TSTRIDE = 176 * 1024
PART = HOFF + 64 * TSTRIDE
WS_SIZE = PART + 256 * 4 * 6144
OOB = 0x80000000
LX, LW, LB = 0, 65536, 131072
SCR = LB + 2 * 8192
GT = SCR + 4096
TRB = LB + 3 * 8192
SRD_X, SRD_B, SRD_W1, SRD_W2, SRD_CR, SRD_CI, SRD_WS, SRD_OUT = 4, 8, 12, 16, 20, 24, 28, 32
sW, sR, sJ, sQ, sC, sTAG, sMASK = 36, 37, 38, 39, 40, 41, 42
sX, sB, sW1 = 43, 44, 45
sMX, sMB, sMW = 46, 47, 48
sT0, sT1, sT2, sT3 = 49, 50, 51, 52
sXb, sBb, sW1b, sCI = 54, 55, 56, 57
sV0, sV1 = 54, 56
sTP = 58
sCNT = 60
sE = 63
pX, pLRE, pLIM, pBRE, pBIM, pCRE, pCIM, pLDT, pDSK, pBX, pW1, pW2, pGATE, pOUT, pDBG, pWS = range(64, 96, 2)
sST = 96
sODD = 98
sHF, sFL = 99, 100
sV2b, sKSW, sCb, sHO, sHS, sHq = 53, 3, 61, 62, 82, 83
sDG = 84
vLANE, vTID8 = 1, 0
vX = 2; vC = 6; vW1 = 10; vW2 = 14
rdA = 18; rdB = 22; rdW = 26
cL, cL16, cL16q, cL128q, cL1024, cCO = 30, 32, 34, 36, 38, 40
vQ, vL16, vL16d = 42, 43, 44
vTAG = 45
vPRE = 46
FR = 48
ACC_RE, ACC_IM, ACC_F = 104, 120, 136
T = 200
LOG2E = 0x3fb8aa3b
INV2PI = 0x3e22f983

g = Asm()
e = g.e
nstamp = [0]
ndiag = [1]
def stamp():
    if OPT["diag"] >= 0:
        if ndiag[0] == OPT["diag"]:
            g.e("%s s[%d:%d]" % ("s_memtime" if OPT["diagcyc"] else "s_memrealtime", sDG, sDG + 1)); g.e("s_waitcnt lgkmcnt(0)"); g.lgq = []
        ndiag[0] += 1
    if not OPT["stamps"]:
        return
    i = nstamp[0]; nstamp[0] += 1
    assert i < 30
    g.e("s_memtime s[%d:%d]" % (sST, sST + 1))
    g.e("s_waitcnt lgkmcnt(0)")
    g.lgq = []
    g.e("v_mov_b32 v207, s%d" % sST)
    g.e("s_mov_b64 exec, 1")
    g.vm("buffer_store_dword v207, off, s[%d:%d], s101 offset:%d" % (SRD_WS, SRD_WS + 3, 4 * i), "stamp")
    g.e("s_mov_b64 exec, -1")

def cfma(dr, di, ar_, ai, br, bi, cr, ci):
    e("v_fma_f32 v%d, v%d, v%d, v%d" % (dr, ar_, br, cr))
    e("v_fma_f32 v%d, v%d, v%d, v%d" % (di, ar_, bi, ci))
    e("v_fma_f32 v%d, -v%d, v%d, v%d" % (dr, ai, bi, dr))
    e("v_fma_f32 v%d, v%d, v%d, v%d" % (di, ai, br, di))
def cmul(dr, di, ar_, ai, br, bi):
    e("v_mul_f32 v%d, v%d, v%d" % (dr, ar_, br))
    e("v_mul_f32 v%d, v%d, v%d" % (di, ar_, bi))
    e("v_fma_f32 v%d, -v%d, v%d, v%d" % (dr, ai, bi, dr))
    e("v_fma_f32 v%d, v%d, v%d, v%d" % (di, ai, br, di))
def srd(base, p):
    e("s_mov_b32 s%d, s%d" % (base, p))
    e("s_mov_b32 s%d, s%d" % (base + 1, p + 1))
def S(fmt, *a):
    e(fmt % a)
def run(L):
    for s, tag in L:
        if tag is None: g.e(s)
        elif tag.startswith("ds:"): g.ds(s, tag[3:])
        else: g.vm(s, tag)
WSR = "s[%d:%d]" % (SRD_WS, SRD_WS + 3)
HSC = " sc1" if OPT["hsc"] else ""

hdr = open("cdna_kernels/%s.s.ref" % NAME).read().split("; Override launch")[0]
out_hdr = hdr + "; @launch grid=(256,1,1) block=(256,1,1) lds=163840\n"
e('.amdgcn_target "amdgcn-amd-amdhsa--gfx950"')
e(".text")
e(".globl %s_kernel" % NAME)
e(".p2align 8")
e(".type %s_kernel,@function" % NAME)
g.label("%s_kernel" % NAME)
e("s_cmp_ge_u32 s2, 256")
e("s_cbranch_scc1 L_end")
if OPT["stamps"]:
    e("s_memrealtime s[82:83]"); e("s_memtime s[96:97]"); e("s_waitcnt lgkmcnt(0)"); e("v_mov_b32 v252, s82"); e("v_mov_b32 v253, s96")
if OPT["diag"] >= 0:
    e("%s s[96:97]" % ("s_memtime" if OPT["diagcyc"] else "s_memrealtime"))
e("s_load_dwordx16 s[64:79], s[0:1], 0")
e("s_load_dwordx16 s[80:95], s[0:1], 64")
e("v_lshrrev_b32 v2, 6, v0")
S("v_and_b32 v%d, 63, v0", vLANE)
S("v_readfirstlane_b32 s%d, v2", sW)
t0, t1, t2, t3 = T, T + 1, T + 2, T + 3
S("v_lshrrev_b32 v%d, 3, v%d", t0, vLANE)
S("v_and_b32 v%d, 7, v%d", t1, vLANE)
S("v_lshrrev_b32 v%d, 1, v%d", t2, t0)
S("v_xor_b32 v%d, v%d, v%d", t3, t1, t2)
S("v_lshlrev_b32 v%d, 4, v%d", t3, t3)
S("v_lshl_add_u32 v%d, v%d, 10, v%d", vC, t0, t3)
S("v_lshrrev_b32 v%d, 2, v%d", t1, t0)
S("v_and_b32 v%d, 3, v%d", t2, t0)
S("v_lshl_add_u32 v%d, v%d, 4, v%d", t1, t1, t2)
S("v_lshl_add_u32 v%d, v%d, 10, v%d", vX, t1, t3)
S("v_xor_b32 v%d, 64, v%d", vX + 1, vX)
S("v_add_u32 v%d, 3072, v%d", vX + 1, vX + 1)
S("v_add_u32 v%d, 6144, v%d", vX + 2, vX)
S("v_add_u32 v%d, 6144, v%d", vX + 3, vX + 1)
S("s_bfe_u32 s%d, s2, 0x30003", sT2)
S("s_and_b32 s%d, s2, 1", sR); S("s_lshl_b32 s%d, s%d, 3", sR, sR); S("s_add_u32 s%d, s%d, s%d", sR, sR, sT2)
S("s_lshr_b32 s%d, s2, 6", sC)
S("s_bfe_u32 s%d, s2, 0x20001", sQ)
S("s_mov_b32 s%d, 0x%x", SRD_X + 2, 2048 * 1024); S("s_mov_b32 s%d, 0x20000", SRD_X + 3)
if OPT["rot1"] == 2:
    S("s_add_u32 s%d, s%d, s%d", sCI, sR, sC); S("s_and_b32 s%d, s%d, 1", sCI, sCI); S("s_lshl_b32 s%d, s%d, 2", sCI, sCI)
elif OPT["rot1"] == 4:
    S("s_add_u32 s%d, s%d, s%d", sCI, sR, sC); S("s_and_b32 s%d, s%d, 3", sCI, sCI); S("s_lshl_b32 s%d, s%d, 1", sCI, sCI)
else:
    S("s_mov_b32 s%d, 0", sCI)
S("s_lshl_b32 s%d, s%d, 17", sXb, sR); S("s_lshl_b32 s%d, s%d, 15", sT0, sW); S("s_add_u32 s%d, s%d, s%d", sXb, sXb, sT0)
S("s_lshl_b32 s%d, s%d, 12", sMX, sW)
S("s_lshl_b32 s%d, s%d, 7", sB, sCI)
S("s_mov_b32 m0, s%d", sMX)
S("s_add_u32 s%d, s%d, s%d", sX, sXb, sB)
e("s_waitcnt lgkmcnt(0)")
srd(SRD_X, pX)
for n in range(4):
    g.vm("buffer_load_dwordx4 v%d, s[%d:%d], s%d offen offset:%d lds" % (vX + n, SRD_X, SRD_X + 3, sX, 1024 * n), "ch0")
S("s_load_dword s%d, s[%d:%d], 0", sE, pWS, pWS + 1)
S("s_lshl_b32 s%d, s%d, 2", sJ, sQ); S("s_add_u32 s%d, s%d, s%d", sJ, sJ, sC)
for b_, sz in ((SRD_B, 512 * 1024), (SRD_W1, 512 * 3584)):
    S("s_mov_b32 s%d, 0x%x", b_ + 2, sz)
    S("s_mov_b32 s%d, 0x20000", b_ + 3)
S("v_xor_b32 v%d, 64, v%d", vC + 1, vC)
S("v_add_u32 v%d, 7168, v%d", vC + 1, vC + 1)
S("s_lshl_b32 s%d, s%d, 15", sBb, sJ); S("s_and_b32 s%d, s%d, 1", sT0, sW); S("s_lshl_b32 s%d, s%d, 14", sT0, sT0); S("s_add_u32 s%d, s%d, s%d", sBb, sBb, sT0)
S("s_lshl_b32 s%d, s%d, 11", sMB, sW); S("s_add_u32 s%d, s%d, %d", sMB, sMB, LB)
S("s_cmp_ge_u32 s%d, 2", sW)
S("s_cselect_b32 s%d, s%d, s%d", SRD_B, pBIM, pBRE)
S("s_cselect_b32 s%d, s%d, s%d", SRD_B + 1, pBIM + 1, pBRE + 1)
S("s_mov_b32 m0, s%d", sMB)
S("s_add_u32 s%d, s%d, s%d", sB, sBb, sB)
for n in range(2):
    g.vm("buffer_load_dwordx4 v%d, s[%d:%d], s%d offen offset:%d lds" % (vC + n, SRD_B, SRD_B + 3, sB, 1024 * n), "ch0")
S("v_lshrrev_b32 v%d, 4, v%d", t0, vLANE)
S("v_and_b32 v%d, 15, v%d", t1, vLANE)
S("v_lshlrev_b32 v%d, 2, v%d", t2, t0)
S("v_xor_b32 v%d, v%d, v%d", vW2, t1, t2)
S("v_lshrrev_b32 v%d, 2, v%d", t2, vW2)
S("v_cmp_eq_u32 vcc, 3, v%d", t2)
S("v_mul_u32_u24 v%d, 3584, v%d", t0, t0)
S("v_lshl_add_u32 v%d, v%d, 4, v%d", vW1, vW2, t0)
S("s_and_b32 s%d, s%d, 1", sODD, sC)
S("s_cselect_b64 s[%d:%d], vcc, 0", sTP, sTP + 1)
S("v_mov_b32 v%d, 0x%x", t3, OOB)
S("v_lshlrev_b32 v%d, 4, v%d", vL16, vLANE)
S("v_cndmask_b32 v%d, v%d, v%d, s[%d:%d]", vW1, vW1, t3, sTP, sTP + 1)
for n in range(1, 4):
    S("v_add_u32 v%d, %d, v%d", vW1 + n, 13312 * n, vW1)
S("s_lshr_b32 s%d, s%d, 1", sT0, sJ); S("s_mul_i32 s%d, s%d, 448", sT0, sT0); S("s_lshl_b32 s%d, s%d, 8", sT1, sODD); S("s_add_u32 s%d, s%d, s%d", sT0, sT0, sT1)
S("s_mul_i32 s%d, s%d, %d", sW1b, sW, 16 * 3584); S("s_add_u32 s%d, s%d, s%d", sW1b, sW1b, sT0)
S("s_add_u32 s%d, s%d, %d", sMW, sMX, LW)
srd(SRD_W1, pW1)
S("s_mul_i32 s%d, s%d, %d", sW1, sCI, 64 * 3584)
S("s_mov_b32 m0, s%d", sMW)
S("s_add_u32 s%d, s%d, s%d", sW1, sW1, sW1b)
for n in range(4):
    g.vm("buffer_load_dwordx4 v%d, s[%d:%d], s%d offen offset:%d lds" % (vW1 + n, SRD_W1, SRD_W1 + 3, sW1, 1024 * n), "ch0")
S("s_add_u32 s%d, s%d, 1", sCI, sCI)
S("v_and_b32 v%d, 31, v%d", t0, vLANE)
S("v_lshlrev_b32 v%d, 1, v%d", t0, t0)
S("s_lshl_b32 s%d, s%d, 6", sT0, sJ)
S("v_add_u32 v%d, s%d, v%d", t0, sT0, t0)
S("s_lshl_b32 s%d, s%d, 11", sT1, sJ); S("s_add_u32 s%d, s%d, s%d", sT1, sT1, sXb)
S("v_add_u32 v%d, s%d, v%d", t1, sT1, vL16)

def dma_chunk(c):
    k = c & 3
    L = []
    def I(s): L.append((s, None))
    def D(s): L.append((s, "ch%d" % c))
    I("s_lshl_b32 s%d, s%d, 7" % (sB, sCI))
    I("s_add_u32 m0, s%d, %d" % (sMX, k * 16384))
    I("s_add_u32 s%d, s%d, s%d" % (sX, sXb, sB))
    for n in range(4): D("buffer_load_dwordx4 v%d, s[%d:%d], s%d offen offset:%d lds" % (vX + n, SRD_X, SRD_X + 3, sX, 1024 * n))
    I("s_add_u32 m0, s%d, %d" % (sMB, k * 8192))
    I("s_add_u32 s%d, s%d, s%d" % (sB, sBb, sB))
    for n in range(2): D("buffer_load_dwordx4 v%d, s[%d:%d], s%d offen offset:%d lds" % (vC + n, SRD_B, SRD_B + 3, sB, 1024 * n))
    I("s_mul_i32 s%d, s%d, %d" % (sW1, sCI, 64 * 3584))
    I("s_add_u32 m0, s%d, %d" % (sMW, k * 16384))
    I("s_add_u32 s%d, s%d, s%d" % (sW1, sW1, sW1b))
    for n in range(4): D("buffer_load_dwordx4 v%d, s[%d:%d], s%d offen offset:%d lds" % (vW1 + n, SRD_W1, SRD_W1 + 3, sW1, 1024 * n))
    I("s_add_u32 s%d, s%d, 1" % (sCI, sCI))
    I("s_and_b32 s%d, s%d, 7" % (sCI, sCI))
    return L
PL, PI, PD = T + 4, T + 5, T + 6
GX0, GX1, GW = T + 8, T + 12, T + 16
g.vm("global_load_dwordx4 %s, v%d, s[%d:%d]" % (vr(GW, 4), vL16, pGATE, pGATE + 1), "small2")
g.vm("global_load_dwordx4 %s, v%d, s[%d:%d]" % (vr(GX0, 4), t1, pX, pX + 1), "small2")
g.vm("global_load_dwordx4 %s, v%d, s[%d:%d] offset:1024" % (vr(GX1, 4), t1, pX, pX + 1), "small2")
g.vm("global_load_ushort v%d, v%d, s[%d:%d]" % (PD, t0, pLDT, pLDT + 1), "small")
g.vm("global_load_ushort v%d, v%d, s[%d:%d]" % (PL, t0, pLRE, pLRE + 1), "small")
g.vm("global_load_ushort v%d, v%d, s[%d:%d]" % (PI, t0, pLIM, pLIM + 1), "small")
for b, sz in ((SRD_W2, 1792 * 1024), (SRD_CR, 512 * 1024), (SRD_CI, 512 * 1024), (SRD_WS, WS_SIZE + (256 * 4 * 128 if OPT["stamps"] else 0)), (SRD_OUT, 2048 * 2048)):
    S("s_mov_b32 s%d, 0x%x", b + 2, sz)
    S("s_mov_b32 s%d, 0x20000", b + 3)
S("s_mov_b32 s%d, 0xffff0000", sMASK)
srd(SRD_W2, pW2); srd(SRD_CR, pCRE); srd(SRD_CI, pCIM); srd(SRD_WS, pWS); srd(SRD_OUT, pOUT)
if OPT["stamps"]:
    e("s_lshl_b32 s101, s2, 2"); S("s_add_u32 s101, s101, s%d", sW); e("s_lshl_b32 s101, s101, 7"); S("s_add_u32 s101, s101, %d", WS_SIZE)
    e("s_mov_b64 exec, 1")
    g.vm("buffer_store_dword v253, off, %s, s101 offset:0" % WSR, "stamp")
    g.vm("buffer_store_dword v252, off, %s, s101 offset:120" % WSR, "stamp")
    e("s_mov_b64 exec, -1")
    nstamp[0] = 1
stamp()
S("v_and_b32 v%d, 31, v%d", t0, vLANE)
S("v_lshrrev_b32 v%d, 5, v%d", t1, vLANE)
S("v_bfe_u32 v%d, v%d, 1, 3", t2, t0)
S("v_xor_b32 v%d, v%d, v%d", t2, t2, t1)
S("v_lshlrev_b32 v%d, 4, v%d", t2, t2)
S("v_lshl_add_u32 v%d, v%d, 7, v%d", t2, t0, t2)
S("v_add_u32 v%d, s%d, v%d", rdA, sMX, t2)
S("v_add_u32 v%d, 0x%x, v%d", rdB, LB, t2)
for s in range(1, 4):
    S("v_xor_b32 v%d, %d, v%d", rdA + s, 32 * s, rdA)
    S("v_xor_b32 v%d, %d, v%d", rdB + s, 32 * s, rdB)
S("s_lshl_b32 s%d, s%d, 1", sT0, sW)
S("v_add_u32 v%d, s%d, v%d", vQ, sT0, t1)
S("v_bfe_u32 v%d, v%d, 2, 2", t0, vLANE)
S("v_lshl_add_u32 v%d, v%d, 3, v%d", t2, t1, t0)
S("v_lshlrev_b32 v%d, 8, v%d", t2, t2)
S("v_lshl_add_u32 v%d, v%d, 6, v%d", t2, t0, t2)
S("v_bfe_u32 v%d, v%d, 4, 1", t3, vLANE)
S("v_lshl_add_u32 v%d, v%d, 5, v%d", vPRE, t3, t2)
S("v_and_b32 v%d, 1, v%d", t3, vLANE)
S("v_lshl_add_u32 v%d, v%d, 4, v%d", t2, t3, vPRE)
S("v_bfe_u32 v%d, v%d, 1, 1", t3, vLANE)
S("v_lshl_add_u32 v%d, v%d, 3, v%d", t2, t3, t2)
S("v_add_u32 v%d, 0x%x, v%d", rdW, LW, t2)
for s in range(1, 4):
    S("v_xor_b32 v%d, %d, v%d", rdW + s, 64 * s, rdW)
for c in range(1, OPT["pre"]):
    run(dma_chunk(c))
e("s_waitcnt lgkmcnt(0)")
S("s_mul_i32 s%d, s%d, 0x9e3779b1", sTAG, sE)
S("s_add_u32 s%d, s%d, 0x7f4a7c15", sTAG, sTAG)

F = Rec()
e = F.e
S("v_lshlrev_b32 v%d, 3, v0", vTID8)
S("v_mov_b32 v%d, 0x%x", t3, OOB)
S("s_cmp_eq_u32 s%d, 1\ns_cselect_b64 s[%d:%d], -1, 0", sODD, sTP, sTP + 1)
F.items[-2:] = [(2, (lambda a, b: (lambda gg: (a(gg), b(gg))))(F.items[-2][1], F.items[-1][1]))]
S("v_mov_b32 v%d, s%d", vTAG, sTAG)
S("v_cndmask_b32 v%d, v%d, v%d, s[%d:%d]", vL16d, vL16, t3, sTP, sTP + 1)
S("v_add_u32 v%d, 14336, v%d", vC + 2, vC); S("v_add_u32 v%d, 14336, v%d", vC + 3, vC + 1)
S("s_lshl_b32 s%d, s%d, 2", sT0, sQ)
S("v_add_u32 v%d, s%d, v%d", vW2, sT0, vW2)
S("v_and_b32 v%d, 15, v%d", vW2, vW2)
S("v_lshlrev_b32 v%d, 4, v%d", vW2, vW2)
S("v_lshrrev_b32 v%d, 4, v%d", t0, vLANE)
S("v_lshl_add_u32 v%d, v%d, 10, v%d", vW2, t0, vW2)
for n in range(1, 4):
    S("v_add_u32 v%d, %d, v%d", vW2 + n, 3072 * n, vW2)
S("s_mul_i32 s%d, s%d, %d", sV2b, sQ, 448 * 1024); S("s_lshl_b32 s%d, s%d, 8", sT0, sC); S("s_add_u32 s%d, s%d, s%d", sV2b, sV2b, sT0)
S("s_lshr_b32 s%d, s%d, 1", sT0, sC); S("s_mul_i32 s%d, s%d, 14", sHO, sT0); S("s_lshl_b32 s%d, s%d, 3", sT1, sODD); S("s_add_u32 s%d, s%d, s%d", sHO, sHO, sT1)
S("s_mov_b32 s%d, s%d", sKSW, sHO)
S("s_add_u32 s%d, s%d, s%d", sT1, sW, sQ); S("s_and_b32 s%d, s%d, 3", sT1, sT1); S("s_lshl_b32 s%d, s%d, 15", sT1, sT1)
S("s_lshl_b32 s%d, s%d, 17", sCb, sC); S("s_add_u32 s%d, s%d, s%d", sCb, sCb, sT1)
S("s_lshl_b32 s%d, s%d, 8", sT1, sQ); S("s_add_u32 s%d, s%d, s%d", sCb, sCb, sT1)
S("s_lshl_b32 s%d, s%d, 7", sT0, sT0); S("s_add_u32 s%d, s%d, s%d", sCb, sCb, sT0)
nearly = len(F.items)
F.wait_vm("small2")
GA0, GA1 = T + 22, T + 24
gl, gh, x0, x1, y0, y1 = T + 26, T + 27, T + 28, T + 29, T + 30, T + 31
for k in range(4):
    S("v_lshlrev_b32 v%d, 16, v%d", gl, GW + k); S("v_and_b32 v%d, s%d, v%d", gh, sMASK, GW + k)
    S("v_lshlrev_b32 v%d, 16, v%d", x0, GX0 + k); S("v_and_b32 v%d, s%d, v%d", x1, sMASK, GX0 + k)
    S("v_lshlrev_b32 v%d, 16, v%d", y0, GX1 + k); S("v_and_b32 v%d, s%d, v%d", y1, sMASK, GX1 + k)
    S("v_mul_f32 v%d, v%d, v%d", x0, x0, gl); S("v_mul_f32 v%d, v%d, v%d", x1, x1, gh)
    S("v_mul_f32 v%d, v%d, v%d", y0, y0, gl); S("v_mul_f32 v%d, v%d, v%d", y1, y1, gh)
    S("v_cvt_pk_bf16_f32 v%d, v%d, v%d", x0, x0, x1); S("v_cvt_pk_bf16_f32 v%d, v%d, v%d", y0, y0, y1)
    S("v_and_b32 v%d, s%d, v%d", x1, sMASK, x0); S("v_lshlrev_b32 v%d, 16, v%d", x0, x0)
    S("v_and_b32 v%d, s%d, v%d", y1, sMASK, y0); S("v_lshlrev_b32 v%d, 16, v%d", y0, y0)
    if k == 0:
        S("v_add_f32 v%d, v%d, v%d", GA0, x0, x1); S("v_add_f32 v%d, v%d, v%d", GA1, y0, y1)
    else:
        S("v_add_f32 v%d, v%d, v%d", GA0, GA0, x0); S("v_add_f32 v%d, v%d, v%d", GA1, GA1, y0)
        S("v_add_f32 v%d, v%d, v%d", GA0, GA0, x1); S("v_add_f32 v%d, v%d, v%d", GA1, GA1, y1)
e("s_nop 0")
for d in ("row_shr:1 row_mask:0xf", "row_shr:2 row_mask:0xf", "row_shr:4 row_mask:0xf", "row_shr:8 row_mask:0xf", "row_bcast:15 row_mask:0xa", "row_bcast:31 row_mask:0xc"):
    S("v_add_f32_dpp v%d, v%d, v%d %s bank_mask:0xf", GA0, GA0, GA0, d)
    S("v_add_f32_dpp v%d, v%d, v%d %s bank_mask:0xf", GA1, GA1, GA1, d)
    e("s_nop 0")
S("v_cvt_pk_bf16_f32 v%d, v%d, v%d", x0, GA0, GA1)
S("v_and_b32 v%d, s%d, v%d", GA1, sMASK, x0); S("v_lshlrev_b32 v%d, 16, v%d", GA0, x0)
S("v_mul_f32 v%d, 0x%x, v%d", GA0, LOG2E | 0x80000000, GA0); S("v_mul_f32 v%d, 0x%x, v%d", GA1, LOG2E | 0x80000000, GA1)
S("v_exp_f32 v%d, v%d", GA0, GA0); S("v_exp_f32 v%d, v%d", GA1, GA1)
e("s_nop 0")
S("v_add_f32 v%d, 1.0, v%d", GA0, GA0); S("v_add_f32 v%d, 1.0, v%d", GA1, GA1)
S("v_rcp_f32 v%d, v%d", GA0, GA0); S("v_rcp_f32 v%d, v%d", GA1, GA1)
S("v_cmp_eq_u32 vcc, 63, v%d", vLANE)
S("v_cvt_pk_bf16_f32 v%d, v%d, v%d", x0, GA0, GA1)
S("v_mov_b32 v%d, s%d", GA0 + 1, sTAG); S("v_mov_b32 v%d, s%d", GA1 + 1, sTAG)
S("v_and_b32 v%d, s%d, v%d", GA1, sMASK, x0); S("v_lshlrev_b32 v%d, 16, v%d", GA0, x0)
S("s_lshl_b32 s%d, s%d, 10", sT0, sR); S("s_lshl_b32 s%d, s%d, 8", sT1, sW); S("s_add_u32 s%d, s%d, s%d", sT0, sT0, sT1)
S("s_add_u32 s%d, s%d, %d", sT0, sT0, GOFF)
S("s_lshl_b32 s%d, s%d, 4", sT1, sJ); S("s_add_u32 s%d, s%d, s%d", sT1, sT1, sT0)
S("v_mov_b32 v%d, s%d", y0, sT1)
S("v_cndmask_b32 v%d, v%d, v%d, vcc", y0, t3, y0)
F.vm("buffer_store_dwordx4 %s, v%d, %s, 0 offen sc1" % (vr(GA0, 4), y0, WSR), "gst")
vTJ, vGA = T + 32, T + 33
S("v_bfe_u32 v%d, v%d, 2, 1", t0, vLANE)
S("v_bfe_u32 v%d, v%d, 3, 2", t1, vLANE)
S("v_and_b32 v%d, 3, v%d", t2, vLANE)
S("v_lshl_add_u32 v%d, v%d, 2, v%d", t1, t1, t2)
S("v_lshl_add_u32 v%d, v%d, 4, v%d", vTJ, t0, t1)
S("v_lshl_add_u32 v%d, v%d, 3, s%d", vGA, vTJ, sT0)
F.wait_vm("small")
a_, b_ = T + 20, T + 21
S("v_lshlrev_b32 v%d, 16, v%d", PD, PD)
S("v_mul_f32 v%d, 0x%x, v%d", PD, LOG2E, PD)
S("v_exp_f32 v%d, v%d", PD, PD)
S("v_lshlrev_b32 v%d, 16, v%d", PL, PL)
S("v_lshlrev_b32 v%d, 16, v%d", PI, PI)
S("v_cvt_pk_bf16_f32 v%d, v%d, v%d", PD, PD, PD)
S("v_lshlrev_b32 v%d, 16, v%d", PD, PD)
S("v_mul_f32 v%d, v%d, v%d", a_, PD, PL)
S("v_mul_f32 v%d, v%d, v%d", b_, PD, PI)
S("v_mul_f32 v%d, 0x%x, v%d", a_, LOG2E, a_)
S("v_mul_f32 v%d, 0x%x, v%d", b_, INV2PI, b_)
S("v_cvt_f32_u32 v%d, v%d", t3, vQ)
def cpow(d, mul):
    if mul is None:
        S("v_exp_f32 v%d, v%d", t0, a_); S("v_fract_f32 v%d, v%d", t1, b_)
    else:
        S("v_mul_f32 v%d, %s, v%d", t0, mul, a_); S("v_mul_f32 v%d, %s, v%d", t1, mul, b_)
        S("v_exp_f32 v%d, v%d", t0, t0); S("v_fract_f32 v%d, v%d", t1, t1)
    S("v_cos_f32 v%d, v%d", d, t1); S("v_sin_f32 v%d, v%d", d + 1, t1)
    e("s_nop 0")
    S("v_mul_f32 v%d, v%d, v%d", d, d, t0); S("v_mul_f32 v%d, v%d, v%d", d + 1, d + 1, t0)
cpow(cL, None)
cpow(cL16, "0x41800000")
cpow(cL1024, "0x44800000")
S("v_mul_f32 v%d, 0x41800000, v%d", t2, t3); cpow(cL16q, "v%d" % t2)
S("v_mul_f32 v%d, 0x43000000, v%d", t2, t3); cpow(cL128q, "v%d" % t2)
S("v_mul_f32 v%d, v%d, v%d", t0, PL, PL)
S("v_fma_f32 v%d, v%d, v%d, v%d", t0, PI, PI, t0)
S("v_rcp_f32 v%d, v%d", t0, t0)
S("v_add_f32 v%d, -1.0, v%d", t1, cL)
S("v_mul_f32 v%d, v%d, v%d", cCO, t1, PL)
S("v_fma_f32 v%d, v%d, v%d, v%d", cCO, cL + 1, PI, cCO)
S("v_mul_f32 v%d, v%d, v%d", cCO + 1, cL + 1, PL)
S("v_fma_f32 v%d, -v%d, v%d, v%d", cCO + 1, t1, PI, cCO + 1)
S("v_add_f32 v%d, v%d, v%d", t0, t0, t0)
S("v_mul_f32 v%d, v%d, v%d", cCO, cCO, t0)
S("v_mul_f32 v%d, v%d, v%d", cCO + 1, cCO + 1, t0)
S("s_lshl_b32 s%d, s%d, 2", sT0, sR); S("s_add_u32 s%d, s%d, s%d", sT0, sT0, sW)
S("s_mul_i32 s%d, s%d, %d", sHF, sT0, TSTRIDE); S("s_add_u32 s%d, s%d, %d", sHF, sHF, HOFF)
S("s_lshl_b32 s%d, s%d, 9", sFL, sT0); S("s_lshl_b32 s%d, s%d, 7", sT1, sQ); S("s_add_u32 s%d, s%d, s%d", sFL, sFL, sT1); S("s_add_u32 s%d, s%d, %d", sFL, sFL, FLAGS)
S("s_mul_i32 s%d, s%d, %d", sHq, sQ, 28 * 1024); S("s_add_u32 s%d, s%d, s%d", sHq, sHq, sHF)
S("s_lshl_b32 s%d, s%d, 10", sHO, sHO)
S("s_lshl_b32 s%d, s%d, 14", sHS, sQ); S("s_add_u32 s%d, s%d, s%d", sHS, sHS, sHF); S("s_add_u32 s%d, s%d, %d", sHS, sHS, 112 * 1024)
e = g.e

def frag(setn, idx):
    return FR + 28 * setn + 4 * idx
def reads(n):
    c, s = n >> 2, n & 3
    k = c & 3; st = n & 1
    L = []
    L.append(("ds_read_b128 %s, v%d offset:%d" % (vr(frag(st, 0), 4), rdA + s, k * 16384), "ds:r%d_0" % n))
    L.append(("ds_read_b128 %s, v%d offset:%d" % (vr(frag(st, 1), 4), rdB + s, k * 8192), "ds:r%d_1" % n))
    L.append(("ds_read_b128 %s, v%d offset:%d" % (vr(frag(st, 2), 4), rdB + s, k * 8192 + 4096), "ds:r%d_2" % n))
    for t in range(4):
        for e2 in range(2):
            L.append(("ds_read_b64_tr_b16 %s, v%d offset:%d" % (vr(frag(st, 3 + t) + 2 * e2, 2), rdW + t, k * 16384 + s * 4096 + 1024 * e2), "ds:r%d_%d" % (n, 3 + t)))
    return L
def mfma1(n, m):
    st = n & 1
    A = vr(frag(st, 0), 4)
    if m < 2:
        acc = (ACC_RE, ACC_IM)[m]
        S("v_mfma_f32_32x32x16_bf16 %s, %s, %s, %s", vr(acc, 16), A, vr(frag(st, 1 + m), 4), "0" if n == 0 else vr(acc, 16))
    else:
        acc = ACC_F + 16 * (m - 2)
        S("v_mfma_f32_32x32x16_bf16 %s, %s, %s, %s", vr(acc, 16), vr(frag(st, 1 + m), 4), A, "0" if n == 0 else vr(acc, 16))

USLOT = {0: ("X", 0), 1: ("W", 0), 2: ("X", 1), 3: ("W", 1), 4: ("X", 2), 5: ("W", 2), 6: ("W", 3), 7: ("X", 3), 8: ("B", 0), 9: ("X", 0), 10: ("X", 1)}
def unit(v):
    L = []
    reg, k = USLOT[v]
    if v < 7:
        if v == 0:
            L.append(("s_add_u32 s%d, s%d, s%d" % (sT3, sW, sKSW), None))
        else:
            L.append(("s_add_u32 s%d, s%d, %d" % (sT3, sW, 4 * v), None))
            L.append(("s_sub_u32 s%d, s%d, 6" % (sT2, sT3), None))
            L.append(("s_cmp_lt_u32 s%d, s%d" % (sT2, sKSW), None))
            L.append(("s_cselect_b32 s%d, s%d, s%d" % (sT2, sT2, sT3), None))
            if v == 1:
                L.append(("s_add_u32 s%d, s%d, s%d" % (sT3, sT3, sKSW), None))
                L.append(("s_cmp_lt_u32 s%d, 2" % sW, None))
                L.append(("s_cselect_b32 s%d, s%d, s%d" % (sT2, sT3, sT2), None))
            L.append(("s_mov_b32 s%d, s%d" % (sT3, sT2), None))
        L.append(("s_lshl_b32 s%d, s%d, 14" % (sT3, sT3), None))
        L.append(("s_add_u32 m0, s%d, %d" % (sMX if reg == "X" else sMW, k * 16384), None))
        L.append(("s_add_u32 s%d, s%d, s%d" % (sT3, sT3, sV2b), None))
        sd, vo, so = SRD_W2, vW2, sT3
    else:
        b = v - 7
        L.append(("s_add_u32 m0, s%d, %d" % (sMX, LB if reg == "B" else k * 16384), None))
        if b & 1:
            L.append(("s_xor_b32 s%d, s%d, 128" % (sT3, sCb), None)); so = sT3
        else:
            L.append(("s_nop 0", None)); so = sCb
        sd, vo = (SRD_CR if b < 2 else SRD_CI), vC
    for n in range(4):
        L.append(("buffer_load_dwordx4 v%d, s[%d:%d], s%d offen offset:%d lds" % (vo + n, sd, sd + 3, so, 1024 * n), "v%d" % v))
    return L

class Spread:
    def __init__(self, items, gaps):
        self.items = list(items)
        n = sum(1 for x in items if x[1])
        self.sched = [int((i + 0.5) * gaps / n) for i in range(n)] if n else []
        self.gi = 0
    def gap(self):
        used = 0
        while self.sched and self.sched[0] <= self.gi:
            self.sched.pop(0)
            while True:
                it = self.items.pop(0); run([it]); used += 1
                if it[1]: break
            if not self.sched:
                run(self.items); used += len(self.items); self.items = []
        self.gi += 1
        return used
    def flush(self):
        run(self.items); self.items = []; self.sched = []

GG = T + 34
def g_load(tag):
    g.vm("buffer_load_dwordx2 %s, v%d, %s, 0 offen sc1" % (vr(GG, 2), vGA, WSR), tag)

stamp()
g.wait_vm("ch0")
e("s_barrier")
stamp()
run(reads(0))
pre_items = []
for c in range(max(1, OPT["pre"]), 4):
    pre_items += dma_chunk(c)
sp = Spread(pre_items, 18)
nplayed = 0
for n in range(32):
    c, s = n >> 2, n & 3
    nxt = reads(n + 1) if n < 31 else []
    per = [3, 3, 3, 2, 0, 0] if s == 2 else [2, 2, 2, 2, 2, 1]
    if s == 3: per = [0, 3, 2, 2, 2, 2]
    for m in range(6):
        if s == 3 and m == 0:
            g.wait_lg_all()
        else:
            g.wait_lg("r%d_%d" % (n, m + 1))
        mfma1(n, m)
        if s == 3 and m == 0:
            assert not sp.items
            if OPT["stamps"] == 2: stamp()
            if c < 7: g.wait_vm("ch%d" % (c + 1))
            e("s_barrier")
            if c < 4: sp = Spread(dma_chunk(c + 4), 23)
            elif c < 7: sp = Spread(unit(2 * (c - 4)) + unit(2 * (c - 4) + 1), 23)
            else: sp = Spread([], 1)
            if c == 4: assert len(F.items) <= ntot - nearly, "staging scalars not ready"
            if c == 6: g_load("gl")
            continue
        run(nxt[:per[m]]); nxt = nxt[per[m]:]
        used = sp.gap()
        if n == 0: ntot = len(F.items)
        if n >= 1:
            F.play(g, max(0, OPT["fillb"] + (2 - per[m]) - used))
    assert not nxt
print("fillers left after loop:", len(F.items))
F.flush(g)
stamp()

GREG = 208
OM = T + 36
late = Spread(unit(6) + unit(7), 8)
vSEG, vLB0, vLB1 = 204, 98, 99
rdVW, rdVX, rdCX, rdCB = 26, 2, 18, 22
S("v_and_b32 v%d, 3, v%d", t2, vLANE)
S("v_lshl_add_u32 v%d, v%d, 3, v%d", rdVX, t2, vPRE)
S("v_add_u32 v%d, 0x%x, v%d", rdVW, LW, rdVX)
for s_ in range(1, 4):
    S("v_xor_b32 v%d, %d, v%d", rdVX + s_, 64 * s_, rdVX)
    S("v_xor_b32 v%d, %d, v%d", rdVW + s_, 64 * s_, rdVW)
H0, H1 = 100, 102
pr, pi = ACC_RE, ACC_IM
for t in range(1, 16):
    d = (H0, H1)[t & 1]
    cfma(d, d + 1, cL, cL + 1, pr, pi, ACC_RE + t, ACC_IM + t)
    pr, pi = d, d + 1
    if t % 2 == 1: late.gap()
OWN = pr
S("v_add_u32 v%d, 0x%x, v%d", t0, SCR, vTID8)
g.ds("ds_write_b64 v%d, %s" % (t0, vr(OWN, 2)), "agg")
S("v_and_b32 v%d, 31, v%d", t1, vLANE)
S("v_lshlrev_b32 v%d, 3, v%d", t1, t1)
S("v_add_u32 v%d, 0x%x, v%d", vSEG, SCR, t1)
S("v_add_u32 v%d, 2048, v%d", vSEG + 1, t0)
vPUB = 206
S("v_lshlrev_b32 v%d, 1, v%d", t0, t1)
S("s_lshl_b32 s%d, s%d, 9", sT0, sJ); S("s_lshl_b32 s%d, s%d, 13", sT1, sR); S("s_add_u32 s%d, s%d, s%d", sT0, sT0, sT1); S("s_add_u32 s%d, s%d, %d", sT0, sT0, AGG)
S("v_add_u32 v%d, s%d, v%d", t0, sT0, t0)
g.wait_vm("v1")
g.wait_lg_all()
e("s_barrier")
SG = 224 + 14
for s_ in range(7):
    g.ds("ds_read_b64 %s, v%d offset:%d" % (vr(SG + 2 * s_, 2), vSEG, 256 * s_), "sg%d" % s_)
S("v_mov_b32 v%d, 0x%x", t3, OOB)
S("v_cmp_eq_u32 vcc, 7, v%d", vQ)
S("v_add_u32 v%d, 1, v%d", t2, vQ)
S("v_cmp_ge_u32 s[%d:%d], s%d, v%d", sV0, sV0 + 1, sR, t2)
S("v_cndmask_b32 v%d, v%d, v%d, vcc", vPUB, t3, t0)
S("v_lshlrev_b32 v%d, 13, v%d", t1, t2)
S("v_sub_u32 v%d, v%d, v%d", t1, t0, t1)
S("v_add_u32 v%d, 8, v%d", t2, t2)
S("v_cmp_ge_u32 s[%d:%d], s%d, v%d", sV1, sV1 + 1, sR, t2)
S("v_cndmask_b32 v%d, v%d, v%d, s[%d:%d]", vLB0, t3, t1, sV0, sV0 + 1)
S("v_subrev_u32 v%d, 0x10000, v%d", t1, t1)
S("v_mov_b32 v%d, 0", vPRE); S("v_mov_b32 v%d, 0", vPRE + 1)
S("v_cndmask_b32 v%d, v%d, v%d, s[%d:%d]", vLB1, t3, t1, sV1, sV1 + 1)
for s_ in range(7):
    g.wait_lg("sg%d" % s_)
    S("v_cmpx_lt_u32 vcc, %d, v%d", s_, vQ)
    a = SG + 2 * s_
    if s_ == 0:
        S("v_mov_b32 v%d, v%d", vPRE, a); S("v_mov_b32 v%d, v%d", vPRE + 1, a + 1)
    else:
        S("v_fma_f32 v%d, v%d, v%d, v%d", a, cL16, vPRE, a)
        S("v_fma_f32 v%d, v%d, v%d, v%d", a + 1, cL16, vPRE + 1, a + 1)
        S("v_fma_f32 v%d, -v%d, v%d, v%d", a, cL16 + 1, vPRE + 1, a)
        S("v_fma_f32 v%d, v%d, v%d, v%d", vPRE + 1, cL16 + 1, vPRE, a + 1)
        S("v_mov_b32 v%d, v%d", vPRE, a)
e("s_mov_b64 exec, -1")
PB = 224
cfma(PB, PB + 1, cL16, cL16 + 1, vPRE, vPRE + 1, OWN, OWN + 1)
S("v_mov_b32 v%d, s%d", PB + 2, sTAG); S("v_mov_b32 v%d, s%d", PB + 3, sTAG)
g.vm("buffer_store_dwordx4 %s, v%d, %s, 0 offen sc1" % (vr(PB, 4), vPUB, WSR), "pub")
stamp()
S("s_lshl_b32 s%d, s%d, 7", sT0, sW); S("s_add_u32 s%d, s%d, %d", sT0, sT0, GT)
S("v_lshl_add_u32 v%d, v%d, 2, s%d", t0, vTJ, sT0)
S("v_lshrrev_b32 v%d, 5, v%d", t1, vLANE)
S("v_lshl_add_u32 v%d, v%d, 6, s%d", t1, t1, sT0)
S("s_mov_b32 s%d, 0", sCNT)
g.wait_vm("gl")
g.label("L_g_chk")
S("v_cmp_ne_u32 vcc, s%d, v%d", sTAG, GG + 1)
S("s_add_u32 s%d, s%d, 1", sCNT, sCNT)
e("s_cbranch_vccz L_g_ok")
S("s_cmp_ge_u32 s%d, 0x8000", sCNT)
e("s_cbranch_scc1 L_g_ok")
sv = list(g.vmq); g_load("x"); g.vmq = sv
e("s_waitcnt vmcnt(0)")
e("s_branch L_g_chk")
g.label("L_g_ok")
g.ds("ds_write_b32 v%d, v%d" % (t0, GG), "gw")
for k in range(4):
    g.ds("ds_read_b128 %s, v%d offset:%d" % (vr(GREG + 4 * k, 4), t1, 16 * k), "gr")
S("v_sub_f32 v%d, 1.0, v%d", OM, GG)
S("v_cvt_pk_bf16_f32 v%d, v%d, v%d", OM, OM, OM)
S("v_lshlrev_b32 v%d, 16, v%d", OM, OM)
S("s_add_u32 s%d, s%d, s%d", sT1, sHq, sHO)
late = Spread(unit(8), 4)
for t in range(4):
    f = ACC_F + 16 * t; d = ACC_F + 8 * t
    for k in range(8):
        S("v_pk_mul_f32 %s, %s, %s op_sel_hi:[1,0]", vr(f + 2 * k, 2), vr(f + 2 * k, 2), vr(OM, 2))
    for k in range(8):
        S("v_cvt_pk_bf16_f32 v%d, v%d, v%d", d + k, f + 2 * k, f + 2 * k + 1)
    for k in range(8):
        S("v_pk_max_i16 v%d, v%d, 0", d + k, d + k)
    if t == 2: S("s_add_u32 s%d, s%d, 4096", sT1, sT1)
    for fr in range(2):
        g.vm("buffer_store_dwordx4 %s, v%d, %s, s%d offen offset:%d%s" % (vr(d + 4 * fr, 4), vL16d if t == 3 else vL16, WSR, sT1, 2048 * (t & 1) + 1024 * fr, HSC), "hf")
stamp()

ACC2 = [48, 64, 80, 240]
WF = 168
FULL = set(range(0, 4)) | set(range(8, 12))
def tiles(n): return [0, 1, 2, 3] if n in FULL else [1, 2, 3]
def wread(n, tau, dst):
    v = n >> 2; sg = n & 3
    reg, k = USLOT[v]
    if n < 28:
        base = (rdVX if reg == "X" else rdVW) + tau
        return [("ds_read_b64_tr_b16 %s, v%d offset:%d" % (vr(dst + 2 * e2, 2), base, k * 16384 + sg * 4096 + 1024 * e2), None) for e2 in range(2)]
    base = (rdCX if reg == "X" else rdCB) + sg
    return [("ds_read_b128 %s, v%d offset:%d" % (vr(dst, 4), base, (k * 16384 if reg == "X" else 0) + tau * 4096), None)]
def reads2(n):
    L = []
    for tau in tiles(n):
        for s, _ in wread(n, tau, WF + 16 * (n & 1) + 4 * tau):
            L.append((s, "ds:w%d_%d" % (n, tau)))
    return L
TFR, TFI = ACC_RE + 8, ACC_IM + 8
def hfrag(n):
    if n < 6: return vr(ACC_F + 4 * n, 4)
    if n < 28: return ar(4 * (n - 6), 4)
    m = n - 28
    if m in (0, 1): return vr(TFR + 4 * m, 4)
    if m in (8, 9): return vr(TFI + 4 * (m - 8), 4)
    idx = m - 2 if m < 8 else m - 4
    return ar(88 + 4 * idx, 4)
def hload(n):
    L = []
    if n < 28:
        if n % 2 == 0:
            L.append(("s_cmp_gt_u32 s%d, %d" % (sKSW, n - 6), None))
            L.append(("s_cselect_b32 s%d, %d, %d" % (sX, (n - 6) * 1024, n * 1024), None) if False else ("s_cselect_b32 s%d, %d, 0" % (sX, 6), None))
            L.append(("s_sub_u32 s%d, %d, s%d" % (sX, n, sX), None))
            L.append(("s_lshl_b32 s%d, s%d, 10" % (sX, sX), None))
            L.append(("s_add_u32 s%d, s%d, s%d" % (sX, sX, sHq), None))
    else:
        m = n - 28
        if m % 2 == 0:
            L.append(("s_xor_b32 s%d, s%d, %d" % (sX, sC, (m >> 1) & 3), None))
            L.append(("s_lshl_b32 s%d, s%d, 11" % (sX, sX), None))
            L.append(("s_add_u32 s%d, s%d, s%d" % (sX, sX, sHS), None))
            if m >= 8: L.append(("s_add_u32 s%d, s%d, 8192" % (sX, sX), None))
    L.append(("buffer_load_dwordx4 %s, v%d, %s, s%d offen offset:%d sc1" % (hfrag(n), vL16, WSR, sX, 1024 * (n & 1)), "h%d" % n))
    return L
started = set()
def step(n, fill=None, pre=None, budget=3):
    nxt = reads2(n + 1) if n < 43 else []
    tl = tiles(n)
    g.wait_vm("h%d" % n)
    for i, tau in enumerate(tl):
        if i == 0 and pre:
            g.wait_lg_all()
        else:
            g.wait_lg("w%d_%d" % (n, tau))
        acc = vr(ACC2[tau], 16)
        S("v_mfma_f32_32x32x16_bf16 %s, %s, %s, %s", acc, hfrag(n), vr(WF + 16 * (n & 1) + 4 * tau, 4), acc if tau in started else "0")
        started.add(tau)
        if i == 0 and pre: pre()
        k = (len(nxt) + (len(tl) - i - 1)) // (len(tl) - i)
        run(nxt[:k]); nxt = nxt[k:]
        if fill: fill(max(0, budget + 2 - k))

F = Rec(); e = F.e
S("s_lshl_b32 s%d, s%d, 6", sT0, sODD)
S("v_subrev_u32 v%d, 0x%x, v%d", rdCX, LB, rdB)
S("v_xor_b32 v%d, s%d, v%d", rdCX, sT0, rdCX)
S("v_xor_b32 v%d, s%d, v%d", rdCB, sT0, rdB)
for s in range(1, 4):
    S("v_xor_b32 v%d, %d, v%d", rdCX + s, 32 * s, rdCX)
    S("v_xor_b32 v%d, %d, v%d", rdCB + s, 32 * s, rdCB)
for t in range(16):
    ur, ui = ACC_RE + t, ACC_IM + t
    tt = 100 + (t & 1)
    S("v_mul_f32 v%d, v%d, v%d", tt, ur, cCO + 1)
    S("v_mul_f32 v%d, v%d, v%d", ur, ur, cCO)
    S("v_fma_f32 v%d, -v%d, v%d, v%d", ur, ui, cCO + 1, ur)
    S("v_fma_f32 v%d, v%d, v%d, v%d", ui, ui, cCO, tt)
e = g.e
run(reads2(0))
def fill5(b):
    u = late.gap()
    F.play(g, max(0, b - u))
A0, A1 = 228, 232
def lb_loads(tag):
    g.vm("buffer_load_dwordx4 %s, v%d, %s, 0 offen sc1" % (vr(A0, 4), vLB0, WSR), tag)
    g.vm("buffer_load_dwordx4 %s, v%d, %s, 0 offen sc1" % (vr(A1, 4), vLB1, WSR), tag)
for n in range(6):
    if n == 5:
        tl = tiles(5)
        for tau in tl:
            g.wait_lg("w5_%d" % tau)
            acc = vr(ACC2[tau], 16)
            S("v_mfma_f32_32x32x16_bf16 %s, %s, %s, %s", acc, hfrag(5), vr(WF + 16 + 4 * tau, 4), acc)
            fill5(5)
    else:
        step(n, fill5, budget=2)
late.flush()
F.flush(g)
lb_loads("lb")
stamp()
vFLG, FLD = 10, 11
S("v_and_b32 v%d, 3, v%d", t0, vLANE)
S("v_lshl_add_u32 v%d, v%d, 2, s%d", vFLG, t0, sFL)
def flag_load(kind, tag):
    g.vm("buffer_load_dword v%d, v%d, %s, %s offen sc1" % (FLD, vFLG, WSR, "s%d" % sB if kind else "0"), tag)
def flag_check(loader, lbl):
    S("s_mov_b32 s%d, 0", sCNT)
    g.label(lbl + "_chk")
    S("v_cmp_ne_u32 vcc, s%d, v%d", sTAG, FLD)
    S("s_add_u32 s%d, s%d, 1", sCNT, sCNT)
    S("s_cbranch_vccz %s_ok", lbl)
    S("s_cmp_ge_u32 s%d, 0x8000", sCNT)
    S("s_cbranch_scc1 %s_ok", lbl)
    sv = list(g.vmq); loader("x"); g.vmq = sv
    e("s_waitcnt vmcnt(0)")
    S("s_branch %s_chk", lbl)
    g.label(lbl + "_ok")
S("s_mov_b32 s%d, 32768", sB)
S("s_mov_b32 s%d, 0", sCNT)
S("s_lshl_b32 s%d, s%d, 2", sT0, sC); S("s_add_u32 s%d, s%d, s%d", sT0, sT0, sFL)
g.wait_vm("hf")
e("s_mov_b64 exec, 1")
g.vm("buffer_store_dword v%d, off, %s, s%d sc1" % (vTAG, WSR, sT0), "fl0")
e("s_mov_b64 exec, -1")
stamp()
g.wait_vm("lb")
g.label("L_lb_chk")
S("v_cmp_ne_u32 vcc, s%d, v%d", sTAG, A0 + 2)
S("v_cmp_ne_u32 s[%d:%d], s%d, v%d", sTP, sTP + 1, sTAG, A1 + 2)
S("s_and_b64 vcc, vcc, s[%d:%d]", sV0, sV0 + 1)
S("s_and_b64 s[%d:%d], s[%d:%d], s[%d:%d]", sTP, sTP + 1, sTP, sTP + 1, sV1, sV1 + 1)
S("s_or_b64 vcc, vcc, s[%d:%d]", sTP, sTP + 1)
e("s_cbranch_scc0 L_lb_ok")
S("s_add_u32 s%d, s%d, 1", sCNT, sCNT)
S("s_cmp_ge_u32 s%d, 0x8000", sCNT)
e("s_cbranch_scc1 L_lb_ok")
sv = list(g.vmq); lb_loads("x"); g.vmq = sv
e("s_waitcnt vmcnt(0)")
e("s_branch L_lb_chk")
g.label("L_lb_ok")
cfma(A0, A0 + 1, cL1024, cL1024 + 1, A1, A1 + 1, A0, A0 + 1)
cmul(A1, A1 + 1, cL128q, cL128q + 1, A0, A0 + 1)
g.ds("ds_write_b64 v%d, %s" % (vSEG + 1, vr(A1, 2)), "pw")
assert g.vm_count("v8") is None
g.wait_lg_all()
e("s_barrier")
stamp()
SG = 224
for s_ in range(8):
    g.ds("ds_read_b64 %s, v%d offset:%d" % (vr(SG + 2 * s_, 2), vSEG, 2048 + 256 * s_), "pp%d" % s_)
run(unit(9))
vTW, vTR = 96, 98
S("s_add_u32 s%d, s%d, %d", sT0, sMB, TRB - LB)
S("v_and_b32 v%d, 31, v%d", t0, vLANE)
S("v_bfe_u32 v%d, v%d, 1, 2", t1, vLANE)
S("v_lshrrev_b32 v%d, 5, v%d", t2, vLANE)
S("v_lshlrev_b32 v%d, 1, v%d", t3, t2)
S("v_xor_b32 v%d, v%d, v%d", t1, t1, t3)
S("v_lshlrev_b32 v%d, 4, v%d", t1, t1)
S("v_lshl_add_u32 v%d, v%d, 6, v%d", t1, t0, t1)
S("v_add_u32 v%d, s%d, v%d", vTW, sT0, t1)
S("v_xor_b32 v%d, 16, v%d", vTW + 1, vTW)
S("v_bfe_u32 v%d, v%d, 2, 2", t0, vLANE)
S("v_lshl_add_u32 v%d, v%d, 3, v%d", t2, t2, t0)
S("v_lshrrev_b32 v%d, 1, v%d", t0, t0)
S("v_and_b32 v%d, 1, v%d", t1, vLANE)
S("v_lshlrev_b32 v%d, 1, v%d", t1, t1)
S("v_bfe_u32 v%d, v%d, 4, 1", t3, vLANE)
S("v_add_u32 v%d, v%d, v%d", t1, t1, t3)
S("v_xor_b32 v%d, v%d, v%d", t1, t1, t0)
S("v_lshlrev_b32 v%d, 4, v%d", t1, t1)
S("v_lshl_add_u32 v%d, v%d, 6, v%d", t1, t2, t1)
S("v_bfe_u32 v%d, v%d, 1, 1", t3, vLANE)
S("v_lshl_add_u32 v%d, v%d, 3, v%d", t1, t3, t1)
S("v_add_u32 v%d, s%d, v%d", vTR, sT0, t1)
S("v_xor_b32 v%d, 32, v%d", vTR + 1, vTR)
S("v_add_u32 v%d, 256, v%d", vTR + 1, vTR + 1)
for s_ in range(1, 8):
    g.wait_lg("pp%d" % s_)
    S("v_pk_add_f32 %s, %s, %s", vr(SG, 2), vr(SG, 2), vr(SG + 2 * s_, 2))
cfma(vPRE, vPRE + 1, cL16q, cL16q + 1, SG, SG + 1, vPRE, vPRE + 1)
cmul(100, 101, cCO, cCO + 1, vPRE, vPRE + 1)
XR = 224; vXO = 12; DSK = 13; vOUT = 44
S("v_lshrrev_b32 v%d, 5, v%d", t0, vLANE)
S("v_and_b32 v%d, 31, v%d", t1, vLANE)
S("v_lshlrev_b32 v%d, 1, v%d", t1, t1)
S("s_lshl_b32 s%d, s%d, 8", sT0, sC); S("s_lshl_b32 s%d, s%d, 6", sT1, sQ); S("s_add_u32 s%d, s%d, s%d", sT0, sT0, sT1)
S("v_add_u32 v%d, s%d, v%d", t1, sT0, t1)
g.vm("global_load_ushort v%d, v%d, s[%d:%d]" % (DSK, t1, pDSK, pDSK + 1), "xr")
S("v_lshl_add_u32 v%d, v%d, 14, v%d", vXO, t0, t1)
S("s_lshl_b32 s%d, s%d, 17", sT0, sR); S("s_lshl_b32 s%d, s%d, 15", sT1, sW); S("s_add_u32 s%d, s%d, s%d", sT0, sT0, sT1)
S("v_add_u32 v%d, s%d, v%d", vXO, sT0, vXO)
S("v_lshlrev_b32 v%d, 1, v%d", vOUT, vXO)
xl = []
for k in range(16):
    if k % 4 == 0: xl.append(("s_mov_b32 s%d, %d" % (sT0, 1024 * k), None))
    xl.append(("buffer_load_ushort v%d, v%d, s[%d:%d], s%d offen offset:%d" % (XR + k, vXO, SRD_X, SRD_X + 3, sT0, 1024 * (k & 3)), "xr"))
hs = Spread(xl, 16)
pr, pi = 100, 101
for t in range(16):
    cfma(ACC_RE + t, ACC_IM + t, cL, cL + 1, pr, pi, ACC_RE + t, ACC_IM + t)
    pr, pi = ACC_RE + t, ACC_IM + t
    hs.gap()
for x, (acc, tf, ng) in enumerate(((ACC_RE, TFR, ""), (ACC_IM, TFI, "-"))):
    for k in range(8):
        S("v_pk_mul_f32 %s, %s, %s", vr(acc + 2 * k, 2), vr(acc + 2 * k, 2), vr(GREG + 2 * k, 2))
    for k in range(8):
        S("v_cvt_pk_bf16_f32 v%d, %sv%d, %sv%d", acc + k, ng, acc + 2 * k, ng, acc + 2 * k + 1)
    for p in range(2):
        g.ds("ds_write_b128 v%d, %s" % (vTW + p, vr(acc + 4 * p, 4)), "tw")
    for f in range(2):
        for e2 in range(2):
            g.ds("ds_read_b64_tr_b16 %s, v%d offset:%d" % (vr(tf + 4 * f + 2 * e2, 2), vTR + e2, 1024 * f), "tr%d%d" % (x, f))
S("s_lshl_b32 s%d, s%d, 11", sT0, sC); S("s_add_u32 s%d, s%d, s%d", sT0, sT0, sHS)
S("s_add_u32 s%d, s%d, 8192", sT1, sT0)
flag_load(0, "pf0")
for x in range(2):
    for f in range(2):
        g.wait_lg("tr%d%d" % (x, f))
        g.vm("buffer_store_dwordx4 %s, v%d, %s, s%d offen offset:%d%s" % (vr((TFI if x else TFR) + 4 * f, 4), vL16, WSR, sT1 if x else sT0, 1024 * f, HSC), "hs")
stamp()
run(reads2(6))
g.wait_vm("pf0")
flag_check(lambda tag: flag_load(0, tag), "L_f0")
stamp()
NH0 = OPT["nh0"]
for n in range(6, 6 + NH0): run(hload(n))
F = Rec(); e = F.e
vF2S, vF2L = 14, 15
sPS = [64, 65, 66]; sPL = 67
S("s_lshl_b32 s%d, s%d, 4", sT0, sR); S("s_add_u32 s%d, s%d, s%d", sT0, sT0, sC); S("s_lshl_b32 s%d, s%d, 2", sT0, sT0); S("s_add_u32 s%d, s%d, s%d", sT0, sT0, sW)
for tau in range(1, 4):
    S("s_add_u32 s%d, s%d, %d", sT1, sQ, tau); S("s_and_b32 s%d, s%d, 3", sT1, sT1); S("s_lshl_b32 s%d, s%d, 4", sT1, sT1); S("s_add_u32 s%d, s%d, s%d", sT1, sT1, sT0)
    S("s_mul_i32 s%d, s%d, 6144", sPS[tau - 1], sT1); S("s_add_u32 s%d, s%d, %d", sPS[tau - 1], sPS[tau - 1], PART + 2048 * (tau - 1))
S("s_lshl_b32 s%d, s%d, 4", sT1, sQ); S("s_add_u32 s%d, s%d, s%d", sT1, sT1, sT0)
S("s_mul_i32 s%d, s%d, 6144", sPL, sT1); S("s_add_u32 s%d, s%d, %d", sPL, sPL, PART)
S("s_lshl_b32 s%d, s%d, 7", sT1, sT1); S("s_add_u32 s%d, s%d, %d", sT1, sT1, FLAGS2)
S("v_min_u32 v%d, 2, v%d", t0, vLANE)
S("v_lshl_add_u32 v%d, v%d, 2, s%d", vF2L, t0, sT1)
S("v_add_u32 v%d, s%d, v%d", t1, sQ, t0)
S("v_add_u32 v%d, 1, v%d", t1, t1)
S("v_and_b32 v%d, 3, v%d", t1, t1)
S("v_lshlrev_b32 v%d, 11, v%d", t1, t1)
S("v_lshl_add_u32 v%d, v%d, 2, v%d", t1, t0, t1)
S("s_lshl_b32 s%d, s%d, 7", sT0, sT0); S("s_add_u32 s%d, s%d, %d", sT0, sT0, FLAGS2)
S("v_add_u32 v%d, s%d, v%d", vF2S, sT0, t1)
F.wait_vm("xr")
nxb = len(F.items)
S("v_lshlrev_b32 v%d, 16, v%d", DSK, DSK)
for k in range(16):
    S("v_lshlrev_b32 v%d, 16, v%d", XR + k, XR + k)
for k in range(16):
    S("v_mul_f32 v%d, v%d, v%d", XR + k, XR + k, DSK)
for k in range(8):
    S("v_cvt_pk_bf16_f32 v%d, v%d, v%d", XR + 2 * k, XR + 2 * k, XR + 2 * k + 1)
    S("v_and_b32 v%d, s%d, v%d", XR + 2 * k + 1, sMASK, XR + 2 * k)
    S("v_lshlrev_b32 v%d, 16, v%d", XR + 2 * k, XR + 2 * k)
nxc = len(F.items)
for k in range(16):
    S("v_fma_f32 v%d, v%d, v%d, v%d", ACC2[0] + k, XR + k, GREG + k, ACC2[0] + k)
e = g.e
ntot = len(F.items)
pend = list(range(6 + NH0, 28))
pend_s = [n for n in range(28, 44) if (n - 28) not in (0, 1, 8, 9)]
extra = Spread([], 1)
cur = [6]
def fill2(b):
    u = extra.gap()
    lim = ntot - len(F.items)
    if cur[0] < 13 and lim >= nxc: return
    k = max(0, b - u)
    if cur[0] < 13: k = min(k, nxc - lim)
    F.play(g, k)
PFS = OPT["pfs"]
for n in range(6, 44):
    cur[0] = n
    pre = None
    if n == 11:
        def pre():
            global extra
            e("s_barrier")
            extra = Spread(unit(10), 3)
    if n == 27:
        def pre():
            g.wait_vm("v9"); g.wait_vm("v10")
            e("s_barrier")
    step(n, fill2, pre, budget=2)
    if n == 6:
        g.wait_vm("hs")
        S("s_lshl_b32 s%d, s%d, 2", sT3, sC); S("s_add_u32 s%d, s%d, s%d", sT3, sT3, sFL); S("s_add_u32 s%d, s%d, 32768", sT3, sT3)
        e("s_mov_b64 exec, 1")
        g.vm("buffer_store_dword v%d, off, %s, s%d sc1" % (vTAG, WSR, sT3), "fl1")
        e("s_mov_b64 exec, -1")
        e("s_nop 1")
    if pend:
        run(hload(pend.pop(0)))
    if n == PFS: flag_load(1, "pf1")
    if n == PFS + 2:
        g.wait_vm("pf1")
        flag_check(lambda tag: flag_load(1, tag), "L_f1")
    if n >= PFS + 2 and pend_s:
        run(hload(pend_s.pop(0)))
        if pend_s and n < PFS + 6: run(hload(pend_s.pop(0)))
assert not pend and not pend_s and not F.items, (pend, pend_s, len(F.items))
stamp()
F = Rec(); e = F.e
for tau in range(1, 4):
    a = ACC2[tau]
    for k in range(8):
        S("v_cvt_pk_bf16_f32 v%d, v%d, v%d", a + k, a + 2 * k, a + 2 * k + 1)
    for p in range(2):
        F.vm("buffer_store_dwordx4 %s, v%d, %s, s%d offen offset:%d sc1" % (vr(a + 4 * p, 4), vL16, WSR, sPS[tau - 1], 1024 * p), "ps")
e = g.e
dl = [n for n in range(44) if n not in FULL]
AHEAD = 5
def dread(i):
    for s, _ in wread(dl[i], 0, WF + 4 * (i % 8)):
        g.ds(s, "d%d" % i)
for i in range(AHEAD): dread(i)
e("s_nop 1")
def f2_load(tag):
    g.vm("buffer_load_dword v%d, v%d, %s, 0 offen sc1" % (FLD, vF2L, WSR), tag)
for i, n in enumerate(dl):
    g.wait_lg("d%d" % i)
    acc = vr(ACC2[0], 16)
    S("v_mfma_f32_32x32x16_bf16 %s, %s, %s, %s", acc, hfrag(n), vr(WF + 4 * (i % 8), 4), acc)
    if i + AHEAD < len(dl): dread(i + AHEAD)
    F.play(g, 3)
    if i == OPT["fwait"]:
        assert not F.items
        g.wait_vm("ps")
        e("s_mov_b64 exec, 7")
        g.vm("buffer_store_dword v%d, v%d, %s, 0 offen sc1" % (vTAG, vF2S, WSR), "fl2")
        e("s_mov_b64 exec, -1")
        e("s_nop 1")
f2_load("pf2")
stamp()
S("v_mov_b32 v%d, 0x3f80", t0)
S("v_mov_b32 v%d, 0x3f800000", t1)
S("s_cmp_eq_u32 s%d, 15", sR); S("s_cselect_b32 s%d, s%d, 1", sT3, sJ); S("s_or_b32 s%d, s%d, s%d", sT3, sT3, sW)
g.wait_vm("pf2")
flag_check(f2_load, "L_f2")
stamp()
S("s_add_u32 s%d, s%d, 4096", sT0, sPL)
for k in range(3):
    for p in range(2):
        o = 2048 * k + 1024 * p
        g.vm("buffer_load_dwordx4 %s, v%d, %s, s%d offen offset:%d sc1" % (vr(ACC2[k + 1] + 8 + 4 * p, 4), vL16, WSR, sPL if o < 4096 else sT0, o & 4095), "pl%d" % k)
for k in range(3):
    g.wait_vm("pl%d" % k)
    for i in range(8):
        S("v_dot2c_f32_bf16 v%d, v%d, v%d", ACC2[0] + 2 * i, ACC2[k + 1] + 8 + i, t0)
        S("v_dot2c_f32_bf16 v%d, v%d, v%d", ACC2[0] + 2 * i + 1, ACC2[k + 1] + 8 + i, t1)
e("s_nop 2")
for k in range(16):
    if k % 2 == 0: S("s_mov_b32 s%d, %d", sT0, 2048 * k)
    g.vm("buffer_store_dword v%d, v%d, s[%d:%d], s%d offen offset:%d" % (ACC2[0] + k, vOUT, SRD_OUT, SRD_OUT + 3, sT0, 2048 * (k & 1)), "out")
stamp()
if OPT["stamps"]:
    e("s_waitcnt vmcnt(0)")
    stamp()
    e("s_memrealtime s[82:83]"); e("s_waitcnt lgkmcnt(0)"); e("v_mov_b32 v252, s82"); e("s_mov_b64 exec, 1")
    e("buffer_store_dword v252, off, %s, s101 offset:124" % WSR)
    e("s_mov_b64 exec, -1")
S("s_cmp_lg_u32 s%d, 0", sT3)
e("s_cbranch_scc1 L_end2")
e("s_mov_b64 exec, 1")
e("buffer_store_dword v%d, off, %s, 0 sc1" % (vTAG, WSR))
g.label("L_end2")
if OPT["diag"] > 0:
    S("s_sub_u32 s%d, s%d, s96", sDG, sDG)
    if OPT["diagcyc"]: S("s_lshr_b32 s%d, s%d, 1", sDG, sDG)
    else: S("s_mul_i32 s%d, s%d, 10", sDG, sDG)
    e("s_memrealtime s[96:97]"); e("s_waitcnt lgkmcnt(0)"); S("s_add_u32 s%d, s%d, s96", sDG, sDG)
    g.label("L_spin")
    e("s_memrealtime s[96:97]"); e("s_waitcnt lgkmcnt(0)"); S("s_sub_u32 s%d, s%d, s96", sDG + 1, sDG); S("s_cmp_gt_i32 s%d, 0", sDG + 1); e("s_cbranch_scc1 L_spin")
g.label("L_end")
e("s_endpgm")
e('.section .rodata,"a"')
e(".p2align 6")
e(".amdhsa_kernel %s_kernel" % NAME)
for l in ("next_free_vgpr 512", "next_free_sgpr 102", "accum_offset 256", "group_segment_fixed_size 0", "kernarg_size 128", "user_sgpr_count 2",
          "user_sgpr_kernarg_segment_ptr 1", "system_sgpr_workgroup_id_x 1"):
    g.lines.append("  .amdhsa_" + l)
e(".end_amdhsa_kernel")

errs = check_hazards(g.lines)
for x in errs:
    print("HAZARD", x)
open(sys.argv[1], "w").write(out_hdr + g.text())
print("lines", len(g.lines), "stamps", nstamp[0], "hazards", len(errs))
```

```python
import re
TRANS = ("v_exp_f32", "v_log_f32", "v_rcp_f32", "v_rsq_f32", "v_sqrt_f32", "v_sin_f32", "v_cos_f32")

class Asm:
    def __init__(self):
        self.lines = []
        self.vmq = []
        self.lgq = []

    def e(self, s):
        for l in s.split("\n"):
            l = l.strip()
            if l:
                self.lines.append(l)

    def c(self, s):
        self.lines.append("; " + s)

    def label(self, n):
        self.lines.append(n + ":")

    def vm(self, s, tag):
        self.e(s)
        self.vmq.append(tag)
        assert len(self.vmq) <= 63, "vmcnt overflow %d" % len(self.vmq)

    def vm_count(self, tag):
        idx = [i for i, t in enumerate(self.vmq) if t == tag]
        if not idx:
            return None
        return len(self.vmq) - 1 - idx[-1]

    def wait_vm(self, tag, extra=""):
        n = self.vm_count(tag)
        if n is None:
            return False
        self.e("s_waitcnt vmcnt(%d)%s" % (n, extra))
        self.vmq = self.vmq[len(self.vmq) - n:] if n else []
        return True

    def wait_vm_all(self):
        self.e("s_waitcnt vmcnt(0)")
        self.vmq = []

    def ds(self, s, tag):
        self.e(s)
        self.lgq.append(tag)
        assert len(self.lgq) <= 15, "lgkmcnt overflow"

    def wait_lg(self, tag):
        idx = [i for i, t in enumerate(self.lgq) if t == tag]
        if not idx:
            return False
        n = len(self.lgq) - 1 - idx[-1]
        self.e("s_waitcnt lgkmcnt(%d)" % n)
        self.lgq = self.lgq[len(self.lgq) - n:] if n else []
        return True

    def wait_lg_all(self):
        self.e("s_waitcnt lgkmcnt(0)")
        self.lgq = []

    def text(self):
        out = []
        for l in self.lines:
            out.append(l if (l.endswith(":") or l.startswith(".") or l.startswith(";")) else "    " + l)
        return "\n".join(out) + "\n"


class Rec:
    def __init__(self):
        self.items = []
    def e(self, s):
        for l in s.split("\n"):
            l = l.strip()
            if l:
                cost = 2 if l.startswith(TRANS) else 1
                self.items.append((cost, lambda g, l=l: g.e(l)))
    def vm(self, s, tag):
        self.items.append((1, lambda g: g.vm(s, tag)))
    def ds(self, s, tag):
        self.items.append((1, lambda g: g.ds(s, tag)))
    def wait_vm(self, tag, extra=""):
        self.items.append((1, lambda g: g.wait_vm(tag, extra)))
    def play(self, g, budget):
        while self.items and budget > 0:
            c, f = self.items.pop(0)
            f(g)
            budget -= c
    def flush(self, g):
        self.play(g, 1 << 30)

def vr(a, n=1):
    return "v%d" % a if n == 1 else "v[%d:%d]" % (a, a + n - 1)
def ar(a, n=1):
    return "a%d" % a if n == 1 else "a[%d:%d]" % (a, a + n - 1)
def sr(a, n=1):
    return "s%d" % a if n == 1 else "s[%d:%d]" % (a, a + n - 1)

_reg = re.compile(r"(?<![\w.])(-?abs\()?-?([vas])(?:(\d+)|\[(\d+):(\d+)\])")
def regs_of(op):
    out = set()
    op = op.strip()
    if op in ("vcc",): return {("s", "vcc")}
    if op in ("exec",): return {("s", "exec")}
    if op in ("m0",): return {("s", "m0")}
    for m in _reg.finditer(op):
        k = m.group(2)
        if m.group(3) is not None:
            out.add((k, int(m.group(3))))
        else:
            for i in range(int(m.group(4)), int(m.group(5)) + 1):
                out.add((k, i))
    return out

TRANS = ("v_exp_f32", "v_log_f32", "v_rcp_f32", "v_rsq_f32", "v_sqrt_f32", "v_sin_f32", "v_cos_f32")

def parse(l):
    l = l.split(";")[0].strip()
    if not l or l.endswith(":") or l.startswith("."):
        return None
    p = l.split(None, 1)
    op = p[0]
    args = [a.strip() for a in p[1].split(",")] if len(p) > 1 else []
    d = dict(op=op, txt=l, defs=set(), uses=set(), kind="other")
    def R(i):
        return regs_of(args[i].split()[0]) if i < len(args) else set()
    if op.startswith("v_mfma"):
        d["kind"] = "mfma"; d["defs"] = R(0); d["A"] = R(1); d["B"] = R(2); d["C"] = R(3); d["uses"] = R(1) | R(2) | R(3)
    elif op.startswith("v_cmpx"):
        d["kind"] = "valu"; d["defs"] = R(0) | {("s", "exec")}; d["uses"] = R(1) | R(2)
    elif op.startswith("v_cmp"):
        d["kind"] = "valu"; d["defs"] = R(0); d["uses"] = R(1) | R(2)
    elif op.startswith("v_readfirstlane") or op.startswith("v_readlane"):
        d["kind"] = "valu"; d["defs"] = R(0); d["uses"] = R(1) | R(2); d["rl"] = True
    elif op.startswith("v_permlane"):
        d["kind"] = "valu"; d["defs"] = R(0) | R(1); d["uses"] = R(0) | R(1); d["pl"] = True
    elif op.startswith("v_"):
        d["kind"] = "valu"; d["defs"] = R(0)
        for i in range(1, len(args)): d["uses"] |= R(i)
        if op.startswith("v_fmac") or "dpp" in op: d["uses"] |= R(0)
        if op.startswith("v_cndmask") and len(args) == 3: d["uses"] |= {("s", "vcc")}
        if "dpp" in op: d["dpp"] = True
        if op.startswith(TRANS): d["trans"] = True
    elif op.startswith("ds_read"):
        d["kind"] = "ds"; d["defs"] = R(0); d["uses"] = R(1)
    elif op.startswith("ds_write"):
        d["kind"] = "ds"; d["uses"] = R(0) | R(1) | R(2)
    elif op.startswith("buffer_load"):
        d["kind"] = "vmem"
        if l.rstrip().endswith("lds") or " lds " in l:
            d["uses"] = R(0) | R(1) | R(2) | {("s", "m0")}; d["dma"] = True
        else:
            d["defs"] = R(0); d["uses"] = R(1) | R(2) | R(3)
    elif op.startswith("buffer_store"):
        d["kind"] = "vmem"; d["uses"] = R(0) | R(1) | R(2) | R(3)
        if "x4" in op or "x3" in op: d["wdata"] = R(0)
    elif op.startswith("global_load"):
        d["kind"] = "vmem"; d["defs"] = R(0); d["uses"] = R(1) | R(2)
    elif op.startswith("global_store"):
        d["kind"] = "vmem"; d["uses"] = R(0) | R(1) | R(2)
        if "x4" in op or "x3" in op: d["wdata"] = R(1)
    elif op.startswith("s_"):
        d["kind"] = "salu"
        if op == "s_nop": d["nop"] = int(args[0]) + 1
        elif op.startswith(("s_cmp", "s_waitcnt", "s_barrier", "s_branch", "s_cbranch", "s_endpgm", "s_setprio", "s_sleep")):
            for i in range(len(args)): d["uses"] |= R(i)
        else:
            d["defs"] = R(0)
            for i in range(1, len(args)): d["uses"] |= R(i)
            if "saveexec" in op: d["defs"] |= {("s", "exec")}
    return d

def check_hazards(lines):
    ins = [(i, parse(l)) for i, l in enumerate(lines)]
    ins = [(i, d) for i, d in ins if d]
    errs = []
    for k, (li, d) in enumerate(ins):
        dist = 0
        j = k - 1
        while j >= 0 and dist < 21:
            p = ins[j][1]
            need = 0
            vdefs = {r for r in p["defs"] if r[0] in "va"}
            sdefs = {r for r in p["defs"] if r[0] == "s"}
            if p["kind"] == "mfma":
                if d["kind"] == "mfma":
                    if p["defs"] & (d["A"] | d["B"]): need = 12
                    if (p["defs"] & d["C"]) and p["defs"] != d["C"]: need = max(need, 10)
                elif d["kind"] in ("valu", "ds", "vmem"):
                    if p["defs"] & (d["uses"] | d["defs"]): need = 12
                    if d["kind"] == "valu" and (p["C"] & d["defs"]): need = max(need, 7)
            elif p["kind"] == "valu":
                if d["kind"] == "mfma" and (vdefs & d["uses"]): need = 2
                if d["kind"] == "mfma" and ("s", "exec") in sdefs: need = max(need, 4)
                if d["kind"] == "valu":
                    if d.get("dpp") and (vdefs & d["uses"]): need = max(need, 2)
                    if d.get("dpp") and ("s", "exec") in sdefs: need = max(need, 5)
                    if d.get("pl") and (vdefs & d["uses"]): need = max(need, 2)
                    if d.get("rl") and (vdefs & d["uses"]): need = max(need, 1)
                    if (d.get("rl") or d.get("pl")) and ("s", "exec") in sdefs: need = max(need, 4)
                    if p.get("trans") and not d.get("trans") and (vdefs & d["uses"]): need = max(need, 1)
                    if (sdefs - {("s", "exec")}) & d["uses"]: need = max(need, 4 if d.get("rl") else 2)
                if d["kind"] == "vmem" and (sdefs & d["uses"]): need = max(need, 5)
                if d["kind"] == "salu" and (sdefs & d["uses"]): need = max(need, 1)
            elif p["kind"] == "salu":
                if d.get("dma") and ("s", "m0") in p["defs"]: need = 1
            if p.get("wdata") and d["kind"] == "valu" and (p["wdata"] & d["defs"]): need = max(need, 2)
            if p.get("wdata") and d["kind"] in ("ds", "vmem") and (p["wdata"] & d["defs"]): need = max(need, 1)
            if need > dist:
                errs.append("line %d: '%s' needs %d states after '%s' (has %d)" % (li, d["txt"], need, p["txt"], dist))
            dist += p.get("nop", 1)
            j -= 1
    return errs

import subprocess, tempfile, os
def is_instr(l):
    l = l.split(";")[0].strip()
    return bool(l) and not l.endswith(":") and not l.startswith(".")

def sizes_of(lines):
    body = ['.amdgcn_target "amdgcn-amd-amdhsa--gfx950"', ".text"]
    for l in lines:
        if is_instr(l) or l.strip().endswith(":"):
            body.append(l)
    d = tempfile.mkdtemp()
    open(d + "/a.s", "w").write("\n".join(body) + "\n")
    subprocess.check_call(["clang", "-x", "assembler", "-target", "amdgcn-amd-amdhsa", "-mcpu=gfx950", "-c", d + "/a.s", "-o", d + "/a.o"])
    out = subprocess.check_output(["llvm-objdump", "-d", "--mcpu=gfx950", d + "/a.o"]).decode()
    sz = []
    for l in out.split("\n"):
        m = re.search(r"// [0-9A-F]{12}: ((?:[0-9A-F]{8} ?)+)", l)
        if m: sz.append(4 * len(m.group(1).split()))
    n = sum(1 for l in lines if is_instr(l))
    assert len(sz) == n, (len(sz), n)
    return sz

PROMO = ("v_mov_b32", "v_add_u32", "v_sub_u32", "v_subrev_u32", "v_and_b32", "v_or_b32", "v_xor_b32", "v_lshlrev_b32", "v_lshrrev_b32", "v_mul_f32", "v_add_f32",
         "v_sub_f32", "v_exp_f32", "v_sin_f32", "v_cos_f32", "v_rcp_f32", "v_fract_f32", "v_cvt_f32_u32", "v_min_u32", "v_mul_u32_u24")
def layout(lines, first_budget, touch_reg, align=True, paging=True):
    idx = [i for i, l in enumerate(lines) if is_instr(l) and l.strip() != "TOUCH"]
    sz = sizes_of([l for l in lines if l.strip() != "TOUCH"])
    size = dict(zip(idx, sz))
    TOUCH_BYTES = 32
    out = []
    off = 0; budget = first_budget; npad = 0
    lastpromo = None
    mis_since = 0; al_since = 0
    for i, l in enumerate(lines):
        s = l.strip()
        if s == "TOUCH":
            out.append(["TOUCH", TOUCH_BYTES]); off += TOUCH_BYTES
            continue
        if i not in size:
            out.append([l, 0]); continue
        n = size[i]
        if paging and off + n + 4 + 8 > budget:
            npad += 1
            out.append(["s_branch L_pg%d" % npad, 4]); out.append([".p2align 12", 0]); out.append(["L_pad%d:" % npad, 0])
            out.append(["PAD%d" % npad, 4]); out.append(["s_nop 0", 4]); out.append(["L_pg%d:" % npad, 0])
            off = 8; budget = 4096; lastpromo = None
        if align and n == 8 and off % 8 == 4:
            run = 0
            for k in range(i, min(i + 24, len(lines))):
                if k in size:
                    if size[k] == 8: run += 1
                    else: break
            if lastpromo is not None and al_since <= mis_since + run - 1 and run >= 2:
                p = out[lastpromo]
                op, rest = p[0].strip().split(None, 1)
                p[0] = op + "_e64 " + rest; p[1] = 8
                off += 4; lastpromo = None
            elif run >= 7:
                out.append(["s_nop 0", 4]); off += 4
        out.append([l, n])
        if n == 4 and s.split()[0] in PROMO:
            lastpromo = len(out) - 1; mis_since = 0; al_since = 0
        elif n == 8:
            if off % 8 == 4: mis_since += 1
            else: al_since += 1
        off += n
    res = []
    for l, n in out:
        if l == "TOUCH":
            for w in range(4):
                if w + 1 <= npad:
                    res.append("s_cmp_eq_u32 s%d, %d" % (touch_reg, w)); res.append("s_cbranch_scc1 L_pad%d" % (w + 1))
                else:
                    res.append("s_nop 0"); res.append("s_nop 0")
            res.append("L_touch_ret:")
        elif l.startswith("PAD"):
            k = int(l[3:])
            res.append("s_branch %s" % ("L_pad%d" % (k + 4) if k + 4 <= npad else "L_touch_ret"))
        else:
            res.append(l)
    return res, npad, off
```

```python
import sys
from asmlib import *

NAME = "gated_mix__ssm_conv_s5__dense_activation_relu__prompt"
OPT = dict(stamps=0, p1map=84, rot1=2, pre=2, fillb=2, diag=-1, diagcyc=0, fwait=22, nh0=8, pfs=17, hsc=1, psc=1, osc=0, lgaps=14, hsn=10, b2=1, wsoff=0, pfpos=10, smask=0, exp=0, lbpos=4, ffpos=0, page=1, align=1, cpf=1, nst0=6, hs0=0, tb=6)
for a in sys.argv[2:]:
    k, v = a.split("=")
    assert k in OPT, k
    OPT[k] = int(v)

AGG = 4096
GOFF = AGG + 16 * 8192
FLAGS = GOFF + 2048 * 8
FLAGS2 = FLAGS + 65536
HOFF = 393216
TSTRIDE = 176 * 1024
PART = HOFF + 64 * TSTRIDE
WS_SIZE = PART + 256 * 4 * 6144
OOB = 0x80000000
LX, LW, LB = 0, 65536, 131072
SCR = LB + 2 * 8192
GT = SCR + 4096
TRB = LB + 3 * 8192
SRD_X, SRD_B, SRD_W1, SRD_W2, SRD_CR, SRD_CI, SRD_WS, SRD_OUT = 4, 8, 12, 16, 20, 24, 28, 32
sW, sR, sJ, sQ, sC, sTAG, sMASK = 36, 37, 38, 39, 40, 41, 42
sX, sB, sW1 = 43, 44, 45
sMX, sMB, sMW = 46, 47, 48
sT0, sT1, sT2, sT3 = 49, 50, 51, 52
sXb, sBb, sW1b, sCI = 54, 55, 56, 57
sV0, sV1 = 54, 56
sTP = 58
sCNT = 60
sE = 63
pX, pLRE, pLIM, pBRE, pBIM, pCRE, pCIM, pLDT, pDSK, pBX, pW1, pW2, pGATE, pOUT, pDBG, pWS = range(64, 96, 2)
sST = 96
sODD = 98
sHF, sFL = 99, 100
sV2b, sKSW, sCb, sHO, sHS, sHq = 53, 3, 61, 62, 82, 83
sDG = 84
vLANE, vTID8 = 1, 0
vX = 2; vC = 6; vW1 = 10; vW2 = 14
rdA = 18; rdB = 22; rdW = 26
cL, cL16, cL16q, cL128q, cL1024, cCO = 30, 32, 34, 36, 38, 40
vQ, vL16, vL16d = 42, 43, 44
vTAG = 45
vPRE = 46
FR = 48
ACC_RE, ACC_IM, ACC_F = 104, 120, 136
T = 200
LOG2E = 0x3fb8aa3b
INV2PI = 0x3e22f983

g = Asm()
e = g.e
nstamp = [0]
sidx = [0]; sused = []; SPAIRS = [70, 72, 74, 76, 78, 84, 86, 88, 90, 92, 94]
ndiag = [1]
import os
STN = os.environ.get("ST", "").split(",")
def nstamp_(name):
    if OPT["stamps"] == 6 and name in STN:
        p = SPAIRS[len(sused)]; sused.append(p)
        g.e("s_memtime s[%d:%d]" % (p, p + 1))
def stamp():
    if OPT["diag"] >= 0:
        if ndiag[0] == OPT["diag"]:
            g.e("%s s[%d:%d]" % ("s_memtime" if OPT["diagcyc"] else "s_memrealtime", sDG, sDG + 1)); g.e("s_waitcnt lgkmcnt(0)"); g.lgq = []
        ndiag[0] += 1
    if OPT["stamps"] == 6:
        sidx[0] += 1
        if (OPT["smask"] >> sidx[0]) & 1:
            p = SPAIRS[len(sused)]; sused.append(p)
            g.e("s_memtime s[%d:%d]" % (p, p + 1))
        return
    if not OPT["stamps"] or OPT["stamps"] == 5:
        return
    i = nstamp[0]; nstamp[0] += 1
    assert i < 30
    g.e("s_memtime s[%d:%d]" % (sST, sST + 1))
    g.e("s_waitcnt lgkmcnt(0)")
    g.lgq = []
    g.e("v_accvgpr_write_b32 a255, s%d" % sST)
    g.e("s_mov_b64 exec, 1")
    g.vm("buffer_store_dword a255, off, s[%d:%d], s101 offset:%d" % (SRD_WS, SRD_WS + 3, 4 * i), "stamp")
    g.e("s_mov_b64 exec, -1")

def cfma(dr, di, ar_, ai, br, bi, cr, ci):
    e("v_fma_f32 v%d, v%d, v%d, v%d" % (dr, ar_, br, cr))
    e("v_fma_f32 v%d, v%d, v%d, v%d" % (di, ar_, bi, ci))
    e("v_fma_f32 v%d, -v%d, v%d, v%d" % (dr, ai, bi, dr))
    e("v_fma_f32 v%d, v%d, v%d, v%d" % (di, ai, br, di))
def cmul(dr, di, ar_, ai, br, bi):
    e("v_mul_f32 v%d, v%d, v%d" % (dr, ar_, br))
    e("v_mul_f32 v%d, v%d, v%d" % (di, ar_, bi))
    e("v_fma_f32 v%d, -v%d, v%d, v%d" % (dr, ai, bi, dr))
    e("v_fma_f32 v%d, v%d, v%d, v%d" % (di, ai, br, di))
def srd(base, p):
    e("s_mov_b32 s%d, s%d" % (base, p))
    e("s_mov_b32 s%d, s%d" % (base + 1, p + 1))
def S(fmt, *a):
    e(fmt % a)
def run(L):
    for s, tag in L:
        if tag is None: g.e(s)
        elif tag.startswith("ds:"): g.ds(s, tag[3:])
        else: g.vm(s, tag)
WSR = "s[%d:%d]" % (SRD_WS, SRD_WS + 3)
HSC = ("", " sc1", " sc1 nt")[OPT["hsc"]]

hdr = open("cdna_kernels/%s.s.ref" % NAME).read().split("; Override launch")[0]
out_hdr = hdr + "; @launch grid=(256,1,1) block=(256,1,1) lds=163840\n"
e('.amdgcn_target "amdgcn-amd-amdhsa--gfx950"')
e(".text")
e(".globl %s_kernel" % NAME)
e(".p2align 8")
e(".type %s_kernel,@function" % NAME)
g.label("%s_kernel" % NAME)
e("s_cmp_ge_u32 s2, 256")
e("s_cbranch_scc1 L_end")
if OPT["stamps"]:
    e("s_memrealtime s[82:83]"); e("s_memtime s[96:97]"); e("s_waitcnt lgkmcnt(0)"); e("v_mov_b32 v252, s82"); e("v_mov_b32 v253, s96")
if OPT["diag"] >= 0:
    e("%s s[96:97]" % ("s_memtime" if OPT["diagcyc"] else "s_memrealtime"))
e("s_load_dwordx16 s[64:79], s[0:1], 0")
e("s_load_dwordx16 s[80:95], s[0:1], 64")
e("v_lshrrev_b32 v2, 6, v0")
S("v_and_b32 v%d, 63, v0", vLANE)
S("v_readfirstlane_b32 s%d, v2", sW)
t0, t1, t2, t3 = T, T + 1, T + 2, T + 3
S("v_lshrrev_b32 v%d, 3, v%d", t0, vLANE)
S("v_and_b32 v%d, 7, v%d", t1, vLANE)
S("v_lshrrev_b32 v%d, 1, v%d", t2, t0)
S("v_xor_b32 v%d, v%d, v%d", t3, t1, t2)
S("v_lshlrev_b32 v%d, 4, v%d", t3, t3)
S("v_lshl_add_u32 v%d, v%d, 10, v%d", vC, t0, t3)
S("v_lshrrev_b32 v%d, 2, v%d", t1, t0)
S("v_and_b32 v%d, 3, v%d", t2, t0)
S("v_lshl_add_u32 v%d, v%d, 4, v%d", t1, t1, t2)
S("v_lshl_add_u32 v%d, v%d, 10, v%d", vX, t1, t3)
S("v_xor_b32 v%d, 64, v%d", vX + 1, vX)
S("v_add_u32 v%d, 3072, v%d", vX + 1, vX + 1)
S("v_add_u32 v%d, 6144, v%d", vX + 2, vX)
S("v_add_u32 v%d, 6144, v%d", vX + 3, vX + 1)
S("s_bfe_u32 s%d, s2, 0x30003", sT2)
S("s_and_b32 s%d, s2, 1", sR); S("s_lshl_b32 s%d, s%d, 3", sR, sR); S("s_add_u32 s%d, s%d, s%d", sR, sR, sT2)
S("s_lshr_b32 s%d, s2, 6", sC)
S("s_bfe_u32 s%d, s2, 0x20001", sQ)
S("s_mov_b32 s%d, 0x%x", SRD_X + 2, 2048 * 1024); S("s_mov_b32 s%d, 0x20000", SRD_X + 3)
if OPT["rot1"] == 2:
    S("s_add_u32 s%d, s%d, s%d", sCI, sR, sC); S("s_and_b32 s%d, s%d, 1", sCI, sCI); S("s_lshl_b32 s%d, s%d, 2", sCI, sCI)
elif OPT["rot1"] == 4:
    S("s_add_u32 s%d, s%d, s%d", sCI, sR, sC); S("s_and_b32 s%d, s%d, 3", sCI, sCI); S("s_lshl_b32 s%d, s%d, 1", sCI, sCI)
else:
    S("s_mov_b32 s%d, 0", sCI)
S("s_lshl_b32 s%d, s%d, 17", sXb, sR); S("s_lshl_b32 s%d, s%d, 15", sT0, sW); S("s_add_u32 s%d, s%d, s%d", sXb, sXb, sT0)
S("s_lshl_b32 s%d, s%d, 12", sMX, sW)
S("s_lshl_b32 s%d, s%d, 7", sB, sCI)
S("s_mov_b32 m0, s%d", sMX)
S("s_add_u32 s%d, s%d, s%d", sX, sXb, sB)
e("s_waitcnt lgkmcnt(0)")
srd(SRD_X, pX)
for n in range(4):
    g.vm("buffer_load_dwordx4 v%d, s[%d:%d], s%d offen offset:%d lds" % (vX + n, SRD_X, SRD_X + 3, sX, 1024 * n), "ch0")
if OPT["cpf"]:
    S("s_getpc_b64 s[%d:%d]", sTP, sTP + 1)
    S("s_lshr_b32 s%d, s2, 3", sT0); S("s_lshl_b32 s%d, s%d, 2", sT0, sT0); S("s_add_u32 s%d, s%d, s%d", sT0, sT0, sW)
    S("s_mul_i32 s%d, s%d, 0x1234", sT0, sT0)
    S("s_add_u32 s%d, s%d, s%d", sTP, sTP, sT0); S("s_addc_u32 s%d, s%d, 0", sTP + 1, sTP + 1)
    S("s_load_dword s%d, s[%d:%d], 0", sCNT, sTP, sTP + 1)
    S("s_load_dword s%d, s[%d:%d], 0x4320", sCb, sTP, sTP + 1)
if OPT["wsoff"]:
    S("s_add_u32 s%d, s%d, 0x%x", pWS, pWS, OPT["wsoff"] << 20); S("s_addc_u32 s%d, s%d, 0", pWS + 1, pWS + 1)
S("s_load_dword s%d, s[%d:%d], 0", sE, pWS, pWS + 1)
S("s_lshl_b32 s%d, s%d, 2", sJ, sQ); S("s_add_u32 s%d, s%d, s%d", sJ, sJ, sC)
for b_, sz in ((SRD_B, 512 * 1024), (SRD_W1, 512 * 3584)):
    S("s_mov_b32 s%d, 0x%x", b_ + 2, sz)
    S("s_mov_b32 s%d, 0x20000", b_ + 3)
S("v_xor_b32 v%d, 64, v%d", vC + 1, vC)
S("v_add_u32 v%d, 7168, v%d", vC + 1, vC + 1)
S("s_lshl_b32 s%d, s%d, 15", sBb, sJ); S("s_and_b32 s%d, s%d, 1", sT0, sW); S("s_lshl_b32 s%d, s%d, 14", sT0, sT0); S("s_add_u32 s%d, s%d, s%d", sBb, sBb, sT0)
S("s_lshl_b32 s%d, s%d, 11", sMB, sW); S("s_add_u32 s%d, s%d, %d", sMB, sMB, LB)
S("s_cmp_ge_u32 s%d, 2", sW)
S("s_cselect_b32 s%d, s%d, s%d", SRD_B, pBIM, pBRE)
S("s_cselect_b32 s%d, s%d, s%d", SRD_B + 1, pBIM + 1, pBRE + 1)
S("s_mov_b32 m0, s%d", sMB)
S("s_add_u32 s%d, s%d, s%d", sB, sBb, sB)
for n in range(2):
    g.vm("buffer_load_dwordx4 v%d, s[%d:%d], s%d offen offset:%d lds" % (vC + n, SRD_B, SRD_B + 3, sB, 1024 * n), "ch0")
S("v_lshrrev_b32 v%d, 4, v%d", t0, vLANE)
S("v_and_b32 v%d, 15, v%d", t1, vLANE)
S("v_lshlrev_b32 v%d, 2, v%d", t2, t0)
S("v_xor_b32 v%d, v%d, v%d", vW2, t1, t2)
S("v_lshrrev_b32 v%d, 2, v%d", t2, vW2)
S("v_cmp_eq_u32 vcc, 3, v%d", t2)
S("v_mul_u32_u24 v%d, 3584, v%d", t0, t0)
S("v_lshl_add_u32 v%d, v%d, 4, v%d", vW1, vW2, t0)
S("s_and_b32 s%d, s%d, 1", sODD, sC)
S("s_cselect_b64 s[%d:%d], vcc, 0", sTP, sTP + 1)
S("v_mov_b32 v%d, 0x%x", t3, OOB)
S("v_lshlrev_b32 v%d, 4, v%d", vL16, vLANE)
S("v_cndmask_b32 v%d, v%d, v%d, s[%d:%d]", vW1, vW1, t3, sTP, sTP + 1)
for n in range(1, 4):
    S("v_add_u32 v%d, %d, v%d", vW1 + n, 13312 * n, vW1)
S("s_lshr_b32 s%d, s%d, 1", sT0, sJ); S("s_mul_i32 s%d, s%d, 448", sT0, sT0); S("s_lshl_b32 s%d, s%d, 8", sT1, sODD); S("s_add_u32 s%d, s%d, s%d", sT0, sT0, sT1)
S("s_mul_i32 s%d, s%d, %d", sW1b, sW, 16 * 3584); S("s_add_u32 s%d, s%d, s%d", sW1b, sW1b, sT0)
S("s_add_u32 s%d, s%d, %d", sMW, sMX, LW)
srd(SRD_W1, pW1)
S("s_mul_i32 s%d, s%d, %d", sW1, sCI, 64 * 3584)
S("s_mov_b32 m0, s%d", sMW)
S("s_add_u32 s%d, s%d, s%d", sW1, sW1, sW1b)
for n in range(4):
    g.vm("buffer_load_dwordx4 v%d, s[%d:%d], s%d offen offset:%d lds" % (vW1 + n, SRD_W1, SRD_W1 + 3, sW1, 1024 * n), "ch0")
S("s_add_u32 s%d, s%d, 1", sCI, sCI)
S("v_and_b32 v%d, 31, v%d", t0, vLANE)
S("v_lshlrev_b32 v%d, 1, v%d", t0, t0)
S("s_lshl_b32 s%d, s%d, 6", sT0, sJ)
S("v_add_u32 v%d, s%d, v%d", t0, sT0, t0)
S("s_lshl_b32 s%d, s%d, 11", sT1, sJ); S("s_add_u32 s%d, s%d, s%d", sT1, sT1, sXb)
S("v_add_u32 v%d, s%d, v%d", t1, sT1, vL16)

def dma_chunk(c):
    k = c & 3
    L = []
    def I(s): L.append((s, None))
    def D(s): L.append((s, "ch%d" % c))
    I("s_lshl_b32 s%d, s%d, 7" % (sB, sCI))
    I("s_add_u32 m0, s%d, %d" % (sMX, k * 16384))
    I("s_add_u32 s%d, s%d, s%d" % (sX, sXb, sB))
    for n in range(4): D("buffer_load_dwordx4 v%d, s[%d:%d], s%d offen offset:%d lds" % (vX + n, SRD_X, SRD_X + 3, sX, 1024 * n))
    I("s_add_u32 m0, s%d, %d" % (sMB, k * 8192))
    I("s_add_u32 s%d, s%d, s%d" % (sB, sBb, sB))
    for n in range(2): D("buffer_load_dwordx4 v%d, s[%d:%d], s%d offen offset:%d lds" % (vC + n, SRD_B, SRD_B + 3, sB, 1024 * n))
    I("s_mul_i32 s%d, s%d, %d" % (sW1, sCI, 64 * 3584))
    I("s_add_u32 m0, s%d, %d" % (sMW, k * 16384))
    I("s_add_u32 s%d, s%d, s%d" % (sW1, sW1, sW1b))
    for n in range(4): D("buffer_load_dwordx4 v%d, s[%d:%d], s%d offen offset:%d lds" % (vW1 + n, SRD_W1, SRD_W1 + 3, sW1, 1024 * n))
    I("s_add_u32 s%d, s%d, 1" % (sCI, sCI))
    I("s_and_b32 s%d, s%d, 7" % (sCI, sCI))
    return L
PL, PI, PD = T + 4, T + 5, T + 6
GX0, GX1, GW = T + 8, T + 12, T + 16
g.vm("global_load_dwordx4 %s, v%d, s[%d:%d]" % (vr(GW, 4), vL16, pGATE, pGATE + 1), "small2")
g.vm("global_load_dwordx4 %s, v%d, s[%d:%d]" % (vr(GX0, 4), t1, pX, pX + 1), "small2")
g.vm("global_load_dwordx4 %s, v%d, s[%d:%d] offset:1024" % (vr(GX1, 4), t1, pX, pX + 1), "small2")
g.vm("global_load_ushort v%d, v%d, s[%d:%d]" % (PD, t0, pLDT, pLDT + 1), "small")
g.vm("global_load_ushort v%d, v%d, s[%d:%d]" % (PL, t0, pLRE, pLRE + 1), "small")
g.vm("global_load_ushort v%d, v%d, s[%d:%d]" % (PI, t0, pLIM, pLIM + 1), "small")
for b, sz in ((SRD_W2, 1792 * 1024), (SRD_CR, 512 * 1024), (SRD_CI, 512 * 1024), (SRD_WS, WS_SIZE + (256 * 4 * 128 if OPT["stamps"] else 0)), (SRD_OUT, 2048 * 2048)):
    S("s_mov_b32 s%d, 0x%x", b + 2, sz)
    S("s_mov_b32 s%d, 0x20000", b + 3)
S("s_mov_b32 s%d, 0xffff0000", sMASK)
srd(SRD_W2, pW2); srd(SRD_CR, pCRE); srd(SRD_CI, pCIM); srd(SRD_WS, pWS); srd(SRD_OUT, pOUT)
if OPT["stamps"]:
    e("s_lshl_b32 s101, s2, 2"); S("s_add_u32 s101, s101, s%d", sW); e("s_lshl_b32 s101, s101, 7"); S("s_add_u32 s101, s101, %d", WS_SIZE)
    e("s_mov_b64 exec, 1")
    g.vm("buffer_store_dword v253, off, %s, s101 offset:0" % WSR, "stamp")
    g.vm("buffer_store_dword v252, off, %s, s101 offset:120" % WSR, "stamp")
    e("s_mov_b64 exec, -1")
    nstamp[0] = 1
stamp()
S("v_and_b32 v%d, 31, v%d", t0, vLANE)
S("v_lshrrev_b32 v%d, 5, v%d", t1, vLANE)
S("v_bfe_u32 v%d, v%d, 1, 3", t2, t0)
S("v_xor_b32 v%d, v%d, v%d", t2, t2, t1)
S("v_lshlrev_b32 v%d, 4, v%d", t2, t2)
S("v_lshl_add_u32 v%d, v%d, 7, v%d", t2, t0, t2)
S("v_add_u32 v%d, s%d, v%d", rdA, sMX, t2)
S("v_add_u32 v%d, 0x%x, v%d", rdB, LB, t2)
for s in range(1, 4):
    S("v_xor_b32 v%d, %d, v%d", rdA + s, 32 * s, rdA)
    S("v_xor_b32 v%d, %d, v%d", rdB + s, 32 * s, rdB)
S("s_lshl_b32 s%d, s%d, 1", sT0, sW)
S("v_add_u32 v%d, s%d, v%d", vQ, sT0, t1)
S("v_bfe_u32 v%d, v%d, 2, 2", t0, vLANE)
S("v_lshl_add_u32 v%d, v%d, 3, v%d", t2, t1, t0)
S("v_lshlrev_b32 v%d, 8, v%d", t2, t2)
S("v_lshl_add_u32 v%d, v%d, 6, v%d", t2, t0, t2)
S("v_bfe_u32 v%d, v%d, 4, 1", t3, vLANE)
S("v_lshl_add_u32 v%d, v%d, 5, v%d", vPRE, t3, t2)
S("v_and_b32 v%d, 1, v%d", t3, vLANE)
S("v_lshl_add_u32 v%d, v%d, 4, v%d", t2, t3, vPRE)
S("v_bfe_u32 v%d, v%d, 1, 1", t3, vLANE)
S("v_lshl_add_u32 v%d, v%d, 3, v%d", t2, t3, t2)
S("v_add_u32 v%d, 0x%x, v%d", rdW, LW, t2)
for s in range(1, 4):
    S("v_xor_b32 v%d, %d, v%d", rdW + s, 64 * s, rdW)
if OPT["page"]: e("TOUCH")
run(dma_chunk(1))
e("s_waitcnt lgkmcnt(0)")
S("s_mul_i32 s%d, s%d, 0x9e3779b1", sTAG, sE)
S("s_add_u32 s%d, s%d, 0x7f4a7c15", sTAG, sTAG)

F = Rec()
e = F.e
S("v_lshlrev_b32 v%d, 3, v0", vTID8)
S("v_add_u32 v%d, 0x%x, v%d", vTID8, SCR, vTID8)
S("v_mov_b32 v%d, 0x%x", t3, OOB)
S("s_cmp_eq_u32 s%d, 1\ns_cselect_b64 s[%d:%d], -1, 0", sODD, sTP, sTP + 1)
F.items[-2:] = [(2, (lambda a, b: (lambda gg: (a(gg), b(gg))))(F.items[-2][1], F.items[-1][1]))]
S("v_mov_b32 v%d, s%d", vTAG, sTAG)
S("v_cndmask_b32 v%d, v%d, v%d, s[%d:%d]", vL16d, vL16, t3, sTP, sTP + 1)
S("v_add_u32 v%d, 14336, v%d", vC + 2, vC); S("v_add_u32 v%d, 14336, v%d", vC + 3, vC + 1)
S("s_lshl_b32 s%d, s%d, 2", sT0, sQ)
S("v_add_u32 v%d, s%d, v%d", vW2, sT0, vW2)
S("v_and_b32 v%d, 15, v%d", vW2, vW2)
S("v_lshlrev_b32 v%d, 4, v%d", vW2, vW2)
S("v_lshrrev_b32 v%d, 4, v%d", t0, vLANE)
S("v_lshl_add_u32 v%d, v%d, 10, v%d", vW2, t0, vW2)
for n in range(1, 4):
    S("v_add_u32 v%d, %d, v%d", vW2 + n, 3072 * n, vW2)
S("s_mul_i32 s%d, s%d, %d", sV2b, sQ, 448 * 1024); S("s_lshl_b32 s%d, s%d, 8", sT0, sC); S("s_add_u32 s%d, s%d, s%d", sV2b, sV2b, sT0)
S("s_lshr_b32 s%d, s%d, 1", sT0, sC); S("s_mul_i32 s%d, s%d, 14", sHO, sT0); S("s_lshl_b32 s%d, s%d, 3", sT1, sODD); S("s_add_u32 s%d, s%d, s%d", sHO, sHO, sT1)
S("s_mov_b32 s%d, s%d", sKSW, sHO)
S("s_add_u32 s%d, s%d, s%d", sT1, sW, sQ); S("s_and_b32 s%d, s%d, 3", sT1, sT1); S("s_lshl_b32 s%d, s%d, 15", sT1, sT1)
S("s_lshl_b32 s%d, s%d, 17", sCb, sC); S("s_add_u32 s%d, s%d, s%d", sCb, sCb, sT1)
S("s_lshl_b32 s%d, s%d, 8", sT1, sQ); S("s_add_u32 s%d, s%d, s%d", sCb, sCb, sT1)
S("s_lshl_b32 s%d, s%d, 7", sT0, sT0); S("s_add_u32 s%d, s%d, s%d", sCb, sCb, sT0)
nearly = len(F.items)
F.wait_vm("small2")
GA0, GA1 = T + 22, T + 24
gl, gh, x0, x1, y0, y1 = T + 26, T + 27, T + 28, T + 29, T + 30, T + 31
for k in range(4):
    S("v_lshlrev_b32 v%d, 16, v%d", gl, GW + k); S("v_and_b32 v%d, s%d, v%d", gh, sMASK, GW + k)
    S("v_lshlrev_b32 v%d, 16, v%d", x0, GX0 + k); S("v_and_b32 v%d, s%d, v%d", x1, sMASK, GX0 + k)
    S("v_lshlrev_b32 v%d, 16, v%d", y0, GX1 + k); S("v_and_b32 v%d, s%d, v%d", y1, sMASK, GX1 + k)
    S("v_mul_f32 v%d, v%d, v%d", x0, x0, gl); S("v_mul_f32 v%d, v%d, v%d", x1, x1, gh)
    S("v_mul_f32 v%d, v%d, v%d", y0, y0, gl); S("v_mul_f32 v%d, v%d, v%d", y1, y1, gh)
    S("v_cvt_pk_bf16_f32 v%d, v%d, v%d", x0, x0, x1); S("v_cvt_pk_bf16_f32 v%d, v%d, v%d", y0, y0, y1)
    S("v_and_b32 v%d, s%d, v%d", x1, sMASK, x0); S("v_lshlrev_b32 v%d, 16, v%d", x0, x0)
    S("v_and_b32 v%d, s%d, v%d", y1, sMASK, y0); S("v_lshlrev_b32 v%d, 16, v%d", y0, y0)
    if k == 0:
        S("v_add_f32 v%d, v%d, v%d", GA0, x0, x1); S("v_add_f32 v%d, v%d, v%d", GA1, y0, y1)
    else:
        S("v_add_f32 v%d, v%d, v%d", GA0, GA0, x0); S("v_add_f32 v%d, v%d, v%d", GA1, GA1, y0)
        S("v_add_f32 v%d, v%d, v%d", GA0, GA0, x1); S("v_add_f32 v%d, v%d, v%d", GA1, GA1, y1)
e("s_nop 0")
for d in ("row_shr:1 row_mask:0xf", "row_shr:2 row_mask:0xf", "row_shr:4 row_mask:0xf", "row_shr:8 row_mask:0xf", "row_bcast:15 row_mask:0xa", "row_bcast:31 row_mask:0xc"):
    S("v_add_f32_dpp v%d, v%d, v%d %s bank_mask:0xf", GA0, GA0, GA0, d)
    S("v_add_f32_dpp v%d, v%d, v%d %s bank_mask:0xf", GA1, GA1, GA1, d)
    e("s_nop 0")
S("v_cvt_pk_bf16_f32 v%d, v%d, v%d", x0, GA0, GA1)
S("v_and_b32 v%d, s%d, v%d", GA1, sMASK, x0); S("v_lshlrev_b32 v%d, 16, v%d", GA0, x0)
S("v_mul_f32 v%d, 0x%x, v%d", GA0, LOG2E | 0x80000000, GA0); S("v_mul_f32 v%d, 0x%x, v%d", GA1, LOG2E | 0x80000000, GA1)
S("v_exp_f32 v%d, v%d", GA0, GA0); S("v_exp_f32 v%d, v%d", GA1, GA1)
e("s_nop 0")
S("v_add_f32 v%d, 1.0, v%d", GA0, GA0); S("v_add_f32 v%d, 1.0, v%d", GA1, GA1)
S("v_rcp_f32 v%d, v%d", GA0, GA0); S("v_rcp_f32 v%d, v%d", GA1, GA1)
S("v_cmp_eq_u32 vcc, 63, v%d", vLANE)
S("v_cvt_pk_bf16_f32 v%d, v%d, v%d", x0, GA0, GA1)
S("v_mov_b32 v%d, s%d", GA0 + 1, sTAG); S("v_mov_b32 v%d, s%d", GA1 + 1, sTAG)
S("v_and_b32 v%d, s%d, v%d", GA1, sMASK, x0); S("v_lshlrev_b32 v%d, 16, v%d", GA0, x0)
S("s_lshl_b32 s%d, s%d, 10", sT0, sR); S("s_lshl_b32 s%d, s%d, 8", sT1, sW); S("s_add_u32 s%d, s%d, s%d", sT0, sT0, sT1)
S("s_add_u32 s%d, s%d, %d", sT0, sT0, GOFF)
S("s_lshl_b32 s%d, s%d, 4", sT1, sJ); S("s_add_u32 s%d, s%d, s%d", sT1, sT1, sT0)
S("v_mov_b32 v%d, s%d", y0, sT1)
S("v_cndmask_b32 v%d, v%d, v%d, vcc", y0, t3, y0)
F.vm("buffer_store_dwordx4 %s, v%d, %s, 0 offen sc1" % (vr(GA0, 4), y0, WSR), "gst")
vTJ, vGA = T + 32, T + 33
S("v_bfe_u32 v%d, v%d, 2, 1", t0, vLANE)
S("v_bfe_u32 v%d, v%d, 3, 2", t1, vLANE)
S("v_and_b32 v%d, 3, v%d", t2, vLANE)
S("v_lshl_add_u32 v%d, v%d, 2, v%d", t1, t1, t2)
S("v_lshl_add_u32 v%d, v%d, 4, v%d", vTJ, t0, t1)
S("v_lshl_add_u32 v%d, v%d, 3, s%d", vGA, vTJ, sT0)
vXD, vDS = 228, 230
sXT = 69
S("s_lshl_b32 s%d, s%d, 8", sT0, sC); S("s_lshl_b32 s%d, s%d, 6", sT1, sQ); S("s_add_u32 s%d, s%d, s%d", sT0, sT0, sT1)
S("v_lshrrev_b32 v%d, 2, v%d", t0, vLANE)
S("v_and_b32 v%d, 3, v%d", t2, vLANE)
S("v_lshlrev_b32 v%d, 4, v%d", t2, t2)
S("v_lshl_add_u32 v%d, v%d, 10, v%d", vXD, t0, t2)
S("v_add_u32 v%d, 15360, v%d", vXD + 1, vXD)
S("s_lshl_b32 s%d, s%d, 17", sT1, sR); S("s_add_u32 s%d, s%d, s%d", sXT, sT0, sT1); S("s_lshl_b32 s%d, s%d, 15", sT1, sW); S("s_add_u32 s%d, s%d, s%d", sXT, sXT, sT1)
S("v_and_b32 v%d, 31, v%d", t2, vLANE)
S("v_lshlrev_b32 v%d, 1, v%d", t2, t2)
S("v_add_u32 v%d, s%d, v%d", vDS, sT0, t2)
nxaddr = len(F.items)
F.wait_vm("small")
a_, b_ = T + 20, T + 21
S("v_lshlrev_b32 v%d, 16, v%d", PD, PD)
S("v_mul_f32 v%d, 0x%x, v%d", PD, LOG2E, PD)
S("v_exp_f32 v%d, v%d", PD, PD)
S("v_lshlrev_b32 v%d, 16, v%d", PL, PL)
S("v_lshlrev_b32 v%d, 16, v%d", PI, PI)
S("v_cvt_pk_bf16_f32 v%d, v%d, v%d", PD, PD, PD)
S("v_lshlrev_b32 v%d, 16, v%d", PD, PD)
S("v_mul_f32 v%d, v%d, v%d", a_, PD, PL)
S("v_mul_f32 v%d, v%d, v%d", b_, PD, PI)
S("v_mul_f32 v%d, 0x%x, v%d", a_, LOG2E, a_)
S("v_mul_f32 v%d, 0x%x, v%d", b_, INV2PI, b_)
S("v_cvt_f32_u32 v%d, v%d", t3, vQ)
def cpow(d, mul):
    if mul is None:
        S("v_exp_f32 v%d, v%d", t0, a_); S("v_fract_f32 v%d, v%d", t1, b_)
    else:
        S("v_mul_f32 v%d, %s, v%d", t0, mul, a_); S("v_mul_f32 v%d, %s, v%d", t1, mul, b_)
        S("v_exp_f32 v%d, v%d", t0, t0); S("v_fract_f32 v%d, v%d", t1, t1)
    S("v_cos_f32 v%d, v%d", d, t1); S("v_sin_f32 v%d, v%d", d + 1, t1)
    e("s_nop 0")
    S("v_mul_f32 v%d, v%d, v%d", d, d, t0); S("v_mul_f32 v%d, v%d, v%d", d + 1, d + 1, t0)
cpow(cL, None)
cpow(cL16, "0x41800000")
cpow(cL1024, "0x44800000")
S("v_mul_f32 v%d, 0x41800000, v%d", t2, t3); cpow(cL16q, "v%d" % t2)
S("v_mul_f32 v%d, 0x43000000, v%d", t2, t3); cpow(cL128q, "v%d" % t2)
S("v_mul_f32 v%d, v%d, v%d", t0, PL, PL)
S("v_fma_f32 v%d, v%d, v%d, v%d", t0, PI, PI, t0)
S("v_rcp_f32 v%d, v%d", t0, t0)
S("v_add_f32 v%d, -1.0, v%d", t1, cL)
S("v_mul_f32 v%d, v%d, v%d", cCO, t1, PL)
S("v_fma_f32 v%d, v%d, v%d, v%d", cCO, cL + 1, PI, cCO)
S("v_mul_f32 v%d, v%d, v%d", cCO + 1, cL + 1, PL)
S("v_fma_f32 v%d, -v%d, v%d, v%d", cCO + 1, t1, PI, cCO + 1)
S("v_add_f32 v%d, v%d, v%d", t0, t0, t0)
S("v_mul_f32 v%d, v%d, v%d", cCO, cCO, t0)
S("v_mul_f32 v%d, v%d, v%d", cCO + 1, cCO + 1, t0)
S("s_lshl_b32 s%d, s%d, 2", sT0, sR); S("s_add_u32 s%d, s%d, s%d", sT0, sT0, sW)
S("s_mul_i32 s%d, s%d, %d", sHF, sT0, TSTRIDE); S("s_add_u32 s%d, s%d, %d", sHF, sHF, HOFF)
S("s_lshl_b32 s%d, s%d, 9", sFL, sT0); S("s_lshl_b32 s%d, s%d, 7", sT1, sQ); S("s_add_u32 s%d, s%d, s%d", sFL, sFL, sT1); S("s_add_u32 s%d, s%d, %d", sFL, sFL, FLAGS)
S("s_mul_i32 s%d, s%d, %d", sHq, sQ, 28 * 1024); S("s_add_u32 s%d, s%d, s%d", sHq, sHq, sHF)
S("s_lshl_b32 s%d, s%d, 10", sHO, sHO)
S("s_lshl_b32 s%d, s%d, 14", sHS, sQ); S("s_add_u32 s%d, s%d, s%d", sHS, sHS, sHF); S("s_add_u32 s%d, s%d, %d", sHS, sHS, 112 * 1024)
nlate = len(F.items)
rdVW, rdVX, rdCX, rdCB = 10, 2, 18, 22
vSEG, vPUB, vLB0, vLB1 = 204, 205, 206, 207
vGW, vGR = 238, 239
vXD, vDS = 228, 230
sHFa, sHFb = 64, 65
S("v_and_b32 v%d, 3, v%d", t2, vLANE)
S("v_lshl_add_u32 v%d, v%d, 3, v%d", rdVX, t2, vPRE)
S("v_add_u32 v%d, 0x%x, v%d", rdVW, LW, rdVX)
for s_ in range(1, 4):
    S("v_xor_b32 v%d, %d, v%d", rdVX + s_, 64 * s_, rdVX)
    S("v_xor_b32 v%d, %d, v%d", rdVW + s_, 64 * s_, rdVW)
S("v_and_b32 v%d, 31, v%d", t1, vLANE)
S("v_lshlrev_b32 v%d, 3, v%d", t1, t1)
S("v_add_u32 v%d, 0x%x, v%d", vSEG, SCR, t1)
S("v_lshlrev_b32 v%d, 1, v%d", t0, t1)
S("s_lshl_b32 s%d, s%d, 9", sT0, sJ); S("s_lshl_b32 s%d, s%d, 13", sT1, sR); S("s_add_u32 s%d, s%d, s%d", sT0, sT0, sT1); S("s_add_u32 s%d, s%d, %d", sT0, sT0, AGG)
S("v_add_u32 v%d, s%d, v%d", t0, sT0, t0)
S("v_mov_b32 v%d, 0x%x", t3, OOB)
S("v_cmp_eq_u32 vcc, 7, v%d", vQ)
S("v_add_u32 v%d, 1, v%d", t2, vQ)
S("v_cmp_ge_u32 s[%d:%d], s%d, v%d", sV0, sV0 + 1, sR, t2)
S("v_cndmask_b32 v%d, v%d, v%d, vcc", vPUB, t3, t0)
S("v_lshlrev_b32 v%d, 13, v%d", t1, t2)
S("v_sub_u32 v%d, v%d, v%d", t1, t0, t1)
S("v_add_u32 v%d, 8, v%d", t2, t2)
S("v_cmp_ge_u32 s[%d:%d], s%d, v%d", sV1, sV1 + 1, sR, t2)
S("v_cndmask_b32 v%d, v%d, v%d, s[%d:%d]", vLB0, t3, t1, sV0, sV0 + 1)
S("v_subrev_u32 v%d, 0x10000, v%d", t1, t1)
S("v_mov_b32 v%d, 0", vPRE); S("v_mov_b32 v%d, 0", vPRE + 1)
S("v_cndmask_b32 v%d, v%d, v%d, s[%d:%d]", vLB1, t3, t1, sV1, sV1 + 1)
S("s_lshl_b32 s%d, s%d, 7", sT0, sW); S("s_add_u32 s%d, s%d, %d", sT0, sT0, GT)
S("v_lshl_add_u32 v%d, v%d, 2, s%d", vGW, vTJ, sT0)
S("v_lshrrev_b32 v%d, 5, v%d", t1, vLANE)
S("v_lshl_add_u32 v%d, v%d, 6, s%d", vGR, t1, sT0)
S("s_add_u32 s%d, s%d, s%d", sHFa, sHq, sHO); S("s_add_u32 s%d, s%d, 4096", sHFb, sHFa)
S("s_mov_b32 s%d, 0", sCNT)
e = g.e

def frag(setn, idx):
    return FR + 28 * setn + 4 * idx
def reads(n):
    c, s = n >> 2, n & 3
    k = c & 3; st = n & 1
    L = []
    L.append(("ds_read_b128 %s, v%d offset:%d" % (vr(frag(st, 0), 4), rdA + s, k * 16384), "ds:r%d_0" % n))
    L.append(("ds_read_b128 %s, v%d offset:%d" % (vr(frag(st, 1), 4), rdB + s, k * 8192), "ds:r%d_1" % n))
    L.append(("ds_read_b128 %s, v%d offset:%d" % (vr(frag(st, 2), 4), rdB + s, k * 8192 + 4096), "ds:r%d_2" % n))
    for t in range(4):
        for e2 in range(2):
            L.append(("ds_read_b64_tr_b16 %s, v%d offset:%d" % (vr(frag(st, 3 + t) + 2 * e2, 2), rdW + t, k * 16384 + s * 4096 + 1024 * e2), "ds:r%d_%d" % (n, 3 + t)))
    return L
def mfma1(n, m):
    st = n & 1
    A = vr(frag(st, 0), 4)
    if m < 2:
        acc = (ACC_RE, ACC_IM)[m]
        S("v_mfma_f32_32x32x16_bf16 %s, %s, %s, %s", vr(acc, 16), A, vr(frag(st, 1 + m), 4), "0" if n == 0 else vr(acc, 16))
    else:
        acc = ACC_F + 16 * (m - 2)
        S("v_mfma_f32_32x32x16_bf16 %s, %s, %s, %s", vr(acc, 16), vr(frag(st, 1 + m), 4), A, "0" if n == 0 else vr(acc, 16))

USLOT = {0: ("X", 0), 1: ("W", 0), 2: ("X", 1), 3: ("W", 1), 4: ("X", 2), 5: ("W", 2), 6: ("W", 3), 7: ("X", 3), 8: ("B", 0), 9: ("X", 0), 10: ("X", 1)}
def unit(v):
    L = []
    reg, k = USLOT[v]
    if v < 7:
        if v == 0:
            L.append(("s_add_u32 s%d, s%d, s%d" % (sT3, sW, sKSW), None))
        else:
            L.append(("s_add_u32 s%d, s%d, %d" % (sT3, sW, 4 * v), None))
            L.append(("s_sub_u32 s%d, s%d, 6" % (sT2, sT3), None))
            L.append(("s_cmp_lt_u32 s%d, s%d" % (sT2, sKSW), None))
            L.append(("s_cselect_b32 s%d, s%d, s%d" % (sT2, sT2, sT3), None))
            if v == 1:
                L.append(("s_add_u32 s%d, s%d, s%d" % (sT3, sT3, sKSW), None))
                L.append(("s_cmp_lt_u32 s%d, 2" % sW, None))
                L.append(("s_cselect_b32 s%d, s%d, s%d" % (sT2, sT3, sT2), None))
            L.append(("s_mov_b32 s%d, s%d" % (sT3, sT2), None))
        L.append(("s_lshl_b32 s%d, s%d, 14" % (sT3, sT3), None))
        L.append(("s_add_u32 m0, s%d, %d" % (sMX if reg == "X" else sMW, k * 16384), None))
        L.append(("s_add_u32 s%d, s%d, s%d" % (sT3, sT3, sV2b), None))
        sd, vo, so = SRD_W2, vW2, sT3
    else:
        b = v - 7
        L.append(("s_add_u32 m0, s%d, %d" % (sMX, LB if reg == "B" else k * 16384), None))
        if b & 1:
            L.append(("s_xor_b32 s%d, s%d, 128" % (sT3, sCb), None)); so = sT3
        else:
            L.append(("s_nop 0", None)); so = sCb
        sd, vo = (SRD_CR if b < 2 else SRD_CI), vC
    for n in range(4):
        L.append(("buffer_load_dwordx4 v%d, s[%d:%d], s%d offen offset:%d lds" % (vo + n, sd, sd + 3, so, 1024 * n), "v%d" % v))
    return L

class Spread:
    def __init__(self, items, gaps):
        self.items = list(items)
        n = sum(1 for x in items if x[1])
        self.sched = [int((i + 0.5) * gaps / n) for i in range(n)] if n else []
        self.gi = 0
    def gap(self):
        used = 0
        while self.sched and self.sched[0] <= self.gi:
            self.sched.pop(0)
            while True:
                it = self.items.pop(0); run([it]); used += 1
                if it[1]: break
            if not self.sched:
                run(self.items); used += len(self.items); self.items = []
        self.gi += 1
        return used
    def flush(self):
        run(self.items); self.items = []; self.sched = []

GG = T + 34
DSK = T + 37
def g_load(tag):
    g.vm("buffer_load_dwordx2 %s, v%d, %s, 0 offen sc1" % (vr(GG, 2), vGA, WSR), tag)

stamp()
g.wait_vm("ch0")
e("s_barrier")
stamp()
run(reads(0))
def chunk_items(c):
    if c + 2 < 8: return dma_chunk(c + 2)
    if c == 6: return unit(0) + unit(1)
    xdma = [("s_mov_b32 m0, s%d" % sMB, None), ("s_nop 0", None)]
    xdma += [("buffer_load_dwordx4 v%d, s[%d:%d], s%d offen offset:%d lds" % (vXD + n, SRD_X, SRD_X + 3, sXT, 1024 * n), "xr") for n in range(2)]
    xdma += [("global_load_ushort v%d, v%d, s[%d:%d]" % (DSK, vDS, pDSK, pDSK + 1), "xr")]
    return unit(2) + unit(3) + xdma
sp = Spread(chunk_items(0), 18)
nplayed = 0
for n in range(32):
    c, s = n >> 2, n & 3
    nxt = reads(n + 1) if n < 31 else []
    per = [3, 3, 3, 2, 0, 0] if s == 2 else [2, 2, 2, 2, 2, 1]
    if s == 3: per = [0, 3, 2, 2, 2, 2]
    for m in range(6):
        if s == 3 and m == 0:
            g.wait_lg_all()
        else:
            g.wait_lg("r%d_%d" % (n, m + 1))
        mfma1(n, m)
        if s == 3 and m == 0:
            assert not sp.items
            nstamp_("a%d" % c)
            if c < 7: g.wait_vm("ch%d" % (c + 1))
            e("s_barrier")
            nstamp_("b%d" % c)
            sp = Spread(chunk_items(c + 1) if c < 7 else [], 23)
            if c == 5: assert len(F.items) <= ntot - nearly, "staging scalars not ready"
            if c == 6:
                g_load("gl")
                assert len(F.items) <= ntot - nxaddr
            continue
        run(nxt[:per[m]]); nxt = nxt[per[m]:]
        used = sp.gap()
        if n == 0: ntot = len(F.items)
        if n >= 1:
            bud = max(0, OPT["fillb"] + (n >= 24) + (2 - per[m]) - used)
            if n < 24: bud = min(bud, nlate - (ntot - len(F.items)))
            F.play(g, bud)
    assert not nxt
print("fillers left after loop:", len(F.items))
F.flush(g)
stamp()

GREG = 208
OM = T + 36
g.wait_vm("gl")
assert g.vm_count("v1") is None
g.label("L_g_chk")
S("v_cmp_ne_u32 vcc, s%d, v%d", sTAG, GG + 1)
S("s_add_u32 s%d, s%d, 1", sCNT, sCNT)
e("s_cbranch_vccz L_g_ok")
S("s_cmp_ge_u32 s%d, 0x8000", sCNT)
e("s_cbranch_scc1 L_g_ok")
sv = list(g.vmq); g_load("x"); g.vmq = sv
e("s_waitcnt vmcnt(0)")
e("s_branch L_g_chk")
g.label("L_g_ok")
g.ds("ds_write_b32 v%d, v%d" % (vGW, GG), "gw")
for k in range(4):
    g.ds("ds_read_b128 %s, v%d offset:%d" % (vr(GREG + 4 * k, 4), vGR, 16 * k), "gr")
S("v_sub_f32 v%d, 1.0, v%d", OM, GG)
S("v_cvt_pk_bf16_f32 v%d, v%d, v%d", OM, OM, OM)
S("v_lshlrev_b32 v%d, 16, v%d", OM, OM)
PB = 224
S("v_mov_b32 v%d, s%d", PB + 2, sTAG); S("v_mov_b32 v%d, s%d", PB + 3, sTAG)
vOUT = 44
def hstore(t, fr):
    d = ACC_F + 8 * t
    return ("buffer_store_dwordx4 %s, v%d, %s, s%d offen offset:%d%s" % (vr(d + 4 * fr, 4), vL16d if t == 3 else vL16, WSR, sHFa if t < 2 else sHFb, 2048 * (t & 1) + 1024 * fr, HSC), "hf")
pend_st = []
nst = 0
for t in range(4):
    f = ACC_F + 16 * t; d = ACC_F + 8 * t
    for k in range(8):
        S("v_pk_mul_f32 %s, %s, %s op_sel_hi:[1,0]", vr(f + 2 * k, 2), vr(f + 2 * k, 2), vr(OM, 2))
    for fr in range(2):
        for k in range(4 * fr, 4 * fr + 4):
            S("v_cvt_pk_bf16_f32 v%d, v%d, v%d", d + k, f + 2 * k, f + 2 * k + 1)
        for k in range(4 * fr, 4 * fr + 4):
            S("v_pk_max_i16 v%d, v%d, 0", d + k, d + k)
        if nst < OPT["nst0"]: run([hstore(t, fr)])
        else: pend_st.append(hstore(t, fr))
        nst += 1
stamp()
late = Spread(pend_st, 7)
H0, H1 = 100, 102
pr, pi = ACC_RE, ACC_IM
for t in range(1, 16):
    d = (H0, H1)[t & 1]
    cfma(d, d + 1, cL, cL + 1, pr, pi, ACC_RE + t, ACC_IM + t)
    pr, pi = d, d + 1
    if t % 2 == 0: late.gap()
OWN = pr
g.ds("ds_write_b64 v%d, %s" % (vTID8, vr(OWN, 2)), "agg")
g.wait_lg_all()
e("s_barrier")
SG = 240
for s_ in range(7):
    g.ds("ds_read_b64 %s, v%d offset:%d" % (vr(SG + 2 * s_, 2), vSEG, 256 * s_), "sg%d" % s_)
for s_ in range(7):
    g.wait_lg("sg%d" % s_)
    S("v_cmpx_lt_u32 vcc, %d, v%d", s_, vQ)
    a = SG + 2 * s_
    if s_ == 0:
        S("v_mov_b32 v%d, v%d", vPRE, a); S("v_mov_b32 v%d, v%d", vPRE + 1, a + 1)
    else:
        S("v_fma_f32 v%d, v%d, v%d, v%d", a, cL16, vPRE, a)
        S("v_fma_f32 v%d, v%d, v%d, v%d", a + 1, cL16, vPRE + 1, a + 1)
        S("v_fma_f32 v%d, -v%d, v%d, v%d", a, cL16 + 1, vPRE + 1, a)
        S("v_fma_f32 v%d, v%d, v%d, v%d", vPRE + 1, cL16 + 1, vPRE, a + 1)
        S("v_mov_b32 v%d, v%d", vPRE, a)
e("s_mov_b64 exec, -1")
cfma(PB, PB + 1, cL16, cL16 + 1, vPRE, vPRE + 1, OWN, OWN + 1)
g.vm("buffer_store_dwordx4 %s, v%d, %s, 0 offen sc1" % (vr(PB, 4), vPUB, WSR), "pub")
stamp()
u6 = unit(6)
A0, A1 = 228, 232
lbl_ = [("buffer_load_dwordx4 %s, v%d, %s, 0 offen sc1" % (vr(A0, 4), vLB0, WSR), "lb"), ("buffer_load_dwordx4 %s, v%d, %s, 0 offen sc1" % (vr(A1, 4), vLB1, WSR), "lb")]
def lb_loads(tag):
    for s_, _ in lbl_: g.vm(s_, tag)
late = Spread(unit(4) + lbl_, OPT["lgaps"])

ACC2 = [48, 64, 80, 240]
WF = 168
FULL = set(range(0, 4)) | set(range(8, 12))
def tiles(n): return [0, 1, 2, 3] if n in FULL else [1, 2, 3]
def wread(n, tau, dst):
    v = n >> 2; sg = n & 3
    reg, k = USLOT[v]
    if n < 28:
        base = (rdVX if reg == "X" else rdVW) + tau
        return [("ds_read_b64_tr_b16 %s, v%d offset:%d" % (vr(dst + 2 * e2, 2), base, k * 16384 + sg * 4096 + 1024 * e2), None) for e2 in range(2)]
    base = (rdCX if reg == "X" else rdCB) + sg
    return [("ds_read_b128 %s, v%d offset:%d" % (vr(dst, 4), base, (k * 16384 if reg == "X" else 0) + tau * 4096), None)]
WF3 = [104, 108, 120, 124]
ORDER = list(range(6)) + [28, 29, 36, 37] + list(range(6, 28)) + list(range(30, 36)) + list(range(38, 44))
POS = {n: p for p, n in enumerate(ORDER)}
def wfrag(n, tau):
    p = POS[n]
    if p < 6: return WF + 16 * (p & 1) + 4 * tau
    k = p % 3
    return WF + 16 * k + 4 * tau if k < 2 else WF3[tau]
def reads2(n):
    L = []
    for tau in tiles(n):
        for s, _ in wread(n, tau, wfrag(n, tau)):
            L.append((s, "ds:w%d_%d" % (n, tau)))
    return L
TFR, TFI = ACC_RE + 8, ACC_IM + 8
def hfrag(n):
    if n < 6: return vr(ACC_F + 4 * n, 4)
    if n < 28: return ar(4 * (n - 6), 4)
    m = n - 28
    if m in (0, 1): return vr(TFR + 4 * m, 4)
    if m in (8, 9): return vr(TFI + 4 * (m - 8), 4)
    idx = m - 2 if m < 8 else m - 4
    return ar(88 + 4 * idx, 4)
def hload(n):
    L = []
    if n < 28:
        if n % 2 == 0:
            L.append(("s_cmp_gt_u32 s%d, %d" % (sKSW, n - 6), None))
            L.append(("s_cselect_b32 s%d, s%d, s%d" % (sX, sHFa, sHq), None))
            L.append(("s_add_u32 s%d, s%d, %d" % (sX, sX, n * 1024), None))
    else:
        m = n - 28
        if m % 2 == 0:
            L.append(("s_xor_b32 s%d, s%d, %d" % (sX, sC, (m >> 1) & 3), None))
            L.append(("s_lshl_b32 s%d, s%d, 11" % (sX, sX), None))
            L.append(("s_add_u32 s%d, s%d, s%d" % (sX, sX, sHS), None))
            if m >= 8: L.append(("s_add_u32 s%d, s%d, 8192" % (sX, sX), None))
    if OPT["exp"] == 1: return L
    if OPT["exp"] == 2:
        L.append(("buffer_load_dwordx4 %s, v%d, s[%d:%d], 0 offen offset:%d" % (hfrag(n), vL16, SRD_W2, SRD_W2 + 3, 1024 * (n & 3)), "h%d" % n))
        return L
    L.append(("buffer_load_dwordx4 %s, v%d, %s, s%d offen offset:%d%s" % (hfrag(n), vL16, WSR, sX, 1024 * (n & 1), "" if OPT["exp"] == 3 else " sc1"), "h%d" % n))
    return L
started = set()
RQ = []
def issue_reads(cur, ahead, maxn, limit):
    k = 0
    while RQ and k < maxn and RQ[0][0] <= min(cur + ahead, limit) and len(g.lgq) < 15:
        run([RQ.pop(0)[1]]); k += 1
    return k
def step(n, fill=None, pre=None, budget=3, ahead=2, limit=99):
    tl = tiles(n)
    while RQ and RQ[0][0] <= POS[n]:
        if len(g.lgq) >= 15: g.wait_lg(g.lgq[1])
        run([RQ.pop(0)[1]])
    g.wait_vm("h%d" % n)
    for i, tau in enumerate(tl):
        if i == 0 and pre:
            g.wait_lg_all()
        else:
            g.wait_lg("w%d_%d" % (n, tau))
        acc = vr(ACC2[tau], 16)
        S("v_mfma_f32_32x32x16_bf16 %s, %s, %s, %s", acc, hfrag(n), vr(wfrag(n, tau), 4), acc if tau in started else "0")
        started.add(tau)
        if i == 0 and pre: pre()
        k = issue_reads(POS[n], ahead, 3, limit)
        if fill: fill(max(0, budget + 2 - k))

F = Rec(); e = F.e
S("s_lshl_b32 s%d, s%d, 6", sT0, sODD)
S("v_subrev_u32 v%d, 0x%x, v%d", rdCX, LB, rdB)
S("v_xor_b32 v%d, s%d, v%d", rdCX, sT0, rdCX)
S("v_xor_b32 v%d, s%d, v%d", rdCB, sT0, rdB)
for s in range(1, 4):
    S("v_xor_b32 v%d, %d, v%d", rdCX + s, 32 * s, rdCX)
    S("v_xor_b32 v%d, %d, v%d", rdCB + s, 32 * s, rdCB)
for t in range(16):
    ur, ui = ACC_RE + t, ACC_IM + t
    tt = 100 + (t & 1)
    S("v_mul_f32 v%d, v%d, v%d", tt, ur, cCO + 1)
    S("v_mul_f32 v%d, v%d, v%d", ur, ur, cCO)
    S("v_fma_f32 v%d, -v%d, v%d, v%d", ur, ui, cCO + 1, ur)
    S("v_fma_f32 v%d, v%d, v%d, v%d", ui, ui, cCO, tt)
vTW, vTR = 26, 28
vXL, vFLG, FLD = 96, 97, 16
S("s_add_u32 s%d, s%d, %d", sT0, sMB, TRB - LB)
S("v_and_b32 v%d, 31, v%d", t0, vLANE)
S("v_bfe_u32 v%d, v%d, 1, 2", t1, vLANE)
S("v_lshrrev_b32 v%d, 5, v%d", t2, vLANE)
S("v_lshlrev_b32 v%d, 1, v%d", t3, t2)
S("v_xor_b32 v%d, v%d, v%d", t1, t1, t3)
S("v_lshlrev_b32 v%d, 4, v%d", t1, t1)
S("v_lshl_add_u32 v%d, v%d, 6, v%d", t1, t0, t1)
S("v_add_u32 v%d, s%d, v%d", vTW, sT0, t1)
S("v_xor_b32 v%d, 16, v%d", vTW + 1, vTW)
S("v_lshlrev_b32 v%d, 1, v%d", t0, t0)
S("v_lshl_add_u32 v%d, v%d, 10, v%d", vXL, t2, t0)
S("v_add_u32 v%d, s%d, v%d", vXL, sMB, vXL)
S("v_lshl_add_u32 v%d, v%d, 14, v%d", t0, t2, t0)
S("v_add_u32 v%d, s%d, v%d", 98, sXT, t0)
S("v_bfe_u32 v%d, v%d, 2, 2", t0, vLANE)
S("v_lshl_add_u32 v%d, v%d, 3, v%d", t2, t2, t0)
S("v_lshrrev_b32 v%d, 1, v%d", t0, t0)
S("v_and_b32 v%d, 1, v%d", t1, vLANE)
S("v_lshlrev_b32 v%d, 1, v%d", t1, t1)
S("v_bfe_u32 v%d, v%d, 4, 1", t3, vLANE)
S("v_add_u32 v%d, v%d, v%d", t1, t1, t3)
S("v_xor_b32 v%d, v%d, v%d", t1, t1, t0)
S("v_lshlrev_b32 v%d, 4, v%d", t1, t1)
S("v_lshl_add_u32 v%d, v%d, 6, v%d", t1, t2, t1)
S("v_bfe_u32 v%d, v%d, 1, 1", t3, vLANE)
S("v_lshl_add_u32 v%d, v%d, 3, v%d", t1, t3, t1)
S("v_add_u32 v%d, s%d, v%d", vTR, sT0, t1)
S("v_xor_b32 v%d, 32, v%d", vTR + 1, vTR)
S("v_add_u32 v%d, 256, v%d", vTR + 1, vTR + 1)
S("v_and_b32 v%d, 3, v%d", t0, vLANE)
S("v_lshl_add_u32 v%d, v%d, 2, s%d", vFLG, t0, sFL)
S("s_mov_b32 s%d, 32768", sB)
S("s_mov_b32 s%d, 0", sCNT)
S("s_lshl_b32 s%d, s%d, 2", sT1, sC); S("s_add_u32 s%d, s%d, s%d", sFL, sFL, sT1)
e = g.e
for n in range(6): RQ += [(n, x) for x in reads2(n)]
def fill5(b):
    u = late.gap()
    F.play(g, max(0, b - u))
for n in range(6):
    step(n, fill5, budget=2, ahead=1)
late.flush()
F.flush(g)
S("v_lshlrev_b32 v%d, 1, v98", vOUT)
S("s_sub_u32 s%d, s%d, 6144", sHFa, sHq)
stamp()
def flag_load(kind, tag):
    g.vm("buffer_load_dword v%d, v%d, %s, %s offen sc1" % (FLD, vFLG, WSR, "s%d" % sB if kind else "0"), tag)
def flag_check(loader, lbl):
    S("s_mov_b32 s%d, 0", sCNT)
    g.label(lbl + "_chk")
    S("v_cmp_ne_u32 vcc, s%d, v%d", sTAG, FLD)
    S("s_add_u32 s%d, s%d, 1", sCNT, sCNT)
    S("s_cbranch_vccz %s_ok", lbl)
    S("s_cmp_ge_u32 s%d, 0x8000", sCNT)
    S("s_cbranch_scc1 %s_ok", lbl)
    sv = list(g.vmq); loader("x"); g.vmq = sv
    e("s_waitcnt vmcnt(0)")
    S("s_branch %s_chk", lbl)
    g.label(lbl + "_ok")
XR = WF
assert g.vm_count("xr") is not None or True
g.wait_vm("xr")
for t in range(16):
    if len(g.lgq) >= 14: g.wait_lg(g.lgq[3])
    g.ds("ds_read_u16 v%d, v%d offset:%d" % (XR + t, vXL, 64 * t), "xl%d" % t)
w56 = Spread(unit(5) + u6, 12)
vF2S, vF2L = 98, 99
sPS = [66, 67, 68]; sPL = 69
S("s_lshl_b32 s%d, s%d, 4", sT0, sR); S("s_add_u32 s%d, s%d, s%d", sT0, sT0, sC); S("s_lshl_b32 s%d, s%d, 2", sT0, sT0); S("s_add_u32 s%d, s%d, s%d", sT0, sT0, sW)
for tau in range(1, 4):
    S("s_add_u32 s%d, s%d, %d", sT1, sQ, tau); S("s_and_b32 s%d, s%d, 3", sT1, sT1); S("s_lshl_b32 s%d, s%d, 4", sT1, sT1); S("s_add_u32 s%d, s%d, s%d", sT1, sT1, sT0)
    S("s_mul_i32 s%d, s%d, 6144", sPS[tau - 1], sT1); S("s_add_u32 s%d, s%d, %d", sPS[tau - 1], sPS[tau - 1], PART + 2048 * (tau - 1))
S("s_lshl_b32 s%d, s%d, 4", sT1, sQ); S("s_add_u32 s%d, s%d, s%d", sT1, sT1, sT0)
S("s_mul_i32 s%d, s%d, 6144", sPL, sT1); S("s_add_u32 s%d, s%d, %d", sPL, sPL, PART)
S("s_lshl_b32 s%d, s%d, 7", sT1, sT1); S("s_add_u32 s%d, s%d, %d", sT1, sT1, FLAGS2)
S("v_min_u32 v%d, 2, v%d", t0, vLANE)
S("v_lshl_add_u32 v%d, v%d, 2, s%d", vF2L, t0, sT1)
S("v_add_u32 v%d, s%d, v%d", t1, sQ, t0)
S("v_add_u32 v%d, 1, v%d", t1, t1)
S("v_and_b32 v%d, 3, v%d", t1, t1)
S("v_lshlrev_b32 v%d, 11, v%d", t1, t1)
S("v_lshl_add_u32 v%d, v%d, 2, v%d", t1, t0, t1)
S("s_lshl_b32 s%d, s%d, 7", sT0, sT0); S("s_add_u32 s%d, s%d, %d", sT0, sT0, FLAGS2)
S("v_add_u32 v%d, s%d, v%d", vF2S, sT0, t1)
w56.gap(); w56.gap()
S("v_lshlrev_b32 v%d, 16, v%d", DSK, DSK)
g.wait_lg_all()
for k in range(8):
    S("v_lshlrev_b32 v%d, 16, v%d", XR + 2 * k, XR + 2 * k); S("v_lshlrev_b32 v%d, 16, v%d", XR + 2 * k + 1, XR + 2 * k + 1)
    S("v_mul_f32 v%d, v%d, v%d", XR + 2 * k, XR + 2 * k, DSK); S("v_mul_f32 v%d, v%d, v%d", XR + 2 * k + 1, XR + 2 * k + 1, DSK)
    S("v_cvt_pk_bf16_f32 v%d, v%d, v%d", XR + 2 * k, XR + 2 * k, XR + 2 * k + 1)
    S("v_and_b32 v%d, s%d, v%d", XR + 2 * k + 1, sMASK, XR + 2 * k)
    S("v_lshlrev_b32 v%d, 16, v%d", XR + 2 * k, XR + 2 * k)
    S("v_fma_f32 v%d, v%d, v%d, v%d", ACC2[0] + 2 * k, XR + 2 * k, GREG + 2 * k, ACC2[0] + 2 * k)
    S("v_fma_f32 v%d, v%d, v%d, v%d", ACC2[0] + 2 * k + 1, XR + 2 * k + 1, GREG + 2 * k + 1, ACC2[0] + 2 * k + 1)
    w56.gap()
w56.flush()
nstamp_("gxd")
g.wait_vm("hf")
e("s_mov_b64 exec, 1")
g.vm("buffer_store_dword v%d, off, %s, s%d sc1" % (vTAG, WSR, sFL), "fl0")
e("s_mov_b64 exec, -1")
g.wait_vm("lb")
g.label("L_lb_chk")
S("v_cmp_ne_u32 vcc, s%d, v%d", sTAG, A0 + 2)
S("v_cmp_ne_u32 s[%d:%d], s%d, v%d", sTP, sTP + 1, sTAG, A1 + 2)
S("s_and_b64 vcc, vcc, s[%d:%d]", sV0, sV0 + 1)
S("s_and_b64 s[%d:%d], s[%d:%d], s[%d:%d]", sTP, sTP + 1, sTP, sTP + 1, sV1, sV1 + 1)
S("s_or_b64 vcc, vcc, s[%d:%d]", sTP, sTP + 1)
e("s_cbranch_scc0 L_lb_ok")
S("s_add_u32 s%d, s%d, 1", sCNT, sCNT)
S("s_cmp_ge_u32 s%d, 0x8000", sCNT)
e("s_cbranch_scc1 L_lb_ok")
sv = list(g.vmq); lb_loads("x"); g.vmq = sv
e("s_waitcnt vmcnt(0)")
e("s_branch L_lb_chk")
g.label("L_lb_ok")
cfma(A0, A0 + 1, cL1024, cL1024 + 1, A1, A1 + 1, A0, A0 + 1)
cmul(A1, A1 + 1, cL128q, cL128q + 1, A0, A0 + 1)
g.ds("ds_write_b64 v%d, %s offset:2048" % (vTID8, vr(A1, 2)), "pw")
assert g.vm_count("v4") is None
g.wait_lg_all()
e("s_barrier")
stamp()
SG = 224
for s_ in range(8):
    g.ds("ds_read_b64 %s, v%d offset:%d" % (vr(SG + 2 * s_, 2), vSEG, 2048 + 256 * s_), "pp%d" % s_)
vs = Spread(unit(7) + unit(9), 10)
for s_ in range(1, 8):
    g.wait_lg("pp%d" % s_)
    S("v_pk_add_f32 %s, %s, %s", vr(SG, 2), vr(SG, 2), vr(SG + 2 * s_, 2))
cfma(vPRE, vPRE + 1, cL16q, cL16q + 1, SG, SG + 1, vPRE, vPRE + 1)
cmul(100, 101, cCO, cCO + 1, vPRE, vPRE + 1)
pr, pi = 100, 101
for t in range(16):
    cfma(ACC_RE + t, ACC_IM + t, cL, cL + 1, pr, pi, ACC_RE + t, ACC_IM + t)
    pr, pi = ACC_RE + t, ACC_IM + t
    vs.gap()
    if t == OPT["pfpos"]: flag_load(0, "pf0")
stamp()
for x, (acc, tf, ng) in enumerate(((ACC_RE, TFR, ""), (ACC_IM, TFI, "-"))):
    for k in range(8):
        S("v_pk_mul_f32 %s, %s, %s", vr(acc + 2 * k, 2), vr(acc + 2 * k, 2), vr(GREG + 2 * k, 2))
    for k in range(8):
        S("v_cvt_pk_bf16_f32 v%d, %sv%d, %sv%d", acc + k, ng, acc + 2 * k, ng, acc + 2 * k + 1)
    for p in range(2):
        g.ds("ds_write_b128 v%d, %s" % (vTW + p, vr(acc + 4 * p, 4)), "tw")
    for f in range(2):
        for e2 in range(2):
            g.ds("ds_read_b64_tr_b16 %s, v%d offset:%d" % (vr(tf + 4 * f + 2 * e2, 2), vTR + e2, 1024 * f), "tr%d%d" % (x, f))
S("s_lshl_b32 s%d, s%d, 11", sT0, sC); S("s_add_u32 s%d, s%d, s%d", sT0, sT0, sHS)
S("s_add_u32 s%d, s%d, 8192", sT1, sT0)
def hs_store(x, f):
    g.wait_lg("tr%d%d" % (x, f))
    g.vm("buffer_store_dwordx4 %s, v%d, %s, s%d offen offset:%d%s" % (vr((TFI if x else TFR) + 4 * f, 4), vL16, WSR, sT1 if x else sT0, 1024 * f, HSC), "hs")
hsq = [(0, 0), (0, 1), (1, 0), (1, 1)]
for _ in range(OPT["hs0"]): hs_store(*hsq.pop(0))
g.wait_vm("pf0")
flag_check(lambda tag: flag_load(0, tag), "L_f0")
stamp()
NH0 = OPT["nh0"]
hq = list(range(6, 6 + NH0))
while hsq:
    run(hload(hq.pop(0))); run(hload(hq.pop(0)))
    hs_store(*hsq.pop(0))
g.wait_vm("v9")
g.wait_lg_all()
e("s_barrier")
for n in ORDER[6:]: RQ += [(POS[n], x_) for x_ in reads2(n)]
issue_reads(6, 1, 6, 99)
stamp()
pend = list(range(6 + NH0, 28))
pend_s = [n for n in range(28, 44) if (n - 28) not in (0, 1, 8, 9)]
extra = Spread(sum([hload(n) for n in hq], []) + unit(8), 12)
def fill2(b):
    extra.gap()
PFS = OPT["pfs"]
for n in ORDER[6:]:
    pre = None
    if n == 11:
        def pre():
            global extra
            g.wait_vm("v8")
            e("s_barrier")
            extra = Spread(unit(10), 6)
    if n == 35:
        def pre():
            g.wait_vm("v10")
            e("s_barrier")
    step(n, fill2, pre, budget=0, limit=(POS[39] if POS[n] < POS[35] else 99))
    nstamp_("s%d" % n)
    if n == OPT["hsn"]:
        S("s_add_u32 s%d, s%d, 32768", sCI, sFL)
        g.wait_vm("hs")
        e("s_mov_b64 exec, 1")
        g.vm("buffer_store_dword v%d, off, %s, s%d sc1" % (vTAG, WSR, sCI), "fl1")
        e("s_mov_b64 exec, -1")
        e("s_nop 1")
    if n == PFS: flag_load(1, "pf1")
    if POS[n] < POS[6]: continue
    if pend:
        run(hload(pend.pop(0)))
    else:
        if g.wait_vm("pf1"):
            flag_check(lambda tag: flag_load(1, tag), "L_f1")
        if pend_s: run(hload(pend_s.pop(0)))
        if pend_s and len(pend_s) % 2 == 1: run(hload(pend_s.pop(0)))
assert not pend and not pend_s and not extra.items
stamp()
F = Rec(); e = F.e
for tau in range(1, 4):
    a = ACC2[tau]
    for k in range(8):
        S("v_cvt_pk_bf16_f32 v%d, v%d, v%d", a + k, a + 2 * k, a + 2 * k + 1)
    for p in range(2):
        F.vm("buffer_store_dwordx4 %s, v%d, %s, s%d offen offset:%d%s" % (vr(a + 4 * p, 4), vL16, WSR, sPS[tau - 1], 1024 * p, " sc1" if OPT["psc"] else ""), "ps")
e = g.e
dl = [n for n in range(44) if n not in FULL]
AHEAD = 5
def dread(i):
    for s, _ in wread(dl[i], 0, WF + 4 * (i % 8)):
        g.ds(s, "d%d" % i)
for i in range(AHEAD): dread(i)
e("s_nop 1")
def f2_load(tag):
    g.vm("buffer_load_dword v%d, v%d, %s, 0 offen sc1" % (FLD, vF2L, WSR), tag)
for i, n in enumerate(dl):
    g.wait_lg("d%d" % i)
    acc = vr(ACC2[0], 16)
    S("v_mfma_f32_32x32x16_bf16 %s, %s, %s, %s", acc, hfrag(n), vr(WF + 4 * (i % 8), 4), acc)
    if i + AHEAD < len(dl): dread(i + AHEAD)
    F.play(g, OPT["tb"])
    nstamp_("d%d" % i)
    if i == OPT["fwait"]:
        assert not F.items
        g.wait_vm("ps")
        nstamp_("psdone")
        e("s_mov_b64 exec, 7")
        g.vm("buffer_store_dword v%d, v%d, %s, 0 offen sc1" % (vTAG, vF2S, WSR), "fl2")
        e("s_mov_b64 exec, -1")
        e("s_nop 1")
f2_load("pf2")
stamp()
S("v_mov_b32 v%d, 0x3f80", t0)
S("v_mov_b32 v%d, 0x3f800000", t1)
S("s_cmp_eq_u32 s%d, 15", sR); S("s_cselect_b32 s%d, s%d, 1", sT3, sJ); S("s_or_b32 s%d, s%d, s%d", sT3, sT3, sW)
g.wait_vm("pf2")
flag_check(f2_load, "L_f2")
stamp()
S("s_add_u32 s%d, s%d, 4096", sT0, sPL)
for k in range(3):
    for p in range(2):
        o = 2048 * k + 1024 * p
        g.vm("buffer_load_dwordx4 %s, v%d, %s, s%d offen offset:%d sc1" % (vr(ACC2[k + 1] + 8 + 4 * p, 4), vL16, WSR, sPL if o < 4096 else sT0, o & 4095), "pl%d" % k)
for k in range(3):
    g.wait_vm("pl%d" % k)
    nstamp_("pl%d" % k)
    for i in range(8):
        S("v_dot2c_f32_bf16 v%d, v%d, v%d", ACC2[0] + 2 * i, ACC2[k + 1] + 8 + i, t0)
        S("v_dot2c_f32_bf16 v%d, v%d, v%d", ACC2[0] + 2 * i + 1, ACC2[k + 1] + 8 + i, t1)
e("s_nop 2")
for k in range(16):
    if k % 2 == 0: S("s_mov_b32 s%d, %d", sT0, 2048 * k)
    g.vm("buffer_store_dword v%d, v%d, s[%d:%d], s%d offen offset:%d" % (ACC2[0] + k, vOUT, SRD_OUT, SRD_OUT + 3, sT0, 2048 * (k & 1)) + ("", " sc1", " nt")[OPT["osc"]], "out")
stamp()
if OPT["stamps"]:
    e("s_waitcnt vmcnt(0)")
    stamp()
    if OPT["stamps"] == 6:
        e("s_waitcnt lgkmcnt(0)"); e("s_mov_b64 exec, 1")
        for i, p in enumerate(sused):
            S("v_mov_b32 v252, s%d", p); e("buffer_store_dword v252, off, %s, s101 offset:%d" % (WSR, 4 + 4 * i)); e("s_nop 1")
        e("s_mov_b64 exec, -1")
        print("sgpr stamps", len(sused))
    e("s_memrealtime s[82:83]"); e("s_waitcnt lgkmcnt(0)"); e("v_mov_b32 v252, s82"); e("s_mov_b64 exec, 1")
    e("buffer_store_dword v252, off, %s, s101 offset:124" % WSR)
    e("s_mov_b64 exec, -1")
S("s_cmp_lg_u32 s%d, 0", sT3)
e("s_cbranch_scc1 L_end2")
e("s_mov_b64 exec, 1")
e("buffer_store_dword v%d, off, %s, 0 sc1" % (vTAG, WSR))
g.label("L_end2")
if OPT["diag"] > 0:
    S("s_sub_u32 s%d, s%d, s96", sDG, sDG)
    if OPT["diagcyc"]: S("s_lshr_b32 s%d, s%d, 1", sDG, sDG)
    else: S("s_mul_i32 s%d, s%d, 10", sDG, sDG)
    e("s_memrealtime s[96:97]"); e("s_waitcnt lgkmcnt(0)"); S("s_add_u32 s%d, s%d, s96", sDG, sDG)
    g.label("L_spin")
    e("s_memrealtime s[96:97]"); e("s_waitcnt lgkmcnt(0)"); S("s_sub_u32 s%d, s%d, s96", sDG + 1, sDG); S("s_cmp_gt_i32 s%d, 0", sDG + 1); e("s_cbranch_scc1 L_spin")
g.label("L_end")
e("s_endpgm")
e('.section .rodata,"a"')
e(".p2align 6")
e(".amdhsa_kernel %s_kernel" % NAME)
for l in ("next_free_vgpr 512", "next_free_sgpr 102", "accum_offset 256", "group_segment_fixed_size 0", "kernarg_size 128", "user_sgpr_count 2",
          "user_sgpr_kernarg_segment_ptr 1", "system_sgpr_workgroup_id_x 1"):
    g.lines.append("  .amdhsa_" + l)
e(".end_amdhsa_kernel")

i0 = g.lines.index("%s_kernel:" % NAME) + 1
i1 = g.lines.index("s_endpgm") + 1
body, npad, lastoff = layout(g.lines[i0:i1], 3328, sW, OPT["align"], OPT["page"])
g.lines = g.lines[:i0] + body + g.lines[i1:]
print("pads", npad, "last page bytes", lastoff)
tot = (3328 + 4096 * (npad - 1) + lastoff if npad else lastoff) - 320
stride = (tot // 128) & ~7
g.lines = [l.replace("0x1234", str(stride)).replace("0x4320", str(stride // 2)) for l in g.lines]
errs = check_hazards(g.lines)
for x in errs:
    print("HAZARD", x)
open(sys.argv[1], "w").write(out_hdr + g.text())
print("lines", len(g.lines), "stamps", nstamp[0], "hazards", len(errs))
```

```python
import sys
from asmlib import *

NAME = "gated_mix__ssm_conv_s5__dense_activation_relu__prompt"
OPT = dict(stamps=0, p1map=84, rot1=2, pre=2, fillb=2, diag=-1, diagcyc=0, dstart=0, fwait=22, nh0=8, pfs=17, hsc=1, psc=1, osc=0, lgaps=20, hsn=10, b2=1, wsoff=0, pfpos=4, smask=0, exp=0, lbpos=4, ffpos=0, page=1, align=1, cpf=1, nst0=4, hs0=0, tb=6, nw56=3, pchk=16, sy2=26, nocomp=0, npre=2, nscan=1, nst1=0, skip=1)
for a in sys.argv[2:]:
    k, v = a.split("=")
    assert k in OPT, k
    OPT[k] = int(v)

AGG = 4096
GOFF = AGG + 16 * 8192
FLAGS = GOFF + 2048 * 8
FLAGS2 = FLAGS + 65536
HOFF = 393216
TSTRIDE = 176 * 1024
PART = HOFF + 64 * TSTRIDE
WS_SIZE = PART + 256 * 4 * 6144
OOB = 0x80000000
LX, LW, LB = 0, 65536, 131072
SCR = LB + 2 * 8192
GT = SCR + 4096
TRB = LB + 3 * 8192
SRD_X, SRD_B, SRD_W1, SRD_W2, SRD_CR, SRD_CI, SRD_WS, SRD_OUT = 4, 8, 12, 16, 20, 24, 28, 32
sW, sR, sJ, sQ, sC, sTAG, sMASK = 36, 37, 38, 39, 40, 41, 42
sX, sB, sW1 = 43, 44, 45
sMX, sMB, sMW = 46, 47, 48
sT0, sT1, sT2, sT3 = 49, 50, 51, 52
sXb, sBb, sW1b, sCI = 54, 55, 56, 57
sV0, sV1 = 54, 56
sTP = 58
sCNT = 60
sE = 63
pX, pLRE, pLIM, pBRE, pBIM, pCRE, pCIM, pLDT, pDSK, pBX, pW1, pW2, pGATE, pOUT, pDBG, pWS = range(64, 96, 2)
sST = 96
sDUM = 98
sHF, sFL = 99, 100
sV2b, sKSW, sCb, sHO, sHS, sHq = 53, 3, 61, 62, 82, 83
sDG = 84
vLANE, vTID8 = 1, 0
vX = 2; vC = 6; vW1 = 10; vW2 = 14
rdA = 18; rdB = 22; rdW = 26
cL, cL16, cL16q, cL128q, cL1024, cCO = 30, 32, 34, 36, 38, 40
vQ, vL16, vL16d = 42, 43, 44
vTAG = 45
vPRE = 46
FR = 48
ACC_RE, ACC_IM, ACC_F = 104, 120, 136
T = 200
LOG2E = 0x3fb8aa3b
INV2PI = 0x3e22f983

g = Asm()
e = g.e
nstamp = [0]
sidx = [0]; sused = []; SPAIRS = [70, 72, 74, 76, 78, 84, 86, 88, 90, 92, 94]
ndiag = [1]
import os
STN = os.environ.get("ST", "").split(",")
def nstamp_(name):
    if OPT["stamps"] == 6 and name in STN:
        p = SPAIRS[len(sused)]; sused.append(p)
        g.e("s_memtime s[%d:%d]" % (p, p + 1))
def stamp():
    if OPT["diag"] >= 0:
        if ndiag[0] == OPT["diag"]:
            g.e("%s s[%d:%d]" % ("s_memtime" if OPT["diagcyc"] else "s_memrealtime", sDG, sDG + 1)); g.e("s_waitcnt lgkmcnt(0)"); g.lgq = []
        if ndiag[0] == OPT["dstart"]:
            g.e("%s s[96:97]" % ("s_memtime" if OPT["diagcyc"] else "s_memrealtime")); g.e("s_waitcnt lgkmcnt(0)"); g.lgq = []
        ndiag[0] += 1
    if OPT["stamps"] == 6:
        sidx[0] += 1
        if (OPT["smask"] >> sidx[0]) & 1:
            p = SPAIRS[len(sused)]; sused.append(p)
            g.e("s_memtime s[%d:%d]" % (p, p + 1))
        return
    if not OPT["stamps"] or OPT["stamps"] == 5:
        return
    i = nstamp[0]; nstamp[0] += 1
    assert i < 30
    g.e("s_memtime s[%d:%d]" % (sST, sST + 1))
    g.e("s_waitcnt lgkmcnt(0)")
    g.lgq = []
    g.e("v_accvgpr_write_b32 a255, s%d" % sST)
    g.e("s_mov_b64 exec, 1")
    g.vm("buffer_store_dword a255, off, s[%d:%d], s101 offset:%d" % (SRD_WS, SRD_WS + 3, 4 * i), "stamp")
    g.e("s_mov_b64 exec, -1")

def cfma(dr, di, ar_, ai, br, bi, cr, ci):
    e("v_fma_f32 v%d, v%d, v%d, v%d" % (dr, ar_, br, cr))
    e("v_fma_f32 v%d, v%d, v%d, v%d" % (di, ar_, bi, ci))
    e("v_fma_f32 v%d, -v%d, v%d, v%d" % (dr, ai, bi, dr))
    e("v_fma_f32 v%d, v%d, v%d, v%d" % (di, ai, br, di))
def cmul(dr, di, ar_, ai, br, bi):
    e("v_mul_f32 v%d, v%d, v%d" % (dr, ar_, br))
    e("v_mul_f32 v%d, v%d, v%d" % (di, ar_, bi))
    e("v_fma_f32 v%d, -v%d, v%d, v%d" % (dr, ai, bi, dr))
    e("v_fma_f32 v%d, v%d, v%d, v%d" % (di, ai, br, di))
def srd(base, p):
    e("s_mov_b32 s%d, s%d" % (base, p))
    e("s_mov_b32 s%d, s%d" % (base + 1, p + 1))
def S(fmt, *a):
    e(fmt % a)
def run(L):
    for s, tag in L:
        if tag is None: g.e(s)
        elif tag.startswith("ds:"): g.ds(s, tag[3:])
        else: g.vm(s, tag)
WSR = "s[%d:%d]" % (SRD_WS, SRD_WS + 3)
HSC = ("", " sc1", " sc1 nt")[OPT["hsc"]]

hdr = open("cdna_kernels/%s.s.ref" % NAME).read().split("; Override launch")[0]
out_hdr = hdr + "; @launch grid=(256,1,1) block=(256,1,1) lds=163840\n"
e('.amdgcn_target "amdgcn-amd-amdhsa--gfx950"')
e(".text")
e(".globl %s_kernel" % NAME)
e(".p2align 8")
e(".type %s_kernel,@function" % NAME)
g.label("%s_kernel" % NAME)
e("s_cmp_ge_u32 s2, 256")
e("s_cbranch_scc1 L_end")
if OPT["stamps"]:
    e("s_memrealtime s[82:83]"); e("s_memtime s[96:97]"); e("s_waitcnt lgkmcnt(0)"); e("v_mov_b32 v252, s82"); e("v_mov_b32 v253, s96")
if OPT["diag"] >= 0:
    e("%s s[96:97]" % ("s_memtime" if OPT["diagcyc"] else "s_memrealtime"))
e("s_load_dwordx16 s[64:79], s[0:1], 0")
e("s_load_dwordx16 s[80:95], s[0:1], 64")
e("v_lshrrev_b32 v2, 6, v0")
S("v_and_b32 v%d, 63, v0", vLANE)
S("v_readfirstlane_b32 s%d, v2", sW)
t0, t1, t2, t3 = T, T + 1, T + 2, T + 3
S("v_lshrrev_b32 v%d, 3, v%d", t0, vLANE)
S("v_and_b32 v%d, 7, v%d", t1, vLANE)
S("v_lshrrev_b32 v%d, 1, v%d", t2, t0)
S("v_xor_b32 v%d, v%d, v%d", t3, t1, t2)
S("v_lshlrev_b32 v%d, 4, v%d", t3, t3)
S("v_lshl_add_u32 v%d, v%d, 10, v%d", vC, t0, t3)
S("v_lshrrev_b32 v%d, 2, v%d", t1, t0)
S("v_and_b32 v%d, 3, v%d", t2, t0)
S("v_lshl_add_u32 v%d, v%d, 4, v%d", t1, t1, t2)
S("v_lshl_add_u32 v%d, v%d, 10, v%d", vX, t1, t3)
S("v_xor_b32 v%d, 64, v%d", vX + 1, vX)
S("v_add_u32 v%d, 3072, v%d", vX + 1, vX + 1)
S("v_add_u32 v%d, 6144, v%d", vX + 2, vX)
S("v_add_u32 v%d, 6144, v%d", vX + 3, vX + 1)
S("s_bfe_u32 s%d, s2, 0x30003", sT2)
S("s_and_b32 s%d, s2, 1", sR); S("s_lshl_b32 s%d, s%d, 3", sR, sR); S("s_add_u32 s%d, s%d, s%d", sR, sR, sT2)
S("s_lshr_b32 s%d, s2, 6", sC)
S("s_bfe_u32 s%d, s2, 0x20001", sQ)
S("s_mov_b32 s%d, 0x%x", SRD_X + 2, 2048 * 1024); S("s_mov_b32 s%d, 0x20000", SRD_X + 3)
if OPT["rot1"] == 2:
    S("s_add_u32 s%d, s%d, s%d", sCI, sR, sC); S("s_and_b32 s%d, s%d, 1", sCI, sCI); S("s_lshl_b32 s%d, s%d, 2", sCI, sCI)
elif OPT["rot1"] == 4:
    S("s_add_u32 s%d, s%d, s%d", sCI, sR, sC); S("s_and_b32 s%d, s%d, 3", sCI, sCI); S("s_lshl_b32 s%d, s%d, 1", sCI, sCI)
else:
    S("s_mov_b32 s%d, 0", sCI)
S("s_lshl_b32 s%d, s%d, 17", sXb, sR); S("s_lshl_b32 s%d, s%d, 15", sT0, sW); S("s_add_u32 s%d, s%d, s%d", sXb, sXb, sT0)
S("s_lshl_b32 s%d, s%d, 12", sMX, sW)
S("s_lshl_b32 s%d, s%d, 7", sB, sCI)
S("s_mov_b32 m0, s%d", sMX)
S("s_add_u32 s%d, s%d, s%d", sX, sXb, sB)
e("s_waitcnt lgkmcnt(0)")
srd(SRD_X, pX)
for n in range(4):
    g.vm("buffer_load_dwordx4 v%d, s[%d:%d], s%d offen offset:%d lds" % (vX + n, SRD_X, SRD_X + 3, sX, 1024 * n), "ch0")
if OPT["cpf"]:
    S("s_getpc_b64 s[%d:%d]", sTP, sTP + 1)
    S("s_lshr_b32 s%d, s2, 3", sT0); S("s_lshl_b32 s%d, s%d, 2", sT0, sT0); S("s_add_u32 s%d, s%d, s%d", sT0, sT0, sW)
    S("s_mul_i32 s%d, s%d, 0x1234", sT0, sT0)
    S("s_add_u32 s%d, s%d, s%d", sTP, sTP, sT0); S("s_addc_u32 s%d, s%d, 0", sTP + 1, sTP + 1)
    S("s_load_dword s%d, s[%d:%d], 0", sCNT, sTP, sTP + 1)
    S("s_load_dword s%d, s[%d:%d], 0x4320", sCb, sTP, sTP + 1)
if OPT["wsoff"]:
    S("s_add_u32 s%d, s%d, 0x%x", pWS, pWS, OPT["wsoff"] << 20); S("s_addc_u32 s%d, s%d, 0", pWS + 1, pWS + 1)
S("s_load_dword s%d, s[%d:%d], 0", sE, pWS, pWS + 1)
S("s_lshl_b32 s%d, s%d, 2", sJ, sQ); S("s_add_u32 s%d, s%d, s%d", sJ, sJ, sC)
for b_, sz in ((SRD_B, 512 * 1024), (SRD_W1, 512 * 3584)):
    S("s_mov_b32 s%d, 0x%x", b_ + 2, sz)
    S("s_mov_b32 s%d, 0x20000", b_ + 3)
S("v_xor_b32 v%d, 64, v%d", vC + 1, vC)
S("v_add_u32 v%d, 7168, v%d", vC + 1, vC + 1)
S("s_lshl_b32 s%d, s%d, 15", sBb, sJ); S("s_and_b32 s%d, s%d, 1", sT0, sW); S("s_lshl_b32 s%d, s%d, 14", sT0, sT0); S("s_add_u32 s%d, s%d, s%d", sBb, sBb, sT0)
S("s_lshl_b32 s%d, s%d, 11", sMB, sW); S("s_add_u32 s%d, s%d, %d", sMB, sMB, LB)
S("s_cmp_ge_u32 s%d, 2", sW)
S("s_cselect_b32 s%d, s%d, s%d", SRD_B, pBIM, pBRE)
S("s_cselect_b32 s%d, s%d, s%d", SRD_B + 1, pBIM + 1, pBRE + 1)
S("s_mov_b32 m0, s%d", sMB)
S("s_add_u32 s%d, s%d, s%d", sB, sBb, sB)
for n in range(2):
    g.vm("buffer_load_dwordx4 v%d, s[%d:%d], s%d offen offset:%d lds" % (vC + n, SRD_B, SRD_B + 3, sB, 1024 * n), "ch0")
S("v_lshrrev_b32 v%d, 4, v%d", t0, vLANE)
S("v_and_b32 v%d, 15, v%d", t1, vLANE)
S("v_lshlrev_b32 v%d, 2, v%d", t2, t0)
S("v_xor_b32 v%d, v%d, v%d", vW2, t1, t2)
S("v_lshrrev_b32 v%d, 2, v%d", t2, vW2)
S("v_cmp_eq_u32 vcc, 3, v%d", t2)
S("v_mul_u32_u24 v%d, 3584, v%d", t0, t0)
S("v_lshl_add_u32 v%d, v%d, 4, v%d", vW1, vW2, t0)
S("s_lshr_b32 s%d, s%d, 1", sDUM, sC)
S("s_cselect_b64 s[%d:%d], vcc, 0", sTP, sTP + 1)
S("v_mov_b32 v%d, 0x%x", t3, OOB)
S("v_lshlrev_b32 v%d, 4, v%d", vL16, vLANE)
S("v_cndmask_b32 v%d, v%d, v%d, s[%d:%d]", vW1, vW1, t3, sTP, sTP + 1)
for n in range(1, 4):
    S("v_add_u32 v%d, %d, v%d", vW1 + n, 13312 * n, vW1)
S("s_lshl_b32 s%d, s%d, 3", sKSW, sC); S("s_min_u32 s%d, s%d, 22", sKSW, sKSW)
S("s_mul_i32 s%d, s%d, 896", sT0, sQ); S("s_lshl_b32 s%d, s%d, 5", sT1, sKSW); S("s_add_u32 s%d, s%d, s%d", sT0, sT0, sT1)
S("s_mul_i32 s%d, s%d, %d", sW1b, sW, 16 * 3584); S("s_add_u32 s%d, s%d, s%d", sW1b, sW1b, sT0)
S("s_add_u32 s%d, s%d, %d", sMW, sMX, LW)
srd(SRD_W1, pW1)
S("s_mul_i32 s%d, s%d, %d", sW1, sCI, 64 * 3584)
S("s_mov_b32 m0, s%d", sMW)
S("s_add_u32 s%d, s%d, s%d", sW1, sW1, sW1b)
for n in range(4):
    g.vm("buffer_load_dwordx4 v%d, s[%d:%d], s%d offen offset:%d lds" % (vW1 + n, SRD_W1, SRD_W1 + 3, sW1, 1024 * n), "ch0")
S("s_add_u32 s%d, s%d, 1", sCI, sCI)
S("v_and_b32 v%d, 31, v%d", t0, vLANE)
S("v_lshlrev_b32 v%d, 1, v%d", t0, t0)
S("s_lshl_b32 s%d, s%d, 6", sT0, sJ)
S("v_add_u32 v%d, s%d, v%d", t0, sT0, t0)
S("s_lshl_b32 s%d, s%d, 11", sT1, sJ); S("s_add_u32 s%d, s%d, s%d", sT1, sT1, sXb)
S("v_add_u32 v%d, s%d, v%d", t1, sT1, vL16)

def dma_chunk(c):
    k = c & 3
    L = []
    def I(s): L.append((s, None))
    def D(s): L.append((s, "ch%d" % c))
    I("s_lshl_b32 s%d, s%d, 7" % (sB, sCI))
    I("s_add_u32 m0, s%d, %d" % (sMX, k * 16384))
    I("s_add_u32 s%d, s%d, s%d" % (sX, sXb, sB))
    for n in range(4): D("buffer_load_dwordx4 v%d, s[%d:%d], s%d offen offset:%d lds" % (vX + n, SRD_X, SRD_X + 3, sX, 1024 * n))
    I("s_add_u32 m0, s%d, %d" % (sMB, k * 8192))
    I("s_add_u32 s%d, s%d, s%d" % (sB, sBb, sB))
    for n in range(2): D("buffer_load_dwordx4 v%d, s[%d:%d], s%d offen offset:%d lds" % (vC + n, SRD_B, SRD_B + 3, sB, 1024 * n))
    I("s_mul_i32 s%d, s%d, %d" % (sW1, sCI, 64 * 3584))
    I("s_add_u32 m0, s%d, %d" % (sMW, k * 16384))
    I("s_add_u32 s%d, s%d, s%d" % (sW1, sW1, sW1b))
    for n in range(4): D("buffer_load_dwordx4 v%d, s[%d:%d], s%d offen offset:%d lds" % (vW1 + n, SRD_W1, SRD_W1 + 3, sW1, 1024 * n))
    I("s_add_u32 s%d, s%d, 1" % (sCI, sCI))
    I("s_and_b32 s%d, s%d, 7" % (sCI, sCI))
    return L
PL, PI, PD = T + 4, T + 5, T + 6
GX0, GX1, GW = T + 8, T + 12, T + 16
g.vm("global_load_dwordx4 %s, v%d, s[%d:%d]" % (vr(GW, 4), vL16, pGATE, pGATE + 1), "small2")
g.vm("global_load_dwordx4 %s, v%d, s[%d:%d]" % (vr(GX0, 4), t1, pX, pX + 1), "small2")
g.vm("global_load_dwordx4 %s, v%d, s[%d:%d] offset:1024" % (vr(GX1, 4), t1, pX, pX + 1), "small2")
g.vm("global_load_ushort v%d, v%d, s[%d:%d]" % (PD, t0, pLDT, pLDT + 1), "small")
g.vm("global_load_ushort v%d, v%d, s[%d:%d]" % (PL, t0, pLRE, pLRE + 1), "small")
g.vm("global_load_ushort v%d, v%d, s[%d:%d]" % (PI, t0, pLIM, pLIM + 1), "small")
for b, sz in ((SRD_W2, 1792 * 1024), (SRD_CR, 512 * 1024), (SRD_CI, 512 * 1024), (SRD_WS, WS_SIZE + (256 * 4 * 128 if OPT["stamps"] else 0)), (SRD_OUT, 2048 * 2048)):
    S("s_mov_b32 s%d, 0x%x", b + 2, sz)
    S("s_mov_b32 s%d, 0x20000", b + 3)
S("s_mov_b32 s%d, 0xffff0000", sMASK)
srd(SRD_W2, pW2); srd(SRD_CR, pCRE); srd(SRD_CI, pCIM); srd(SRD_WS, pWS); srd(SRD_OUT, pOUT)
if OPT["stamps"]:
    e("s_lshl_b32 s101, s2, 2"); S("s_add_u32 s101, s101, s%d", sW); e("s_lshl_b32 s101, s101, 7"); S("s_add_u32 s101, s101, %d", WS_SIZE)
    e("s_mov_b64 exec, 1")
    g.vm("buffer_store_dword v253, off, %s, s101 offset:0" % WSR, "stamp")
    g.vm("buffer_store_dword v252, off, %s, s101 offset:120" % WSR, "stamp")
    e("s_mov_b64 exec, -1")
    nstamp[0] = 1
stamp()
S("v_and_b32 v%d, 31, v%d", t0, vLANE)
S("v_lshrrev_b32 v%d, 5, v%d", t1, vLANE)
S("v_bfe_u32 v%d, v%d, 1, 3", t2, t0)
S("v_xor_b32 v%d, v%d, v%d", t2, t2, t1)
S("v_lshlrev_b32 v%d, 4, v%d", t2, t2)
S("v_lshl_add_u32 v%d, v%d, 7, v%d", t2, t0, t2)
S("v_add_u32 v%d, s%d, v%d", rdA, sMX, t2)
S("v_add_u32 v%d, 0x%x, v%d", rdB, LB, t2)
for s in range(1, 4):
    S("v_xor_b32 v%d, %d, v%d", rdA + s, 32 * s, rdA)
    S("v_xor_b32 v%d, %d, v%d", rdB + s, 32 * s, rdB)
S("s_lshl_b32 s%d, s%d, 1", sT0, sW)
S("v_add_u32 v%d, s%d, v%d", vQ, sT0, t1)
S("v_bfe_u32 v%d, v%d, 2, 2", t0, vLANE)
S("v_lshl_add_u32 v%d, v%d, 3, v%d", t2, t1, t0)
S("v_lshlrev_b32 v%d, 8, v%d", t2, t2)
S("v_lshl_add_u32 v%d, v%d, 6, v%d", t2, t0, t2)
S("v_bfe_u32 v%d, v%d, 4, 1", t3, vLANE)
S("v_lshl_add_u32 v%d, v%d, 5, v%d", vPRE, t3, t2)
S("v_and_b32 v%d, 1, v%d", t3, vLANE)
S("v_lshl_add_u32 v%d, v%d, 4, v%d", t2, t3, vPRE)
S("v_bfe_u32 v%d, v%d, 1, 1", t3, vLANE)
S("v_lshl_add_u32 v%d, v%d, 3, v%d", t2, t3, t2)
S("v_add_u32 v%d, 0x%x, v%d", rdW, LW, t2)
for s in range(1, 4):
    S("v_xor_b32 v%d, %d, v%d", rdW + s, 64 * s, rdW)
if OPT["page"]: e("TOUCH")
run(dma_chunk(1))
e("s_waitcnt lgkmcnt(0)")
S("s_mul_i32 s%d, s%d, 0x9e3779b1", sTAG, sE)
S("s_add_u32 s%d, s%d, 0x7f4a7c15", sTAG, sTAG)
S("s_cmp_lg_u32 s%d, 0", sDUM); e("s_cselect_b64 vcc, -1, 0")

F = Rec()
e = F.e
S("v_lshlrev_b32 v%d, 3, v0", vTID8)
S("v_add_u32 v%d, 0x%x, v%d", vTID8, SCR, vTID8)
S("v_mov_b32 v%d, 0x%x", t3, OOB)
S("v_mov_b32 v%d, s%d", vTAG, sTAG)
S("v_cndmask_b32 v%d, v%d, v%d, vcc", vL16d, vL16, t3)
S("v_add_u32 v%d, 14336, v%d", vC + 2, vC); S("v_add_u32 v%d, 14336, v%d", vC + 3, vC + 1)
S("s_lshl_b32 s%d, s%d, 2", sT0, sQ)
S("v_add_u32 v%d, s%d, v%d", vW2, sT0, vW2)
S("v_and_b32 v%d, 15, v%d", vW2, vW2)
S("v_lshlrev_b32 v%d, 4, v%d", vW2, vW2)
S("v_lshrrev_b32 v%d, 4, v%d", t0, vLANE)
S("v_lshl_add_u32 v%d, v%d, 10, v%d", vW2, t0, vW2)
for n in range(1, 4):
    S("v_add_u32 v%d, %d, v%d", vW2 + n, 3072 * n, vW2)
S("s_mul_i32 s%d, s%d, %d", sV2b, sQ, 448 * 1024); S("s_lshl_b32 s%d, s%d, 8", sT0, sC); S("s_add_u32 s%d, s%d, s%d", sV2b, sV2b, sT0)
S("s_lshr_b32 s%d, s%d, 1", sT0, sC)
S("s_add_u32 s%d, s%d, s%d", sT1, sW, sQ); S("s_and_b32 s%d, s%d, 3", sT1, sT1); S("s_lshl_b32 s%d, s%d, 15", sT1, sT1)
S("s_lshl_b32 s%d, s%d, 17", sCb, sC); S("s_add_u32 s%d, s%d, s%d", sCb, sCb, sT1)
S("s_lshl_b32 s%d, s%d, 8", sT1, sQ); S("s_add_u32 s%d, s%d, s%d", sCb, sCb, sT1)
S("s_lshl_b32 s%d, s%d, 7", sT0, sT0); S("s_add_u32 s%d, s%d, s%d", sCb, sCb, sT0)
nearly = len(F.items)
F.wait_vm("small2")
GA0, GA1 = T + 22, T + 24
gl, gh, x0, x1, y0, y1 = T + 26, T + 27, T + 28, T + 29, T + 30, T + 31
for k in range(4):
    S("v_lshlrev_b32 v%d, 16, v%d", gl, GW + k); S("v_and_b32 v%d, s%d, v%d", gh, sMASK, GW + k)
    S("v_lshlrev_b32 v%d, 16, v%d", x0, GX0 + k); S("v_and_b32 v%d, s%d, v%d", x1, sMASK, GX0 + k)
    S("v_lshlrev_b32 v%d, 16, v%d", y0, GX1 + k); S("v_and_b32 v%d, s%d, v%d", y1, sMASK, GX1 + k)
    S("v_mul_f32 v%d, v%d, v%d", x0, x0, gl); S("v_mul_f32 v%d, v%d, v%d", x1, x1, gh)
    S("v_mul_f32 v%d, v%d, v%d", y0, y0, gl); S("v_mul_f32 v%d, v%d, v%d", y1, y1, gh)
    S("v_cvt_pk_bf16_f32 v%d, v%d, v%d", x0, x0, x1); S("v_cvt_pk_bf16_f32 v%d, v%d, v%d", y0, y0, y1)
    S("v_and_b32 v%d, s%d, v%d", x1, sMASK, x0); S("v_lshlrev_b32 v%d, 16, v%d", x0, x0)
    S("v_and_b32 v%d, s%d, v%d", y1, sMASK, y0); S("v_lshlrev_b32 v%d, 16, v%d", y0, y0)
    if k == 0:
        S("v_add_f32 v%d, v%d, v%d", GA0, x0, x1); S("v_add_f32 v%d, v%d, v%d", GA1, y0, y1)
    else:
        S("v_add_f32 v%d, v%d, v%d", GA0, GA0, x0); S("v_add_f32 v%d, v%d, v%d", GA1, GA1, y0)
        S("v_add_f32 v%d, v%d, v%d", GA0, GA0, x1); S("v_add_f32 v%d, v%d, v%d", GA1, GA1, y1)
e("s_nop 0")
for d in ("row_shr:1 row_mask:0xf", "row_shr:2 row_mask:0xf", "row_shr:4 row_mask:0xf", "row_shr:8 row_mask:0xf", "row_bcast:15 row_mask:0xa", "row_bcast:31 row_mask:0xc"):
    S("v_add_f32_dpp v%d, v%d, v%d %s bank_mask:0xf", GA0, GA0, GA0, d)
    S("v_add_f32_dpp v%d, v%d, v%d %s bank_mask:0xf", GA1, GA1, GA1, d)
    e("s_nop 0")
S("v_cvt_pk_bf16_f32 v%d, v%d, v%d", x0, GA0, GA1)
S("v_and_b32 v%d, s%d, v%d", GA1, sMASK, x0); S("v_lshlrev_b32 v%d, 16, v%d", GA0, x0)
S("v_mul_f32 v%d, 0x%x, v%d", GA0, LOG2E | 0x80000000, GA0); S("v_mul_f32 v%d, 0x%x, v%d", GA1, LOG2E | 0x80000000, GA1)
S("v_exp_f32 v%d, v%d", GA0, GA0); S("v_exp_f32 v%d, v%d", GA1, GA1)
e("s_nop 0")
S("v_add_f32 v%d, 1.0, v%d", GA0, GA0); S("v_add_f32 v%d, 1.0, v%d", GA1, GA1)
S("v_rcp_f32 v%d, v%d", GA0, GA0); S("v_rcp_f32 v%d, v%d", GA1, GA1)
S("v_cmp_eq_u32 s[%d:%d], 63, v%d", sTP, sTP + 1, vLANE)
S("v_cvt_pk_bf16_f32 v%d, v%d, v%d", x0, GA0, GA1)
S("v_mov_b32 v%d, s%d", GA0 + 1, sTAG); S("v_mov_b32 v%d, s%d", GA1 + 1, sTAG)
S("v_and_b32 v%d, s%d, v%d", GA1, sMASK, x0); S("v_lshlrev_b32 v%d, 16, v%d", GA0, x0)
S("s_lshl_b32 s%d, s%d, 10", sT0, sR); S("s_lshl_b32 s%d, s%d, 8", sT1, sW); S("s_add_u32 s%d, s%d, s%d", sT0, sT0, sT1)
S("s_add_u32 s%d, s%d, %d", sT0, sT0, GOFF)
S("s_lshl_b32 s%d, s%d, 4", sT1, sJ); S("s_add_u32 s%d, s%d, s%d", sT1, sT1, sT0)
S("v_mov_b32 v%d, s%d", y0, sT1)
S("v_cndmask_b32 v%d, v%d, v%d, s[%d:%d]", y0, t3, y0, sTP, sTP + 1)
F.vm("buffer_store_dwordx4 %s, v%d, %s, 0 offen sc1" % (vr(GA0, 4), y0, WSR), "gst")
vTJ, vGA = T + 32, T + 33
S("v_bfe_u32 v%d, v%d, 2, 1", t0, vLANE)
S("v_bfe_u32 v%d, v%d, 3, 2", t1, vLANE)
S("v_and_b32 v%d, 3, v%d", t2, vLANE)
S("v_lshl_add_u32 v%d, v%d, 2, v%d", t1, t1, t2)
S("v_lshl_add_u32 v%d, v%d, 4, v%d", vTJ, t0, t1)
S("v_lshl_add_u32 v%d, v%d, 3, s%d", vGA, vTJ, sT0)
vXD, vDS = 228, 230
sXT = 69
S("s_lshl_b32 s%d, s%d, 8", sT0, sC); S("s_lshl_b32 s%d, s%d, 6", sT1, sQ); S("s_add_u32 s%d, s%d, s%d", sT0, sT0, sT1)
S("v_lshrrev_b32 v%d, 2, v%d", t0, vLANE)
S("v_and_b32 v%d, 3, v%d", t2, vLANE)
S("v_lshlrev_b32 v%d, 4, v%d", t2, t2)
S("v_lshl_add_u32 v%d, v%d, 10, v%d", vXD, t0, t2)
S("v_add_u32 v%d, 15360, v%d", vXD + 1, vXD)
S("s_lshl_b32 s%d, s%d, 17", sT1, sR); S("s_add_u32 s%d, s%d, s%d", sXT, sT0, sT1); S("s_lshl_b32 s%d, s%d, 15", sT1, sW); S("s_add_u32 s%d, s%d, s%d", sXT, sXT, sT1)
S("v_and_b32 v%d, 31, v%d", t2, vLANE)
S("v_lshlrev_b32 v%d, 1, v%d", t2, t2)
S("v_add_u32 v%d, s%d, v%d", vDS, sT0, t2)
nxaddr = len(F.items)
F.wait_vm("small")
a_, b_ = T + 20, T + 21
S("v_lshlrev_b32 v%d, 16, v%d", PD, PD)
S("v_mul_f32 v%d, 0x%x, v%d", PD, LOG2E, PD)
S("v_exp_f32 v%d, v%d", PD, PD)
S("v_lshlrev_b32 v%d, 16, v%d", PL, PL)
S("v_lshlrev_b32 v%d, 16, v%d", PI, PI)
S("v_cvt_pk_bf16_f32 v%d, v%d, v%d", PD, PD, PD)
S("v_lshlrev_b32 v%d, 16, v%d", PD, PD)
S("v_mul_f32 v%d, v%d, v%d", a_, PD, PL)
S("v_mul_f32 v%d, v%d, v%d", b_, PD, PI)
S("v_mul_f32 v%d, 0x%x, v%d", a_, LOG2E, a_)
S("v_mul_f32 v%d, 0x%x, v%d", b_, INV2PI, b_)
S("v_cvt_f32_u32 v%d, v%d", t3, vQ)
def cpow(d, mul):
    if mul is None:
        S("v_exp_f32 v%d, v%d", t0, a_); S("v_fract_f32 v%d, v%d", t1, b_)
    else:
        S("v_mul_f32 v%d, %s, v%d", t0, mul, a_); S("v_mul_f32 v%d, %s, v%d", t1, mul, b_)
        S("v_exp_f32 v%d, v%d", t0, t0); S("v_fract_f32 v%d, v%d", t1, t1)
    S("v_cos_f32 v%d, v%d", d, t1); S("v_sin_f32 v%d, v%d", d + 1, t1)
    e("s_nop 0")
    S("v_mul_f32 v%d, v%d, v%d", d, d, t0); S("v_mul_f32 v%d, v%d, v%d", d + 1, d + 1, t0)
cpow(cL, None)
cpow(cL16, "0x41800000")
cpow(cL1024, "0x44800000")
S("v_mul_f32 v%d, 0x41800000, v%d", t2, t3); cpow(cL16q, "v%d" % t2)
S("v_mul_f32 v%d, 0x43000000, v%d", t2, t3); cpow(cL128q, "v%d" % t2)
S("v_mul_f32 v%d, v%d, v%d", t0, PL, PL)
S("v_fma_f32 v%d, v%d, v%d, v%d", t0, PI, PI, t0)
S("v_rcp_f32 v%d, v%d", t0, t0)
S("v_add_f32 v%d, -1.0, v%d", t1, cL)
S("v_mul_f32 v%d, v%d, v%d", cCO, t1, PL)
S("v_fma_f32 v%d, v%d, v%d, v%d", cCO, cL + 1, PI, cCO)
S("v_mul_f32 v%d, v%d, v%d", cCO + 1, cL + 1, PL)
S("v_fma_f32 v%d, -v%d, v%d, v%d", cCO + 1, t1, PI, cCO + 1)
S("v_add_f32 v%d, v%d, v%d", t0, t0, t0)
S("v_mul_f32 v%d, v%d, v%d", cCO, cCO, t0)
S("v_mul_f32 v%d, v%d, v%d", cCO + 1, cCO + 1, t0)
S("s_lshl_b32 s%d, s%d, 2", sT0, sR); S("s_add_u32 s%d, s%d, s%d", sT0, sT0, sW)
S("s_mul_i32 s%d, s%d, %d", sHF, sT0, TSTRIDE); S("s_add_u32 s%d, s%d, %d", sHF, sHF, HOFF)
S("s_lshl_b32 s%d, s%d, 9", sFL, sT0); S("s_lshl_b32 s%d, s%d, 7", sT1, sQ); S("s_add_u32 s%d, s%d, s%d", sFL, sFL, sT1); S("s_add_u32 s%d, s%d, %d", sFL, sFL, FLAGS)
S("s_mul_i32 s%d, s%d, %d", sHq, sQ, 28 * 1024); S("s_add_u32 s%d, s%d, s%d", sHq, sHq, sHF)
S("s_lshl_b32 s%d, s%d, 10", sHO, sKSW)
S("s_lshl_b32 s%d, s%d, 14", sHS, sQ); S("s_add_u32 s%d, s%d, s%d", sHS, sHS, sHF); S("s_add_u32 s%d, s%d, %d", sHS, sHS, 112 * 1024)
nlate = len(F.items)
rdVW, rdVX, rdCX, rdCB = 10, 2, 18, 22
vSEG, vPUB, vLB0, vLB1 = 204, 205, 206, 207
vGW, vGR = 238, 239
vXD, vDS = 228, 230
sHFa, sHFb = 64, 65
S("v_and_b32 v%d, 3, v%d", t2, vLANE)
S("v_lshl_add_u32 v%d, v%d, 3, v%d", rdVX, t2, vPRE)
S("v_add_u32 v%d, 0x%x, v%d", rdVW, LW, rdVX)
for s_ in range(1, 4):
    S("v_xor_b32 v%d, %d, v%d", rdVX + s_, 64 * s_, rdVX)
    S("v_xor_b32 v%d, %d, v%d", rdVW + s_, 64 * s_, rdVW)
S("v_and_b32 v%d, 31, v%d", t1, vLANE)
S("v_lshlrev_b32 v%d, 3, v%d", t1, t1)
S("v_add_u32 v%d, 0x%x, v%d", vSEG, SCR, t1)
S("v_lshlrev_b32 v%d, 1, v%d", t0, t1)
S("s_lshl_b32 s%d, s%d, 9", sT0, sJ); S("s_lshl_b32 s%d, s%d, 13", sT1, sR); S("s_add_u32 s%d, s%d, s%d", sT0, sT0, sT1); S("s_add_u32 s%d, s%d, %d", sT0, sT0, AGG)
S("v_add_u32 v%d, s%d, v%d", t0, sT0, t0)
S("v_mov_b32 v%d, 0x%x", t3, OOB)
S("v_cmp_eq_u32 s[%d:%d], 7, v%d", sTP, sTP + 1, vQ)
S("v_add_u32 v%d, 1, v%d", t2, vQ)
S("v_cmp_ge_u32 s[%d:%d], s%d, v%d", sV0, sV0 + 1, sR, t2)
S("v_cndmask_b32 v%d, v%d, v%d, s[%d:%d]", vPUB, t3, t0, sTP, sTP + 1)
S("v_lshlrev_b32 v%d, 13, v%d", t1, t2)
S("v_sub_u32 v%d, v%d, v%d", t1, t0, t1)
S("v_add_u32 v%d, 8, v%d", t2, t2)
S("v_cmp_ge_u32 s[%d:%d], s%d, v%d", sV1, sV1 + 1, sR, t2)
S("v_cndmask_b32 v%d, v%d, v%d, s[%d:%d]", vLB0, t3, t1, sV0, sV0 + 1)
S("v_subrev_u32 v%d, 0x10000, v%d", t1, t1)
S("v_mov_b32 v%d, 0", vPRE); S("v_mov_b32 v%d, 0", vPRE + 1)
S("v_cndmask_b32 v%d, v%d, v%d, s[%d:%d]", vLB1, t3, t1, sV1, sV1 + 1)
S("s_lshl_b32 s%d, s%d, 7", sT0, sW); S("s_add_u32 s%d, s%d, %d", sT0, sT0, GT)
S("v_lshl_add_u32 v%d, v%d, 2, s%d", vGW, vTJ, sT0)
S("v_lshrrev_b32 v%d, 5, v%d", t1, vLANE)
S("v_lshl_add_u32 v%d, v%d, 6, s%d", vGR, t1, sT0)
S("s_add_u32 s%d, s%d, s%d", sHFa, sHq, sHO); S("s_add_u32 s%d, s%d, 4096", sHFb, sHFa)
S("s_mov_b32 s%d, 0", sCNT)
e = g.e

def frag(setn, idx):
    return FR + 28 * setn + 4 * idx
def reads(n):
    c, s = n >> 2, n & 3
    k = c & 3; st = n & 1
    L = []
    L.append(("ds_read_b128 %s, v%d offset:%d" % (vr(frag(st, 0), 4), rdA + s, k * 16384), "ds:r%d_0" % n))
    L.append(("ds_read_b128 %s, v%d offset:%d" % (vr(frag(st, 1), 4), rdB + s, k * 8192), "ds:r%d_1" % n))
    L.append(("ds_read_b128 %s, v%d offset:%d" % (vr(frag(st, 2), 4), rdB + s, k * 8192 + 4096), "ds:r%d_2" % n))
    for t in range(4):
        for e2 in range(2):
            L.append(("ds_read_b64_tr_b16 %s, v%d offset:%d" % (vr(frag(st, 3 + t) + 2 * e2, 2), rdW + t, k * 16384 + s * 4096 + 1024 * e2), "ds:r%d_%d" % (n, 3 + t)))
    return L
def mfma1(n, m):
    st = n & 1
    A = vr(frag(st, 0), 4)
    if m < 2:
        acc = (ACC_RE, ACC_IM)[m]
        S("v_mfma_f32_32x32x16_bf16 %s, %s, %s, %s", vr(acc, 16), A, vr(frag(st, 1 + m), 4), "0" if n == 0 else vr(acc, 16))
    else:
        acc = ACC_F + 16 * (m - 2)
        S("v_mfma_f32_32x32x16_bf16 %s, %s, %s, %s", vr(acc, 16), vr(frag(st, 1 + m), 4), A, "0" if n == 0 else vr(acc, 16))

USLOT = {0: ("X", 0), 1: ("W", 0), 2: ("X", 1), 3: ("W", 1), 4: ("X", 2), 5: ("W", 2), 6: ("W", 3), 7: ("X", 3), 8: ("B", 0), 9: ("X", 0), 10: ("X", 1)}
def unit(v):
    L = []
    reg, k = USLOT[v]
    if v < 7:
        if v == 0:
            L.append(("s_add_u32 s%d, s%d, s%d" % (sT3, sW, sKSW), None))
        else:
            L.append(("s_add_u32 s%d, s%d, %d" % (sT3, sW, 4 * v), None))
            L.append(("s_sub_u32 s%d, s%d, 6" % (sT2, sT3), None))
            L.append(("s_cmp_lt_u32 s%d, s%d" % (sT2, sKSW), None))
            L.append(("s_cselect_b32 s%d, s%d, s%d" % (sT2, sT2, sT3), None))
            if v == 1:
                L.append(("s_add_u32 s%d, s%d, s%d" % (sT3, sT3, sKSW), None))
                L.append(("s_cmp_lt_u32 s%d, 2" % sW, None))
                L.append(("s_cselect_b32 s%d, s%d, s%d" % (sT2, sT3, sT2), None))
            L.append(("s_mov_b32 s%d, s%d" % (sT3, sT2), None))
        L.append(("s_lshl_b32 s%d, s%d, 14" % (sT3, sT3), None))
        L.append(("s_add_u32 m0, s%d, %d" % (sMX if reg == "X" else sMW, k * 16384), None))
        L.append(("s_add_u32 s%d, s%d, s%d" % (sT3, sT3, sV2b), None))
        sd, vo, so = SRD_W2, vW2, sT3
    else:
        b = v - 7
        L.append(("s_add_u32 m0, s%d, %d" % (sMX, LB if reg == "B" else k * 16384), None))
        if b & 1:
            L.append(("s_xor_b32 s%d, s%d, 128" % (sT3, sCb), None)); so = sT3
        else:
            L.append(("s_nop 0", None)); so = sCb
        sd, vo = (SRD_CR if b < 2 else SRD_CI), vC
    for n in range(4):
        L.append(("buffer_load_dwordx4 v%d, s[%d:%d], s%d offen offset:%d lds" % (vo + n, sd, sd + 3, so, 1024 * n), "v%d" % v))
    return L

class Spread:
    def __init__(self, items, gaps):
        self.items = list(items)
        n = sum(1 for x in items if x[1])
        self.sched = [int((i + 0.5) * gaps / n) for i in range(n)] if n else []
        self.gi = 0
    def gap(self):
        used = 0
        while self.sched and self.sched[0] <= self.gi:
            self.sched.pop(0)
            while True:
                it = self.items.pop(0); run([it]); used += 1
                if it[1]: break
            if not self.sched:
                run(self.items); used += len(self.items); self.items = []
        self.gi += 1
        return used
    def flush(self):
        run(self.items); self.items = []; self.sched = []

GG = T + 34
DSK = T + 37
def g_load(tag):
    g.vm("buffer_load_dwordx2 %s, v%d, %s, 0 offen sc1" % (vr(GG, 2), vGA, WSR), tag)

stamp()
g.wait_vm("ch0")
e("s_barrier")
stamp()
for it in reads(0):
    if OPT["skip"] and it[1].endswith("_6"): g.e(it[0])
    else: run([it])
def chunk_items(c):
    if c + 2 < 8: return dma_chunk(c + 2)
    if c == 6: return unit(0) + unit(1)
    xdma = [("s_mov_b32 m0, s%d" % sMB, None), ("s_nop 0", None)]
    xdma += [("buffer_load_dwordx4 v%d, s[%d:%d], s%d offen offset:%d lds" % (vXD + n, SRD_X, SRD_X + 3, sXT, 1024 * n), "xr") for n in range(2)]
    xdma += [("global_load_ushort v%d, v%d, s[%d:%d]" % (DSK, vDS, pDSK, pDSK + 1), "xr")]
    return unit(2) + unit(3) + xdma
sp = Spread(chunk_items(0), 18)
nplayed = 0
def emit_read(item):
    s_, tag = item
    if OPT["skip"] and tag.endswith("_6"):
        g.e(s_); ph.append(len(g.lgq))
        evq.append(tag)
    else:
        g.ds(s_, tag[3:]); evq.append(tag)
def wait_tile(n, m):
    if OPT["skip"] and m == 5:
        tag = "ds:r%d_6" % n
        k = len(evq) - 1 - max(i for i, t in enumerate(evq) if t == tag)
        g.e("s_waitcnt lgkmcnt(%d)" % k)
    else:
        g.wait_lg("r%d_%d" % (n, m + 1))
ph = []; evq = [x[1] for x in reads(0)]
for n in range(32):
    c, s = n >> 2, n & 3
    nxt = reads(n + 1) if n < 31 else []
    per = [2, 2, 2, 2, 1, 2]
    for m in range(6):
        sk = OPT["skip"] and m == 5
        if sk: e("s_cbranch_vccnz L_sk%d" % n)
        wait_tile(n, m)
        mfma1(n, m)
        if s == 3 and m == 0:
            assert not sp.items
            nstamp_("a%d" % c)
            if c < 7: g.wait_vm("ch%d" % (c + 1))
            e("s_barrier")
            nstamp_("b%d" % c)
            sp = Spread(chunk_items(c + 1) if c < 7 else [], 23)
            if c == 5: assert len(F.items) <= ntot - nearly, "staging scalars not ready"
            if c == 6:
                g_load("gl")
                assert len(F.items) <= ntot - nxaddr
        for it in nxt[:per[m]]: emit_read(it)
        nxt = nxt[per[m]:]
        assert len(evq) - max([i for i, t in enumerate(evq) if t.startswith("ds:r%d_" % n)] + [-1]) - 1 <= 11
        if sk: g.label("L_sk%d" % n)
        if s == 3 and m == 0: continue
        used = sp.gap()
        if n == 0: ntot = len(F.items)
        if n >= 1:
            bud = max(0, OPT["fillb"] + (n >= 24) + (2 - per[m]) - used - (1 if sk else 0))
            if n < 24: bud = min(bud, nlate - (ntot - len(F.items)))
            F.play(g, bud)
    assert not nxt
print("fillers left after loop:", len(F.items))
F.flush(g)
stamp()

GREG = 208
OM = T + 36
g.wait_vm("gl")
assert g.vm_count("v1") is None
g.label("L_g_chk")
S("v_cmp_ne_u32 vcc, s%d, v%d", sTAG, GG + 1)
S("s_add_u32 s%d, s%d, 1", sCNT, sCNT)
e("s_cbranch_vccz L_g_ok")
S("s_cmp_ge_u32 s%d, 0x8000", sCNT)
e("s_cbranch_scc1 L_g_ok")
sv = list(g.vmq); g_load("x"); g.vmq = sv
e("s_waitcnt vmcnt(0)")
e("s_branch L_g_chk")
g.label("L_g_ok")
g.ds("ds_write_b32 v%d, v%d" % (vGW, GG), "gw")
for k in range(4):
    g.ds("ds_read_b128 %s, v%d offset:%d" % (vr(GREG + 4 * k, 4), vGR, 16 * k), "gr")
S("v_sub_f32 v%d, 1.0, v%d", OM, GG)
S("v_cvt_pk_bf16_f32 v%d, v%d, v%d", OM, OM, OM)
S("v_lshlrev_b32 v%d, 16, v%d", OM, OM)
PB = 224
S("v_mov_b32 v%d, s%d", PB + 2, sTAG); S("v_mov_b32 v%d, s%d", PB + 3, sTAG)
vOUT = 44
def hstore(t, fr):
    d = ACC_F + 8 * t
    return ("buffer_store_dwordx4 %s, v%d, %s, s%d offen offset:%d%s" % (vr(d + 4 * fr, 4), vL16d if t == 3 else vL16, WSR, sHFa if t < 2 else sHFb, 2048 * (t & 1) + 1024 * fr, HSC), "hf")
pend_st = []
nst = 0
for t in range(4):
    f = ACC_F + 16 * t; d = ACC_F + 8 * t
    for k in range(8):
        S("v_pk_mul_f32 %s, %s, %s op_sel_hi:[1,0]", vr(f + 2 * k, 2), vr(f + 2 * k, 2), vr(OM, 2))
    for fr in range(2):
        for k in range(4 * fr, 4 * fr + 4):
            S("v_cvt_pk_bf16_f32 v%d, v%d, v%d", d + k, f + 2 * k, f + 2 * k + 1)
        for k in range(4 * fr, 4 * fr + 4):
            S("v_pk_max_i16 v%d, v%d, 0", d + k, d + k)
        if nst < OPT["nst0"]: run([hstore(t, fr)])
        else: pend_st.append(hstore(t, fr))
        nst += 1
stamp()
late = Spread(pend_st[:OPT["nst1"]], 7); pend_st = pend_st[OPT["nst1"]:]
H0, H1 = 100, 102
pr, pi = ACC_RE, ACC_IM
for t in range(1, 16):
    d = (H0, H1)[t & 1]
    cfma(d, d + 1, cL, cL + 1, pr, pi, ACC_RE + t, ACC_IM + t)
    pr, pi = d, d + 1
    if t % 2 == 0: late.gap()
OWN = pr
g.ds("ds_write_b64 v%d, %s" % (vTID8, vr(OWN, 2)), "agg")
g.wait_lg_all()
e("s_barrier")
SG = 240
for s_ in range(7):
    g.ds("ds_read_b64 %s, v%d offset:%d" % (vr(SG + 2 * s_, 2), vSEG, 256 * s_), "sg%d" % s_)
for s_ in range(7):
    g.wait_lg("sg%d" % s_)
    S("v_cmpx_lt_u32 vcc, %d, v%d", s_, vQ)
    a = SG + 2 * s_
    if s_ == 0:
        S("v_mov_b32 v%d, v%d", vPRE, a); S("v_mov_b32 v%d, v%d", vPRE + 1, a + 1)
    else:
        S("v_fma_f32 v%d, v%d, v%d, v%d", a, cL16, vPRE, a)
        S("v_fma_f32 v%d, v%d, v%d, v%d", a + 1, cL16, vPRE + 1, a + 1)
        S("v_fma_f32 v%d, -v%d, v%d, v%d", a, cL16 + 1, vPRE + 1, a)
        S("v_fma_f32 v%d, v%d, v%d, v%d", vPRE + 1, cL16 + 1, vPRE, a + 1)
        S("v_mov_b32 v%d, v%d", vPRE, a)
e("s_mov_b64 exec, -1")
cfma(PB, PB + 1, cL16, cL16 + 1, vPRE, vPRE + 1, OWN, OWN + 1)
g.vm("buffer_store_dwordx4 %s, v%d, %s, 0 offen sc1" % (vr(PB, 4), vPUB, WSR), "pub")
stamp()
u6 = unit(6)
A0, A1 = 228, 232
lbl_ = [("buffer_load_dwordx4 %s, v%d, %s, 0 offen sc1" % (vr(A0, 4), vLB0, WSR), "lb"), ("buffer_load_dwordx4 %s, v%d, %s, 0 offen sc1" % (vr(A1, 4), vLB1, WSR), "lb")]
def lb_loads(tag):
    for s_, _ in lbl_: g.vm(s_, tag)
late = Spread(pend_st + unit(4) + lbl_, OPT["lgaps"])

ACC2 = [48, 64, 80, 240]
WF = 168
FULL = set(range(0, 4)) | set(range(8, 12))
def tiles(n): return [0, 1, 2, 3] if n in FULL else [1, 2, 3]
def wread(n, tau, dst):
    v = n >> 2; sg = n & 3
    reg, k = USLOT[v]
    if n < 28:
        base = (rdVX if reg == "X" else rdVW) + tau
        return [("ds_read_b64_tr_b16 %s, v%d offset:%d" % (vr(dst + 2 * e2, 2), base, k * 16384 + sg * 4096 + 1024 * e2), None) for e2 in range(2)]
    base = (rdCX if reg == "X" else rdCB) + sg
    return [("ds_read_b128 %s, v%d offset:%d" % (vr(dst, 4), base, (k * 16384 if reg == "X" else 0) + tau * 4096), None)]
WF3 = [104, 108, 120, 124]
ORDER = list(range(44))
POS = {n: p for p, n in enumerate(ORDER)}
def wfrag(n, tau):
    p = POS[n]
    if p < 6: return WF + 16 * (p & 1) + 4 * tau
    k = p % 3
    return WF + 16 * k + 4 * tau if k < 2 else WF3[tau]
def reads2(n):
    L = []
    for tau in tiles(n):
        for s, _ in wread(n, tau, wfrag(n, tau)):
            L.append((s, "ds:w%d_%d" % (n, tau)))
    return L
TFR, TFI = ACC_RE + 8, ACC_IM + 8
def hfrag(n):
    if n < 6: return vr(ACC_F + 4 * n, 4)
    if n < 28: return ar(4 * (n - 6), 4)
    m = n - 28
    if m in (0, 1): return vr(TFR + 4 * m, 4)
    if m in (8, 9): return vr(TFI + 4 * (m - 8), 4)
    idx = m - 2 if m < 8 else m - 4
    return ar(88 + 4 * idx, 4)
def hload(n):
    L = []
    if n < 28:
        if n % 2 == 0:
            L.append(("s_cmp_gt_u32 s%d, %d" % (sKSW, n - 6), None))
            L.append(("s_cselect_b32 s%d, s%d, s%d" % (sX, sHFa, sHq), None))
            L.append(("s_add_u32 s%d, s%d, %d" % (sX, sX, n * 1024), None))
    else:
        m = n - 28
        if m % 2 == 0:
            L.append(("s_xor_b32 s%d, s%d, %d" % (sX, sC, (m >> 1) & 3), None))
            L.append(("s_lshl_b32 s%d, s%d, 11" % (sX, sX), None))
            L.append(("s_add_u32 s%d, s%d, s%d" % (sX, sX, sHS), None))
            if m >= 8: L.append(("s_add_u32 s%d, s%d, 8192" % (sX, sX), None))
    if OPT["exp"] == 1: return L
    if OPT["exp"] == 2:
        L.append(("buffer_load_dwordx4 %s, v%d, s[%d:%d], 0 offen offset:%d" % (hfrag(n), vL16, SRD_W2, SRD_W2 + 3, 1024 * (n & 3)), "h%d" % n))
        return L
    L.append(("buffer_load_dwordx4 %s, v%d, %s, s%d offen offset:%d%s" % (hfrag(n), vL16, WSR, sX, 1024 * (n & 1), "" if OPT["exp"] == 3 else " sc1"), "h%d" % n))
    return L
started = set()
RQ = []
def issue_reads(cur, ahead, maxn, limit):
    k = 0
    while RQ and k < maxn and RQ[0][0] <= min(cur + ahead, limit) and len(g.lgq) < 15:
        run([RQ.pop(0)[1]]); k += 1
    return k
def step(n, fill=None, pre=None, budget=3, ahead=2, limit=99):
    tl = tiles(n)
    while RQ and RQ[0][0] <= POS[n]:
        if len(g.lgq) >= 15: g.wait_lg(g.lgq[1])
        run([RQ.pop(0)[1]])
    g.wait_vm("h%d" % n)
    for i, tau in enumerate(tl):
        if i == 0 and pre:
            g.wait_lg_all()
        else:
            g.wait_lg("w%d_%d" % (n, tau))
        acc = vr(ACC2[tau], 16)
        S("v_mfma_f32_32x32x16_bf16 %s, %s, %s, %s", acc, hfrag(n), vr(wfrag(n, tau), 4), acc if tau in started else "0")
        started.add(tau)
        if i == 0 and pre: pre()
        k = issue_reads(POS[n], ahead, 3, limit)
        if fill: fill(max(0, budget + 2 - k))

F = Rec(); e = F.e
S("s_and_b32 s%d, s%d, 1", sT0, sC); S("s_lshl_b32 s%d, s%d, 6", sT0, sT0)
S("v_subrev_u32 v%d, 0x%x, v%d", rdCX, LB, rdB)
S("v_xor_b32 v%d, s%d, v%d", rdCX, sT0, rdCX)
S("v_xor_b32 v%d, s%d, v%d", rdCB, sT0, rdB)
for s in range(1, 4):
    S("v_xor_b32 v%d, %d, v%d", rdCX + s, 32 * s, rdCX)
    S("v_xor_b32 v%d, %d, v%d", rdCB + s, 32 * s, rdCB)
for t in range(16):
    ur, ui = ACC_RE + t, ACC_IM + t
    tt = 100 + (t & 1)
    S("v_mul_f32 v%d, v%d, v%d", tt, ur, cCO + 1)
    S("v_mul_f32 v%d, v%d, v%d", ur, ur, cCO)
    S("v_fma_f32 v%d, -v%d, v%d, v%d", ur, ui, cCO + 1, ur)
    S("v_fma_f32 v%d, v%d, v%d, v%d", ui, ui, cCO, tt)
vTW, vTR = 26, 28
vXL, vFLG, FLD = 96, 97, 203
S("s_add_u32 s%d, s%d, %d", sT0, sMB, TRB - LB)
S("v_and_b32 v%d, 31, v%d", t0, vLANE)
S("v_bfe_u32 v%d, v%d, 1, 2", t1, vLANE)
S("v_lshrrev_b32 v%d, 5, v%d", t2, vLANE)
S("v_lshlrev_b32 v%d, 1, v%d", t3, t2)
S("v_xor_b32 v%d, v%d, v%d", t1, t1, t3)
S("v_lshlrev_b32 v%d, 4, v%d", t1, t1)
S("v_lshl_add_u32 v%d, v%d, 6, v%d", t1, t0, t1)
S("v_add_u32 v%d, s%d, v%d", vTW, sT0, t1)
S("v_xor_b32 v%d, 16, v%d", vTW + 1, vTW)
S("v_lshlrev_b32 v%d, 1, v%d", t0, t0)
S("v_lshl_add_u32 v%d, v%d, 10, v%d", vXL, t2, t0)
S("v_add_u32 v%d, s%d, v%d", vXL, sMB, vXL)
S("v_lshl_add_u32 v%d, v%d, 14, v%d", t0, t2, t0)
S("v_add_u32 v%d, s%d, v%d", 98, sXT, t0)
S("v_bfe_u32 v%d, v%d, 2, 2", t0, vLANE)
S("v_lshl_add_u32 v%d, v%d, 3, v%d", t2, t2, t0)
S("v_lshrrev_b32 v%d, 1, v%d", t0, t0)
S("v_and_b32 v%d, 1, v%d", t1, vLANE)
S("v_lshlrev_b32 v%d, 1, v%d", t1, t1)
S("v_bfe_u32 v%d, v%d, 4, 1", t3, vLANE)
S("v_add_u32 v%d, v%d, v%d", t1, t1, t3)
S("v_xor_b32 v%d, v%d, v%d", t1, t1, t0)
S("v_lshlrev_b32 v%d, 4, v%d", t1, t1)
S("v_lshl_add_u32 v%d, v%d, 6, v%d", t1, t2, t1)
S("v_bfe_u32 v%d, v%d, 1, 1", t3, vLANE)
S("v_lshl_add_u32 v%d, v%d, 3, v%d", t1, t3, t1)
S("v_add_u32 v%d, s%d, v%d", vTR, sT0, t1)
S("v_xor_b32 v%d, 32, v%d", vTR + 1, vTR)
S("v_add_u32 v%d, 256, v%d", vTR + 1, vTR + 1)
S("v_and_b32 v%d, 3, v%d", t0, vLANE)
S("v_lshl_add_u32 v%d, v%d, 2, s%d", vFLG, t0, sFL)
S("s_mov_b32 s%d, 32768", sB)
S("s_mov_b32 s%d, 0", sCNT)
S("s_lshl_b32 s%d, s%d, 2", sT1, sC); S("s_add_u32 s%d, s%d, s%d", sFL, sFL, sT1)
e = g.e
for n in range(6): RQ += [(n, x) for x in reads2(n)]
def fill5(b):
    u = late.gap()
    F.play(g, max(0, b - u))
for n in range(6):
    step(n, fill5, budget=2, ahead=1)
late.flush()
F.flush(g)
S("v_lshlrev_b32 v%d, 1, v98", vOUT)
S("s_sub_u32 s%d, s%d, 6144", sHFa, sHq)
stamp()
def flag_load(kind, tag):
    g.vm("buffer_load_dword v%d, v%d, %s, %s offen sc1" % (FLD, vFLG, WSR, "s%d" % sB if kind else "0"), tag)
def flag_check(loader, lbl):
    S("s_mov_b32 s%d, 0", sCNT)
    g.label(lbl + "_chk")
    S("v_cmp_ne_u32 vcc, s%d, v%d", sTAG, FLD)
    S("s_add_u32 s%d, s%d, 1", sCNT, sCNT)
    S("s_cbranch_vccz %s_ok", lbl)
    S("s_cmp_ge_u32 s%d, 0x8000", sCNT)
    S("s_cbranch_scc1 %s_ok", lbl)
    sv = list(g.vmq); loader("x"); g.vmq = sv
    e("s_waitcnt vmcnt(0)")
    S("s_branch %s_chk", lbl)
    g.label(lbl + "_ok")
vorder = [5, 6, 7, 8, 9, 10]
for v in vorder[:OPT["npre"]]: run(unit(v))
vorder = vorder[OPT["npre"]:]
g.wait_vm("hf")
nstamp_("hfdone")
assert g.vm_count("xr") is None
S("v_lshlrev_b32 v205, 16, v%d", DSK)
DSK = 205
e("s_mov_b64 exec, 1")
g.vm("buffer_store_dword v%d, off, %s, s%d sc1" % (vTAG, WSR, sFL), "fl0")
e("s_mov_b64 exec, -1")
g.wait_vm("lb")
g.label("L_lb_chk")
S("v_cmp_ne_u32 vcc, s%d, v%d", sTAG, A0 + 2)
S("v_cmp_ne_u32 s[%d:%d], s%d, v%d", sTP, sTP + 1, sTAG, A1 + 2)
S("s_and_b64 vcc, vcc, s[%d:%d]", sV0, sV0 + 1)
S("s_and_b64 s[%d:%d], s[%d:%d], s[%d:%d]", sTP, sTP + 1, sTP, sTP + 1, sV1, sV1 + 1)
S("s_or_b64 vcc, vcc, s[%d:%d]", sTP, sTP + 1)
e("s_cbranch_scc0 L_lb_ok")
S("s_add_u32 s%d, s%d, 1", sCNT, sCNT)
S("s_cmp_ge_u32 s%d, 0x8000", sCNT)
e("s_cbranch_scc1 L_lb_ok")
sv = list(g.vmq); lb_loads("x"); g.vmq = sv
e("s_waitcnt vmcnt(0)")
e("s_branch L_lb_chk")
g.label("L_lb_ok")
cfma(A0, A0 + 1, cL1024, cL1024 + 1, A1, A1 + 1, A0, A0 + 1)
cmul(A1, A1 + 1, cL128q, cL128q + 1, A0, A0 + 1)
g.ds("ds_write_b64 v%d, %s offset:2048" % (vTID8, vr(A1, 2)), "pw")
assert g.vm_count("v4") is None
g.wait_lg_all()
e("s_barrier")
stamp()
SG = 224
for s_ in range(8):
    g.ds("ds_read_b64 %s, v%d offset:%d" % (vr(SG + 2 * s_, 2), vSEG, 2048 + 256 * s_), "pp%d" % s_)
NH0 = OPT["nh0"]
hq = list(range(6, 6 + NH0))
vs = Spread(sum([unit(v) for v in vorder[:OPT["nscan"]]], []), 8); vorder = vorder[OPT["nscan"]:]
XR = 224
for s_ in range(1, 8):
    g.wait_lg("pp%d" % s_)
    S("v_pk_add_f32 %s, %s, %s", vr(SG, 2), vr(SG, 2), vr(SG + 2 * s_, 2))
cfma(vPRE, vPRE + 1, cL16q, cL16q + 1, SG, SG + 1, vPRE, vPRE + 1)
cmul(100, 101, cCO, cCO + 1, vPRE, vPRE + 1)
pr, pi = 100, 101
for t in range(16):
    cfma(ACC_RE + t, ACC_IM + t, cL, cL + 1, pr, pi, ACC_RE + t, ACC_IM + t)
    pr, pi = ACC_RE + t, ACC_IM + t
    if len(g.lgq) >= 12: g.wait_lg(g.lgq[3])
    g.ds("ds_read_u16 v%d, v%d offset:%d" % (XR + t, vXL, 64 * t), "xl%d" % t)
    vs.gap()
    if t == OPT["pfpos"]: flag_load(0, "pf0")
    if t == OPT["pchk"]:
        g.wait_vm("pf0")
        flag_check(lambda tag: flag_load(0, tag), "L_f0")
        nstamp_("pollok")
        nin = min(NH0, 2 * ((15 - t) // 2))
        vs = Spread(sum([hload(n) for n in hq[:nin]], []), 15 - t); hq = hq[nin:]
stamp()
for x, (acc, tf, ng) in enumerate(((ACC_RE, TFR, ""), (ACC_IM, TFI, "-"))):
    for k in range(8):
        S("v_pk_mul_f32 %s, %s, %s", vr(acc + 2 * k, 2), vr(acc + 2 * k, 2), vr(GREG + 2 * k, 2))
    for k in range(8):
        S("v_cvt_pk_bf16_f32 v%d, %sv%d, %sv%d", acc + k, ng, acc + 2 * k, ng, acc + 2 * k + 1)
    g.wait_lg("xl15")
    for p in range(2):
        g.ds("ds_write_b128 v%d, %s" % (vTW + p, vr(acc + 4 * p, 4)), "tw")
    for f in range(2):
        for e2 in range(2):
            g.ds("ds_read_b64_tr_b16 %s, v%d offset:%d" % (vr(tf + 4 * f + 2 * e2, 2), vTR + e2, 1024 * f), "tr%d%d" % (x, f))
S("s_lshl_b32 s%d, s%d, 11", sT0, sC); S("s_add_u32 s%d, s%d, s%d", sT0, sT0, sHS)
S("s_add_u32 s%d, s%d, 8192", sT1, sT0)
def hs_store(x, f):
    g.wait_lg("tr%d%d" % (x, f))
    g.vm("buffer_store_dwordx4 %s, v%d, %s, s%d offen offset:%d%s" % (vr((TFI if x else TFR) + 4 * f, 4), vL16, WSR, sT1 if x else sT0, 1024 * f, HSC), "hs")
hsq = [(0, 0), (0, 1), (1, 0), (1, 1)]
vs.flush()
for _ in range(OPT["hs0"]): hs_store(*hsq.pop(0))
if OPT["pchk"] > 15:
    g.wait_vm("pf0")
    flag_check(lambda tag: flag_load(0, tag), "L_f0")
    nstamp_("pollok")
stamp()
for n in ORDER[6:]: RQ += [(POS[n], x_) for x_ in reads2(n)]
while hsq or hq:
    for _ in range(2):
        if hq: run(hload(hq.pop(0)))
    if hsq: hs_store(*hsq.pop(0))
    issue_reads(6, 1, 3, 99)
stamp()
vF2S, vF2L = 98, 99
sPS = [66, 67, 68]; sPL = 69
S("s_lshl_b32 s%d, s%d, 4", sT0, sR); S("s_add_u32 s%d, s%d, s%d", sT0, sT0, sC); S("s_lshl_b32 s%d, s%d, 2", sT0, sT0); S("s_add_u32 s%d, s%d, s%d", sT0, sT0, sW)
for tau in range(1, 4):
    S("s_add_u32 s%d, s%d, %d", sT1, sQ, tau); S("s_and_b32 s%d, s%d, 3", sT1, sT1); S("s_lshl_b32 s%d, s%d, 4", sT1, sT1); S("s_add_u32 s%d, s%d, s%d", sT1, sT1, sT0)
    S("s_mul_i32 s%d, s%d, 6144", sPS[tau - 1], sT1); S("s_add_u32 s%d, s%d, %d", sPS[tau - 1], sPS[tau - 1], PART + 2048 * (tau - 1))
S("s_lshl_b32 s%d, s%d, 4", sT1, sQ); S("s_add_u32 s%d, s%d, s%d", sT1, sT1, sT0)
S("s_mul_i32 s%d, s%d, 6144", sPL, sT1); S("s_add_u32 s%d, s%d, %d", sPL, sPL, PART)
S("s_lshl_b32 s%d, s%d, 7", sT1, sT1); S("s_add_u32 s%d, s%d, %d", sT1, sT1, FLAGS2)
S("v_min_u32 v%d, 2, v%d", t0, vLANE)
S("v_lshl_add_u32 v%d, v%d, 2, s%d", vF2L, t0, sT1)
S("v_add_u32 v%d, s%d, v%d", t1, sQ, t0)
S("v_add_u32 v%d, 1, v%d", t1, t1)
S("v_and_b32 v%d, 3, v%d", t1, t1)
S("v_lshlrev_b32 v%d, 11, v%d", t1, t1)
S("v_lshl_add_u32 v%d, v%d, 2, v%d", t1, t0, t1)
S("s_lshl_b32 s%d, s%d, 7", sT0, sT0); S("s_add_u32 s%d, s%d, %d", sT0, sT0, FLAGS2)
S("v_add_u32 v%d, s%d, v%d", vF2S, sT0, t1)
for k in range(8):
    S("v_lshlrev_b32 v%d, 16, v%d", XR + 2 * k, XR + 2 * k); S("v_lshlrev_b32 v%d, 16, v%d", XR + 2 * k + 1, XR + 2 * k + 1)
    S("v_mul_f32 v%d, v%d, v%d", XR + 2 * k, XR + 2 * k, DSK); S("v_mul_f32 v%d, v%d, v%d", XR + 2 * k + 1, XR + 2 * k + 1, DSK)
    S("v_cvt_pk_bf16_f32 v%d, v%d, v%d", XR + 2 * k, XR + 2 * k, XR + 2 * k + 1)
    S("v_and_b32 v%d, s%d, v%d", XR + 2 * k + 1, sMASK, XR + 2 * k)
    S("v_lshlrev_b32 v%d, 16, v%d", XR + 2 * k, XR + 2 * k)
    S("v_fma_f32 v%d, v%d, v%d, v%d", ACC2[0] + 2 * k, XR + 2 * k, GREG + 2 * k, ACC2[0] + 2 * k)
    S("v_fma_f32 v%d, v%d, v%d, v%d", ACC2[0] + 2 * k + 1, XR + 2 * k + 1, GREG + 2 * k + 1, ACC2[0] + 2 * k + 1)
nstamp_("gxd")
pend = list(range(6 + NH0, 28))
pend_s = [n for n in range(28, 44) if (n - 28) not in (0, 1, 8, 9)]
assert not hq
vq = [v for v in vorder if v < 8] + [9, 8, 10]
NV = OPT["npre"] + OPT["nscan"]
vitems = []
def fill2(b):
    pass
PFS = OPT["pfs"]
SY = {11: ("v%d" % (4 + NV), 4 * (5 + NV) - 1), OPT["sy2"]: ("v8", 35), 34: ("v10", 99)}
assert NV <= 3
limit = 19
for n in ORDER[6:]:
    pre = None
    if n in SY:
        def pre(n=n):
            g.wait_vm(SY[n][0])
            e("s_barrier")
        limit = SY[n][1]
    step(n, fill2, pre, budget=0, limit=limit)
    nstamp_("s%d" % n)
    if n == OPT["hsn"]:
        S("s_add_u32 s%d, s%d, 32768", sCI, sFL)
        g.wait_vm("hs")
        e("s_mov_b64 exec, 1")
        g.vm("buffer_store_dword v%d, off, %s, s%d sc1" % (vTAG, WSR, sCI), "fl1")
        e("s_mov_b64 exec, -1")
        e("s_nop 1")
    if n == PFS: flag_load(1, "pf1")
    if not vitems and vq and not (vq[0] in (8, 10) and n < 11):
        vitems = unit(vq.pop(0))
    while vitems:
        it = vitems.pop(0); run([it])
        if it[1]: break
    if pend:
        run(hload(pend.pop(0)))
    else:
        if g.wait_vm("pf1"):
            flag_check(lambda tag: flag_load(1, tag), "L_f1")
        if pend_s: run(hload(pend_s.pop(0)))
        if pend_s and len(pend_s) % 2 == 1: run(hload(pend_s.pop(0)))
assert not pend and not pend_s and not vq and not vitems
stamp()
F = Rec(); e = F.e
for tau in range(1, 4):
    a = ACC2[tau]
    for k in range(8):
        S("v_cvt_pk_bf16_f32 v%d, v%d, v%d", a + k, a + 2 * k, a + 2 * k + 1)
    for p in range(2):
        F.vm("buffer_store_dwordx4 %s, v%d, %s, s%d offen offset:%d%s" % (vr(a + 4 * p, 4), vL16, WSR, sPS[tau - 1], 1024 * p, " sc1" if OPT["psc"] else ""), "ps")
e = g.e
dl = [n for n in range(44) if n not in FULL]
AHEAD = 5
def dread(i):
    for s, _ in wread(dl[i], 0, WF + 4 * (i % 8)):
        g.ds(s, "d%d" % i)
for i in range(AHEAD): dread(i)
e("s_nop 1")
def f2_load(tag):
    g.vm("buffer_load_dword v%d, v%d, %s, 0 offen sc1" % (FLD, vF2L, WSR), tag)
for i, n in enumerate(dl):
    g.wait_lg("d%d" % i)
    acc = vr(ACC2[0], 16)
    S("v_mfma_f32_32x32x16_bf16 %s, %s, %s, %s", acc, hfrag(n), vr(WF + 4 * (i % 8), 4), acc)
    if i + AHEAD < len(dl): dread(i + AHEAD)
    F.play(g, OPT["tb"])
    nstamp_("d%d" % i)
    if i == OPT["fwait"]:
        assert not F.items
        g.wait_vm("ps")
        nstamp_("psdone")
        e("s_mov_b64 exec, 7")
        g.vm("buffer_store_dword v%d, v%d, %s, 0 offen sc1" % (vTAG, vF2S, WSR), "fl2")
        e("s_mov_b64 exec, -1")
        e("s_nop 1")
f2_load("pf2")
stamp()
S("v_mov_b32 v%d, 0x3f80", t0)
S("v_mov_b32 v%d, 0x3f800000", t1)
S("s_cmp_eq_u32 s%d, 15", sR); S("s_cselect_b32 s%d, s%d, 1", sT3, sJ); S("s_or_b32 s%d, s%d, s%d", sT3, sT3, sW)
g.wait_vm("pf2")
flag_check(f2_load, "L_f2")
stamp()
S("s_add_u32 s%d, s%d, 4096", sT0, sPL)
for k in range(3):
    for p in range(2):
        o = 2048 * k + 1024 * p
        g.vm("buffer_load_dwordx4 %s, v%d, %s, s%d offen offset:%d sc1" % (vr(ACC2[k + 1] + 8 + 4 * p, 4), vL16, WSR, sPL if o < 4096 else sT0, o & 4095), "pl%d" % k)
for k in range(3):
    g.wait_vm("pl%d" % k)
    nstamp_("pl%d" % k)
    for i in range(8):
        S("v_dot2c_f32_bf16 v%d, v%d, v%d", ACC2[0] + 2 * i, ACC2[k + 1] + 8 + i, t0)
        S("v_dot2c_f32_bf16 v%d, v%d, v%d", ACC2[0] + 2 * i + 1, ACC2[k + 1] + 8 + i, t1)
e("s_nop 2")
for k in range(16):
    if k % 2 == 0: S("s_mov_b32 s%d, %d", sT0, 2048 * k)
    g.vm("buffer_store_dword v%d, v%d, s[%d:%d], s%d offen offset:%d" % (ACC2[0] + k, vOUT, SRD_OUT, SRD_OUT + 3, sT0, 2048 * (k & 1)) + ("", " sc1", " nt")[OPT["osc"]], "out")
stamp()
if OPT["stamps"]:
    e("s_waitcnt vmcnt(0)")
    stamp()
    if OPT["stamps"] == 6:
        e("s_waitcnt lgkmcnt(0)"); e("s_mov_b64 exec, 1")
        for i, p in enumerate(sused):
            S("v_mov_b32 v252, s%d", p); e("buffer_store_dword v252, off, %s, s101 offset:%d" % (WSR, 4 + 4 * i)); e("s_nop 1")
        e("s_mov_b64 exec, -1")
        print("sgpr stamps", len(sused))
    e("s_memrealtime s[82:83]"); e("s_waitcnt lgkmcnt(0)"); e("v_mov_b32 v252, s82"); e("s_mov_b64 exec, 1")
    e("buffer_store_dword v252, off, %s, s101 offset:124" % WSR)
    e("s_mov_b64 exec, -1")
S("s_cmp_lg_u32 s%d, 0", sT3)
e("s_cbranch_scc1 L_end2")
e("s_mov_b64 exec, 1")
e("buffer_store_dword v%d, off, %s, 0 sc1" % (vTAG, WSR))
g.label("L_end2")
if OPT["diag"] > 0:
    S("s_sub_u32 s%d, s%d, s96", sDG, sDG)
    if OPT["diagcyc"]: S("s_lshr_b32 s%d, s%d, 1", sDG, sDG)
    else: S("s_mul_i32 s%d, s%d, 10", sDG, sDG)
    e("s_memrealtime s[96:97]"); e("s_waitcnt lgkmcnt(0)"); S("s_add_u32 s%d, s%d, s96", sDG, sDG)
    g.label("L_spin")
    e("s_memrealtime s[96:97]"); e("s_waitcnt lgkmcnt(0)"); S("s_sub_u32 s%d, s%d, s96", sDG + 1, sDG); S("s_cmp_gt_i32 s%d, 0", sDG + 1); e("s_cbranch_scc1 L_spin")
g.label("L_end")
e("s_endpgm")
e('.section .rodata,"a"')
e(".p2align 6")
e(".amdhsa_kernel %s_kernel" % NAME)
for l in ("next_free_vgpr 512", "next_free_sgpr 102", "accum_offset 256", "group_segment_fixed_size 0", "kernarg_size 128", "user_sgpr_count 2",
          "user_sgpr_kernarg_segment_ptr 1", "system_sgpr_workgroup_id_x 1"):
    g.lines.append("  .amdhsa_" + l)
e(".end_amdhsa_kernel")

if OPT["nocomp"]:
    g.lines = [l for l in g.lines if not (l.startswith("v_mfma") or l.startswith("ds_read_b64_tr") or l.startswith("ds_read_b128"))]
i0 = g.lines.index("%s_kernel:" % NAME) + 1
i1 = g.lines.index("s_endpgm") + 1
body, npad, lastoff = layout(g.lines[i0:i1], 3328, sW, OPT["align"], OPT["page"])
g.lines = g.lines[:i0] + body + g.lines[i1:]
print("pads", npad, "last page bytes", lastoff)
tot = (3328 + 4096 * (npad - 1) + lastoff if npad else lastoff) - 320
stride = (tot // 128) & ~7
g.lines = [l.replace("0x1234", str(stride)).replace("0x4320", str(stride // 2)) for l in g.lines]
errs = check_hazards(g.lines)
for x in errs:
    print("HAZARD", x)
open(sys.argv[1], "w").write(out_hdr + g.text())
print("lines", len(g.lines), "stamps", nstamp[0], "hazards", len(errs))
```

```python
import sys
from asmlib import *

NAME = "gated_mix__ssm_conv_s5__dense_activation_relu__prompt"
OPT = dict(stamps=0, p1map=84, rot1=2, pre=2, fillb=2, diag=-1, diagcyc=0, dstart=0, fwait=22, nh0=8, pfs=17, hsc=1, psc=1, osc=0, lgaps=20, hsn=10, b2=1, wsoff=0, pfpos=4, smask=0, exp=0, lbpos=4, ffpos=0, page=1, align=1, cpf=1, nst0=4, hs0=0, tb=6, nw56=3, pchk=16, sy2=26, nocomp=0, npre=2, nscan=1, nst1=0, skip=1, ntin=0)
for a in sys.argv[2:]:
    k, v = a.split("=")
    assert k in OPT, k
    OPT[k] = int(v)

AGG = 4096
GOFF = AGG + 16 * 8192
FLAGS = GOFF + 2048 * 8
FLAGS2 = FLAGS + 65536
HOFF = 393216
TSTRIDE = 176 * 1024
PART = HOFF + 64 * TSTRIDE
WS_SIZE = PART + 256 * 4 * 6144
OOB = 0x80000000
LX, LW, LB = 0, 65536, 131072
SCR = LB + 2 * 8192
GT = SCR + 4096
TRB = LB + 3 * 8192
SRD_X, SRD_B, SRD_W1, SRD_W2, SRD_CR, SRD_CI, SRD_WS, SRD_OUT = 4, 8, 12, 16, 20, 24, 28, 32
sW, sR, sJ, sQ, sC, sTAG, sMASK = 36, 37, 38, 39, 40, 41, 42
sX, sB, sW1 = 43, 44, 45
sMX, sMB, sMW = 46, 47, 48
sT0, sT1, sT2, sT3 = 49, 50, 51, 52
sXb, sBb, sW1b, sCI = 54, 55, 56, 57
sV0, sV1 = 54, 56
sTP = 58
sCNT = 60
sE = 63
pX, pLRE, pLIM, pBRE, pBIM, pCRE, pCIM, pLDT, pDSK, pBX, pW1, pW2, pGATE, pOUT, pDBG, pWS = range(64, 96, 2)
sST = 96
sDUM = 98
sHF, sFL = 99, 100
sV2b, sKSW, sCb, sHO, sHS, sHq = 53, 3, 61, 62, 82, 83
sDG = 84
vLANE, vTID8 = 1, 0
vX = 2; vC = 6; vW1 = 10; vW2 = 14
rdA = 18; rdB = 22; rdW = 26
cL, cL16, cL16q, cL128q, cL1024, cCO = 30, 32, 34, 36, 38, 40
vQ, vL16, vL16d = 42, 43, 44
vTAG = 45
vPRE = 46
FR = 48
ACC_RE, ACC_IM, ACC_F = 104, 120, 136
T = 200
LOG2E = 0x3fb8aa3b
INV2PI = 0x3e22f983

g = Asm()
e = g.e
nstamp = [0]
sidx = [0]; sused = []; SPAIRS = [70, 72, 74, 76, 78, 84, 86, 88, 90, 92, 94]
ndiag = [1]
import os
STN = os.environ.get("ST", "").split(",")
def nstamp_(name):
    if OPT["stamps"] == 6 and name in STN:
        p = SPAIRS[len(sused)]; sused.append(p)
        g.e("s_memtime s[%d:%d]" % (p, p + 1))
def stamp():
    if OPT["diag"] >= 0:
        if ndiag[0] == OPT["diag"]:
            g.e("%s s[%d:%d]" % ("s_memtime" if OPT["diagcyc"] else "s_memrealtime", sDG, sDG + 1)); g.e("s_waitcnt lgkmcnt(0)"); g.lgq = []
        if ndiag[0] == OPT["dstart"]:
            g.e("%s s[96:97]" % ("s_memtime" if OPT["diagcyc"] else "s_memrealtime")); g.e("s_waitcnt lgkmcnt(0)"); g.lgq = []
        ndiag[0] += 1
    if OPT["stamps"] == 6:
        sidx[0] += 1
        if (OPT["smask"] >> sidx[0]) & 1:
            p = SPAIRS[len(sused)]; sused.append(p)
            g.e("s_memtime s[%d:%d]" % (p, p + 1))
        return
    if not OPT["stamps"] or OPT["stamps"] == 5:
        return
    i = nstamp[0]; nstamp[0] += 1
    assert i < 30
    g.e("s_memtime s[%d:%d]" % (sST, sST + 1))
    g.e("s_waitcnt lgkmcnt(0)")
    g.lgq = []
    g.e("v_accvgpr_write_b32 a255, s%d" % sST)
    g.e("s_mov_b64 exec, 1")
    g.vm("buffer_store_dword a255, off, s[%d:%d], s101 offset:%d" % (SRD_WS, SRD_WS + 3, 4 * i), "stamp")
    g.e("s_mov_b64 exec, -1")

def cfma(dr, di, ar_, ai, br, bi, cr, ci):
    e("v_fma_f32 v%d, v%d, v%d, v%d" % (dr, ar_, br, cr))
    e("v_fma_f32 v%d, v%d, v%d, v%d" % (di, ar_, bi, ci))
    e("v_fma_f32 v%d, -v%d, v%d, v%d" % (dr, ai, bi, dr))
    e("v_fma_f32 v%d, v%d, v%d, v%d" % (di, ai, br, di))
def cmul(dr, di, ar_, ai, br, bi):
    e("v_mul_f32 v%d, v%d, v%d" % (dr, ar_, br))
    e("v_mul_f32 v%d, v%d, v%d" % (di, ar_, bi))
    e("v_fma_f32 v%d, -v%d, v%d, v%d" % (dr, ai, bi, dr))
    e("v_fma_f32 v%d, v%d, v%d, v%d" % (di, ai, br, di))
def srd(base, p):
    e("s_mov_b32 s%d, s%d" % (base, p))
    e("s_mov_b32 s%d, s%d" % (base + 1, p + 1))
def S(fmt, *a):
    e(fmt % a)
def run(L):
    for s, tag in L:
        if tag is None: g.e(s)
        elif tag.startswith("ds:"): g.ds(s, tag[3:])
        else: g.vm(s, tag)
WSR = "s[%d:%d]" % (SRD_WS, SRD_WS + 3)
HSC = ("", " sc1", " sc1 nt")[OPT["hsc"]]

hdr = open("cdna_kernels/%s.s.ref" % NAME).read().split("; Override launch")[0]
out_hdr = hdr + "; @launch grid=(256,1,1) block=(256,1,1) lds=163840\n"
e('.amdgcn_target "amdgcn-amd-amdhsa--gfx950"')
e(".text")
e(".globl %s_kernel" % NAME)
e(".p2align 8")
e(".type %s_kernel,@function" % NAME)
g.label("%s_kernel" % NAME)
e("s_cmp_ge_u32 s2, 256")
e("s_cbranch_scc1 L_end")
if OPT["stamps"]:
    e("s_memrealtime s[82:83]"); e("s_memtime s[96:97]"); e("s_waitcnt lgkmcnt(0)"); e("v_mov_b32 v252, s82"); e("v_mov_b32 v253, s96")
if OPT["diag"] >= 0:
    e("%s s[96:97]" % ("s_memtime" if OPT["diagcyc"] else "s_memrealtime"))
e("s_load_dwordx16 s[64:79], s[0:1], 0")
e("s_load_dwordx16 s[80:95], s[0:1], 64")
e("v_lshrrev_b32 v2, 6, v0")
S("v_and_b32 v%d, 63, v0", vLANE)
S("v_readfirstlane_b32 s%d, v2", sW)
t0, t1, t2, t3 = T, T + 1, T + 2, T + 3
S("v_lshrrev_b32 v%d, 3, v%d", t0, vLANE)
S("v_and_b32 v%d, 7, v%d", t1, vLANE)
S("v_lshrrev_b32 v%d, 1, v%d", t2, t0)
S("v_xor_b32 v%d, v%d, v%d", t3, t1, t2)
S("v_lshlrev_b32 v%d, 4, v%d", t3, t3)
S("v_lshl_add_u32 v%d, v%d, 10, v%d", vC, t0, t3)
S("v_lshrrev_b32 v%d, 2, v%d", t1, t0)
S("v_and_b32 v%d, 3, v%d", t2, t0)
S("v_lshl_add_u32 v%d, v%d, 4, v%d", t1, t1, t2)
S("v_lshl_add_u32 v%d, v%d, 10, v%d", vX, t1, t3)
S("v_xor_b32 v%d, 64, v%d", vX + 1, vX)
S("v_add_u32 v%d, 3072, v%d", vX + 1, vX + 1)
S("v_add_u32 v%d, 6144, v%d", vX + 2, vX)
S("v_add_u32 v%d, 6144, v%d", vX + 3, vX + 1)
S("s_bfe_u32 s%d, s2, 0x30003", sT2)
S("s_and_b32 s%d, s2, 1", sR); S("s_lshl_b32 s%d, s%d, 3", sR, sR); S("s_add_u32 s%d, s%d, s%d", sR, sR, sT2)
S("s_lshr_b32 s%d, s2, 6", sC)
S("s_bfe_u32 s%d, s2, 0x20001", sQ)
S("s_mov_b32 s%d, 0x%x", SRD_X + 2, 2048 * 1024); S("s_mov_b32 s%d, 0x20000", SRD_X + 3)
if OPT["rot1"] == 2:
    S("s_add_u32 s%d, s%d, s%d", sCI, sR, sC); S("s_and_b32 s%d, s%d, 1", sCI, sCI); S("s_lshl_b32 s%d, s%d, 2", sCI, sCI)
elif OPT["rot1"] == 4:
    S("s_add_u32 s%d, s%d, s%d", sCI, sR, sC); S("s_and_b32 s%d, s%d, 3", sCI, sCI); S("s_lshl_b32 s%d, s%d, 1", sCI, sCI)
else:
    S("s_mov_b32 s%d, 0", sCI)
S("s_lshl_b32 s%d, s%d, 17", sXb, sR); S("s_lshl_b32 s%d, s%d, 15", sT0, sW); S("s_add_u32 s%d, s%d, s%d", sXb, sXb, sT0)
S("s_lshl_b32 s%d, s%d, 12", sMX, sW)
S("s_lshl_b32 s%d, s%d, 7", sB, sCI)
S("s_mov_b32 m0, s%d", sMX)
S("s_add_u32 s%d, s%d, s%d", sX, sXb, sB)
e("s_waitcnt lgkmcnt(0)")
srd(SRD_X, pX)
for n in range(4):
    g.vm("buffer_load_dwordx4 v%d, s[%d:%d], s%d offen offset:%d lds" % (vX + n, SRD_X, SRD_X + 3, sX, 1024 * n), "ch0")
if OPT["cpf"]:
    S("s_getpc_b64 s[%d:%d]", sTP, sTP + 1)
    S("s_lshr_b32 s%d, s2, 3", sT0); S("s_lshl_b32 s%d, s%d, 2", sT0, sT0); S("s_add_u32 s%d, s%d, s%d", sT0, sT0, sW)
    S("s_mul_i32 s%d, s%d, 0x1234", sT0, sT0)
    S("s_add_u32 s%d, s%d, s%d", sTP, sTP, sT0); S("s_addc_u32 s%d, s%d, 0", sTP + 1, sTP + 1)
    S("s_load_dword s%d, s[%d:%d], 0", sCNT, sTP, sTP + 1)
    S("s_load_dword s%d, s[%d:%d], 0x4320", sCb, sTP, sTP + 1)
if OPT["wsoff"]:
    S("s_add_u32 s%d, s%d, 0x%x", pWS, pWS, OPT["wsoff"] << 20); S("s_addc_u32 s%d, s%d, 0", pWS + 1, pWS + 1)
S("s_load_dword s%d, s[%d:%d], 0", sE, pWS, pWS + 1)
S("s_lshl_b32 s%d, s%d, 2", sJ, sQ); S("s_add_u32 s%d, s%d, s%d", sJ, sJ, sC)
for b_, sz in ((SRD_B, 512 * 1024), (SRD_W1, 512 * 3584)):
    S("s_mov_b32 s%d, 0x%x", b_ + 2, sz)
    S("s_mov_b32 s%d, 0x20000", b_ + 3)
S("v_xor_b32 v%d, 64, v%d", vC + 1, vC)
S("v_add_u32 v%d, 7168, v%d", vC + 1, vC + 1)
S("s_lshl_b32 s%d, s%d, 15", sBb, sJ); S("s_and_b32 s%d, s%d, 1", sT0, sW); S("s_lshl_b32 s%d, s%d, 14", sT0, sT0); S("s_add_u32 s%d, s%d, s%d", sBb, sBb, sT0)
S("s_lshl_b32 s%d, s%d, 11", sMB, sW); S("s_add_u32 s%d, s%d, %d", sMB, sMB, LB)
S("s_cmp_ge_u32 s%d, 2", sW)
S("s_cselect_b32 s%d, s%d, s%d", SRD_B, pBIM, pBRE)
S("s_cselect_b32 s%d, s%d, s%d", SRD_B + 1, pBIM + 1, pBRE + 1)
S("s_mov_b32 m0, s%d", sMB)
S("s_add_u32 s%d, s%d, s%d", sB, sBb, sB)
for n in range(2):
    g.vm("buffer_load_dwordx4 v%d, s[%d:%d], s%d offen offset:%d lds" % (vC + n, SRD_B, SRD_B + 3, sB, 1024 * n), "ch0")
S("v_lshrrev_b32 v%d, 4, v%d", t0, vLANE)
S("v_and_b32 v%d, 15, v%d", t1, vLANE)
S("v_lshlrev_b32 v%d, 2, v%d", t2, t0)
S("v_xor_b32 v%d, v%d, v%d", vW2, t1, t2)
S("v_lshrrev_b32 v%d, 2, v%d", t2, vW2)
S("v_cmp_eq_u32 vcc, 3, v%d", t2)
S("v_mul_u32_u24 v%d, 3584, v%d", t0, t0)
S("v_lshl_add_u32 v%d, v%d, 4, v%d", vW1, vW2, t0)
S("s_lshr_b32 s%d, s%d, 1", sDUM, sC)
S("s_cselect_b64 s[%d:%d], vcc, 0", sTP, sTP + 1)
S("v_mov_b32 v%d, 0x%x", t3, OOB)
S("v_lshlrev_b32 v%d, 4, v%d", vL16, vLANE)
S("v_cndmask_b32 v%d, v%d, v%d, s[%d:%d]", vW1, vW1, t3, sTP, sTP + 1)
for n in range(1, 4):
    S("v_add_u32 v%d, %d, v%d", vW1 + n, 13312 * n, vW1)
S("s_lshl_b32 s%d, s%d, 3", sKSW, sC); S("s_min_u32 s%d, s%d, 22", sKSW, sKSW)
S("s_mul_i32 s%d, s%d, 896", sT0, sQ); S("s_lshl_b32 s%d, s%d, 5", sT1, sKSW); S("s_add_u32 s%d, s%d, s%d", sT0, sT0, sT1)
S("s_mul_i32 s%d, s%d, %d", sW1b, sW, 16 * 3584); S("s_add_u32 s%d, s%d, s%d", sW1b, sW1b, sT0)
S("s_add_u32 s%d, s%d, %d", sMW, sMX, LW)
srd(SRD_W1, pW1)
S("s_mul_i32 s%d, s%d, %d", sW1, sCI, 64 * 3584)
S("s_mov_b32 m0, s%d", sMW)
S("s_add_u32 s%d, s%d, s%d", sW1, sW1, sW1b)
for n in range(4):
    g.vm("buffer_load_dwordx4 v%d, s[%d:%d], s%d offen offset:%d lds" % (vW1 + n, SRD_W1, SRD_W1 + 3, sW1, 1024 * n), "ch0")
S("s_add_u32 s%d, s%d, 1", sCI, sCI)
S("v_and_b32 v%d, 31, v%d", t0, vLANE)
S("v_lshlrev_b32 v%d, 1, v%d", t0, t0)
S("s_lshl_b32 s%d, s%d, 6", sT0, sJ)
S("v_add_u32 v%d, s%d, v%d", t0, sT0, t0)
S("s_lshl_b32 s%d, s%d, 11", sT1, sJ); S("s_add_u32 s%d, s%d, s%d", sT1, sT1, sXb)
S("v_add_u32 v%d, s%d, v%d", t1, sT1, vL16)

def dma_chunk(c):
    k = c & 3
    L = []
    def I(s): L.append((s, None))
    def D(s): L.append((s, "ch%d" % c))
    I("s_lshl_b32 s%d, s%d, 7" % (sB, sCI))
    I("s_add_u32 m0, s%d, %d" % (sMX, k * 16384))
    I("s_add_u32 s%d, s%d, s%d" % (sX, sXb, sB))
    for n in range(4): D("buffer_load_dwordx4 v%d, s[%d:%d], s%d offen offset:%d lds" % (vX + n, SRD_X, SRD_X + 3, sX, 1024 * n))
    I("s_add_u32 m0, s%d, %d" % (sMB, k * 8192))
    I("s_add_u32 s%d, s%d, s%d" % (sB, sBb, sB))
    for n in range(2): D("buffer_load_dwordx4 v%d, s[%d:%d], s%d offen offset:%d lds" % (vC + n, SRD_B, SRD_B + 3, sB, 1024 * n))
    I("s_mul_i32 s%d, s%d, %d" % (sW1, sCI, 64 * 3584))
    I("s_add_u32 m0, s%d, %d" % (sMW, k * 16384))
    I("s_add_u32 s%d, s%d, s%d" % (sW1, sW1, sW1b))
    for n in range(4): D("buffer_load_dwordx4 v%d, s[%d:%d], s%d offen offset:%d lds" % (vW1 + n, SRD_W1, SRD_W1 + 3, sW1, 1024 * n))
    I("s_add_u32 s%d, s%d, 1" % (sCI, sCI))
    I("s_and_b32 s%d, s%d, 7" % (sCI, sCI))
    return L
PL, PI, PD = T + 4, T + 5, T + 6
GX0, GX1, GW = T + 8, T + 12, T + 16
g.vm("global_load_dwordx4 %s, v%d, s[%d:%d]" % (vr(GW, 4), vL16, pGATE, pGATE + 1), "small2")
g.vm("global_load_dwordx4 %s, v%d, s[%d:%d]" % (vr(GX0, 4), t1, pX, pX + 1), "small2")
g.vm("global_load_dwordx4 %s, v%d, s[%d:%d] offset:1024" % (vr(GX1, 4), t1, pX, pX + 1), "small2")
g.vm("global_load_ushort v%d, v%d, s[%d:%d]" % (PD, t0, pLDT, pLDT + 1), "small")
g.vm("global_load_ushort v%d, v%d, s[%d:%d]" % (PL, t0, pLRE, pLRE + 1), "small")
g.vm("global_load_ushort v%d, v%d, s[%d:%d]" % (PI, t0, pLIM, pLIM + 1), "small")
for b, sz in ((SRD_W2, 1792 * 1024), (SRD_CR, 512 * 1024), (SRD_CI, 512 * 1024), (SRD_WS, WS_SIZE + (256 * 4 * 128 if OPT["stamps"] else 0)), (SRD_OUT, 2048 * 2048)):
    S("s_mov_b32 s%d, 0x%x", b + 2, sz)
    S("s_mov_b32 s%d, 0x20000", b + 3)
S("s_mov_b32 s%d, 0xffff0000", sMASK)
srd(SRD_W2, pW2); srd(SRD_CR, pCRE); srd(SRD_CI, pCIM); srd(SRD_WS, pWS); srd(SRD_OUT, pOUT)
if OPT["stamps"]:
    e("s_lshl_b32 s101, s2, 2"); S("s_add_u32 s101, s101, s%d", sW); e("s_lshl_b32 s101, s101, 7"); S("s_add_u32 s101, s101, %d", WS_SIZE)
    e("s_mov_b64 exec, 1")
    g.vm("buffer_store_dword v253, off, %s, s101 offset:0" % WSR, "stamp")
    g.vm("buffer_store_dword v252, off, %s, s101 offset:120" % WSR, "stamp")
    e("s_mov_b64 exec, -1")
    nstamp[0] = 1
stamp()
S("v_and_b32 v%d, 31, v%d", t0, vLANE)
S("v_lshrrev_b32 v%d, 5, v%d", t1, vLANE)
S("v_bfe_u32 v%d, v%d, 1, 3", t2, t0)
S("v_xor_b32 v%d, v%d, v%d", t2, t2, t1)
S("v_lshlrev_b32 v%d, 4, v%d", t2, t2)
S("v_lshl_add_u32 v%d, v%d, 7, v%d", t2, t0, t2)
S("v_add_u32 v%d, s%d, v%d", rdA, sMX, t2)
S("v_add_u32 v%d, 0x%x, v%d", rdB, LB, t2)
for s in range(1, 4):
    S("v_xor_b32 v%d, %d, v%d", rdA + s, 32 * s, rdA)
    S("v_xor_b32 v%d, %d, v%d", rdB + s, 32 * s, rdB)
S("s_lshl_b32 s%d, s%d, 1", sT0, sW)
S("v_add_u32 v%d, s%d, v%d", vQ, sT0, t1)
S("v_bfe_u32 v%d, v%d, 2, 2", t0, vLANE)
S("v_lshl_add_u32 v%d, v%d, 3, v%d", t2, t1, t0)
S("v_lshlrev_b32 v%d, 8, v%d", t2, t2)
S("v_lshl_add_u32 v%d, v%d, 6, v%d", t2, t0, t2)
S("v_bfe_u32 v%d, v%d, 4, 1", t3, vLANE)
S("v_lshl_add_u32 v%d, v%d, 5, v%d", vPRE, t3, t2)
S("v_and_b32 v%d, 1, v%d", t3, vLANE)
S("v_lshl_add_u32 v%d, v%d, 4, v%d", t2, t3, vPRE)
S("v_bfe_u32 v%d, v%d, 1, 1", t3, vLANE)
S("v_lshl_add_u32 v%d, v%d, 3, v%d", t2, t3, t2)
S("v_add_u32 v%d, 0x%x, v%d", rdW, LW, t2)
for s in range(1, 4):
    S("v_xor_b32 v%d, %d, v%d", rdW + s, 64 * s, rdW)
if OPT["page"]: e("TOUCH")
run(dma_chunk(1))
e("s_waitcnt lgkmcnt(0)")
S("s_mul_i32 s%d, s%d, 0x9e3779b1", sTAG, sE)
S("s_add_u32 s%d, s%d, 0x7f4a7c15", sTAG, sTAG)
S("s_cmp_lg_u32 s%d, 0", sDUM); e("s_cselect_b64 vcc, -1, 0")

F = Rec()
e = F.e
S("v_lshlrev_b32 v%d, 3, v0", vTID8)
S("v_add_u32 v%d, 0x%x, v%d", vTID8, SCR, vTID8)
S("v_mov_b32 v%d, 0x%x", t3, OOB)
S("v_mov_b32 v%d, s%d", vTAG, sTAG)
S("v_cndmask_b32 v%d, v%d, v%d, vcc", vL16d, vL16, t3)
S("v_add_u32 v%d, 14336, v%d", vC + 2, vC); S("v_add_u32 v%d, 14336, v%d", vC + 3, vC + 1)
S("s_lshl_b32 s%d, s%d, 2", sT0, sQ)
S("v_add_u32 v%d, s%d, v%d", vW2, sT0, vW2)
S("v_and_b32 v%d, 15, v%d", vW2, vW2)
S("v_lshlrev_b32 v%d, 4, v%d", vW2, vW2)
S("v_lshrrev_b32 v%d, 4, v%d", t0, vLANE)
S("v_lshl_add_u32 v%d, v%d, 10, v%d", vW2, t0, vW2)
for n in range(1, 4):
    S("v_add_u32 v%d, %d, v%d", vW2 + n, 3072 * n, vW2)
S("s_mul_i32 s%d, s%d, %d", sV2b, sQ, 448 * 1024); S("s_lshl_b32 s%d, s%d, 8", sT0, sC); S("s_add_u32 s%d, s%d, s%d", sV2b, sV2b, sT0)
S("s_lshr_b32 s%d, s%d, 1", sT0, sC)
S("s_add_u32 s%d, s%d, s%d", sT1, sW, sQ); S("s_and_b32 s%d, s%d, 3", sT1, sT1); S("s_lshl_b32 s%d, s%d, 15", sT1, sT1)
S("s_lshl_b32 s%d, s%d, 17", sCb, sC); S("s_add_u32 s%d, s%d, s%d", sCb, sCb, sT1)
S("s_lshl_b32 s%d, s%d, 8", sT1, sQ); S("s_add_u32 s%d, s%d, s%d", sCb, sCb, sT1)
S("s_lshl_b32 s%d, s%d, 7", sT0, sT0); S("s_add_u32 s%d, s%d, s%d", sCb, sCb, sT0)
nearly = len(F.items)
F.wait_vm("small2")
GA0, GA1 = T + 22, T + 24
gl, gh, x0, x1, y0, y1 = T + 26, T + 27, T + 28, T + 29, T + 30, T + 31
for k in range(4):
    S("v_lshlrev_b32 v%d, 16, v%d", gl, GW + k); S("v_and_b32 v%d, s%d, v%d", gh, sMASK, GW + k)
    S("v_lshlrev_b32 v%d, 16, v%d", x0, GX0 + k); S("v_and_b32 v%d, s%d, v%d", x1, sMASK, GX0 + k)
    S("v_lshlrev_b32 v%d, 16, v%d", y0, GX1 + k); S("v_and_b32 v%d, s%d, v%d", y1, sMASK, GX1 + k)
    S("v_mul_f32 v%d, v%d, v%d", x0, x0, gl); S("v_mul_f32 v%d, v%d, v%d", x1, x1, gh)
    S("v_mul_f32 v%d, v%d, v%d", y0, y0, gl); S("v_mul_f32 v%d, v%d, v%d", y1, y1, gh)
    S("v_cvt_pk_bf16_f32 v%d, v%d, v%d", x0, x0, x1); S("v_cvt_pk_bf16_f32 v%d, v%d, v%d", y0, y0, y1)
    S("v_and_b32 v%d, s%d, v%d", x1, sMASK, x0); S("v_lshlrev_b32 v%d, 16, v%d", x0, x0)
    S("v_and_b32 v%d, s%d, v%d", y1, sMASK, y0); S("v_lshlrev_b32 v%d, 16, v%d", y0, y0)
    if k == 0:
        S("v_add_f32 v%d, v%d, v%d", GA0, x0, x1); S("v_add_f32 v%d, v%d, v%d", GA1, y0, y1)
    else:
        S("v_add_f32 v%d, v%d, v%d", GA0, GA0, x0); S("v_add_f32 v%d, v%d, v%d", GA1, GA1, y0)
        S("v_add_f32 v%d, v%d, v%d", GA0, GA0, x1); S("v_add_f32 v%d, v%d, v%d", GA1, GA1, y1)
e("s_nop 0")
for d in ("row_shr:1 row_mask:0xf", "row_shr:2 row_mask:0xf", "row_shr:4 row_mask:0xf", "row_shr:8 row_mask:0xf", "row_bcast:15 row_mask:0xa", "row_bcast:31 row_mask:0xc"):
    S("v_add_f32_dpp v%d, v%d, v%d %s bank_mask:0xf", GA0, GA0, GA0, d)
    S("v_add_f32_dpp v%d, v%d, v%d %s bank_mask:0xf", GA1, GA1, GA1, d)
    e("s_nop 0")
S("v_cvt_pk_bf16_f32 v%d, v%d, v%d", x0, GA0, GA1)
S("v_and_b32 v%d, s%d, v%d", GA1, sMASK, x0); S("v_lshlrev_b32 v%d, 16, v%d", GA0, x0)
S("v_mul_f32 v%d, 0x%x, v%d", GA0, LOG2E | 0x80000000, GA0); S("v_mul_f32 v%d, 0x%x, v%d", GA1, LOG2E | 0x80000000, GA1)
S("v_exp_f32 v%d, v%d", GA0, GA0); S("v_exp_f32 v%d, v%d", GA1, GA1)
e("s_nop 0")
S("v_add_f32 v%d, 1.0, v%d", GA0, GA0); S("v_add_f32 v%d, 1.0, v%d", GA1, GA1)
S("v_rcp_f32 v%d, v%d", GA0, GA0); S("v_rcp_f32 v%d, v%d", GA1, GA1)
S("v_cmp_eq_u32 s[%d:%d], 63, v%d", sTP, sTP + 1, vLANE)
S("v_cvt_pk_bf16_f32 v%d, v%d, v%d", x0, GA0, GA1)
S("v_mov_b32 v%d, s%d", GA0 + 1, sTAG); S("v_mov_b32 v%d, s%d", GA1 + 1, sTAG)
S("v_and_b32 v%d, s%d, v%d", GA1, sMASK, x0); S("v_lshlrev_b32 v%d, 16, v%d", GA0, x0)
S("s_lshl_b32 s%d, s%d, 10", sT0, sR); S("s_lshl_b32 s%d, s%d, 8", sT1, sW); S("s_add_u32 s%d, s%d, s%d", sT0, sT0, sT1)
S("s_add_u32 s%d, s%d, %d", sT0, sT0, GOFF)
S("s_lshl_b32 s%d, s%d, 4", sT1, sJ); S("s_add_u32 s%d, s%d, s%d", sT1, sT1, sT0)
S("v_mov_b32 v%d, s%d", y0, sT1)
S("v_cndmask_b32 v%d, v%d, v%d, s[%d:%d]", y0, t3, y0, sTP, sTP + 1)
F.vm("buffer_store_dwordx4 %s, v%d, %s, 0 offen sc1" % (vr(GA0, 4), y0, WSR), "gst")
vTJ, vGA = T + 32, T + 33
S("v_bfe_u32 v%d, v%d, 2, 1", t0, vLANE)
S("v_bfe_u32 v%d, v%d, 3, 2", t1, vLANE)
S("v_and_b32 v%d, 3, v%d", t2, vLANE)
S("v_lshl_add_u32 v%d, v%d, 2, v%d", t1, t1, t2)
S("v_lshl_add_u32 v%d, v%d, 4, v%d", vTJ, t0, t1)
S("v_lshl_add_u32 v%d, v%d, 3, s%d", vGA, vTJ, sT0)
vXD, vDS = 228, 230
sXT = 69
S("s_lshl_b32 s%d, s%d, 8", sT0, sC); S("s_lshl_b32 s%d, s%d, 6", sT1, sQ); S("s_add_u32 s%d, s%d, s%d", sT0, sT0, sT1)
S("v_lshrrev_b32 v%d, 2, v%d", t0, vLANE)
S("v_and_b32 v%d, 3, v%d", t2, vLANE)
S("v_lshlrev_b32 v%d, 4, v%d", t2, t2)
S("v_lshl_add_u32 v%d, v%d, 10, v%d", vXD, t0, t2)
S("v_add_u32 v%d, 15360, v%d", vXD + 1, vXD)
S("s_lshl_b32 s%d, s%d, 17", sT1, sR); S("s_add_u32 s%d, s%d, s%d", sXT, sT0, sT1); S("s_lshl_b32 s%d, s%d, 15", sT1, sW); S("s_add_u32 s%d, s%d, s%d", sXT, sXT, sT1)
S("v_and_b32 v%d, 31, v%d", t2, vLANE)
S("v_lshlrev_b32 v%d, 1, v%d", t2, t2)
S("v_add_u32 v%d, s%d, v%d", vDS, sT0, t2)
nxaddr = len(F.items)
F.wait_vm("small")
a_, b_ = T + 20, T + 21
S("v_lshlrev_b32 v%d, 16, v%d", PD, PD)
S("v_mul_f32 v%d, 0x%x, v%d", PD, LOG2E, PD)
S("v_exp_f32 v%d, v%d", PD, PD)
S("v_lshlrev_b32 v%d, 16, v%d", PL, PL)
S("v_lshlrev_b32 v%d, 16, v%d", PI, PI)
S("v_cvt_pk_bf16_f32 v%d, v%d, v%d", PD, PD, PD)
S("v_lshlrev_b32 v%d, 16, v%d", PD, PD)
S("v_mul_f32 v%d, v%d, v%d", a_, PD, PL)
S("v_mul_f32 v%d, v%d, v%d", b_, PD, PI)
S("v_mul_f32 v%d, 0x%x, v%d", a_, LOG2E, a_)
S("v_mul_f32 v%d, 0x%x, v%d", b_, INV2PI, b_)
S("v_cvt_f32_u32 v%d, v%d", t3, vQ)
def cpow(d, mul):
    if mul is None:
        S("v_exp_f32 v%d, v%d", t0, a_); S("v_fract_f32 v%d, v%d", t1, b_)
    else:
        S("v_mul_f32 v%d, %s, v%d", t0, mul, a_); S("v_mul_f32 v%d, %s, v%d", t1, mul, b_)
        S("v_exp_f32 v%d, v%d", t0, t0); S("v_fract_f32 v%d, v%d", t1, t1)
    S("v_cos_f32 v%d, v%d", d, t1); S("v_sin_f32 v%d, v%d", d + 1, t1)
    e("s_nop 0")
    S("v_mul_f32 v%d, v%d, v%d", d, d, t0); S("v_mul_f32 v%d, v%d, v%d", d + 1, d + 1, t0)
cpow(cL, None)
cpow(cL16, "0x41800000")
cpow(cL1024, "0x44800000")
S("v_mul_f32 v%d, 0x41800000, v%d", t2, t3); cpow(cL16q, "v%d" % t2)
S("v_mul_f32 v%d, 0x43000000, v%d", t2, t3); cpow(cL128q, "v%d" % t2)
S("v_mul_f32 v%d, v%d, v%d", t0, PL, PL)
S("v_fma_f32 v%d, v%d, v%d, v%d", t0, PI, PI, t0)
S("v_rcp_f32 v%d, v%d", t0, t0)
S("v_add_f32 v%d, -1.0, v%d", t1, cL)
S("v_mul_f32 v%d, v%d, v%d", cCO, t1, PL)
S("v_fma_f32 v%d, v%d, v%d, v%d", cCO, cL + 1, PI, cCO)
S("v_mul_f32 v%d, v%d, v%d", cCO + 1, cL + 1, PL)
S("v_fma_f32 v%d, -v%d, v%d, v%d", cCO + 1, t1, PI, cCO + 1)
S("v_add_f32 v%d, v%d, v%d", t0, t0, t0)
S("v_mul_f32 v%d, v%d, v%d", cCO, cCO, t0)
S("v_mul_f32 v%d, v%d, v%d", cCO + 1, cCO + 1, t0)
S("s_lshl_b32 s%d, s%d, 2", sT0, sR); S("s_add_u32 s%d, s%d, s%d", sT0, sT0, sW)
S("s_mul_i32 s%d, s%d, %d", sHF, sT0, TSTRIDE); S("s_add_u32 s%d, s%d, %d", sHF, sHF, HOFF)
S("s_lshl_b32 s%d, s%d, 9", sFL, sT0); S("s_lshl_b32 s%d, s%d, 7", sT1, sQ); S("s_add_u32 s%d, s%d, s%d", sFL, sFL, sT1); S("s_add_u32 s%d, s%d, %d", sFL, sFL, FLAGS)
S("s_mul_i32 s%d, s%d, %d", sHq, sQ, 28 * 1024); S("s_add_u32 s%d, s%d, s%d", sHq, sHq, sHF)
S("s_lshl_b32 s%d, s%d, 10", sHO, sKSW)
S("s_lshl_b32 s%d, s%d, 14", sHS, sQ); S("s_add_u32 s%d, s%d, s%d", sHS, sHS, sHF); S("s_add_u32 s%d, s%d, %d", sHS, sHS, 112 * 1024)
nlate = len(F.items)
rdVW, rdVX, rdCX, rdCB = 10, 2, 18, 22
vSEG, vPUB, vLB0, vLB1 = 204, 205, 206, 207
vGW, vGR = 238, 239
vXD, vDS = 228, 230
sHFa, sHFb = 64, 65
S("v_and_b32 v%d, 3, v%d", t2, vLANE)
S("v_lshl_add_u32 v%d, v%d, 3, v%d", rdVX, t2, vPRE)
S("v_add_u32 v%d, 0x%x, v%d", rdVW, LW, rdVX)
for s_ in range(1, 4):
    S("v_xor_b32 v%d, %d, v%d", rdVX + s_, 64 * s_, rdVX)
    S("v_xor_b32 v%d, %d, v%d", rdVW + s_, 64 * s_, rdVW)
S("v_and_b32 v%d, 31, v%d", t1, vLANE)
S("v_lshlrev_b32 v%d, 3, v%d", t1, t1)
S("v_add_u32 v%d, 0x%x, v%d", vSEG, SCR, t1)
S("v_lshlrev_b32 v%d, 1, v%d", t0, t1)
S("s_lshl_b32 s%d, s%d, 9", sT0, sJ); S("s_lshl_b32 s%d, s%d, 13", sT1, sR); S("s_add_u32 s%d, s%d, s%d", sT0, sT0, sT1); S("s_add_u32 s%d, s%d, %d", sT0, sT0, AGG)
S("v_add_u32 v%d, s%d, v%d", t0, sT0, t0)
S("v_mov_b32 v%d, 0x%x", t3, OOB)
S("v_cmp_eq_u32 s[%d:%d], 7, v%d", sTP, sTP + 1, vQ)
S("v_add_u32 v%d, 1, v%d", t2, vQ)
S("v_cmp_ge_u32 s[%d:%d], s%d, v%d", sV0, sV0 + 1, sR, t2)
S("v_cndmask_b32 v%d, v%d, v%d, s[%d:%d]", vPUB, t3, t0, sTP, sTP + 1)
S("v_lshlrev_b32 v%d, 13, v%d", t1, t2)
S("v_sub_u32 v%d, v%d, v%d", t1, t0, t1)
S("v_add_u32 v%d, 8, v%d", t2, t2)
S("v_cmp_ge_u32 s[%d:%d], s%d, v%d", sV1, sV1 + 1, sR, t2)
S("v_cndmask_b32 v%d, v%d, v%d, s[%d:%d]", vLB0, t3, t1, sV0, sV0 + 1)
S("v_subrev_u32 v%d, 0x10000, v%d", t1, t1)
S("v_mov_b32 v%d, 0", vPRE); S("v_mov_b32 v%d, 0", vPRE + 1)
S("v_cndmask_b32 v%d, v%d, v%d, s[%d:%d]", vLB1, t3, t1, sV1, sV1 + 1)
S("s_lshl_b32 s%d, s%d, 7", sT0, sW); S("s_add_u32 s%d, s%d, %d", sT0, sT0, GT)
S("v_lshl_add_u32 v%d, v%d, 2, s%d", vGW, vTJ, sT0)
S("v_lshrrev_b32 v%d, 5, v%d", t1, vLANE)
S("v_lshl_add_u32 v%d, v%d, 6, s%d", vGR, t1, sT0)
S("s_add_u32 s%d, s%d, s%d", sHFa, sHq, sHO); S("s_add_u32 s%d, s%d, 4096", sHFb, sHFa)
S("s_mov_b32 s%d, 0", sCNT)
e = g.e

def frag(setn, idx):
    return FR + 28 * setn + 4 * idx
def reads(n):
    c, s = n >> 2, n & 3
    k = c & 3; st = n & 1
    L = []
    L.append(("ds_read_b128 %s, v%d offset:%d" % (vr(frag(st, 0), 4), rdA + s, k * 16384), "ds:r%d_0" % n))
    L.append(("ds_read_b128 %s, v%d offset:%d" % (vr(frag(st, 1), 4), rdB + s, k * 8192), "ds:r%d_1" % n))
    L.append(("ds_read_b128 %s, v%d offset:%d" % (vr(frag(st, 2), 4), rdB + s, k * 8192 + 4096), "ds:r%d_2" % n))
    for t in range(4):
        for e2 in range(2):
            L.append(("ds_read_b64_tr_b16 %s, v%d offset:%d" % (vr(frag(st, 3 + t) + 2 * e2, 2), rdW + t, k * 16384 + s * 4096 + 1024 * e2), "ds:r%d_%d" % (n, 3 + t)))
    return L
def mfma1(n, m):
    st = n & 1
    A = vr(frag(st, 0), 4)
    if m < 2:
        acc = (ACC_RE, ACC_IM)[m]
        S("v_mfma_f32_32x32x16_bf16 %s, %s, %s, %s", vr(acc, 16), A, vr(frag(st, 1 + m), 4), "0" if n == 0 else vr(acc, 16))
    else:
        acc = ACC_F + 16 * (m - 2)
        S("v_mfma_f32_32x32x16_bf16 %s, %s, %s, %s", vr(acc, 16), vr(frag(st, 1 + m), 4), A, "0" if n == 0 else vr(acc, 16))

USLOT = {0: ("X", 0), 1: ("W", 0), 2: ("X", 1), 3: ("W", 1), 4: ("X", 2), 5: ("W", 2), 6: ("W", 3), 7: ("X", 3), 8: ("B", 0), 9: ("X", 0), 10: ("X", 1)}
def unit(v):
    L = []
    reg, k = USLOT[v]
    if v < 7:
        if v == 0:
            L.append(("s_add_u32 s%d, s%d, s%d" % (sT3, sW, sKSW), None))
        else:
            L.append(("s_add_u32 s%d, s%d, %d" % (sT3, sW, 4 * v), None))
            L.append(("s_sub_u32 s%d, s%d, 6" % (sT2, sT3), None))
            L.append(("s_cmp_lt_u32 s%d, s%d" % (sT2, sKSW), None))
            L.append(("s_cselect_b32 s%d, s%d, s%d" % (sT2, sT2, sT3), None))
            if v == 1:
                L.append(("s_add_u32 s%d, s%d, s%d" % (sT3, sT3, sKSW), None))
                L.append(("s_cmp_lt_u32 s%d, 2" % sW, None))
                L.append(("s_cselect_b32 s%d, s%d, s%d" % (sT2, sT3, sT2), None))
            L.append(("s_mov_b32 s%d, s%d" % (sT3, sT2), None))
        L.append(("s_lshl_b32 s%d, s%d, 14" % (sT3, sT3), None))
        L.append(("s_add_u32 m0, s%d, %d" % (sMX if reg == "X" else sMW, k * 16384), None))
        L.append(("s_add_u32 s%d, s%d, s%d" % (sT3, sT3, sV2b), None))
        sd, vo, so = SRD_W2, vW2, sT3
    else:
        b = v - 7
        L.append(("s_add_u32 m0, s%d, %d" % (sMX, LB if reg == "B" else k * 16384), None))
        if b & 1:
            L.append(("s_xor_b32 s%d, s%d, 128" % (sT3, sCb), None)); so = sT3
        else:
            L.append(("s_nop 0", None)); so = sCb
        sd, vo = (SRD_CR if b < 2 else SRD_CI), vC
    for n in range(4):
        L.append(("buffer_load_dwordx4 v%d, s[%d:%d], s%d offen offset:%d lds" % (vo + n, sd, sd + 3, so, 1024 * n), "v%d" % v))
    return L

class Spread:
    def __init__(self, items, gaps):
        self.items = list(items)
        n = sum(1 for x in items if x[1])
        self.sched = [int((i + 0.5) * gaps / n) for i in range(n)] if n else []
        self.gi = 0
    def gap(self):
        used = 0
        while self.sched and self.sched[0] <= self.gi:
            self.sched.pop(0)
            while True:
                it = self.items.pop(0); run([it]); used += 1
                if it[1]: break
            if not self.sched:
                run(self.items); used += len(self.items); self.items = []
        self.gi += 1
        return used
    def flush(self):
        run(self.items); self.items = []; self.sched = []

GG = T + 34
DSK = T + 37
def g_load(tag):
    g.vm("buffer_load_dwordx2 %s, v%d, %s, 0 offen sc1" % (vr(GG, 2), vGA, WSR), tag)

stamp()
g.wait_vm("ch0")
e("s_barrier")
stamp()
for it in reads(0):
    if OPT["skip"] and it[1].endswith("_6"): g.e(it[0])
    else: run([it])
def chunk_items(c):
    if c + 2 < 8: return dma_chunk(c + 2)
    if c == 6: return unit(0) + unit(1)
    xdma = [("s_mov_b32 m0, s%d" % sMB, None), ("s_nop 0", None)]
    xdma += [("buffer_load_dwordx4 v%d, s[%d:%d], s%d offen offset:%d lds" % (vXD + n, SRD_X, SRD_X + 3, sXT, 1024 * n), "xr") for n in range(2)]
    xdma += [("global_load_ushort v%d, v%d, s[%d:%d]" % (DSK, vDS, pDSK, pDSK + 1), "xr")]
    return unit(2) + unit(3) + xdma
sp = Spread(chunk_items(0), 18)
nplayed = 0
def emit_read(item):
    s_, tag = item
    if OPT["skip"] and tag.endswith("_6"):
        g.e(s_); ph.append(len(g.lgq))
        evq.append(tag)
    else:
        g.ds(s_, tag[3:]); evq.append(tag)
def wait_tile(n, m):
    if OPT["skip"] and m == 5:
        tag = "ds:r%d_6" % n
        k = len(evq) - 1 - max(i for i, t in enumerate(evq) if t == tag)
        g.e("s_waitcnt lgkmcnt(%d)" % k)
    else:
        g.wait_lg("r%d_%d" % (n, m + 1))
ph = []; evq = [x[1] for x in reads(0)]
for n in range(32):
    c, s = n >> 2, n & 3
    nxt = reads(n + 1) if n < 31 else []
    per = [2, 2, 2, 2, 1, 2]
    for m in range(6):
        sk = OPT["skip"] and m == 5
        if sk: e("s_cbranch_vccnz L_sk%d" % n)
        wait_tile(n, m)
        mfma1(n, m)
        if s == 3 and m == 0:
            assert not sp.items
            nstamp_("a%d" % c)
            if c < 7: g.wait_vm("ch%d" % (c + 1))
            e("s_barrier")
            nstamp_("b%d" % c)
            sp = Spread(chunk_items(c + 1) if c < 7 else [], 23)
            if c == 5: assert len(F.items) <= ntot - nearly, "staging scalars not ready"
            if c == 6:
                g_load("gl")
                assert len(F.items) <= ntot - nxaddr
        for it in nxt[:per[m]]: emit_read(it)
        nxt = nxt[per[m]:]
        assert len(evq) - max([i for i, t in enumerate(evq) if t.startswith("ds:r%d_" % n)] + [-1]) - 1 <= 11
        if sk: g.label("L_sk%d" % n)
        if s == 3 and m == 0: continue
        used = sp.gap()
        if n == 0: ntot = len(F.items)
        if n >= 1:
            bud = max(0, OPT["fillb"] + (n >= 24) + (2 - per[m]) - used - (1 if sk else 0))
            if n < 24: bud = min(bud, nlate - (ntot - len(F.items)))
            F.play(g, bud)
    assert not nxt
print("fillers left after loop:", len(F.items))
F.flush(g)
stamp()

GREG = 208
OM = T + 36
g.wait_vm("gl")
assert g.vm_count("v1") is None
g.label("L_g_chk")
S("v_cmp_ne_u32 vcc, s%d, v%d", sTAG, GG + 1)
S("s_add_u32 s%d, s%d, 1", sCNT, sCNT)
e("s_cbranch_vccz L_g_ok")
S("s_cmp_ge_u32 s%d, 0x8000", sCNT)
e("s_cbranch_scc1 L_g_ok")
sv = list(g.vmq); g_load("x"); g.vmq = sv
e("s_waitcnt vmcnt(0)")
e("s_branch L_g_chk")
g.label("L_g_ok")
g.ds("ds_write_b32 v%d, v%d" % (vGW, GG), "gw")
for k in range(4):
    g.ds("ds_read_b128 %s, v%d offset:%d" % (vr(GREG + 4 * k, 4), vGR, 16 * k), "gr")
S("v_sub_f32 v%d, 1.0, v%d", OM, GG)
S("v_cvt_pk_bf16_f32 v%d, v%d, v%d", OM, OM, OM)
S("v_lshlrev_b32 v%d, 16, v%d", OM, OM)
PB = 224
S("v_mov_b32 v%d, s%d", PB + 2, sTAG); S("v_mov_b32 v%d, s%d", PB + 3, sTAG)
vOUT = 44
def hstore(t, fr):
    d = ACC_F + 8 * t
    return ("buffer_store_dwordx4 %s, v%d, %s, s%d offen offset:%d%s" % (vr(d + 4 * fr, 4), vL16d if t == 3 else vL16, WSR, sHFa if t < 2 else sHFb, 2048 * (t & 1) + 1024 * fr, HSC), "hf")
pend_st = []
nst = 0
for t in range(4):
    f = ACC_F + 16 * t; d = ACC_F + 8 * t
    for k in range(8):
        S("v_pk_mul_f32 %s, %s, %s op_sel_hi:[1,0]", vr(f + 2 * k, 2), vr(f + 2 * k, 2), vr(OM, 2))
    for fr in range(2):
        for k in range(4 * fr, 4 * fr + 4):
            S("v_cvt_pk_bf16_f32 v%d, v%d, v%d", d + k, f + 2 * k, f + 2 * k + 1)
        for k in range(4 * fr, 4 * fr + 4):
            S("v_pk_max_i16 v%d, v%d, 0", d + k, d + k)
        if nst < OPT["nst0"]: run([hstore(t, fr)])
        else: pend_st.append(hstore(t, fr))
        nst += 1
stamp()
late = Spread(pend_st[:OPT["nst1"]], 7); pend_st = pend_st[OPT["nst1"]:]
H0, H1 = 100, 102
pr, pi = ACC_RE, ACC_IM
for t in range(1, 16):
    d = (H0, H1)[t & 1]
    cfma(d, d + 1, cL, cL + 1, pr, pi, ACC_RE + t, ACC_IM + t)
    pr, pi = d, d + 1
    if t % 2 == 0: late.gap()
OWN = pr
g.ds("ds_write_b64 v%d, %s" % (vTID8, vr(OWN, 2)), "agg")
g.wait_lg_all()
e("s_barrier")
SG = 240
for s_ in range(7):
    g.ds("ds_read_b64 %s, v%d offset:%d" % (vr(SG + 2 * s_, 2), vSEG, 256 * s_), "sg%d" % s_)
for s_ in range(7):
    g.wait_lg("sg%d" % s_)
    S("v_cmpx_lt_u32 vcc, %d, v%d", s_, vQ)
    a = SG + 2 * s_
    if s_ == 0:
        S("v_mov_b32 v%d, v%d", vPRE, a); S("v_mov_b32 v%d, v%d", vPRE + 1, a + 1)
    else:
        S("v_fma_f32 v%d, v%d, v%d, v%d", a, cL16, vPRE, a)
        S("v_fma_f32 v%d, v%d, v%d, v%d", a + 1, cL16, vPRE + 1, a + 1)
        S("v_fma_f32 v%d, -v%d, v%d, v%d", a, cL16 + 1, vPRE + 1, a)
        S("v_fma_f32 v%d, v%d, v%d, v%d", vPRE + 1, cL16 + 1, vPRE, a + 1)
        S("v_mov_b32 v%d, v%d", vPRE, a)
e("s_mov_b64 exec, -1")
cfma(PB, PB + 1, cL16, cL16 + 1, vPRE, vPRE + 1, OWN, OWN + 1)
g.vm("buffer_store_dwordx4 %s, v%d, %s, 0 offen sc1" % (vr(PB, 4), vPUB, WSR), "pub")
stamp()
u6 = unit(6)
A0, A1 = 228, 232
lbl_ = [("buffer_load_dwordx4 %s, v%d, %s, 0 offen sc1" % (vr(A0, 4), vLB0, WSR), "lb"), ("buffer_load_dwordx4 %s, v%d, %s, 0 offen sc1" % (vr(A1, 4), vLB1, WSR), "lb")]
def lb_loads(tag):
    for s_, _ in lbl_: g.vm(s_, tag)
late = Spread(pend_st + unit(4) + lbl_, OPT["lgaps"])

ACC2 = [48, 64, 80, 240]
WF = 168
FULL = set(range(0, 4)) | set(range(8, 12))
def tiles(n): return [0, 1, 2, 3] if n in FULL else [1, 2, 3]
def wread(n, tau, dst):
    v = n >> 2; sg = n & 3
    reg, k = USLOT[v]
    if n < 28:
        base = (rdVX if reg == "X" else rdVW) + tau
        return [("ds_read_b64_tr_b16 %s, v%d offset:%d" % (vr(dst + 2 * e2, 2), base, k * 16384 + sg * 4096 + 1024 * e2), None) for e2 in range(2)]
    base = (rdCX if reg == "X" else rdCB) + sg
    return [("ds_read_b128 %s, v%d offset:%d" % (vr(dst, 4), base, (k * 16384 if reg == "X" else 0) + tau * 4096), None)]
WF3 = [104, 108, 120, 124]
ORDER = list(range(44))
POS = {n: p for p, n in enumerate(ORDER)}
def wfrag(n, tau):
    p = POS[n]
    if p < 6: return WF + 16 * (p & 1) + 4 * tau
    k = p % 3
    return WF + 16 * k + 4 * tau if k < 2 else WF3[tau]
def reads2(n):
    L = []
    for tau in tiles(n):
        for s, _ in wread(n, tau, wfrag(n, tau)):
            L.append((s, "ds:w%d_%d" % (n, tau)))
    return L
TFR, TFI = ACC_RE + 8, ACC_IM + 8
def hfrag(n):
    if n < 6: return vr(ACC_F + 4 * n, 4)
    if n < 28: return ar(4 * (n - 6), 4)
    m = n - 28
    if m in (0, 1): return vr(TFR + 4 * m, 4)
    if m in (8, 9): return vr(TFI + 4 * (m - 8), 4)
    idx = m - 2 if m < 8 else m - 4
    return ar(88 + 4 * idx, 4)
def hload(n):
    L = []
    if n < 28:
        if n % 2 == 0:
            L.append(("s_cmp_gt_u32 s%d, %d" % (sKSW, n - 6), None))
            L.append(("s_cselect_b32 s%d, s%d, s%d" % (sX, sHFa, sHq), None))
            L.append(("s_add_u32 s%d, s%d, %d" % (sX, sX, n * 1024), None))
    else:
        m = n - 28
        if m % 2 == 0:
            L.append(("s_xor_b32 s%d, s%d, %d" % (sX, sC, (m >> 1) & 3), None))
            L.append(("s_lshl_b32 s%d, s%d, 11" % (sX, sX), None))
            L.append(("s_add_u32 s%d, s%d, s%d" % (sX, sX, sHS), None))
            if m >= 8: L.append(("s_add_u32 s%d, s%d, 8192" % (sX, sX), None))
    if OPT["exp"] == 1: return L
    if OPT["exp"] == 2:
        L.append(("buffer_load_dwordx4 %s, v%d, s[%d:%d], 0 offen offset:%d" % (hfrag(n), vL16, SRD_W2, SRD_W2 + 3, 1024 * (n & 3)), "h%d" % n))
        return L
    L.append(("buffer_load_dwordx4 %s, v%d, %s, s%d offen offset:%d%s" % (hfrag(n), vL16, WSR, sX, 1024 * (n & 1), "" if OPT["exp"] == 3 else " sc1"), "h%d" % n))
    return L
started = set()
RQ = []
def issue_reads(cur, ahead, maxn, limit):
    k = 0
    while RQ and k < maxn and RQ[0][0] <= min(cur + ahead, limit) and len(g.lgq) < 15:
        run([RQ.pop(0)[1]]); k += 1
    return k
def step(n, fill=None, pre=None, budget=3, ahead=2, limit=99):
    tl = tiles(n)
    while RQ and RQ[0][0] <= POS[n]:
        if len(g.lgq) >= 15: g.wait_lg(g.lgq[1])
        run([RQ.pop(0)[1]])
    g.wait_vm("h%d" % n)
    for i, tau in enumerate(tl):
        if i == 0 and pre:
            g.wait_lg_all()
        else:
            g.wait_lg("w%d_%d" % (n, tau))
        acc = vr(ACC2[tau], 16)
        S("v_mfma_f32_32x32x16_bf16 %s, %s, %s, %s", acc, hfrag(n), vr(wfrag(n, tau), 4), acc if tau in started else "0")
        started.add(tau)
        if i == 0 and pre: pre()
        k = issue_reads(POS[n], ahead, 3, limit)
        if fill: fill(max(0, budget + 2 - k))

F = Rec(); e = F.e
S("s_and_b32 s%d, s%d, 1", sT0, sC); S("s_lshl_b32 s%d, s%d, 6", sT0, sT0)
S("v_subrev_u32 v%d, 0x%x, v%d", rdCX, LB, rdB)
S("v_xor_b32 v%d, s%d, v%d", rdCX, sT0, rdCX)
S("v_xor_b32 v%d, s%d, v%d", rdCB, sT0, rdB)
for s in range(1, 4):
    S("v_xor_b32 v%d, %d, v%d", rdCX + s, 32 * s, rdCX)
    S("v_xor_b32 v%d, %d, v%d", rdCB + s, 32 * s, rdCB)
for t in range(16):
    ur, ui = ACC_RE + t, ACC_IM + t
    tt = 100 + (t & 1)
    S("v_mul_f32 v%d, v%d, v%d", tt, ur, cCO + 1)
    S("v_mul_f32 v%d, v%d, v%d", ur, ur, cCO)
    S("v_fma_f32 v%d, -v%d, v%d, v%d", ur, ui, cCO + 1, ur)
    S("v_fma_f32 v%d, v%d, v%d, v%d", ui, ui, cCO, tt)
vTW, vTR = 26, 28
vXL, vFLG, FLD = 96, 97, 203
S("s_add_u32 s%d, s%d, %d", sT0, sMB, TRB - LB)
S("v_and_b32 v%d, 31, v%d", t0, vLANE)
S("v_bfe_u32 v%d, v%d, 1, 2", t1, vLANE)
S("v_lshrrev_b32 v%d, 5, v%d", t2, vLANE)
S("v_lshlrev_b32 v%d, 1, v%d", t3, t2)
S("v_xor_b32 v%d, v%d, v%d", t1, t1, t3)
S("v_lshlrev_b32 v%d, 4, v%d", t1, t1)
S("v_lshl_add_u32 v%d, v%d, 6, v%d", t1, t0, t1)
S("v_add_u32 v%d, s%d, v%d", vTW, sT0, t1)
S("v_xor_b32 v%d, 16, v%d", vTW + 1, vTW)
S("v_lshlrev_b32 v%d, 1, v%d", t0, t0)
S("v_lshl_add_u32 v%d, v%d, 10, v%d", vXL, t2, t0)
S("v_add_u32 v%d, s%d, v%d", vXL, sMB, vXL)
S("v_lshl_add_u32 v%d, v%d, 14, v%d", t0, t2, t0)
S("v_add_u32 v%d, s%d, v%d", 98, sXT, t0)
S("v_bfe_u32 v%d, v%d, 2, 2", t0, vLANE)
S("v_lshl_add_u32 v%d, v%d, 3, v%d", t2, t2, t0)
S("v_lshrrev_b32 v%d, 1, v%d", t0, t0)
S("v_and_b32 v%d, 1, v%d", t1, vLANE)
S("v_lshlrev_b32 v%d, 1, v%d", t1, t1)
S("v_bfe_u32 v%d, v%d, 4, 1", t3, vLANE)
S("v_add_u32 v%d, v%d, v%d", t1, t1, t3)
S("v_xor_b32 v%d, v%d, v%d", t1, t1, t0)
S("v_lshlrev_b32 v%d, 4, v%d", t1, t1)
S("v_lshl_add_u32 v%d, v%d, 6, v%d", t1, t2, t1)
S("v_bfe_u32 v%d, v%d, 1, 1", t3, vLANE)
S("v_lshl_add_u32 v%d, v%d, 3, v%d", t1, t3, t1)
S("v_add_u32 v%d, s%d, v%d", vTR, sT0, t1)
S("v_xor_b32 v%d, 32, v%d", vTR + 1, vTR)
S("v_add_u32 v%d, 256, v%d", vTR + 1, vTR + 1)
S("v_and_b32 v%d, 3, v%d", t0, vLANE)
S("v_lshl_add_u32 v%d, v%d, 2, s%d", vFLG, t0, sFL)
S("s_mov_b32 s%d, 32768", sB)
S("s_mov_b32 s%d, 0", sCNT)
S("s_lshl_b32 s%d, s%d, 2", sT1, sC); S("s_add_u32 s%d, s%d, s%d", sFL, sFL, sT1)
e = g.e
for n in range(6): RQ += [(n, x) for x in reads2(n)]
def fill5(b):
    u = late.gap()
    F.play(g, max(0, b - u))
for n in range(6):
    step(n, fill5, budget=2, ahead=1)
late.flush()
F.flush(g)
S("v_lshlrev_b32 v%d, 1, v98", vOUT)
S("s_sub_u32 s%d, s%d, 6144", sHFa, sHq)
stamp()
def flag_load(kind, tag):
    g.vm("buffer_load_dword v%d, v%d, %s, %s offen sc1" % (FLD, vFLG, WSR, "s%d" % sB if kind else "0"), tag)
def flag_check(loader, lbl):
    S("s_mov_b32 s%d, 0", sCNT)
    g.label(lbl + "_chk")
    S("v_cmp_ne_u32 vcc, s%d, v%d", sTAG, FLD)
    S("s_add_u32 s%d, s%d, 1", sCNT, sCNT)
    S("s_cbranch_vccz %s_ok", lbl)
    S("s_cmp_ge_u32 s%d, 0x8000", sCNT)
    S("s_cbranch_scc1 %s_ok", lbl)
    sv = list(g.vmq); loader("x"); g.vmq = sv
    e("s_waitcnt vmcnt(0)")
    S("s_branch %s_chk", lbl)
    g.label(lbl + "_ok")
vorder = [5, 6, 7, 8, 9, 10]
for v in vorder[:OPT["npre"]]: run(unit(v))
vorder = vorder[OPT["npre"]:]
g.wait_vm("hf")
nstamp_("hfdone")
assert g.vm_count("xr") is None
S("v_lshlrev_b32 v205, 16, v%d", DSK)
DSK = 205
e("s_mov_b64 exec, 1")
g.vm("buffer_store_dword v%d, off, %s, s%d sc1" % (vTAG, WSR, sFL), "fl0")
e("s_mov_b64 exec, -1")
g.wait_vm("lb")
g.label("L_lb_chk")
S("v_cmp_ne_u32 vcc, s%d, v%d", sTAG, A0 + 2)
S("v_cmp_ne_u32 s[%d:%d], s%d, v%d", sTP, sTP + 1, sTAG, A1 + 2)
S("s_and_b64 vcc, vcc, s[%d:%d]", sV0, sV0 + 1)
S("s_and_b64 s[%d:%d], s[%d:%d], s[%d:%d]", sTP, sTP + 1, sTP, sTP + 1, sV1, sV1 + 1)
S("s_or_b64 vcc, vcc, s[%d:%d]", sTP, sTP + 1)
e("s_cbranch_scc0 L_lb_ok")
S("s_add_u32 s%d, s%d, 1", sCNT, sCNT)
S("s_cmp_ge_u32 s%d, 0x8000", sCNT)
e("s_cbranch_scc1 L_lb_ok")
sv = list(g.vmq); lb_loads("x"); g.vmq = sv
e("s_waitcnt vmcnt(0)")
e("s_branch L_lb_chk")
g.label("L_lb_ok")
cfma(A0, A0 + 1, cL1024, cL1024 + 1, A1, A1 + 1, A0, A0 + 1)
cmul(A1, A1 + 1, cL128q, cL128q + 1, A0, A0 + 1)
g.ds("ds_write_b64 v%d, %s offset:2048" % (vTID8, vr(A1, 2)), "pw")
assert g.vm_count("v4") is None
g.wait_lg_all()
e("s_barrier")
stamp()
SG = 224
for s_ in range(8):
    g.ds("ds_read_b64 %s, v%d offset:%d" % (vr(SG + 2 * s_, 2), vSEG, 2048 + 256 * s_), "pp%d" % s_)
NH0 = OPT["nh0"]
hq = list(range(6, 6 + NH0))
vs = Spread(sum([unit(v) for v in vorder[:OPT["nscan"]]], []), 8); vorder = vorder[OPT["nscan"]:]
XR = 224
for s_ in range(1, 8):
    g.wait_lg("pp%d" % s_)
    S("v_pk_add_f32 %s, %s, %s", vr(SG, 2), vr(SG, 2), vr(SG + 2 * s_, 2))
cfma(vPRE, vPRE + 1, cL16q, cL16q + 1, SG, SG + 1, vPRE, vPRE + 1)
cmul(100, 101, cCO, cCO + 1, vPRE, vPRE + 1)
pr, pi = 100, 101
for t in range(16):
    cfma(ACC_RE + t, ACC_IM + t, cL, cL + 1, pr, pi, ACC_RE + t, ACC_IM + t)
    pr, pi = ACC_RE + t, ACC_IM + t
    if len(g.lgq) >= 12: g.wait_lg(g.lgq[3])
    g.ds("ds_read_u16 v%d, v%d offset:%d" % (XR + t, vXL, 64 * t), "xl%d" % t)
    vs.gap()
    if t == OPT["pfpos"]: flag_load(0, "pf0")
    if t == OPT["pchk"]:
        g.wait_vm("pf0")
        flag_check(lambda tag: flag_load(0, tag), "L_f0")
        nstamp_("pollok")
        nin = min(NH0, 2 * ((15 - t) // 2))
        vs = Spread(sum([hload(n) for n in hq[:nin]], []), 15 - t); hq = hq[nin:]
stamp()
for x, (acc, tf, ng) in enumerate(((ACC_RE, TFR, ""), (ACC_IM, TFI, "-"))):
    for k in range(8):
        S("v_pk_mul_f32 %s, %s, %s", vr(acc + 2 * k, 2), vr(acc + 2 * k, 2), vr(GREG + 2 * k, 2))
    for k in range(8):
        S("v_cvt_pk_bf16_f32 v%d, %sv%d, %sv%d", acc + k, ng, acc + 2 * k, ng, acc + 2 * k + 1)
    g.wait_lg("xl15")
    for p in range(2):
        g.ds("ds_write_b128 v%d, %s" % (vTW + p, vr(acc + 4 * p, 4)), "tw")
    for f in range(2):
        for e2 in range(2):
            g.ds("ds_read_b64_tr_b16 %s, v%d offset:%d" % (vr(tf + 4 * f + 2 * e2, 2), vTR + e2, 1024 * f), "tr%d%d" % (x, f))
S("s_lshl_b32 s%d, s%d, 11", sT0, sC); S("s_add_u32 s%d, s%d, s%d", sT0, sT0, sHS)
S("s_add_u32 s%d, s%d, 8192", sT1, sT0)
def hs_store(x, f):
    g.wait_lg("tr%d%d" % (x, f))
    g.vm("buffer_store_dwordx4 %s, v%d, %s, s%d offen offset:%d%s" % (vr((TFI if x else TFR) + 4 * f, 4), vL16, WSR, sT1 if x else sT0, 1024 * f, HSC), "hs")
hsq = [(0, 0), (0, 1), (1, 0), (1, 1)]
vs.flush()
for _ in range(OPT["hs0"]): hs_store(*hsq.pop(0))
if OPT["pchk"] > 15:
    g.wait_vm("pf0")
    flag_check(lambda tag: flag_load(0, tag), "L_f0")
    nstamp_("pollok")
stamp()
for n in ORDER[6:]: RQ += [(POS[n], x_) for x_ in reads2(n)]
while hsq or hq:
    for _ in range(2):
        if hq: run(hload(hq.pop(0)))
    if hsq: hs_store(*hsq.pop(0))
    issue_reads(6, 1, 3, 99)
stamp()
vF2S, vF2L = 98, 99
sPS = [66, 67, 68]; sPL = 69
S("s_lshl_b32 s%d, s%d, 4", sT0, sR); S("s_add_u32 s%d, s%d, s%d", sT0, sT0, sC); S("s_lshl_b32 s%d, s%d, 2", sT0, sT0); S("s_add_u32 s%d, s%d, s%d", sT0, sT0, sW)
for tau in range(1, 4):
    S("s_add_u32 s%d, s%d, %d", sT1, sQ, tau); S("s_and_b32 s%d, s%d, 3", sT1, sT1); S("s_lshl_b32 s%d, s%d, 4", sT1, sT1); S("s_add_u32 s%d, s%d, s%d", sT1, sT1, sT0)
    S("s_mul_i32 s%d, s%d, 6144", sPS[tau - 1], sT1); S("s_add_u32 s%d, s%d, %d", sPS[tau - 1], sPS[tau - 1], PART + 2048 * (tau - 1))
S("s_lshl_b32 s%d, s%d, 4", sT1, sQ); S("s_add_u32 s%d, s%d, s%d", sT1, sT1, sT0)
S("s_mul_i32 s%d, s%d, 6144", sPL, sT1); S("s_add_u32 s%d, s%d, %d", sPL, sPL, PART)
S("s_lshl_b32 s%d, s%d, 7", sT1, sT1); S("s_add_u32 s%d, s%d, %d", sT1, sT1, FLAGS2)
S("v_min_u32 v%d, 2, v%d", t0, vLANE)
S("v_lshl_add_u32 v%d, v%d, 2, s%d", vF2L, t0, sT1)
S("v_add_u32 v%d, s%d, v%d", t1, sQ, t0)
S("v_add_u32 v%d, 1, v%d", t1, t1)
S("v_and_b32 v%d, 3, v%d", t1, t1)
S("v_lshlrev_b32 v%d, 11, v%d", t1, t1)
S("v_lshl_add_u32 v%d, v%d, 2, v%d", t1, t0, t1)
S("s_lshl_b32 s%d, s%d, 7", sT0, sT0); S("s_add_u32 s%d, s%d, %d", sT0, sT0, FLAGS2)
S("v_add_u32 v%d, s%d, v%d", vF2S, sT0, t1)
for k in range(8):
    S("v_lshlrev_b32 v%d, 16, v%d", XR + 2 * k, XR + 2 * k); S("v_lshlrev_b32 v%d, 16, v%d", XR + 2 * k + 1, XR + 2 * k + 1)
    S("v_mul_f32 v%d, v%d, v%d", XR + 2 * k, XR + 2 * k, DSK); S("v_mul_f32 v%d, v%d, v%d", XR + 2 * k + 1, XR + 2 * k + 1, DSK)
    S("v_cvt_pk_bf16_f32 v%d, v%d, v%d", XR + 2 * k, XR + 2 * k, XR + 2 * k + 1)
    S("v_and_b32 v%d, s%d, v%d", XR + 2 * k + 1, sMASK, XR + 2 * k)
    S("v_lshlrev_b32 v%d, 16, v%d", XR + 2 * k, XR + 2 * k)
    S("v_fma_f32 v%d, v%d, v%d, v%d", ACC2[0] + 2 * k, XR + 2 * k, GREG + 2 * k, ACC2[0] + 2 * k)
    S("v_fma_f32 v%d, v%d, v%d, v%d", ACC2[0] + 2 * k + 1, XR + 2 * k + 1, GREG + 2 * k + 1, ACC2[0] + 2 * k + 1)
nstamp_("gxd")
pend = list(range(6 + NH0, 28))
pend_s = [n for n in range(28, 44) if (n - 28) not in (0, 1, 8, 9)]
assert not hq
vq = [v for v in vorder if v < 8] + [9, 8, 10]
NV = OPT["npre"] + OPT["nscan"]
vitems = []
def fill2(b):
    pass
PFS = OPT["pfs"]
SY = {11: ("v%d" % (4 + NV), 4 * (5 + NV) - 1), OPT["sy2"]: ("v8", 35), 34: ("v10", 99)}
assert NV <= 3
limit = 19
for n in ORDER[6:]:
    pre = None
    if n in SY:
        def pre(n=n):
            g.wait_vm(SY[n][0])
            e("s_barrier")
        limit = SY[n][1]
    step(n, fill2, pre, budget=0, limit=limit)
    nstamp_("s%d" % n)
    if n == OPT["hsn"]:
        S("s_add_u32 s%d, s%d, 32768", sCI, sFL)
        g.wait_vm("hs")
        e("s_mov_b64 exec, 1")
        g.vm("buffer_store_dword v%d, off, %s, s%d sc1" % (vTAG, WSR, sCI), "fl1")
        e("s_mov_b64 exec, -1")
        e("s_nop 1")
    if n == PFS: flag_load(1, "pf1")
    if not vitems and vq and not (vq[0] in (8, 10) and n < 11):
        vitems = unit(vq.pop(0))
    while vitems:
        it = vitems.pop(0); run([it])
        if it[1]: break
    if pend:
        run(hload(pend.pop(0)))
    else:
        if g.wait_vm("pf1"):
            flag_check(lambda tag: flag_load(1, tag), "L_f1")
        if pend_s: run(hload(pend_s.pop(0)))
        if pend_s and len(pend_s) % 2 == 1: run(hload(pend_s.pop(0)))
assert not pend and not pend_s and not vq and not vitems
stamp()
F = Rec(); e = F.e
for tau in range(1, 4):
    a = ACC2[tau]
    for k in range(8):
        S("v_cvt_pk_bf16_f32 v%d, v%d, v%d", a + k, a + 2 * k, a + 2 * k + 1)
    for p in range(2):
        F.vm("buffer_store_dwordx4 %s, v%d, %s, s%d offen offset:%d%s" % (vr(a + 4 * p, 4), vL16, WSR, sPS[tau - 1], 1024 * p, " sc1" if OPT["psc"] else ""), "ps")
e = g.e
dl = [n for n in range(44) if n not in FULL]
AHEAD = 5
def dread(i):
    for s, _ in wread(dl[i], 0, WF + 4 * (i % 8)):
        g.ds(s, "d%d" % i)
for i in range(AHEAD): dread(i)
e("s_nop 1")
def f2_load(tag):
    g.vm("buffer_load_dword v%d, v%d, %s, 0 offen sc1" % (FLD, vF2L, WSR), tag)
for i, n in enumerate(dl):
    g.wait_lg("d%d" % i)
    acc = vr(ACC2[0], 16)
    S("v_mfma_f32_32x32x16_bf16 %s, %s, %s, %s", acc, hfrag(n), vr(WF + 4 * (i % 8), 4), acc)
    if i + AHEAD < len(dl): dread(i + AHEAD)
    F.play(g, OPT["tb"])
    nstamp_("d%d" % i)
    if i == OPT["fwait"]:
        assert not F.items
        g.wait_vm("ps")
        nstamp_("psdone")
        e("s_mov_b64 exec, 7")
        g.vm("buffer_store_dword v%d, v%d, %s, 0 offen sc1" % (vTAG, vF2S, WSR), "fl2")
        e("s_mov_b64 exec, -1")
        e("s_nop 1")
f2_load("pf2")
stamp()
S("v_mov_b32 v%d, 0x3f80", t0)
S("v_mov_b32 v%d, 0x3f800000", t1)
S("s_cmp_eq_u32 s%d, 15", sR); S("s_cselect_b32 s%d, s%d, 1", sT3, sJ); S("s_or_b32 s%d, s%d, s%d", sT3, sT3, sW)
g.wait_vm("pf2")
flag_check(f2_load, "L_f2")
stamp()
S("s_add_u32 s%d, s%d, 4096", sT0, sPL)
for k in range(3):
    for p in range(2):
        o = 2048 * k + 1024 * p
        g.vm("buffer_load_dwordx4 %s, v%d, %s, s%d offen offset:%d sc1" % (vr(ACC2[k + 1] + 8 + 4 * p, 4), vL16, WSR, sPL if o < 4096 else sT0, o & 4095), "pl%d" % k)
for k in range(3):
    g.wait_vm("pl%d" % k)
    nstamp_("pl%d" % k)
    for i in range(8):
        S("v_dot2c_f32_bf16 v%d, v%d, v%d", ACC2[0] + 2 * i, ACC2[k + 1] + 8 + i, t0)
        S("v_dot2c_f32_bf16 v%d, v%d, v%d", ACC2[0] + 2 * i + 1, ACC2[k + 1] + 8 + i, t1)
e("s_nop 2")
for k in range(16):
    if k % 2 == 0: S("s_mov_b32 s%d, %d", sT0, 2048 * k)
    g.vm("buffer_store_dword v%d, v%d, s[%d:%d], s%d offen offset:%d" % (ACC2[0] + k, vOUT, SRD_OUT, SRD_OUT + 3, sT0, 2048 * (k & 1)) + ("", " sc1", " nt")[OPT["osc"]], "out")
stamp()
if OPT["stamps"]:
    e("s_waitcnt vmcnt(0)")
    stamp()
    if OPT["stamps"] == 6:
        e("s_waitcnt lgkmcnt(0)"); e("s_mov_b64 exec, 1")
        for i, p in enumerate(sused):
            S("v_mov_b32 v252, s%d", p); e("buffer_store_dword v252, off, %s, s101 offset:%d" % (WSR, 4 + 4 * i)); e("s_nop 1")
        e("s_mov_b64 exec, -1")
        print("sgpr stamps", len(sused))
    e("s_memrealtime s[82:83]"); e("s_waitcnt lgkmcnt(0)"); e("v_mov_b32 v252, s82"); e("s_mov_b64 exec, 1")
    e("buffer_store_dword v252, off, %s, s101 offset:124" % WSR)
    e("s_mov_b64 exec, -1")
S("s_cmp_lg_u32 s%d, 0", sT3)
e("s_cbranch_scc1 L_end2")
e("s_mov_b64 exec, 1")
e("buffer_store_dword v%d, off, %s, 0 sc1" % (vTAG, WSR))
g.label("L_end2")
if OPT["diag"] > 0:
    S("s_sub_u32 s%d, s%d, s96", sDG, sDG)
    if OPT["diagcyc"]: S("s_lshr_b32 s%d, s%d, 1", sDG, sDG)
    else: S("s_mul_i32 s%d, s%d, 10", sDG, sDG)
    e("s_memrealtime s[96:97]"); e("s_waitcnt lgkmcnt(0)"); S("s_add_u32 s%d, s%d, s96", sDG, sDG)
    g.label("L_spin")
    e("s_memrealtime s[96:97]"); e("s_waitcnt lgkmcnt(0)"); S("s_sub_u32 s%d, s%d, s96", sDG + 1, sDG); S("s_cmp_gt_i32 s%d, 0", sDG + 1); e("s_cbranch_scc1 L_spin")
g.label("L_end")
e("s_endpgm")
e('.section .rodata,"a"')
e(".p2align 6")
e(".amdhsa_kernel %s_kernel" % NAME)
for l in ("next_free_vgpr 512", "next_free_sgpr 102", "accum_offset 256", "group_segment_fixed_size 0", "kernarg_size 128", "user_sgpr_count 2",
          "user_sgpr_kernarg_segment_ptr 1", "system_sgpr_workgroup_id_x 1"):
    g.lines.append("  .amdhsa_" + l)
e(".end_amdhsa_kernel")

if OPT["nocomp"]:
    g.lines = [l for l in g.lines if not (l.startswith("v_mfma") or l.startswith("ds_read_b64_tr") or l.startswith("ds_read_b128"))]
if OPT["ntin"]:
    def ntf(l):
        if l.startswith("buffer_load_dwordx4") and l.endswith(" lds"):
            p1 = any(("s[%d:%d]" % (b, b + 3)) in l for b in (SRD_X, SRD_B, SRD_W1))
            if (p1 and OPT["ntin"] & 1) or (not p1 and OPT["ntin"] & 2): return l[:-4] + " nt lds"
        return l
    g.lines = [ntf(l) for l in g.lines]
i0 = g.lines.index("%s_kernel:" % NAME) + 1
i1 = g.lines.index("s_endpgm") + 1
body, npad, lastoff = layout(g.lines[i0:i1], 3328, sW, OPT["align"], OPT["page"])
g.lines = g.lines[:i0] + body + g.lines[i1:]
print("pads", npad, "last page bytes", lastoff)
tot = (3328 + 4096 * (npad - 1) + lastoff if npad else lastoff) - 320
stride = (tot // 128) & ~7
g.lines = [l.replace("0x1234", str(stride)).replace("0x4320", str(stride // 2)) for l in g.lines]
errs = check_hazards(g.lines)
for x in errs:
    print("HAZARD", x)
open(sys.argv[1], "w").write(out_hdr + g.text())
print("lines", len(g.lines), "stamps", nstamp[0], "hazards", len(errs))
```

```python
import sys
from asmlib import *

NAME = "gated_mix__ssm_conv_s5__dense_activation_relu__prompt"
OPT = dict(stamps=0, p1map=84, rot1=2, pre=2, fillb=2, diag=-1, diagcyc=0, dstart=0, fwait=22, nh0=8, pfs=17, hsc=1, psc=1, osc=0, lgaps=20, hsn=10, b2=1, wsoff=0, pfpos=4, smask=0, exp=0, lbpos=4, ffpos=0, page=1, align=1, cpf=1, nst0=4, hs0=0, tb=6, nw56=3, pchk=16, sy2=26, nocomp=0, npre=2, nscan=1, nst1=0, skip=1, ntin=0, wpf=0, wpc=2)
for a in sys.argv[2:]:
    k, v = a.split("=")
    assert k in OPT, k
    OPT[k] = int(v)

AGG = 4096
GOFF = AGG + 16 * 8192
FLAGS = GOFF + 2048 * 8
FLAGS2 = FLAGS + 65536
HOFF = 393216
TSTRIDE = 176 * 1024
PART = HOFF + 64 * TSTRIDE
WS_SIZE = PART + 256 * 4 * 6144
OOB = 0x80000000
LX, LW, LB = 0, 65536, 131072
SCR = LB + 2 * 8192
GT = SCR + 4096
TRB = LB + 3 * 8192
SRD_X, SRD_B, SRD_W1, SRD_W2, SRD_CR, SRD_CI, SRD_WS, SRD_OUT = 4, 8, 12, 16, 20, 24, 28, 32
sW, sR, sJ, sQ, sC, sTAG, sMASK = 36, 37, 38, 39, 40, 41, 42
sX, sB, sW1 = 43, 44, 45
sMX, sMB, sMW = 46, 47, 48
sT0, sT1, sT2, sT3 = 49, 50, 51, 52
sXb, sBb, sW1b, sCI = 54, 55, 56, 57
sV0, sV1 = 54, 56
sTP = 58
sCNT = 60
sE = 63
pX, pLRE, pLIM, pBRE, pBIM, pCRE, pCIM, pLDT, pDSK, pBX, pW1, pW2, pGATE, pOUT, pDBG, pWS = range(64, 96, 2)
sST = 96
sDUM = 98
sHF, sFL = 99, 100
sV2b, sKSW, sCb, sHO, sHS, sHq = 53, 3, 61, 62, 82, 83
sDG = 84
vLANE, vTID8 = 1, 0
vX = 2; vC = 6; vW1 = 10; vW2 = 14
rdA = 18; rdB = 22; rdW = 26
cL, cL16, cL16q, cL128q, cL1024, cCO = 30, 32, 34, 36, 38, 40
vQ, vL16, vL16d = 42, 43, 44
vTAG = 45
vPRE = 46
FR = 48
ACC_RE, ACC_IM, ACC_F = 104, 120, 136
T = 200
LOG2E = 0x3fb8aa3b
INV2PI = 0x3e22f983

g = Asm()
e = g.e
nstamp = [0]
sidx = [0]; sused = []; SPAIRS = [70, 72, 78, 84, 86, 92, 94, 74, 76, 88, 90]
ndiag = [1]
import os
STN = os.environ.get("ST", "").split(",")
def nstamp_(name):
    if OPT["stamps"] == 6 and name in STN:
        p = SPAIRS[len(sused)]; sused.append(p)
        g.e("s_memtime s[%d:%d]" % (p, p + 1))
def stamp():
    if OPT["diag"] >= 0:
        if ndiag[0] == OPT["diag"]:
            g.e("%s s[%d:%d]" % ("s_memtime" if OPT["diagcyc"] else "s_memrealtime", sDG, sDG + 1)); g.e("s_waitcnt lgkmcnt(0)"); g.lgq = []
        if ndiag[0] == OPT["dstart"]:
            g.e("%s s[96:97]" % ("s_memtime" if OPT["diagcyc"] else "s_memrealtime")); g.e("s_waitcnt lgkmcnt(0)"); g.lgq = []
        ndiag[0] += 1
    if OPT["stamps"] == 6:
        sidx[0] += 1
        if (OPT["smask"] >> sidx[0]) & 1:
            p = SPAIRS[len(sused)]; sused.append(p)
            g.e("s_memtime s[%d:%d]" % (p, p + 1))
        return
    if not OPT["stamps"] or OPT["stamps"] == 5:
        return
    i = nstamp[0]; nstamp[0] += 1
    assert i < 30
    g.e("s_memtime s[%d:%d]" % (sST, sST + 1))
    g.e("s_waitcnt lgkmcnt(0)")
    g.lgq = []
    g.e("v_accvgpr_write_b32 a255, s%d" % sST)
    g.e("s_mov_b64 exec, 1")
    g.vm("buffer_store_dword a255, off, s[%d:%d], s101 offset:%d" % (SRD_WS, SRD_WS + 3, 4 * i), "stamp")
    g.e("s_mov_b64 exec, -1")

def cfma(dr, di, ar_, ai, br, bi, cr, ci):
    e("v_fma_f32 v%d, v%d, v%d, v%d" % (dr, ar_, br, cr))
    e("v_fma_f32 v%d, v%d, v%d, v%d" % (di, ar_, bi, ci))
    e("v_fma_f32 v%d, -v%d, v%d, v%d" % (dr, ai, bi, dr))
    e("v_fma_f32 v%d, v%d, v%d, v%d" % (di, ai, br, di))
def cmul(dr, di, ar_, ai, br, bi):
    e("v_mul_f32 v%d, v%d, v%d" % (dr, ar_, br))
    e("v_mul_f32 v%d, v%d, v%d" % (di, ar_, bi))
    e("v_fma_f32 v%d, -v%d, v%d, v%d" % (dr, ai, bi, dr))
    e("v_fma_f32 v%d, v%d, v%d, v%d" % (di, ai, br, di))
def srd(base, p):
    e("s_mov_b32 s%d, s%d" % (base, p))
    e("s_mov_b32 s%d, s%d" % (base + 1, p + 1))
def S(fmt, *a):
    e(fmt % a)
def run(L):
    for s, tag in L:
        if tag is None: g.e(s)
        elif tag.startswith("ds:"): g.ds(s, tag[3:])
        else: g.vm(s, tag)
WSR = "s[%d:%d]" % (SRD_WS, SRD_WS + 3)
HSC = ("", " sc1", " sc1 nt")[OPT["hsc"]]

hdr = open("cdna_kernels/%s.s.ref" % NAME).read().split("; Override launch")[0]
out_hdr = hdr + "; @launch grid=(256,1,1) block=(256,1,1) lds=163840\n"
e('.amdgcn_target "amdgcn-amd-amdhsa--gfx950"')
e(".text")
e(".globl %s_kernel" % NAME)
e(".p2align 8")
e(".type %s_kernel,@function" % NAME)
g.label("%s_kernel" % NAME)
e("s_cmp_ge_u32 s2, 256")
e("s_cbranch_scc1 L_end")
if OPT["stamps"]:
    e("s_memrealtime s[82:83]"); e("s_memtime s[96:97]"); e("s_waitcnt lgkmcnt(0)"); e("v_mov_b32 v252, s82"); e("v_mov_b32 v253, s96")
if OPT["diag"] >= 0:
    e("%s s[96:97]" % ("s_memtime" if OPT["diagcyc"] else "s_memrealtime"))
e("s_load_dwordx16 s[64:79], s[0:1], 0")
e("s_load_dwordx16 s[80:95], s[0:1], 64")
e("v_lshrrev_b32 v2, 6, v0")
S("v_and_b32 v%d, 63, v0", vLANE)
S("v_readfirstlane_b32 s%d, v2", sW)
t0, t1, t2, t3 = T, T + 1, T + 2, T + 3
S("v_lshrrev_b32 v%d, 3, v%d", t0, vLANE)
S("v_and_b32 v%d, 7, v%d", t1, vLANE)
S("v_lshrrev_b32 v%d, 1, v%d", t2, t0)
S("v_xor_b32 v%d, v%d, v%d", t3, t1, t2)
S("v_lshlrev_b32 v%d, 4, v%d", t3, t3)
S("v_lshl_add_u32 v%d, v%d, 10, v%d", vC, t0, t3)
S("v_lshrrev_b32 v%d, 2, v%d", t1, t0)
S("v_and_b32 v%d, 3, v%d", t2, t0)
S("v_lshl_add_u32 v%d, v%d, 4, v%d", t1, t1, t2)
S("v_lshl_add_u32 v%d, v%d, 10, v%d", vX, t1, t3)
S("v_xor_b32 v%d, 64, v%d", vX + 1, vX)
S("v_add_u32 v%d, 3072, v%d", vX + 1, vX + 1)
S("v_add_u32 v%d, 6144, v%d", vX + 2, vX)
S("v_add_u32 v%d, 6144, v%d", vX + 3, vX + 1)
S("s_bfe_u32 s%d, s2, 0x30003", sT2)
S("s_and_b32 s%d, s2, 1", sR); S("s_lshl_b32 s%d, s%d, 3", sR, sR); S("s_add_u32 s%d, s%d, s%d", sR, sR, sT2)
S("s_lshr_b32 s%d, s2, 6", sC)
S("s_bfe_u32 s%d, s2, 0x20001", sQ)
S("s_mov_b32 s%d, 0x%x", SRD_X + 2, 2048 * 1024); S("s_mov_b32 s%d, 0x20000", SRD_X + 3)
if OPT["rot1"] == 2:
    S("s_add_u32 s%d, s%d, s%d", sCI, sR, sC); S("s_and_b32 s%d, s%d, 1", sCI, sCI); S("s_lshl_b32 s%d, s%d, 2", sCI, sCI)
elif OPT["rot1"] == 4:
    S("s_add_u32 s%d, s%d, s%d", sCI, sR, sC); S("s_and_b32 s%d, s%d, 3", sCI, sCI); S("s_lshl_b32 s%d, s%d, 1", sCI, sCI)
else:
    S("s_mov_b32 s%d, 0", sCI)
S("s_lshl_b32 s%d, s%d, 17", sXb, sR); S("s_lshl_b32 s%d, s%d, 15", sT0, sW); S("s_add_u32 s%d, s%d, s%d", sXb, sXb, sT0)
S("s_lshl_b32 s%d, s%d, 12", sMX, sW)
S("s_lshl_b32 s%d, s%d, 7", sB, sCI)
S("s_mov_b32 m0, s%d", sMX)
S("s_add_u32 s%d, s%d, s%d", sX, sXb, sB)
e("s_waitcnt lgkmcnt(0)")
srd(SRD_X, pX)
for n in range(4):
    g.vm("buffer_load_dwordx4 v%d, s[%d:%d], s%d offen offset:%d lds" % (vX + n, SRD_X, SRD_X + 3, sX, 1024 * n), "ch0")
if OPT["cpf"]:
    S("s_getpc_b64 s[%d:%d]", sTP, sTP + 1)
    S("s_lshr_b32 s%d, s2, 3", sT0); S("s_lshl_b32 s%d, s%d, 2", sT0, sT0); S("s_add_u32 s%d, s%d, s%d", sT0, sT0, sW)
    S("s_mul_i32 s%d, s%d, 0x1234", sT0, sT0)
    S("s_add_u32 s%d, s%d, s%d", sTP, sTP, sT0); S("s_addc_u32 s%d, s%d, 0", sTP + 1, sTP + 1)
    S("s_load_dword s%d, s[%d:%d], 0", sCNT, sTP, sTP + 1)
    S("s_load_dword s%d, s[%d:%d], 0x4320", sCb, sTP, sTP + 1)
if OPT["wsoff"]:
    S("s_add_u32 s%d, s%d, 0x%x", pWS, pWS, OPT["wsoff"] << 20); S("s_addc_u32 s%d, s%d, 0", pWS + 1, pWS + 1)
S("s_load_dword s%d, s[%d:%d], 0", sE, pWS, pWS + 1)
S("s_lshl_b32 s%d, s%d, 2", sJ, sQ); S("s_add_u32 s%d, s%d, s%d", sJ, sJ, sC)
for b_, sz in ((SRD_B, 512 * 1024), (SRD_W1, 512 * 3584)):
    S("s_mov_b32 s%d, 0x%x", b_ + 2, sz)
    S("s_mov_b32 s%d, 0x20000", b_ + 3)
S("v_xor_b32 v%d, 64, v%d", vC + 1, vC)
S("v_add_u32 v%d, 7168, v%d", vC + 1, vC + 1)
S("s_lshl_b32 s%d, s%d, 15", sBb, sJ); S("s_and_b32 s%d, s%d, 1", sT0, sW); S("s_lshl_b32 s%d, s%d, 14", sT0, sT0); S("s_add_u32 s%d, s%d, s%d", sBb, sBb, sT0)
S("s_lshl_b32 s%d, s%d, 11", sMB, sW); S("s_add_u32 s%d, s%d, %d", sMB, sMB, LB)
S("s_cmp_ge_u32 s%d, 2", sW)
S("s_cselect_b32 s%d, s%d, s%d", SRD_B, pBIM, pBRE)
S("s_cselect_b32 s%d, s%d, s%d", SRD_B + 1, pBIM + 1, pBRE + 1)
S("s_mov_b32 m0, s%d", sMB)
S("s_add_u32 s%d, s%d, s%d", sB, sBb, sB)
for n in range(2):
    g.vm("buffer_load_dwordx4 v%d, s[%d:%d], s%d offen offset:%d lds" % (vC + n, SRD_B, SRD_B + 3, sB, 1024 * n), "ch0")
S("v_lshrrev_b32 v%d, 4, v%d", t0, vLANE)
S("v_and_b32 v%d, 15, v%d", t1, vLANE)
S("v_lshlrev_b32 v%d, 2, v%d", t2, t0)
S("v_xor_b32 v%d, v%d, v%d", vW2, t1, t2)
S("v_lshrrev_b32 v%d, 2, v%d", t2, vW2)
S("v_cmp_eq_u32 vcc, 3, v%d", t2)
S("v_mul_u32_u24 v%d, 3584, v%d", t0, t0)
S("v_lshl_add_u32 v%d, v%d, 4, v%d", vW1, vW2, t0)
S("s_lshr_b32 s%d, s%d, 1", sDUM, sC)
S("s_cselect_b64 s[%d:%d], vcc, 0", sTP, sTP + 1)
S("v_mov_b32 v%d, 0x%x", t3, OOB)
S("v_lshlrev_b32 v%d, 4, v%d", vL16, vLANE)
S("v_cndmask_b32 v%d, v%d, v%d, s[%d:%d]", vW1, vW1, t3, sTP, sTP + 1)
for n in range(1, 4):
    S("v_add_u32 v%d, %d, v%d", vW1 + n, 13312 * n, vW1)
S("s_lshl_b32 s%d, s%d, 3", sKSW, sC); S("s_min_u32 s%d, s%d, 22", sKSW, sKSW)
S("s_mul_i32 s%d, s%d, 896", sT0, sQ); S("s_lshl_b32 s%d, s%d, 5", sT1, sKSW); S("s_add_u32 s%d, s%d, s%d", sT0, sT0, sT1)
S("s_mul_i32 s%d, s%d, %d", sW1b, sW, 16 * 3584); S("s_add_u32 s%d, s%d, s%d", sW1b, sW1b, sT0)
S("s_add_u32 s%d, s%d, %d", sMW, sMX, LW)
srd(SRD_W1, pW1)
S("s_mul_i32 s%d, s%d, %d", sW1, sCI, 64 * 3584)
S("s_mov_b32 m0, s%d", sMW)
S("s_add_u32 s%d, s%d, s%d", sW1, sW1, sW1b)
for n in range(4):
    g.vm("buffer_load_dwordx4 v%d, s[%d:%d], s%d offen offset:%d lds" % (vW1 + n, SRD_W1, SRD_W1 + 3, sW1, 1024 * n), "ch0")
S("s_add_u32 s%d, s%d, 1", sCI, sCI)
S("v_and_b32 v%d, 31, v%d", t0, vLANE)
S("v_lshlrev_b32 v%d, 1, v%d", t0, t0)
S("s_lshl_b32 s%d, s%d, 6", sT0, sJ)
S("v_add_u32 v%d, s%d, v%d", t0, sT0, t0)
S("s_lshl_b32 s%d, s%d, 11", sT1, sJ); S("s_add_u32 s%d, s%d, s%d", sT1, sT1, sXb)
S("v_add_u32 v%d, s%d, v%d", t1, sT1, vL16)

def dma_chunk(c):
    k = c & 3
    L = []
    def I(s): L.append((s, None))
    def D(s): L.append((s, "ch%d" % c))
    I("s_lshl_b32 s%d, s%d, 7" % (sB, sCI))
    I("s_add_u32 m0, s%d, %d" % (sMX, k * 16384))
    I("s_add_u32 s%d, s%d, s%d" % (sX, sXb, sB))
    for n in range(4): D("buffer_load_dwordx4 v%d, s[%d:%d], s%d offen offset:%d lds" % (vX + n, SRD_X, SRD_X + 3, sX, 1024 * n))
    I("s_add_u32 m0, s%d, %d" % (sMB, k * 8192))
    I("s_add_u32 s%d, s%d, s%d" % (sB, sBb, sB))
    for n in range(2): D("buffer_load_dwordx4 v%d, s[%d:%d], s%d offen offset:%d lds" % (vC + n, SRD_B, SRD_B + 3, sB, 1024 * n))
    I("s_mul_i32 s%d, s%d, %d" % (sW1, sCI, 64 * 3584))
    I("s_add_u32 m0, s%d, %d" % (sMW, k * 16384))
    I("s_add_u32 s%d, s%d, s%d" % (sW1, sW1, sW1b))
    for n in range(4): D("buffer_load_dwordx4 v%d, s[%d:%d], s%d offen offset:%d lds" % (vW1 + n, SRD_W1, SRD_W1 + 3, sW1, 1024 * n))
    I("s_add_u32 s%d, s%d, 1" % (sCI, sCI))
    I("s_and_b32 s%d, s%d, 7" % (sCI, sCI))
    return L
PL, PI, PD = T + 4, T + 5, T + 6
GX0, GX1, GW = T + 8, T + 12, T + 16
g.vm("global_load_dwordx4 %s, v%d, s[%d:%d]" % (vr(GW, 4), vL16, pGATE, pGATE + 1), "small2")
g.vm("global_load_dwordx4 %s, v%d, s[%d:%d]" % (vr(GX0, 4), t1, pX, pX + 1), "small2")
g.vm("global_load_dwordx4 %s, v%d, s[%d:%d] offset:1024" % (vr(GX1, 4), t1, pX, pX + 1), "small2")
g.vm("global_load_ushort v%d, v%d, s[%d:%d]" % (PD, t0, pLDT, pLDT + 1), "small")
g.vm("global_load_ushort v%d, v%d, s[%d:%d]" % (PL, t0, pLRE, pLRE + 1), "small")
g.vm("global_load_ushort v%d, v%d, s[%d:%d]" % (PI, t0, pLIM, pLIM + 1), "small")
for b, sz in ((SRD_W2, 1792 * 1024), (SRD_CR, 512 * 1024), (SRD_CI, 512 * 1024), (SRD_WS, WS_SIZE + (256 * 4 * 128 if OPT["stamps"] else 0)), (SRD_OUT, 2048 * 2048)):
    S("s_mov_b32 s%d, 0x%x", b + 2, sz)
    S("s_mov_b32 s%d, 0x20000", b + 3)
S("s_mov_b32 s%d, 0xffff0000", sMASK)
srd(SRD_W2, pW2); srd(SRD_CR, pCRE); srd(SRD_CI, pCIM); srd(SRD_WS, pWS); srd(SRD_OUT, pOUT)
if OPT["stamps"]:
    e("s_lshl_b32 s101, s2, 2"); S("s_add_u32 s101, s101, s%d", sW); e("s_lshl_b32 s101, s101, 7"); S("s_add_u32 s101, s101, %d", WS_SIZE)
    e("s_mov_b64 exec, 1")
    g.vm("buffer_store_dword v253, off, %s, s101 offset:0" % WSR, "stamp")
    g.vm("buffer_store_dword v252, off, %s, s101 offset:120" % WSR, "stamp")
    e("s_mov_b64 exec, -1")
    nstamp[0] = 1
stamp()
S("v_and_b32 v%d, 31, v%d", t0, vLANE)
S("v_lshrrev_b32 v%d, 5, v%d", t1, vLANE)
S("v_bfe_u32 v%d, v%d, 1, 3", t2, t0)
S("v_xor_b32 v%d, v%d, v%d", t2, t2, t1)
S("v_lshlrev_b32 v%d, 4, v%d", t2, t2)
S("v_lshl_add_u32 v%d, v%d, 7, v%d", t2, t0, t2)
S("v_add_u32 v%d, s%d, v%d", rdA, sMX, t2)
S("v_add_u32 v%d, 0x%x, v%d", rdB, LB, t2)
for s in range(1, 4):
    S("v_xor_b32 v%d, %d, v%d", rdA + s, 32 * s, rdA)
    S("v_xor_b32 v%d, %d, v%d", rdB + s, 32 * s, rdB)
S("s_lshl_b32 s%d, s%d, 1", sT0, sW)
S("v_add_u32 v%d, s%d, v%d", vQ, sT0, t1)
S("v_bfe_u32 v%d, v%d, 2, 2", t0, vLANE)
S("v_lshl_add_u32 v%d, v%d, 3, v%d", t2, t1, t0)
S("v_lshlrev_b32 v%d, 8, v%d", t2, t2)
S("v_lshl_add_u32 v%d, v%d, 6, v%d", t2, t0, t2)
S("v_bfe_u32 v%d, v%d, 4, 1", t3, vLANE)
S("v_lshl_add_u32 v%d, v%d, 5, v%d", vPRE, t3, t2)
S("v_and_b32 v%d, 1, v%d", t3, vLANE)
S("v_lshl_add_u32 v%d, v%d, 4, v%d", t2, t3, vPRE)
S("v_bfe_u32 v%d, v%d, 1, 1", t3, vLANE)
S("v_lshl_add_u32 v%d, v%d, 3, v%d", t2, t3, t2)
S("v_add_u32 v%d, 0x%x, v%d", rdW, LW, t2)
for s in range(1, 4):
    S("v_xor_b32 v%d, %d, v%d", rdW + s, 64 * s, rdW)
if OPT["page"]: e("TOUCH")
run(dma_chunk(1))
e("s_waitcnt lgkmcnt(0)")
S("s_mul_i32 s%d, s%d, 0x9e3779b1", sTAG, sE)
S("s_add_u32 s%d, s%d, 0x7f4a7c15", sTAG, sTAG)
S("s_cmp_lg_u32 s%d, 0", sDUM); e("s_cselect_b64 vcc, -1, 0")

F = Rec()
e = F.e
S("v_lshlrev_b32 v%d, 3, v0", vTID8)
S("v_add_u32 v%d, 0x%x, v%d", vTID8, SCR, vTID8)
S("v_mov_b32 v%d, 0x%x", t3, OOB)
S("v_mov_b32 v%d, s%d", vTAG, sTAG)
S("v_cndmask_b32 v%d, v%d, v%d, vcc", vL16d, vL16, t3)
S("v_add_u32 v%d, 14336, v%d", vC + 2, vC); S("v_add_u32 v%d, 14336, v%d", vC + 3, vC + 1)
S("s_lshl_b32 s%d, s%d, 2", sT0, sQ)
S("v_add_u32 v%d, s%d, v%d", vW2, sT0, vW2)
S("v_and_b32 v%d, 15, v%d", vW2, vW2)
S("v_lshlrev_b32 v%d, 4, v%d", vW2, vW2)
S("v_lshrrev_b32 v%d, 4, v%d", t0, vLANE)
S("v_lshl_add_u32 v%d, v%d, 10, v%d", vW2, t0, vW2)
for n in range(1, 4):
    S("v_add_u32 v%d, %d, v%d", vW2 + n, 3072 * n, vW2)
S("s_mul_i32 s%d, s%d, %d", sV2b, sQ, 448 * 1024); S("s_lshl_b32 s%d, s%d, 8", sT0, sC); S("s_add_u32 s%d, s%d, s%d", sV2b, sV2b, sT0)
S("s_lshr_b32 s%d, s%d, 1", sT0, sC)
S("s_add_u32 s%d, s%d, s%d", sT1, sW, sQ); S("s_and_b32 s%d, s%d, 3", sT1, sT1); S("s_lshl_b32 s%d, s%d, 15", sT1, sT1)
S("s_lshl_b32 s%d, s%d, 17", sCb, sC); S("s_add_u32 s%d, s%d, s%d", sCb, sCb, sT1)
S("s_lshl_b32 s%d, s%d, 8", sT1, sQ); S("s_add_u32 s%d, s%d, s%d", sCb, sCb, sT1)
S("s_lshl_b32 s%d, s%d, 7", sT0, sT0); S("s_add_u32 s%d, s%d, s%d", sCb, sCb, sT0)
if OPT["wpf"]:
    vPF = T + 38
    S("s_and_b32 s%d, s%d, 7", sT0, sR); S("s_mul_i32 s%d, s%d, 56", sT1, sT0); S("s_mul_i32 s%d, s%d, 14", sCNT, sW); S("s_add_u32 s%d, s%d, s%d", sT1, sT1, sCNT)
    S("v_lshrrev_b32 v%d, 1, v%d", t0, vLANE); S("v_add_u32 v%d, s%d, v%d", t0, sT1, t0); S("v_lshlrev_b32 v%d, 10, v%d", t0, t0)
    S("v_and_b32 v%d, 1, v%d", t1, vLANE); S("v_lshl_add_u32 v%d, v%d, 7, v%d", t0, t1, t0)
    S("v_cmp_gt_u32 s[%d:%d], 28, v%d", sTP, sTP + 1, vLANE)
    S("s_lshl_b32 s%d, s%d, 4", sT0, sT0); S("s_and_b32 s%d, s%d, 1", sT1, sW); S("s_lshl_b32 s%d, s%d, 3", sT1, sT1); S("s_add_u32 s%d, s%d, s%d", sT0, sT0, sT1)
    S("v_cndmask_b32 v%d, v%d, v%d, s[%d:%d]", vPF, t3, t0, sTP, sTP + 1)
    S("v_lshrrev_b32 v%d, 1, v%d", t0, vLANE); S("v_add_u32 v%d, s%d, v%d", t0, sT0, t0); S("v_lshlrev_b32 v%d, 10, v%d", t0, t0)
    S("v_lshl_add_u32 v%d, v%d, 7, v%d", t0, t1, t0)
    S("v_cmp_gt_u32 s[%d:%d], 16, v%d", sTP, sTP + 1, vLANE)
    S("s_lshl_b32 s%d, s%d, 17", sT0, sC); S("s_lshl_b32 s%d, s%d, 8", sT1, sQ); S("s_add_u32 s%d, s%d, s%d", sE, sT0, sT1)
    S("v_cndmask_b32 v%d, v%d, v%d, s[%d:%d]", vPF + 1, t3, t0, sTP, sTP + 1)
    S("s_cmp_ge_u32 s%d, 2\ns_cselect_b32 s%d, s%d, s%d\ns_cselect_b32 s%d, s%d, s%d", sW, 88, pCIM, pCRE, 89, pCIM + 1, pCRE + 1)
    F.items[-3:] = [(3, (lambda a, b, c: (lambda gg: (a(gg), b(gg), c(gg))))(F.items[-3][1], F.items[-2][1], F.items[-1][1]))]
    S("s_mov_b32 s90, 0x80000"); S("s_mov_b32 s91, 0x20000")
nearly = len(F.items)
F.wait_vm("small2")
GA0, GA1 = T + 22, T + 24
gl, gh, x0, x1, y0, y1 = T + 26, T + 27, T + 28, T + 29, T + 30, T + 31
for k in range(4):
    S("v_lshlrev_b32 v%d, 16, v%d", gl, GW + k); S("v_and_b32 v%d, s%d, v%d", gh, sMASK, GW + k)
    S("v_lshlrev_b32 v%d, 16, v%d", x0, GX0 + k); S("v_and_b32 v%d, s%d, v%d", x1, sMASK, GX0 + k)
    S("v_lshlrev_b32 v%d, 16, v%d", y0, GX1 + k); S("v_and_b32 v%d, s%d, v%d", y1, sMASK, GX1 + k)
    S("v_mul_f32 v%d, v%d, v%d", x0, x0, gl); S("v_mul_f32 v%d, v%d, v%d", x1, x1, gh)
    S("v_mul_f32 v%d, v%d, v%d", y0, y0, gl); S("v_mul_f32 v%d, v%d, v%d", y1, y1, gh)
    S("v_cvt_pk_bf16_f32 v%d, v%d, v%d", x0, x0, x1); S("v_cvt_pk_bf16_f32 v%d, v%d, v%d", y0, y0, y1)
    S("v_and_b32 v%d, s%d, v%d", x1, sMASK, x0); S("v_lshlrev_b32 v%d, 16, v%d", x0, x0)
    S("v_and_b32 v%d, s%d, v%d", y1, sMASK, y0); S("v_lshlrev_b32 v%d, 16, v%d", y0, y0)
    if k == 0:
        S("v_add_f32 v%d, v%d, v%d", GA0, x0, x1); S("v_add_f32 v%d, v%d, v%d", GA1, y0, y1)
    else:
        S("v_add_f32 v%d, v%d, v%d", GA0, GA0, x0); S("v_add_f32 v%d, v%d, v%d", GA1, GA1, y0)
        S("v_add_f32 v%d, v%d, v%d", GA0, GA0, x1); S("v_add_f32 v%d, v%d, v%d", GA1, GA1, y1)
e("s_nop 0")
for d in ("row_shr:1 row_mask:0xf", "row_shr:2 row_mask:0xf", "row_shr:4 row_mask:0xf", "row_shr:8 row_mask:0xf", "row_bcast:15 row_mask:0xa", "row_bcast:31 row_mask:0xc"):
    S("v_add_f32_dpp v%d, v%d, v%d %s bank_mask:0xf", GA0, GA0, GA0, d)
    S("v_add_f32_dpp v%d, v%d, v%d %s bank_mask:0xf", GA1, GA1, GA1, d)
    e("s_nop 0")
S("v_cvt_pk_bf16_f32 v%d, v%d, v%d", x0, GA0, GA1)
S("v_and_b32 v%d, s%d, v%d", GA1, sMASK, x0); S("v_lshlrev_b32 v%d, 16, v%d", GA0, x0)
S("v_mul_f32 v%d, 0x%x, v%d", GA0, LOG2E | 0x80000000, GA0); S("v_mul_f32 v%d, 0x%x, v%d", GA1, LOG2E | 0x80000000, GA1)
S("v_exp_f32 v%d, v%d", GA0, GA0); S("v_exp_f32 v%d, v%d", GA1, GA1)
e("s_nop 0")
S("v_add_f32 v%d, 1.0, v%d", GA0, GA0); S("v_add_f32 v%d, 1.0, v%d", GA1, GA1)
S("v_rcp_f32 v%d, v%d", GA0, GA0); S("v_rcp_f32 v%d, v%d", GA1, GA1)
S("v_cmp_eq_u32 s[%d:%d], 63, v%d", sTP, sTP + 1, vLANE)
S("v_cvt_pk_bf16_f32 v%d, v%d, v%d", x0, GA0, GA1)
S("v_mov_b32 v%d, s%d", GA0 + 1, sTAG); S("v_mov_b32 v%d, s%d", GA1 + 1, sTAG)
S("v_and_b32 v%d, s%d, v%d", GA1, sMASK, x0); S("v_lshlrev_b32 v%d, 16, v%d", GA0, x0)
S("s_lshl_b32 s%d, s%d, 10", sT0, sR); S("s_lshl_b32 s%d, s%d, 8", sT1, sW); S("s_add_u32 s%d, s%d, s%d", sT0, sT0, sT1)
S("s_add_u32 s%d, s%d, %d", sT0, sT0, GOFF)
S("s_lshl_b32 s%d, s%d, 4", sT1, sJ); S("s_add_u32 s%d, s%d, s%d", sT1, sT1, sT0)
S("v_mov_b32 v%d, s%d", y0, sT1)
S("v_cndmask_b32 v%d, v%d, v%d, s[%d:%d]", y0, t3, y0, sTP, sTP + 1)
F.vm("buffer_store_dwordx4 %s, v%d, %s, 0 offen sc1" % (vr(GA0, 4), y0, WSR), "gst")
vTJ, vGA = T + 32, T + 33
S("v_bfe_u32 v%d, v%d, 2, 1", t0, vLANE)
S("v_bfe_u32 v%d, v%d, 3, 2", t1, vLANE)
S("v_and_b32 v%d, 3, v%d", t2, vLANE)
S("v_lshl_add_u32 v%d, v%d, 2, v%d", t1, t1, t2)
S("v_lshl_add_u32 v%d, v%d, 4, v%d", vTJ, t0, t1)
S("v_lshl_add_u32 v%d, v%d, 3, s%d", vGA, vTJ, sT0)
vXD, vDS = 228, 230
sXT = 69
S("s_lshl_b32 s%d, s%d, 8", sT0, sC); S("s_lshl_b32 s%d, s%d, 6", sT1, sQ); S("s_add_u32 s%d, s%d, s%d", sT0, sT0, sT1)
S("v_lshrrev_b32 v%d, 2, v%d", t0, vLANE)
S("v_and_b32 v%d, 3, v%d", t2, vLANE)
S("v_lshlrev_b32 v%d, 4, v%d", t2, t2)
S("v_lshl_add_u32 v%d, v%d, 10, v%d", vXD, t0, t2)
S("v_add_u32 v%d, 15360, v%d", vXD + 1, vXD)
S("s_lshl_b32 s%d, s%d, 17", sT1, sR); S("s_add_u32 s%d, s%d, s%d", sXT, sT0, sT1); S("s_lshl_b32 s%d, s%d, 15", sT1, sW); S("s_add_u32 s%d, s%d, s%d", sXT, sXT, sT1)
S("v_and_b32 v%d, 31, v%d", t2, vLANE)
S("v_lshlrev_b32 v%d, 1, v%d", t2, t2)
S("v_add_u32 v%d, s%d, v%d", vDS, sT0, t2)
nxaddr = len(F.items)
F.wait_vm("small")
a_, b_ = T + 20, T + 21
S("v_lshlrev_b32 v%d, 16, v%d", PD, PD)
S("v_mul_f32 v%d, 0x%x, v%d", PD, LOG2E, PD)
S("v_exp_f32 v%d, v%d", PD, PD)
S("v_lshlrev_b32 v%d, 16, v%d", PL, PL)
S("v_lshlrev_b32 v%d, 16, v%d", PI, PI)
S("v_cvt_pk_bf16_f32 v%d, v%d, v%d", PD, PD, PD)
S("v_lshlrev_b32 v%d, 16, v%d", PD, PD)
S("v_mul_f32 v%d, v%d, v%d", a_, PD, PL)
S("v_mul_f32 v%d, v%d, v%d", b_, PD, PI)
S("v_mul_f32 v%d, 0x%x, v%d", a_, LOG2E, a_)
S("v_mul_f32 v%d, 0x%x, v%d", b_, INV2PI, b_)
S("v_cvt_f32_u32 v%d, v%d", t3, vQ)
def cpow(d, mul):
    if mul is None:
        S("v_exp_f32 v%d, v%d", t0, a_); S("v_fract_f32 v%d, v%d", t1, b_)
    else:
        S("v_mul_f32 v%d, %s, v%d", t0, mul, a_); S("v_mul_f32 v%d, %s, v%d", t1, mul, b_)
        S("v_exp_f32 v%d, v%d", t0, t0); S("v_fract_f32 v%d, v%d", t1, t1)
    S("v_cos_f32 v%d, v%d", d, t1); S("v_sin_f32 v%d, v%d", d + 1, t1)
    e("s_nop 0")
    S("v_mul_f32 v%d, v%d, v%d", d, d, t0); S("v_mul_f32 v%d, v%d, v%d", d + 1, d + 1, t0)
cpow(cL, None)
cpow(cL16, "0x41800000")
cpow(cL1024, "0x44800000")
S("v_mul_f32 v%d, 0x41800000, v%d", t2, t3); cpow(cL16q, "v%d" % t2)
S("v_mul_f32 v%d, 0x43000000, v%d", t2, t3); cpow(cL128q, "v%d" % t2)
S("v_mul_f32 v%d, v%d, v%d", t0, PL, PL)
S("v_fma_f32 v%d, v%d, v%d, v%d", t0, PI, PI, t0)
S("v_rcp_f32 v%d, v%d", t0, t0)
S("v_add_f32 v%d, -1.0, v%d", t1, cL)
S("v_mul_f32 v%d, v%d, v%d", cCO, t1, PL)
S("v_fma_f32 v%d, v%d, v%d, v%d", cCO, cL + 1, PI, cCO)
S("v_mul_f32 v%d, v%d, v%d", cCO + 1, cL + 1, PL)
S("v_fma_f32 v%d, -v%d, v%d, v%d", cCO + 1, t1, PI, cCO + 1)
S("v_add_f32 v%d, v%d, v%d", t0, t0, t0)
S("v_mul_f32 v%d, v%d, v%d", cCO, cCO, t0)
S("v_mul_f32 v%d, v%d, v%d", cCO + 1, cCO + 1, t0)
S("s_lshl_b32 s%d, s%d, 2", sT0, sR); S("s_add_u32 s%d, s%d, s%d", sT0, sT0, sW)
S("s_mul_i32 s%d, s%d, %d", sHF, sT0, TSTRIDE); S("s_add_u32 s%d, s%d, %d", sHF, sHF, HOFF)
S("s_lshl_b32 s%d, s%d, 9", sFL, sT0); S("s_lshl_b32 s%d, s%d, 7", sT1, sQ); S("s_add_u32 s%d, s%d, s%d", sFL, sFL, sT1); S("s_add_u32 s%d, s%d, %d", sFL, sFL, FLAGS)
S("s_mul_i32 s%d, s%d, %d", sHq, sQ, 28 * 1024); S("s_add_u32 s%d, s%d, s%d", sHq, sHq, sHF)
S("s_lshl_b32 s%d, s%d, 10", sHO, sKSW)
S("s_lshl_b32 s%d, s%d, 14", sHS, sQ); S("s_add_u32 s%d, s%d, s%d", sHS, sHS, sHF); S("s_add_u32 s%d, s%d, %d", sHS, sHS, 112 * 1024)
nlate = len(F.items)
rdVW, rdVX, rdCX, rdCB = 10, 2, 18, 22
vSEG, vPUB, vLB0, vLB1 = 204, 205, 206, 207
vGW, vGR = 238, 239
vXD, vDS = 228, 230
sHFa, sHFb = 64, 65
S("v_and_b32 v%d, 3, v%d", t2, vLANE)
S("v_lshl_add_u32 v%d, v%d, 3, v%d", rdVX, t2, vPRE)
S("v_add_u32 v%d, 0x%x, v%d", rdVW, LW, rdVX)
for s_ in range(1, 4):
    S("v_xor_b32 v%d, %d, v%d", rdVX + s_, 64 * s_, rdVX)
    S("v_xor_b32 v%d, %d, v%d", rdVW + s_, 64 * s_, rdVW)
S("v_and_b32 v%d, 31, v%d", t1, vLANE)
S("v_lshlrev_b32 v%d, 3, v%d", t1, t1)
S("v_add_u32 v%d, 0x%x, v%d", vSEG, SCR, t1)
S("v_lshlrev_b32 v%d, 1, v%d", t0, t1)
S("s_lshl_b32 s%d, s%d, 9", sT0, sJ); S("s_lshl_b32 s%d, s%d, 13", sT1, sR); S("s_add_u32 s%d, s%d, s%d", sT0, sT0, sT1); S("s_add_u32 s%d, s%d, %d", sT0, sT0, AGG)
S("v_add_u32 v%d, s%d, v%d", t0, sT0, t0)
S("v_mov_b32 v%d, 0x%x", t3, OOB)
S("v_cmp_eq_u32 s[%d:%d], 7, v%d", sTP, sTP + 1, vQ)
S("v_add_u32 v%d, 1, v%d", t2, vQ)
S("v_cmp_ge_u32 s[%d:%d], s%d, v%d", sV0, sV0 + 1, sR, t2)
S("v_cndmask_b32 v%d, v%d, v%d, s[%d:%d]", vPUB, t3, t0, sTP, sTP + 1)
S("v_lshlrev_b32 v%d, 13, v%d", t1, t2)
S("v_sub_u32 v%d, v%d, v%d", t1, t0, t1)
S("v_add_u32 v%d, 8, v%d", t2, t2)
S("v_cmp_ge_u32 s[%d:%d], s%d, v%d", sV1, sV1 + 1, sR, t2)
S("v_cndmask_b32 v%d, v%d, v%d, s[%d:%d]", vLB0, t3, t1, sV0, sV0 + 1)
S("v_subrev_u32 v%d, 0x10000, v%d", t1, t1)
S("v_mov_b32 v%d, 0", vPRE); S("v_mov_b32 v%d, 0", vPRE + 1)
S("v_cndmask_b32 v%d, v%d, v%d, s[%d:%d]", vLB1, t3, t1, sV1, sV1 + 1)
S("s_lshl_b32 s%d, s%d, 7", sT0, sW); S("s_add_u32 s%d, s%d, %d", sT0, sT0, GT)
S("v_lshl_add_u32 v%d, v%d, 2, s%d", vGW, vTJ, sT0)
S("v_lshrrev_b32 v%d, 5, v%d", t1, vLANE)
S("v_lshl_add_u32 v%d, v%d, 6, s%d", vGR, t1, sT0)
S("s_add_u32 s%d, s%d, s%d", sHFa, sHq, sHO); S("s_add_u32 s%d, s%d, 4096", sHFb, sHFa)
S("s_mov_b32 s%d, 0", sCNT)
e = g.e

def frag(setn, idx):
    return FR + 28 * setn + 4 * idx
def reads(n):
    c, s = n >> 2, n & 3
    k = c & 3; st = n & 1
    L = []
    L.append(("ds_read_b128 %s, v%d offset:%d" % (vr(frag(st, 0), 4), rdA + s, k * 16384), "ds:r%d_0" % n))
    L.append(("ds_read_b128 %s, v%d offset:%d" % (vr(frag(st, 1), 4), rdB + s, k * 8192), "ds:r%d_1" % n))
    L.append(("ds_read_b128 %s, v%d offset:%d" % (vr(frag(st, 2), 4), rdB + s, k * 8192 + 4096), "ds:r%d_2" % n))
    for t in range(4):
        for e2 in range(2):
            L.append(("ds_read_b64_tr_b16 %s, v%d offset:%d" % (vr(frag(st, 3 + t) + 2 * e2, 2), rdW + t, k * 16384 + s * 4096 + 1024 * e2), "ds:r%d_%d" % (n, 3 + t)))
    return L
def mfma1(n, m):
    st = n & 1
    A = vr(frag(st, 0), 4)
    if m < 2:
        acc = (ACC_RE, ACC_IM)[m]
        S("v_mfma_f32_32x32x16_bf16 %s, %s, %s, %s", vr(acc, 16), A, vr(frag(st, 1 + m), 4), "0" if n == 0 else vr(acc, 16))
    else:
        acc = ACC_F + 16 * (m - 2)
        S("v_mfma_f32_32x32x16_bf16 %s, %s, %s, %s", vr(acc, 16), vr(frag(st, 1 + m), 4), A, "0" if n == 0 else vr(acc, 16))

USLOT = {0: ("X", 0), 1: ("W", 0), 2: ("X", 1), 3: ("W", 1), 4: ("X", 2), 5: ("W", 2), 6: ("W", 3), 7: ("X", 3), 8: ("B", 0), 9: ("X", 0), 10: ("X", 1)}
def unit(v):
    L = []
    reg, k = USLOT[v]
    if v < 7:
        if v == 0:
            L.append(("s_add_u32 s%d, s%d, s%d" % (sT3, sW, sKSW), None))
        else:
            L.append(("s_add_u32 s%d, s%d, %d" % (sT3, sW, 4 * v), None))
            L.append(("s_sub_u32 s%d, s%d, 6" % (sT2, sT3), None))
            L.append(("s_cmp_lt_u32 s%d, s%d" % (sT2, sKSW), None))
            L.append(("s_cselect_b32 s%d, s%d, s%d" % (sT2, sT2, sT3), None))
            if v == 1:
                L.append(("s_add_u32 s%d, s%d, s%d" % (sT3, sT3, sKSW), None))
                L.append(("s_cmp_lt_u32 s%d, 2" % sW, None))
                L.append(("s_cselect_b32 s%d, s%d, s%d" % (sT2, sT3, sT2), None))
            L.append(("s_mov_b32 s%d, s%d" % (sT3, sT2), None))
        L.append(("s_lshl_b32 s%d, s%d, 14" % (sT3, sT3), None))
        L.append(("s_add_u32 m0, s%d, %d" % (sMX if reg == "X" else sMW, k * 16384), None))
        L.append(("s_add_u32 s%d, s%d, s%d" % (sT3, sT3, sV2b), None))
        sd, vo, so = SRD_W2, vW2, sT3
    else:
        b = v - 7
        L.append(("s_add_u32 m0, s%d, %d" % (sMX, LB if reg == "B" else k * 16384), None))
        if b & 1:
            L.append(("s_xor_b32 s%d, s%d, 128" % (sT3, sCb), None)); so = sT3
        else:
            L.append(("s_nop 0", None)); so = sCb
        sd, vo = (SRD_CR if b < 2 else SRD_CI), vC
    for n in range(4):
        L.append(("buffer_load_dwordx4 v%d, s[%d:%d], s%d offen offset:%d lds" % (vo + n, sd, sd + 3, so, 1024 * n), "v%d" % v))
    return L

class Spread:
    def __init__(self, items, gaps):
        self.items = list(items)
        n = sum(1 for x in items if x[1])
        self.sched = [int((i + 0.5) * gaps / n) for i in range(n)] if n else []
        self.gi = 0
    def gap(self):
        used = 0
        while self.sched and self.sched[0] <= self.gi:
            self.sched.pop(0)
            while True:
                it = self.items.pop(0); run([it]); used += 1
                if it[1]: break
            if not self.sched:
                run(self.items); used += len(self.items); self.items = []
        self.gi += 1
        return used
    def flush(self):
        run(self.items); self.items = []; self.sched = []

GG = T + 34
DSK = T + 37
def g_load(tag):
    g.vm("buffer_load_dwordx2 %s, v%d, %s, 0 offen sc1" % (vr(GG, 2), vGA, WSR), tag)

stamp()
g.wait_vm("ch0")
e("s_barrier")
stamp()
for it in reads(0):
    if OPT["skip"] and it[1].endswith("_6"): g.e(it[0])
    else: run([it])
def chunk_items(c):
    if c + 2 < 8: return dma_chunk(c + 2)
    if c == 6: return unit(0) + unit(1)
    xdma = [("s_mov_b32 m0, s%d" % sMB, None), ("s_nop 0", None)]
    xdma += [("buffer_load_dwordx4 v%d, s[%d:%d], s%d offen offset:%d lds" % (vXD + n, SRD_X, SRD_X + 3, sXT, 1024 * n), "xr") for n in range(2)]
    xdma += [("global_load_ushort v%d, v%d, s[%d:%d]" % (DSK, vDS, pDSK, pDSK + 1), "xr")]
    return unit(2) + unit(3) + xdma
sp = Spread(chunk_items(0), 18)
nplayed = 0
def emit_read(item):
    s_, tag = item
    if OPT["skip"] and tag.endswith("_6"):
        g.e(s_); ph.append(len(g.lgq))
        evq.append(tag)
    else:
        g.ds(s_, tag[3:]); evq.append(tag)
def wait_tile(n, m):
    if OPT["skip"] and m == 5:
        tag = "ds:r%d_6" % n
        k = len(evq) - 1 - max(i for i, t in enumerate(evq) if t == tag)
        g.e("s_waitcnt lgkmcnt(%d)" % k)
    else:
        g.wait_lg("r%d_%d" % (n, m + 1))
ph = []; evq = [x[1] for x in reads(0)]
for n in range(32):
    c, s = n >> 2, n & 3
    nxt = reads(n + 1) if n < 31 else []
    per = [2, 2, 2, 2, 1, 2]
    for m in range(6):
        sk = OPT["skip"] and m == 5
        if sk: e("s_cbranch_vccnz L_sk%d" % n)
        wait_tile(n, m)
        mfma1(n, m)
        if s == 3 and m == 0:
            assert not sp.items
            nstamp_("a%d" % c)
            if c < 7: g.wait_vm("ch%d" % (c + 1))
            e("s_barrier")
            nstamp_("b%d" % c)
            sp = Spread(chunk_items(c + 1) if c < 7 else [], 23)
            if OPT["wpf"] and c == OPT["wpc"]:
                assert len(F.items) <= ntot - nearly
                g.vm("buffer_load_dword v%d, v%d, s[%d:%d], s%d offen" % (vPF + 2, vPF, SRD_W2, SRD_W2 + 3, sV2b), "wpf")
                g.vm("buffer_load_dword v%d, v%d, s[88:91], s%d offen" % (vPF + 3, vPF + 1, sE), "wpf")
            if c == 5: assert len(F.items) <= ntot - nearly, "staging scalars not ready"
            if c == 6:
                g_load("gl")
                assert len(F.items) <= ntot - nxaddr
        for it in nxt[:per[m]]: emit_read(it)
        nxt = nxt[per[m]:]
        assert len(evq) - max([i for i, t in enumerate(evq) if t.startswith("ds:r%d_" % n)] + [-1]) - 1 <= 11
        if sk: g.label("L_sk%d" % n)
        if s == 3 and m == 0: continue
        used = sp.gap()
        if n == 0: ntot = len(F.items)
        if n >= 1:
            bud = max(0, OPT["fillb"] + (n >= 24) + (2 - per[m]) - used - (1 if sk else 0))
            if n < 24: bud = min(bud, nlate - (ntot - len(F.items)))
            F.play(g, bud)
    assert not nxt
print("fillers left after loop:", len(F.items))
F.flush(g)
stamp()

GREG = 208
OM = T + 36
g.wait_vm("gl")
assert g.vm_count("v1") is None
g.label("L_g_chk")
S("v_cmp_ne_u32 vcc, s%d, v%d", sTAG, GG + 1)
S("s_add_u32 s%d, s%d, 1", sCNT, sCNT)
e("s_cbranch_vccz L_g_ok")
S("s_cmp_ge_u32 s%d, 0x8000", sCNT)
e("s_cbranch_scc1 L_g_ok")
sv = list(g.vmq); g_load("x"); g.vmq = sv
e("s_waitcnt vmcnt(0)")
e("s_branch L_g_chk")
g.label("L_g_ok")
g.ds("ds_write_b32 v%d, v%d" % (vGW, GG), "gw")
for k in range(4):
    g.ds("ds_read_b128 %s, v%d offset:%d" % (vr(GREG + 4 * k, 4), vGR, 16 * k), "gr")
S("v_sub_f32 v%d, 1.0, v%d", OM, GG)
S("v_cvt_pk_bf16_f32 v%d, v%d, v%d", OM, OM, OM)
S("v_lshlrev_b32 v%d, 16, v%d", OM, OM)
PB = 224
S("v_mov_b32 v%d, s%d", PB + 2, sTAG); S("v_mov_b32 v%d, s%d", PB + 3, sTAG)
vOUT = 44
def hstore(t, fr):
    d = ACC_F + 8 * t
    return ("buffer_store_dwordx4 %s, v%d, %s, s%d offen offset:%d%s" % (vr(d + 4 * fr, 4), vL16d if t == 3 else vL16, WSR, sHFa if t < 2 else sHFb, 2048 * (t & 1) + 1024 * fr, HSC), "hf")
pend_st = []
nst = 0
for t in range(4):
    f = ACC_F + 16 * t; d = ACC_F + 8 * t
    for k in range(8):
        S("v_pk_mul_f32 %s, %s, %s op_sel_hi:[1,0]", vr(f + 2 * k, 2), vr(f + 2 * k, 2), vr(OM, 2))
    for fr in range(2):
        for k in range(4 * fr, 4 * fr + 4):
            S("v_cvt_pk_bf16_f32 v%d, v%d, v%d", d + k, f + 2 * k, f + 2 * k + 1)
        for k in range(4 * fr, 4 * fr + 4):
            S("v_pk_max_i16 v%d, v%d, 0", d + k, d + k)
        if nst < OPT["nst0"]: run([hstore(t, fr)])
        else: pend_st.append(hstore(t, fr))
        nst += 1
stamp()
late = Spread(pend_st[:OPT["nst1"]], 7); pend_st = pend_st[OPT["nst1"]:]
H0, H1 = 100, 102
pr, pi = ACC_RE, ACC_IM
for t in range(1, 16):
    d = (H0, H1)[t & 1]
    cfma(d, d + 1, cL, cL + 1, pr, pi, ACC_RE + t, ACC_IM + t)
    pr, pi = d, d + 1
    if t % 2 == 0: late.gap()
OWN = pr
g.ds("ds_write_b64 v%d, %s" % (vTID8, vr(OWN, 2)), "agg")
g.wait_lg_all()
e("s_barrier")
SG = 240
for s_ in range(7):
    g.ds("ds_read_b64 %s, v%d offset:%d" % (vr(SG + 2 * s_, 2), vSEG, 256 * s_), "sg%d" % s_)
for s_ in range(7):
    g.wait_lg("sg%d" % s_)
    S("v_cmpx_lt_u32 vcc, %d, v%d", s_, vQ)
    a = SG + 2 * s_
    if s_ == 0:
        S("v_mov_b32 v%d, v%d", vPRE, a); S("v_mov_b32 v%d, v%d", vPRE + 1, a + 1)
    else:
        S("v_fma_f32 v%d, v%d, v%d, v%d", a, cL16, vPRE, a)
        S("v_fma_f32 v%d, v%d, v%d, v%d", a + 1, cL16, vPRE + 1, a + 1)
        S("v_fma_f32 v%d, -v%d, v%d, v%d", a, cL16 + 1, vPRE + 1, a)
        S("v_fma_f32 v%d, v%d, v%d, v%d", vPRE + 1, cL16 + 1, vPRE, a + 1)
        S("v_mov_b32 v%d, v%d", vPRE, a)
e("s_mov_b64 exec, -1")
cfma(PB, PB + 1, cL16, cL16 + 1, vPRE, vPRE + 1, OWN, OWN + 1)
g.vm("buffer_store_dwordx4 %s, v%d, %s, 0 offen sc1" % (vr(PB, 4), vPUB, WSR), "pub")
stamp()
u6 = unit(6)
A0, A1 = 228, 232
lbl_ = [("buffer_load_dwordx4 %s, v%d, %s, 0 offen sc1" % (vr(A0, 4), vLB0, WSR), "lb"), ("buffer_load_dwordx4 %s, v%d, %s, 0 offen sc1" % (vr(A1, 4), vLB1, WSR), "lb")]
def lb_loads(tag):
    for s_, _ in lbl_: g.vm(s_, tag)
late = Spread(pend_st + unit(4) + lbl_, OPT["lgaps"])

ACC2 = [48, 64, 80, 240]
WF = 168
FULL = set(range(0, 4)) | set(range(8, 12))
def tiles(n): return [0, 1, 2, 3] if n in FULL else [1, 2, 3]
def wread(n, tau, dst):
    v = n >> 2; sg = n & 3
    reg, k = USLOT[v]
    if n < 28:
        base = (rdVX if reg == "X" else rdVW) + tau
        return [("ds_read_b64_tr_b16 %s, v%d offset:%d" % (vr(dst + 2 * e2, 2), base, k * 16384 + sg * 4096 + 1024 * e2), None) for e2 in range(2)]
    base = (rdCX if reg == "X" else rdCB) + sg
    return [("ds_read_b128 %s, v%d offset:%d" % (vr(dst, 4), base, (k * 16384 if reg == "X" else 0) + tau * 4096), None)]
WF3 = [104, 108, 120, 124]
ORDER = list(range(44))
POS = {n: p for p, n in enumerate(ORDER)}
def wfrag(n, tau):
    p = POS[n]
    if p < 6: return WF + 16 * (p & 1) + 4 * tau
    k = p % 3
    return WF + 16 * k + 4 * tau if k < 2 else WF3[tau]
def reads2(n):
    L = []
    for tau in tiles(n):
        for s, _ in wread(n, tau, wfrag(n, tau)):
            L.append((s, "ds:w%d_%d" % (n, tau)))
    return L
TFR, TFI = ACC_RE + 8, ACC_IM + 8
def hfrag(n):
    if n < 6: return vr(ACC_F + 4 * n, 4)
    if n < 28: return ar(4 * (n - 6), 4)
    m = n - 28
    if m in (0, 1): return vr(TFR + 4 * m, 4)
    if m in (8, 9): return vr(TFI + 4 * (m - 8), 4)
    idx = m - 2 if m < 8 else m - 4
    return ar(88 + 4 * idx, 4)
def hload(n):
    L = []
    if n < 28:
        if n % 2 == 0:
            L.append(("s_cmp_gt_u32 s%d, %d" % (sKSW, n - 6), None))
            L.append(("s_cselect_b32 s%d, s%d, s%d" % (sX, sHFa, sHq), None))
            L.append(("s_add_u32 s%d, s%d, %d" % (sX, sX, n * 1024), None))
    else:
        m = n - 28
        if m % 2 == 0:
            L.append(("s_xor_b32 s%d, s%d, %d" % (sX, sC, (m >> 1) & 3), None))
            L.append(("s_lshl_b32 s%d, s%d, 11" % (sX, sX), None))
            L.append(("s_add_u32 s%d, s%d, s%d" % (sX, sX, sHS), None))
            if m >= 8: L.append(("s_add_u32 s%d, s%d, 8192" % (sX, sX), None))
    if OPT["exp"] == 1: return L
    if OPT["exp"] == 2:
        L.append(("buffer_load_dwordx4 %s, v%d, s[%d:%d], 0 offen offset:%d" % (hfrag(n), vL16, SRD_W2, SRD_W2 + 3, 1024 * (n & 3)), "h%d" % n))
        return L
    L.append(("buffer_load_dwordx4 %s, v%d, %s, s%d offen offset:%d%s" % (hfrag(n), vL16, WSR, sX, 1024 * (n & 1), "" if OPT["exp"] == 3 else " sc1"), "h%d" % n))
    return L
started = set()
RQ = []
def issue_reads(cur, ahead, maxn, limit):
    k = 0
    while RQ and k < maxn and RQ[0][0] <= min(cur + ahead, limit) and len(g.lgq) < 15:
        run([RQ.pop(0)[1]]); k += 1
    return k
def step(n, fill=None, pre=None, budget=3, ahead=2, limit=99):
    tl = tiles(n)
    while RQ and RQ[0][0] <= POS[n]:
        if len(g.lgq) >= 15: g.wait_lg(g.lgq[1])
        run([RQ.pop(0)[1]])
    g.wait_vm("h%d" % n)
    for i, tau in enumerate(tl):
        if i == 0 and pre:
            g.wait_lg_all()
        else:
            g.wait_lg("w%d_%d" % (n, tau))
        acc = vr(ACC2[tau], 16)
        S("v_mfma_f32_32x32x16_bf16 %s, %s, %s, %s", acc, hfrag(n), vr(wfrag(n, tau), 4), acc if tau in started else "0")
        started.add(tau)
        if i == 0 and pre: pre()
        k = issue_reads(POS[n], ahead, 3, limit)
        if fill: fill(max(0, budget + 2 - k))

F = Rec(); e = F.e
S("s_and_b32 s%d, s%d, 1", sT0, sC); S("s_lshl_b32 s%d, s%d, 6", sT0, sT0)
S("v_subrev_u32 v%d, 0x%x, v%d", rdCX, LB, rdB)
S("v_xor_b32 v%d, s%d, v%d", rdCX, sT0, rdCX)
S("v_xor_b32 v%d, s%d, v%d", rdCB, sT0, rdB)
for s in range(1, 4):
    S("v_xor_b32 v%d, %d, v%d", rdCX + s, 32 * s, rdCX)
    S("v_xor_b32 v%d, %d, v%d", rdCB + s, 32 * s, rdCB)
for t in range(16):
    ur, ui = ACC_RE + t, ACC_IM + t
    tt = 100 + (t & 1)
    S("v_mul_f32 v%d, v%d, v%d", tt, ur, cCO + 1)
    S("v_mul_f32 v%d, v%d, v%d", ur, ur, cCO)
    S("v_fma_f32 v%d, -v%d, v%d, v%d", ur, ui, cCO + 1, ur)
    S("v_fma_f32 v%d, v%d, v%d, v%d", ui, ui, cCO, tt)
vTW, vTR = 26, 28
vXL, vFLG, FLD = 96, 97, 203
S("s_add_u32 s%d, s%d, %d", sT0, sMB, TRB - LB)
S("v_and_b32 v%d, 31, v%d", t0, vLANE)
S("v_bfe_u32 v%d, v%d, 1, 2", t1, vLANE)
S("v_lshrrev_b32 v%d, 5, v%d", t2, vLANE)
S("v_lshlrev_b32 v%d, 1, v%d", t3, t2)
S("v_xor_b32 v%d, v%d, v%d", t1, t1, t3)
S("v_lshlrev_b32 v%d, 4, v%d", t1, t1)
S("v_lshl_add_u32 v%d, v%d, 6, v%d", t1, t0, t1)
S("v_add_u32 v%d, s%d, v%d", vTW, sT0, t1)
S("v_xor_b32 v%d, 16, v%d", vTW + 1, vTW)
S("v_lshlrev_b32 v%d, 1, v%d", t0, t0)
S("v_lshl_add_u32 v%d, v%d, 10, v%d", vXL, t2, t0)
S("v_add_u32 v%d, s%d, v%d", vXL, sMB, vXL)
S("v_lshl_add_u32 v%d, v%d, 14, v%d", t0, t2, t0)
S("v_add_u32 v%d, s%d, v%d", 98, sXT, t0)
S("v_bfe_u32 v%d, v%d, 2, 2", t0, vLANE)
S("v_lshl_add_u32 v%d, v%d, 3, v%d", t2, t2, t0)
S("v_lshrrev_b32 v%d, 1, v%d", t0, t0)
S("v_and_b32 v%d, 1, v%d", t1, vLANE)
S("v_lshlrev_b32 v%d, 1, v%d", t1, t1)
S("v_bfe_u32 v%d, v%d, 4, 1", t3, vLANE)
S("v_add_u32 v%d, v%d, v%d", t1, t1, t3)
S("v_xor_b32 v%d, v%d, v%d", t1, t1, t0)
S("v_lshlrev_b32 v%d, 4, v%d", t1, t1)
S("v_lshl_add_u32 v%d, v%d, 6, v%d", t1, t2, t1)
S("v_bfe_u32 v%d, v%d, 1, 1", t3, vLANE)
S("v_lshl_add_u32 v%d, v%d, 3, v%d", t1, t3, t1)
S("v_add_u32 v%d, s%d, v%d", vTR, sT0, t1)
S("v_xor_b32 v%d, 32, v%d", vTR + 1, vTR)
S("v_add_u32 v%d, 256, v%d", vTR + 1, vTR + 1)
S("v_and_b32 v%d, 3, v%d", t0, vLANE)
S("v_lshl_add_u32 v%d, v%d, 2, s%d", vFLG, t0, sFL)
S("s_mov_b32 s%d, 32768", sB)
S("s_mov_b32 s%d, 0", sCNT)
S("s_lshl_b32 s%d, s%d, 2", sT1, sC); S("s_add_u32 s%d, s%d, s%d", sFL, sFL, sT1)
e = g.e
for n in range(6): RQ += [(n, x) for x in reads2(n)]
def fill5(b):
    u = late.gap()
    F.play(g, max(0, b - u))
for n in range(6):
    step(n, fill5, budget=2, ahead=1)
late.flush()
F.flush(g)
S("v_lshlrev_b32 v%d, 1, v98", vOUT)
S("s_sub_u32 s%d, s%d, 6144", sHFa, sHq)
stamp()
def flag_load(kind, tag):
    g.vm("buffer_load_dword v%d, v%d, %s, %s offen sc1" % (FLD, vFLG, WSR, "s%d" % sB if kind else "0"), tag)
def flag_check(loader, lbl):
    S("s_mov_b32 s%d, 0", sCNT)
    g.label(lbl + "_chk")
    S("v_cmp_ne_u32 vcc, s%d, v%d", sTAG, FLD)
    S("s_add_u32 s%d, s%d, 1", sCNT, sCNT)
    S("s_cbranch_vccz %s_ok", lbl)
    S("s_cmp_ge_u32 s%d, 0x8000", sCNT)
    S("s_cbranch_scc1 %s_ok", lbl)
    sv = list(g.vmq); loader("x"); g.vmq = sv
    e("s_waitcnt vmcnt(0)")
    S("s_branch %s_chk", lbl)
    g.label(lbl + "_ok")
vorder = [5, 6, 7, 8, 9, 10]
for v in vorder[:OPT["npre"]]: run(unit(v))
vorder = vorder[OPT["npre"]:]
g.wait_vm("hf")
nstamp_("hfdone")
assert g.vm_count("xr") is None
S("v_lshlrev_b32 v205, 16, v%d", DSK)
DSK = 205
e("s_mov_b64 exec, 1")
g.vm("buffer_store_dword v%d, off, %s, s%d sc1" % (vTAG, WSR, sFL), "fl0")
e("s_mov_b64 exec, -1")
g.wait_vm("lb")
g.label("L_lb_chk")
S("v_cmp_ne_u32 vcc, s%d, v%d", sTAG, A0 + 2)
S("v_cmp_ne_u32 s[%d:%d], s%d, v%d", sTP, sTP + 1, sTAG, A1 + 2)
S("s_and_b64 vcc, vcc, s[%d:%d]", sV0, sV0 + 1)
S("s_and_b64 s[%d:%d], s[%d:%d], s[%d:%d]", sTP, sTP + 1, sTP, sTP + 1, sV1, sV1 + 1)
S("s_or_b64 vcc, vcc, s[%d:%d]", sTP, sTP + 1)
e("s_cbranch_scc0 L_lb_ok")
S("s_add_u32 s%d, s%d, 1", sCNT, sCNT)
S("s_cmp_ge_u32 s%d, 0x8000", sCNT)
e("s_cbranch_scc1 L_lb_ok")
sv = list(g.vmq); lb_loads("x"); g.vmq = sv
e("s_waitcnt vmcnt(0)")
e("s_branch L_lb_chk")
g.label("L_lb_ok")
cfma(A0, A0 + 1, cL1024, cL1024 + 1, A1, A1 + 1, A0, A0 + 1)
cmul(A1, A1 + 1, cL128q, cL128q + 1, A0, A0 + 1)
g.ds("ds_write_b64 v%d, %s offset:2048" % (vTID8, vr(A1, 2)), "pw")
assert g.vm_count("v4") is None
g.wait_lg_all()
e("s_barrier")
stamp()
SG = 224
for s_ in range(8):
    g.ds("ds_read_b64 %s, v%d offset:%d" % (vr(SG + 2 * s_, 2), vSEG, 2048 + 256 * s_), "pp%d" % s_)
NH0 = OPT["nh0"]
hq = list(range(6, 6 + NH0))
vs = Spread(sum([unit(v) for v in vorder[:OPT["nscan"]]], []), 8); vorder = vorder[OPT["nscan"]:]
XR = 224
for s_ in range(1, 8):
    g.wait_lg("pp%d" % s_)
    S("v_pk_add_f32 %s, %s, %s", vr(SG, 2), vr(SG, 2), vr(SG + 2 * s_, 2))
cfma(vPRE, vPRE + 1, cL16q, cL16q + 1, SG, SG + 1, vPRE, vPRE + 1)
cmul(100, 101, cCO, cCO + 1, vPRE, vPRE + 1)
pr, pi = 100, 101
for t in range(16):
    cfma(ACC_RE + t, ACC_IM + t, cL, cL + 1, pr, pi, ACC_RE + t, ACC_IM + t)
    pr, pi = ACC_RE + t, ACC_IM + t
    if len(g.lgq) >= 12: g.wait_lg(g.lgq[3])
    g.ds("ds_read_u16 v%d, v%d offset:%d" % (XR + t, vXL, 64 * t), "xl%d" % t)
    vs.gap()
    if t == OPT["pfpos"]: flag_load(0, "pf0")
    if t == OPT["pchk"]:
        g.wait_vm("pf0")
        flag_check(lambda tag: flag_load(0, tag), "L_f0")
        nstamp_("pollok")
        nin = min(NH0, 2 * ((15 - t) // 2))
        vs = Spread(sum([hload(n) for n in hq[:nin]], []), 15 - t); hq = hq[nin:]
stamp()
for x, (acc, tf, ng) in enumerate(((ACC_RE, TFR, ""), (ACC_IM, TFI, "-"))):
    for k in range(8):
        S("v_pk_mul_f32 %s, %s, %s", vr(acc + 2 * k, 2), vr(acc + 2 * k, 2), vr(GREG + 2 * k, 2))
    for k in range(8):
        S("v_cvt_pk_bf16_f32 v%d, %sv%d, %sv%d", acc + k, ng, acc + 2 * k, ng, acc + 2 * k + 1)
    g.wait_lg("xl15")
    for p in range(2):
        g.ds("ds_write_b128 v%d, %s" % (vTW + p, vr(acc + 4 * p, 4)), "tw")
    for f in range(2):
        for e2 in range(2):
            g.ds("ds_read_b64_tr_b16 %s, v%d offset:%d" % (vr(tf + 4 * f + 2 * e2, 2), vTR + e2, 1024 * f), "tr%d%d" % (x, f))
S("s_lshl_b32 s%d, s%d, 11", sT0, sC); S("s_add_u32 s%d, s%d, s%d", sT0, sT0, sHS)
S("s_add_u32 s%d, s%d, 8192", sT1, sT0)
def hs_store(x, f):
    g.wait_lg("tr%d%d" % (x, f))
    g.vm("buffer_store_dwordx4 %s, v%d, %s, s%d offen offset:%d%s" % (vr((TFI if x else TFR) + 4 * f, 4), vL16, WSR, sT1 if x else sT0, 1024 * f, HSC), "hs")
hsq = [(0, 0), (0, 1), (1, 0), (1, 1)]
vs.flush()
for _ in range(OPT["hs0"]): hs_store(*hsq.pop(0))
if OPT["pchk"] > 15:
    g.wait_vm("pf0")
    flag_check(lambda tag: flag_load(0, tag), "L_f0")
    nstamp_("pollok")
stamp()
for n in ORDER[6:]: RQ += [(POS[n], x_) for x_ in reads2(n)]
while hsq or hq:
    for _ in range(2):
        if hq: run(hload(hq.pop(0)))
    if hsq: hs_store(*hsq.pop(0))
    issue_reads(6, 1, 3, 99)
stamp()
vF2S, vF2L = 98, 99
sPS = [66, 67, 68]; sPL = 69
S("s_lshl_b32 s%d, s%d, 4", sT0, sR); S("s_add_u32 s%d, s%d, s%d", sT0, sT0, sC); S("s_lshl_b32 s%d, s%d, 2", sT0, sT0); S("s_add_u32 s%d, s%d, s%d", sT0, sT0, sW)
for tau in range(1, 4):
    S("s_add_u32 s%d, s%d, %d", sT1, sQ, tau); S("s_and_b32 s%d, s%d, 3", sT1, sT1); S("s_lshl_b32 s%d, s%d, 4", sT1, sT1); S("s_add_u32 s%d, s%d, s%d", sT1, sT1, sT0)
    S("s_mul_i32 s%d, s%d, 6144", sPS[tau - 1], sT1); S("s_add_u32 s%d, s%d, %d", sPS[tau - 1], sPS[tau - 1], PART + 2048 * (tau - 1))
S("s_lshl_b32 s%d, s%d, 4", sT1, sQ); S("s_add_u32 s%d, s%d, s%d", sT1, sT1, sT0)
S("s_mul_i32 s%d, s%d, 6144", sPL, sT1); S("s_add_u32 s%d, s%d, %d", sPL, sPL, PART)
S("s_lshl_b32 s%d, s%d, 7", sT1, sT1); S("s_add_u32 s%d, s%d, %d", sT1, sT1, FLAGS2)
S("v_min_u32 v%d, 2, v%d", t0, vLANE)
S("v_lshl_add_u32 v%d, v%d, 2, s%d", vF2L, t0, sT1)
S("v_add_u32 v%d, s%d, v%d", t1, sQ, t0)
S("v_add_u32 v%d, 1, v%d", t1, t1)
S("v_and_b32 v%d, 3, v%d", t1, t1)
S("v_lshlrev_b32 v%d, 11, v%d", t1, t1)
S("v_lshl_add_u32 v%d, v%d, 2, v%d", t1, t0, t1)
S("s_lshl_b32 s%d, s%d, 7", sT0, sT0); S("s_add_u32 s%d, s%d, %d", sT0, sT0, FLAGS2)
S("v_add_u32 v%d, s%d, v%d", vF2S, sT0, t1)
for k in range(8):
    S("v_lshlrev_b32 v%d, 16, v%d", XR + 2 * k, XR + 2 * k); S("v_lshlrev_b32 v%d, 16, v%d", XR + 2 * k + 1, XR + 2 * k + 1)
    S("v_mul_f32 v%d, v%d, v%d", XR + 2 * k, XR + 2 * k, DSK); S("v_mul_f32 v%d, v%d, v%d", XR + 2 * k + 1, XR + 2 * k + 1, DSK)
    S("v_cvt_pk_bf16_f32 v%d, v%d, v%d", XR + 2 * k, XR + 2 * k, XR + 2 * k + 1)
    S("v_and_b32 v%d, s%d, v%d", XR + 2 * k + 1, sMASK, XR + 2 * k)
    S("v_lshlrev_b32 v%d, 16, v%d", XR + 2 * k, XR + 2 * k)
    S("v_fma_f32 v%d, v%d, v%d, v%d", ACC2[0] + 2 * k, XR + 2 * k, GREG + 2 * k, ACC2[0] + 2 * k)
    S("v_fma_f32 v%d, v%d, v%d, v%d", ACC2[0] + 2 * k + 1, XR + 2 * k + 1, GREG + 2 * k + 1, ACC2[0] + 2 * k + 1)
nstamp_("gxd")
pend = list(range(6 + NH0, 28))
pend_s = [n for n in range(28, 44) if (n - 28) not in (0, 1, 8, 9)]
assert not hq
vq = [v for v in vorder if v < 8] + [9, 8, 10]
NV = OPT["npre"] + OPT["nscan"]
vitems = []
def fill2(b):
    pass
PFS = OPT["pfs"]
SY = {11: ("v%d" % (4 + NV), 4 * (5 + NV) - 1), OPT["sy2"]: ("v8", 35), 34: ("v10", 99)}
assert NV <= 3
limit = 19
for n in ORDER[6:]:
    pre = None
    if n in SY:
        def pre(n=n):
            g.wait_vm(SY[n][0])
            e("s_barrier")
        limit = SY[n][1]
    step(n, fill2, pre, budget=0, limit=limit)
    nstamp_("s%d" % n)
    if n == OPT["hsn"]:
        S("s_add_u32 s%d, s%d, 32768", sCI, sFL)
        g.wait_vm("hs")
        e("s_mov_b64 exec, 1")
        g.vm("buffer_store_dword v%d, off, %s, s%d sc1" % (vTAG, WSR, sCI), "fl1")
        e("s_mov_b64 exec, -1")
        e("s_nop 1")
    if n == PFS: flag_load(1, "pf1")
    if not vitems and vq and not (vq[0] in (8, 10) and n < 11):
        vitems = unit(vq.pop(0))
    while vitems:
        it = vitems.pop(0); run([it])
        if it[1]: break
    if pend:
        run(hload(pend.pop(0)))
    else:
        if g.wait_vm("pf1"):
            flag_check(lambda tag: flag_load(1, tag), "L_f1")
        if pend_s: run(hload(pend_s.pop(0)))
        if pend_s and len(pend_s) % 2 == 1: run(hload(pend_s.pop(0)))
assert not pend and not pend_s and not vq and not vitems
stamp()
F = Rec(); e = F.e
for tau in range(1, 4):
    a = ACC2[tau]
    for k in range(8):
        S("v_cvt_pk_bf16_f32 v%d, v%d, v%d", a + k, a + 2 * k, a + 2 * k + 1)
    for p in range(2):
        F.vm("buffer_store_dwordx4 %s, v%d, %s, s%d offen offset:%d%s" % (vr(a + 4 * p, 4), vL16, WSR, sPS[tau - 1], 1024 * p, " sc1" if OPT["psc"] else ""), "ps")
e = g.e
dl = [n for n in range(44) if n not in FULL]
AHEAD = 5
def dread(i):
    for s, _ in wread(dl[i], 0, WF + 4 * (i % 8)):
        g.ds(s, "d%d" % i)
for i in range(AHEAD): dread(i)
e("s_nop 1")
def f2_load(tag):
    g.vm("buffer_load_dword v%d, v%d, %s, 0 offen sc1" % (FLD, vF2L, WSR), tag)
for i, n in enumerate(dl):
    g.wait_lg("d%d" % i)
    acc = vr(ACC2[0], 16)
    S("v_mfma_f32_32x32x16_bf16 %s, %s, %s, %s", acc, hfrag(n), vr(WF + 4 * (i % 8), 4), acc)
    if i + AHEAD < len(dl): dread(i + AHEAD)
    F.play(g, OPT["tb"])
    nstamp_("d%d" % i)
    if i == OPT["fwait"]:
        assert not F.items
        g.wait_vm("ps")
        nstamp_("psdone")
        e("s_mov_b64 exec, 7")
        g.vm("buffer_store_dword v%d, v%d, %s, 0 offen sc1" % (vTAG, vF2S, WSR), "fl2")
        e("s_mov_b64 exec, -1")
        e("s_nop 1")
f2_load("pf2")
stamp()
S("v_mov_b32 v%d, 0x3f80", t0)
S("v_mov_b32 v%d, 0x3f800000", t1)
S("s_cmp_eq_u32 s%d, 15", sR); S("s_cselect_b32 s%d, s%d, 1", sT3, sJ); S("s_or_b32 s%d, s%d, s%d", sT3, sT3, sW)
g.wait_vm("pf2")
flag_check(f2_load, "L_f2")
stamp()
S("s_add_u32 s%d, s%d, 4096", sT0, sPL)
for k in range(3):
    for p in range(2):
        o = 2048 * k + 1024 * p
        g.vm("buffer_load_dwordx4 %s, v%d, %s, s%d offen offset:%d sc1" % (vr(ACC2[k + 1] + 8 + 4 * p, 4), vL16, WSR, sPL if o < 4096 else sT0, o & 4095), "pl%d" % k)
for k in range(3):
    g.wait_vm("pl%d" % k)
    nstamp_("pl%d" % k)
    for i in range(8):
        S("v_dot2c_f32_bf16 v%d, v%d, v%d", ACC2[0] + 2 * i, ACC2[k + 1] + 8 + i, t0)
        S("v_dot2c_f32_bf16 v%d, v%d, v%d", ACC2[0] + 2 * i + 1, ACC2[k + 1] + 8 + i, t1)
e("s_nop 2")
for k in range(16):
    if k % 2 == 0: S("s_mov_b32 s%d, %d", sT0, 2048 * k)
    g.vm("buffer_store_dword v%d, v%d, s[%d:%d], s%d offen offset:%d" % (ACC2[0] + k, vOUT, SRD_OUT, SRD_OUT + 3, sT0, 2048 * (k & 1)) + ("", " sc1", " nt")[OPT["osc"]], "out")
stamp()
if OPT["stamps"]:
    e("s_waitcnt vmcnt(0)")
    stamp()
    if OPT["stamps"] == 6:
        e("s_waitcnt lgkmcnt(0)"); e("s_mov_b64 exec, 1")
        for i, p in enumerate(sused):
            S("v_mov_b32 v252, s%d", p); e("buffer_store_dword v252, off, %s, s101 offset:%d" % (WSR, 4 + 4 * i)); e("s_nop 1")
        e("s_mov_b64 exec, -1")
        print("sgpr stamps", len(sused))
    e("s_memrealtime s[82:83]"); e("s_waitcnt lgkmcnt(0)"); e("v_mov_b32 v252, s82"); e("s_mov_b64 exec, 1")
    e("buffer_store_dword v252, off, %s, s101 offset:124" % WSR)
    e("s_mov_b64 exec, -1")
S("s_cmp_lg_u32 s%d, 0", sT3)
e("s_cbranch_scc1 L_end2")
e("s_mov_b64 exec, 1")
e("buffer_store_dword v%d, off, %s, 0 sc1" % (vTAG, WSR))
g.label("L_end2")
if OPT["diag"] > 0:
    S("s_sub_u32 s%d, s%d, s96", sDG, sDG)
    if OPT["diagcyc"]: S("s_lshr_b32 s%d, s%d, 1", sDG, sDG)
    else: S("s_mul_i32 s%d, s%d, 10", sDG, sDG)
    e("s_memrealtime s[96:97]"); e("s_waitcnt lgkmcnt(0)"); S("s_add_u32 s%d, s%d, s96", sDG, sDG)
    g.label("L_spin")
    e("s_memrealtime s[96:97]"); e("s_waitcnt lgkmcnt(0)"); S("s_sub_u32 s%d, s%d, s96", sDG + 1, sDG); S("s_cmp_gt_i32 s%d, 0", sDG + 1); e("s_cbranch_scc1 L_spin")
g.label("L_end")
e("s_endpgm")
e('.section .rodata,"a"')
e(".p2align 6")
e(".amdhsa_kernel %s_kernel" % NAME)
for l in ("next_free_vgpr 512", "next_free_sgpr 102", "accum_offset 256", "group_segment_fixed_size 0", "kernarg_size 128", "user_sgpr_count 2",
          "user_sgpr_kernarg_segment_ptr 1", "system_sgpr_workgroup_id_x 1"):
    g.lines.append("  .amdhsa_" + l)
e(".end_amdhsa_kernel")

if OPT["nocomp"]:
    g.lines = [l for l in g.lines if not (l.startswith("v_mfma") or l.startswith("ds_read_b64_tr") or l.startswith("ds_read_b128"))]
if OPT["ntin"]:
    def ntf(l):
        if l.startswith("buffer_load_dwordx4") and l.endswith(" lds"):
            p1 = any(("s[%d:%d]" % (b, b + 3)) in l for b in (SRD_X, SRD_B, SRD_W1))
            if (p1 and OPT["ntin"] & 1) or (not p1 and OPT["ntin"] & 2): return l[:-4] + " nt lds"
        return l
    g.lines = [ntf(l) for l in g.lines]
i0 = g.lines.index("%s_kernel:" % NAME) + 1
i1 = g.lines.index("s_endpgm") + 1
body, npad, lastoff = layout(g.lines[i0:i1], 3328, sW, OPT["align"], OPT["page"])
g.lines = g.lines[:i0] + body + g.lines[i1:]
print("pads", npad, "last page bytes", lastoff)
tot = (3328 + 4096 * (npad - 1) + lastoff if npad else lastoff) - 320
stride = (tot // 128) & ~7
g.lines = [l.replace("0x1234", str(stride)).replace("0x4320", str(stride // 2)) for l in g.lines]
errs = check_hazards(g.lines)
for x in errs:
    print("HAZARD", x)
open(sys.argv[1], "w").write(out_hdr + g.text())
print("lines", len(g.lines), "stamps", nstamp[0], "hazards", len(errs))
```

```python
import sys
from asmlib import *

NAME = "gated_mix__ssm_conv_s5__dense_activation_relu__prompt"
OPT = dict(stamps=0, p1map=84, rot1=2, pre=2, fillb=2, diag=-1, diagcyc=0, dstart=0, fwait=22, nh0=8, pfs=17, hsc=1, psc=1, osc=0, lgaps=20, hsn=10, b2=1, wsoff=236, pfpos=4, smask=0, exp=0, lbpos=4, ffpos=0, page=1, align=1, cpf=1, nst0=4, hs0=0, tb=6, nw56=3, pchk=16, sy2=26, nocomp=0, npre=2, nscan=1, nst1=0, skip=1, ntin=0, wpf=1, wpc=2, ppf=0)
for a in sys.argv[2:]:
    k, v = a.split("=")
    assert k in OPT, k
    OPT[k] = int(v)

AGG = 4096
GOFF = AGG + 16 * 8192
FLAGS = GOFF + 2048 * 8
FLAGS2 = FLAGS + 65536
HOFF = 393216
TSTRIDE = 176 * 1024
PART = HOFF + 64 * TSTRIDE
WS_SIZE = PART + 256 * 4 * 6144
OOB = 0x80000000
LX, LW, LB = 0, 65536, 131072
SCR = LB + 2 * 8192
GT = SCR + 4096
TRB = LB + 3 * 8192
SRD_X, SRD_B, SRD_W1, SRD_W2, SRD_CR, SRD_CI, SRD_WS, SRD_OUT = 4, 8, 12, 16, 20, 24, 28, 32
sW, sR, sJ, sQ, sC, sTAG, sMASK = 36, 37, 38, 39, 40, 41, 42
sX, sB, sW1 = 43, 44, 45
sMX, sMB, sMW = 46, 47, 48
sT0, sT1, sT2, sT3 = 49, 50, 51, 52
sXb, sBb, sW1b, sCI = 54, 55, 56, 57
sV0, sV1 = 54, 56
sTP = 58
sCNT = 60
sE = 63
pX, pLRE, pLIM, pBRE, pBIM, pCRE, pCIM, pLDT, pDSK, pBX, pW1, pW2, pGATE, pOUT, pDBG, pWS = range(64, 96, 2)
sST = 96
sDUM = 98
sHF, sFL = 99, 100
sV2b, sKSW, sCb, sHO, sHS, sHq = 53, 3, 61, 62, 82, 83
sDG = 84
vLANE, vTID8 = 1, 0
vX = 2; vC = 6; vW1 = 10; vW2 = 14
rdA = 18; rdB = 22; rdW = 26
cL, cL16, cL16q, cL128q, cL1024, cCO = 30, 32, 34, 36, 38, 40
vQ, vL16, vL16d = 42, 43, 44
vTAG = 45
vPRE = 46
FR = 48
ACC_RE, ACC_IM, ACC_F = 104, 120, 136
T = 200
LOG2E = 0x3fb8aa3b
INV2PI = 0x3e22f983

g = Asm()
e = g.e
nstamp = [0]
sidx = [0]; sused = []; SPAIRS = [70, 72, 78, 84, 86, 92, 94, 74, 76, 88, 90]
ndiag = [1]
import os
STN = os.environ.get("ST", "").split(",")
def nstamp_(name):
    if OPT["stamps"] == 6 and name in STN:
        p = SPAIRS[len(sused)]; sused.append(p)
        g.e("s_memtime s[%d:%d]" % (p, p + 1))
def stamp():
    if OPT["diag"] >= 0:
        if ndiag[0] == OPT["diag"]:
            g.e("%s s[%d:%d]" % ("s_memtime" if OPT["diagcyc"] else "s_memrealtime", sDG, sDG + 1)); g.e("s_waitcnt lgkmcnt(0)"); g.lgq = []
        if ndiag[0] == OPT["dstart"]:
            g.e("%s s[96:97]" % ("s_memtime" if OPT["diagcyc"] else "s_memrealtime")); g.e("s_waitcnt lgkmcnt(0)"); g.lgq = []
        ndiag[0] += 1
    if OPT["stamps"] == 6:
        sidx[0] += 1
        if (OPT["smask"] >> sidx[0]) & 1:
            p = SPAIRS[len(sused)]; sused.append(p)
            g.e("s_memtime s[%d:%d]" % (p, p + 1))
        return
    if not OPT["stamps"] or OPT["stamps"] == 5:
        return
    i = nstamp[0]; nstamp[0] += 1
    assert i < 30
    g.e("s_memtime s[%d:%d]" % (sST, sST + 1))
    g.e("s_waitcnt lgkmcnt(0)")
    g.lgq = []
    g.e("v_accvgpr_write_b32 a255, s%d" % sST)
    g.e("s_mov_b64 exec, 1")
    g.vm("buffer_store_dword a255, off, s[%d:%d], s101 offset:%d" % (SRD_WS, SRD_WS + 3, 4 * i), "stamp")
    g.e("s_mov_b64 exec, -1")

def cfma(dr, di, ar_, ai, br, bi, cr, ci):
    e("v_fma_f32 v%d, v%d, v%d, v%d" % (dr, ar_, br, cr))
    e("v_fma_f32 v%d, v%d, v%d, v%d" % (di, ar_, bi, ci))
    e("v_fma_f32 v%d, -v%d, v%d, v%d" % (dr, ai, bi, dr))
    e("v_fma_f32 v%d, v%d, v%d, v%d" % (di, ai, br, di))
def cmul(dr, di, ar_, ai, br, bi):
    e("v_mul_f32 v%d, v%d, v%d" % (dr, ar_, br))
    e("v_mul_f32 v%d, v%d, v%d" % (di, ar_, bi))
    e("v_fma_f32 v%d, -v%d, v%d, v%d" % (dr, ai, bi, dr))
    e("v_fma_f32 v%d, v%d, v%d, v%d" % (di, ai, br, di))
def srd(base, p):
    e("s_mov_b32 s%d, s%d" % (base, p))
    e("s_mov_b32 s%d, s%d" % (base + 1, p + 1))
def S(fmt, *a):
    e(fmt % a)
def run(L):
    for s, tag in L:
        if tag is None: g.e(s)
        elif tag.startswith("ds:"): g.ds(s, tag[3:])
        else: g.vm(s, tag)
WSR = "s[%d:%d]" % (SRD_WS, SRD_WS + 3)
HSC = ("", " sc1", " sc1 nt")[OPT["hsc"]]

hdr = open("cdna_kernels/%s.s.ref" % NAME).read().split("; Override launch")[0]
out_hdr = hdr + "; @launch grid=(256,1,1) block=(256,1,1) lds=163840\n"
e('.amdgcn_target "amdgcn-amd-amdhsa--gfx950"')
e(".text")
e(".globl %s_kernel" % NAME)
e(".p2align 8")
e(".type %s_kernel,@function" % NAME)
g.label("%s_kernel" % NAME)
e("s_cmp_ge_u32 s2, 256")
e("s_cbranch_scc1 L_end")
if OPT["stamps"]:
    e("s_memrealtime s[82:83]"); e("s_memtime s[96:97]"); e("s_waitcnt lgkmcnt(0)"); e("v_mov_b32 v252, s82"); e("v_mov_b32 v253, s96")
if OPT["diag"] >= 0:
    e("%s s[96:97]" % ("s_memtime" if OPT["diagcyc"] else "s_memrealtime"))
e("s_load_dwordx16 s[64:79], s[0:1], 0")
e("s_load_dwordx16 s[80:95], s[0:1], 64")
e("v_lshrrev_b32 v2, 6, v0")
S("v_and_b32 v%d, 63, v0", vLANE)
S("v_readfirstlane_b32 s%d, v2", sW)
t0, t1, t2, t3 = T, T + 1, T + 2, T + 3
S("v_lshrrev_b32 v%d, 3, v%d", t0, vLANE)
S("v_and_b32 v%d, 7, v%d", t1, vLANE)
S("v_lshrrev_b32 v%d, 1, v%d", t2, t0)
S("v_xor_b32 v%d, v%d, v%d", t3, t1, t2)
S("v_lshlrev_b32 v%d, 4, v%d", t3, t3)
S("v_lshl_add_u32 v%d, v%d, 10, v%d", vC, t0, t3)
S("v_lshrrev_b32 v%d, 2, v%d", t1, t0)
S("v_and_b32 v%d, 3, v%d", t2, t0)
S("v_lshl_add_u32 v%d, v%d, 4, v%d", t1, t1, t2)
S("v_lshl_add_u32 v%d, v%d, 10, v%d", vX, t1, t3)
S("v_xor_b32 v%d, 64, v%d", vX + 1, vX)
S("v_add_u32 v%d, 3072, v%d", vX + 1, vX + 1)
S("v_add_u32 v%d, 6144, v%d", vX + 2, vX)
S("v_add_u32 v%d, 6144, v%d", vX + 3, vX + 1)
S("s_bfe_u32 s%d, s2, 0x30003", sT2)
S("s_and_b32 s%d, s2, 1", sR); S("s_lshl_b32 s%d, s%d, 3", sR, sR); S("s_add_u32 s%d, s%d, s%d", sR, sR, sT2)
S("s_lshr_b32 s%d, s2, 6", sC)
S("s_bfe_u32 s%d, s2, 0x20001", sQ)
S("s_mov_b32 s%d, 0x%x", SRD_X + 2, 2048 * 1024); S("s_mov_b32 s%d, 0x20000", SRD_X + 3)
if OPT["rot1"] == 2:
    S("s_add_u32 s%d, s%d, s%d", sCI, sR, sC); S("s_and_b32 s%d, s%d, 1", sCI, sCI); S("s_lshl_b32 s%d, s%d, 2", sCI, sCI)
elif OPT["rot1"] == 4:
    S("s_add_u32 s%d, s%d, s%d", sCI, sR, sC); S("s_and_b32 s%d, s%d, 3", sCI, sCI); S("s_lshl_b32 s%d, s%d, 1", sCI, sCI)
else:
    S("s_mov_b32 s%d, 0", sCI)
S("s_lshl_b32 s%d, s%d, 17", sXb, sR); S("s_lshl_b32 s%d, s%d, 15", sT0, sW); S("s_add_u32 s%d, s%d, s%d", sXb, sXb, sT0)
S("s_lshl_b32 s%d, s%d, 12", sMX, sW)
S("s_lshl_b32 s%d, s%d, 7", sB, sCI)
S("s_mov_b32 m0, s%d", sMX)
S("s_add_u32 s%d, s%d, s%d", sX, sXb, sB)
e("s_waitcnt lgkmcnt(0)")
srd(SRD_X, pX)
for n in range(4):
    g.vm("buffer_load_dwordx4 v%d, s[%d:%d], s%d offen offset:%d lds" % (vX + n, SRD_X, SRD_X + 3, sX, 1024 * n), "ch0")
if OPT["cpf"]:
    S("s_getpc_b64 s[%d:%d]", sTP, sTP + 1)
    S("s_lshr_b32 s%d, s2, 3", sT0); S("s_lshl_b32 s%d, s%d, 2", sT0, sT0); S("s_add_u32 s%d, s%d, s%d", sT0, sT0, sW)
    S("s_mul_i32 s%d, s%d, 0x1234", sT0, sT0)
    S("s_add_u32 s%d, s%d, s%d", sTP, sTP, sT0); S("s_addc_u32 s%d, s%d, 0", sTP + 1, sTP + 1)
    S("s_load_dword s%d, s[%d:%d], 0", sCNT, sTP, sTP + 1)
    S("s_load_dword s%d, s[%d:%d], 0x4320", sCb, sTP, sTP + 1)
if OPT["wsoff"]:
    S("s_add_u32 s%d, s%d, 0x%x", pWS, pWS, OPT["wsoff"] << 20); S("s_addc_u32 s%d, s%d, 0", pWS + 1, pWS + 1)
S("s_load_dword s%d, s[%d:%d], 0", sE, pWS, pWS + 1)
S("s_lshl_b32 s%d, s%d, 2", sJ, sQ); S("s_add_u32 s%d, s%d, s%d", sJ, sJ, sC)
for b_, sz in ((SRD_B, 512 * 1024), (SRD_W1, 512 * 3584)):
    S("s_mov_b32 s%d, 0x%x", b_ + 2, sz)
    S("s_mov_b32 s%d, 0x20000", b_ + 3)
S("v_xor_b32 v%d, 64, v%d", vC + 1, vC)
S("v_add_u32 v%d, 7168, v%d", vC + 1, vC + 1)
S("s_lshl_b32 s%d, s%d, 15", sBb, sJ); S("s_and_b32 s%d, s%d, 1", sT0, sW); S("s_lshl_b32 s%d, s%d, 14", sT0, sT0); S("s_add_u32 s%d, s%d, s%d", sBb, sBb, sT0)
S("s_lshl_b32 s%d, s%d, 11", sMB, sW); S("s_add_u32 s%d, s%d, %d", sMB, sMB, LB)
S("s_cmp_ge_u32 s%d, 2", sW)
S("s_cselect_b32 s%d, s%d, s%d", SRD_B, pBIM, pBRE)
S("s_cselect_b32 s%d, s%d, s%d", SRD_B + 1, pBIM + 1, pBRE + 1)
S("s_mov_b32 m0, s%d", sMB)
S("s_add_u32 s%d, s%d, s%d", sB, sBb, sB)
for n in range(2):
    g.vm("buffer_load_dwordx4 v%d, s[%d:%d], s%d offen offset:%d lds" % (vC + n, SRD_B, SRD_B + 3, sB, 1024 * n), "ch0")
S("v_lshrrev_b32 v%d, 4, v%d", t0, vLANE)
S("v_and_b32 v%d, 15, v%d", t1, vLANE)
S("v_lshlrev_b32 v%d, 2, v%d", t2, t0)
S("v_xor_b32 v%d, v%d, v%d", vW2, t1, t2)
S("v_lshrrev_b32 v%d, 2, v%d", t2, vW2)
S("v_cmp_eq_u32 vcc, 3, v%d", t2)
S("v_mul_u32_u24 v%d, 3584, v%d", t0, t0)
S("v_lshl_add_u32 v%d, v%d, 4, v%d", vW1, vW2, t0)
S("s_lshr_b32 s%d, s%d, 1", sDUM, sC)
S("s_cselect_b64 s[%d:%d], vcc, 0", sTP, sTP + 1)
S("v_mov_b32 v%d, 0x%x", t3, OOB)
S("v_lshlrev_b32 v%d, 4, v%d", vL16, vLANE)
S("v_cndmask_b32 v%d, v%d, v%d, s[%d:%d]", vW1, vW1, t3, sTP, sTP + 1)
for n in range(1, 4):
    S("v_add_u32 v%d, %d, v%d", vW1 + n, 13312 * n, vW1)
S("s_lshl_b32 s%d, s%d, 3", sKSW, sC); S("s_min_u32 s%d, s%d, 22", sKSW, sKSW)
S("s_mul_i32 s%d, s%d, 896", sT0, sQ); S("s_lshl_b32 s%d, s%d, 5", sT1, sKSW); S("s_add_u32 s%d, s%d, s%d", sT0, sT0, sT1)
S("s_mul_i32 s%d, s%d, %d", sW1b, sW, 16 * 3584); S("s_add_u32 s%d, s%d, s%d", sW1b, sW1b, sT0)
S("s_add_u32 s%d, s%d, %d", sMW, sMX, LW)
srd(SRD_W1, pW1)
S("s_mul_i32 s%d, s%d, %d", sW1, sCI, 64 * 3584)
S("s_mov_b32 m0, s%d", sMW)
S("s_add_u32 s%d, s%d, s%d", sW1, sW1, sW1b)
for n in range(4):
    g.vm("buffer_load_dwordx4 v%d, s[%d:%d], s%d offen offset:%d lds" % (vW1 + n, SRD_W1, SRD_W1 + 3, sW1, 1024 * n), "ch0")
S("s_add_u32 s%d, s%d, 1", sCI, sCI)
S("v_and_b32 v%d, 31, v%d", t0, vLANE)
S("v_lshlrev_b32 v%d, 1, v%d", t0, t0)
S("s_lshl_b32 s%d, s%d, 6", sT0, sJ)
S("v_add_u32 v%d, s%d, v%d", t0, sT0, t0)
S("s_lshl_b32 s%d, s%d, 11", sT1, sJ); S("s_add_u32 s%d, s%d, s%d", sT1, sT1, sXb)
S("v_add_u32 v%d, s%d, v%d", t1, sT1, vL16)

def dma_chunk(c):
    k = c & 3
    L = []
    def I(s): L.append((s, None))
    def D(s): L.append((s, "ch%d" % c))
    I("s_lshl_b32 s%d, s%d, 7" % (sB, sCI))
    I("s_add_u32 m0, s%d, %d" % (sMX, k * 16384))
    I("s_add_u32 s%d, s%d, s%d" % (sX, sXb, sB))
    for n in range(4): D("buffer_load_dwordx4 v%d, s[%d:%d], s%d offen offset:%d lds" % (vX + n, SRD_X, SRD_X + 3, sX, 1024 * n))
    I("s_add_u32 m0, s%d, %d" % (sMB, k * 8192))
    I("s_add_u32 s%d, s%d, s%d" % (sB, sBb, sB))
    for n in range(2): D("buffer_load_dwordx4 v%d, s[%d:%d], s%d offen offset:%d lds" % (vC + n, SRD_B, SRD_B + 3, sB, 1024 * n))
    I("s_mul_i32 s%d, s%d, %d" % (sW1, sCI, 64 * 3584))
    I("s_add_u32 m0, s%d, %d" % (sMW, k * 16384))
    I("s_add_u32 s%d, s%d, s%d" % (sW1, sW1, sW1b))
    for n in range(4): D("buffer_load_dwordx4 v%d, s[%d:%d], s%d offen offset:%d lds" % (vW1 + n, SRD_W1, SRD_W1 + 3, sW1, 1024 * n))
    I("s_add_u32 s%d, s%d, 1" % (sCI, sCI))
    I("s_and_b32 s%d, s%d, 7" % (sCI, sCI))
    return L
PL, PI, PD = T + 4, T + 5, T + 6
GX0, GX1, GW = T + 8, T + 12, T + 16
g.vm("global_load_dwordx4 %s, v%d, s[%d:%d]" % (vr(GW, 4), vL16, pGATE, pGATE + 1), "small2")
g.vm("global_load_dwordx4 %s, v%d, s[%d:%d]" % (vr(GX0, 4), t1, pX, pX + 1), "small2")
g.vm("global_load_dwordx4 %s, v%d, s[%d:%d] offset:1024" % (vr(GX1, 4), t1, pX, pX + 1), "small2")
g.vm("global_load_ushort v%d, v%d, s[%d:%d]" % (PD, t0, pLDT, pLDT + 1), "small")
g.vm("global_load_ushort v%d, v%d, s[%d:%d]" % (PL, t0, pLRE, pLRE + 1), "small")
g.vm("global_load_ushort v%d, v%d, s[%d:%d]" % (PI, t0, pLIM, pLIM + 1), "small")
for b, sz in ((SRD_W2, 1792 * 1024), (SRD_CR, 512 * 1024), (SRD_CI, 512 * 1024), (SRD_WS, WS_SIZE + (256 * 4 * 128 if OPT["stamps"] else 0)), (SRD_OUT, 2048 * 2048)):
    S("s_mov_b32 s%d, 0x%x", b + 2, sz)
    S("s_mov_b32 s%d, 0x20000", b + 3)
S("s_mov_b32 s%d, 0xffff0000", sMASK)
srd(SRD_W2, pW2); srd(SRD_CR, pCRE); srd(SRD_CI, pCIM); srd(SRD_WS, pWS); srd(SRD_OUT, pOUT)
if OPT["stamps"]:
    e("s_lshl_b32 s101, s2, 2"); S("s_add_u32 s101, s101, s%d", sW); e("s_lshl_b32 s101, s101, 7"); S("s_add_u32 s101, s101, %d", WS_SIZE)
    e("s_mov_b64 exec, 1")
    g.vm("buffer_store_dword v253, off, %s, s101 offset:0" % WSR, "stamp")
    g.vm("buffer_store_dword v252, off, %s, s101 offset:120" % WSR, "stamp")
    e("s_mov_b64 exec, -1")
    nstamp[0] = 1
stamp()
S("v_and_b32 v%d, 31, v%d", t0, vLANE)
S("v_lshrrev_b32 v%d, 5, v%d", t1, vLANE)
S("v_bfe_u32 v%d, v%d, 1, 3", t2, t0)
S("v_xor_b32 v%d, v%d, v%d", t2, t2, t1)
S("v_lshlrev_b32 v%d, 4, v%d", t2, t2)
S("v_lshl_add_u32 v%d, v%d, 7, v%d", t2, t0, t2)
S("v_add_u32 v%d, s%d, v%d", rdA, sMX, t2)
S("v_add_u32 v%d, 0x%x, v%d", rdB, LB, t2)
for s in range(1, 4):
    S("v_xor_b32 v%d, %d, v%d", rdA + s, 32 * s, rdA)
    S("v_xor_b32 v%d, %d, v%d", rdB + s, 32 * s, rdB)
S("s_lshl_b32 s%d, s%d, 1", sT0, sW)
S("v_add_u32 v%d, s%d, v%d", vQ, sT0, t1)
S("v_bfe_u32 v%d, v%d, 2, 2", t0, vLANE)
S("v_lshl_add_u32 v%d, v%d, 3, v%d", t2, t1, t0)
S("v_lshlrev_b32 v%d, 8, v%d", t2, t2)
S("v_lshl_add_u32 v%d, v%d, 6, v%d", t2, t0, t2)
S("v_bfe_u32 v%d, v%d, 4, 1", t3, vLANE)
S("v_lshl_add_u32 v%d, v%d, 5, v%d", vPRE, t3, t2)
S("v_and_b32 v%d, 1, v%d", t3, vLANE)
S("v_lshl_add_u32 v%d, v%d, 4, v%d", t2, t3, vPRE)
S("v_bfe_u32 v%d, v%d, 1, 1", t3, vLANE)
S("v_lshl_add_u32 v%d, v%d, 3, v%d", t2, t3, t2)
S("v_add_u32 v%d, 0x%x, v%d", rdW, LW, t2)
for s in range(1, 4):
    S("v_xor_b32 v%d, %d, v%d", rdW + s, 64 * s, rdW)
if OPT["ppf"]:
    S("v_lshrrev_b32 v%d, 2, v%d", t0, vLANE); S("v_lshlrev_b32 v%d, 10, v%d", t0, t0)
    S("v_and_b32 v%d, 1, v%d", t1, vLANE); S("v_lshl_add_u32 v%d, v%d, 7, v%d", t0, t1, t0)
    S("v_bfe_u32 v%d, v%d, 1, 1", t1, vLANE); S("v_lshl_add_u32 v%d, v%d, 9, v%d", t0, t1, t0)
    S("v_lshlrev_b32 v%d, 7, v%d", t1, vLANE)
    S("s_lshl_b32 s%d, s2, 2", sT0); S("s_add_u32 s%d, s%d, s%d", sT0, sT0, sW); S("s_lshl_b32 s%d, s%d, 11", sT0, sT0)
    S("s_lshl_b32 s%d, s2, 1", sT1); S("s_and_b32 s%d, s%d, 1", sT2, sW); S("s_add_u32 s%d, s%d, s%d", sT1, sT1, sT2); S("s_lshl_b32 s%d, s%d, 10", sT1, sT1)
    S("s_and_b32 s%d, s2, 127", sT2); S("s_lshr_b32 s%d, s2, 7", sT3); S("s_lshl_b32 s%d, s%d, 8", sT3, sT3); S("s_add_u32 s%d, s%d, s%d", sT2, sT2, sT3)
    S("s_add_u32 s%d, s%d, 128", sT2, sT2); S("s_mul_i32 s%d, s%d, 3584", sT2, sT2); S("s_mul_i32 s%d, s%d, 896", sT3, sW); S("s_add_u32 s%d, s%d, s%d", sT2, sT2, sT3)
    e("s_mov_b64 exec, 0xff")
    g.vm("buffer_load_dword v%d, v%d, s[%d:%d], s%d offen offset:256" % (T + 42, t0, SRD_X, SRD_X + 3, sT0), "ppf")
    e("s_mov_b64 exec, 0x7f")
    g.vm("buffer_load_dword v%d, v%d, s[%d:%d], s%d offen" % (T + 43, t1, SRD_W1, SRD_W1 + 3, sT2), "ppf")
    e("s_mov_b64 exec, 15")
    g.vm("buffer_load_dword v%d, v%d, s[%d:%d], s%d offen offset:256" % (T + 44, t0, SRD_B, SRD_B + 3, sT1), "ppf")
    e("s_mov_b64 exec, -1")
if OPT["page"]: e("TOUCH")
run(dma_chunk(1))
if OPT["wpf"]:
    vPF = T + 38
    S("v_mov_b32 v%d, 0x%x", t3, OOB)
    S("s_mul_i32 s%d, s%d, %d", sV2b, sQ, 448 * 1024); S("s_lshl_b32 s%d, s%d, 8", sT0, sC); S("s_add_u32 s%d, s%d, s%d", sV2b, sV2b, sT0)
    S("s_and_b32 s%d, s%d, 7", sT0, sR); S("s_mul_i32 s%d, s%d, 56", sT1, sT0); S("s_mul_i32 s%d, s%d, 14", sT2, sW); S("s_add_u32 s%d, s%d, s%d", sT1, sT1, sT2)
    S("v_lshrrev_b32 v%d, 1, v%d", t0, vLANE); S("v_add_u32 v%d, s%d, v%d", t0, sT1, t0); S("v_lshlrev_b32 v%d, 10, v%d", t0, t0)
    S("v_and_b32 v%d, 1, v%d", t1, vLANE); S("v_lshl_add_u32 v%d, v%d, 7, v%d", t0, t1, t0)
    S("v_cmp_gt_u32 s[%d:%d], 28, v%d", sTP, sTP + 1, vLANE)
    S("s_lshl_b32 s%d, s%d, 4", sT0, sT0); S("s_and_b32 s%d, s%d, 1", sT1, sW); S("s_lshl_b32 s%d, s%d, 3", sT1, sT1); S("s_add_u32 s%d, s%d, s%d", sT0, sT0, sT1)
    S("v_cndmask_b32 v%d, v%d, v%d, s[%d:%d]", vPF, t3, t0, sTP, sTP + 1)
    S("v_lshrrev_b32 v%d, 1, v%d", t0, vLANE); S("v_add_u32 v%d, s%d, v%d", t0, sT0, t0); S("v_lshlrev_b32 v%d, 10, v%d", t0, t0)
    S("v_lshl_add_u32 v%d, v%d, 7, v%d", t0, t1, t0)
    S("v_cmp_gt_u32 s[%d:%d], 16, v%d", sTP, sTP + 1, vLANE)
    S("s_lshl_b32 s%d, s%d, 17", sT0, sC); S("s_lshl_b32 s%d, s%d, 8", sT1, sQ); S("s_add_u32 s%d, s%d, s%d", sHS, sT0, sT1)
    S("v_cndmask_b32 v%d, v%d, v%d, s[%d:%d]", vPF + 1, t3, t0, sTP, sTP + 1)
    S("s_cmp_ge_u32 s%d, 2\ns_cselect_b32 s%d, s%d, s%d\ns_cselect_b32 s%d, s%d, s%d", sW, 88, pCIM, pCRE, 89, pCIM + 1, pCRE + 1)
    S("s_mov_b32 s90, 0x80000"); S("s_mov_b32 s91, 0x20000")

e("s_waitcnt lgkmcnt(0)")
S("s_mul_i32 s%d, s%d, 0x9e3779b1", sTAG, sE)
S("s_add_u32 s%d, s%d, 0x7f4a7c15", sTAG, sTAG)
S("s_cmp_lg_u32 s%d, 0", sDUM); e("s_cselect_b64 vcc, -1, 0")

F = Rec()
e = F.e
S("v_lshlrev_b32 v%d, 3, v0", vTID8)
S("v_add_u32 v%d, 0x%x, v%d", vTID8, SCR, vTID8)
S("v_mov_b32 v%d, 0x%x", t3, OOB)
S("v_mov_b32 v%d, s%d", vTAG, sTAG)
S("v_cndmask_b32 v%d, v%d, v%d, vcc", vL16d, vL16, t3)
S("v_add_u32 v%d, 14336, v%d", vC + 2, vC); S("v_add_u32 v%d, 14336, v%d", vC + 3, vC + 1)
S("s_lshl_b32 s%d, s%d, 2", sT0, sQ)
S("v_add_u32 v%d, s%d, v%d", vW2, sT0, vW2)
S("v_and_b32 v%d, 15, v%d", vW2, vW2)
S("v_lshlrev_b32 v%d, 4, v%d", vW2, vW2)
S("v_lshrrev_b32 v%d, 4, v%d", t0, vLANE)
S("v_lshl_add_u32 v%d, v%d, 10, v%d", vW2, t0, vW2)
for n in range(1, 4):
    S("v_add_u32 v%d, %d, v%d", vW2 + n, 3072 * n, vW2)
S("s_lshr_b32 s%d, s%d, 1", sT0, sC)
S("s_add_u32 s%d, s%d, s%d", sT1, sW, sQ); S("s_and_b32 s%d, s%d, 3", sT1, sT1); S("s_lshl_b32 s%d, s%d, 15", sT1, sT1)
S("s_lshl_b32 s%d, s%d, 17", sCb, sC); S("s_add_u32 s%d, s%d, s%d", sCb, sCb, sT1)
S("s_lshl_b32 s%d, s%d, 8", sT1, sQ); S("s_add_u32 s%d, s%d, s%d", sCb, sCb, sT1)
S("s_lshl_b32 s%d, s%d, 7", sT0, sT0); S("s_add_u32 s%d, s%d, s%d", sCb, sCb, sT0)
nearly = len(F.items)
F.wait_vm("small2")
GA0, GA1 = T + 22, T + 24
gl, gh, x0, x1, y0, y1 = T + 26, T + 27, T + 28, T + 29, T + 30, T + 31
for k in range(4):
    S("v_lshlrev_b32 v%d, 16, v%d", gl, GW + k); S("v_and_b32 v%d, s%d, v%d", gh, sMASK, GW + k)
    S("v_lshlrev_b32 v%d, 16, v%d", x0, GX0 + k); S("v_and_b32 v%d, s%d, v%d", x1, sMASK, GX0 + k)
    S("v_lshlrev_b32 v%d, 16, v%d", y0, GX1 + k); S("v_and_b32 v%d, s%d, v%d", y1, sMASK, GX1 + k)
    S("v_mul_f32 v%d, v%d, v%d", x0, x0, gl); S("v_mul_f32 v%d, v%d, v%d", x1, x1, gh)
    S("v_mul_f32 v%d, v%d, v%d", y0, y0, gl); S("v_mul_f32 v%d, v%d, v%d", y1, y1, gh)
    S("v_cvt_pk_bf16_f32 v%d, v%d, v%d", x0, x0, x1); S("v_cvt_pk_bf16_f32 v%d, v%d, v%d", y0, y0, y1)
    S("v_and_b32 v%d, s%d, v%d", x1, sMASK, x0); S("v_lshlrev_b32 v%d, 16, v%d", x0, x0)
    S("v_and_b32 v%d, s%d, v%d", y1, sMASK, y0); S("v_lshlrev_b32 v%d, 16, v%d", y0, y0)
    if k == 0:
        S("v_add_f32 v%d, v%d, v%d", GA0, x0, x1); S("v_add_f32 v%d, v%d, v%d", GA1, y0, y1)
    else:
        S("v_add_f32 v%d, v%d, v%d", GA0, GA0, x0); S("v_add_f32 v%d, v%d, v%d", GA1, GA1, y0)
        S("v_add_f32 v%d, v%d, v%d", GA0, GA0, x1); S("v_add_f32 v%d, v%d, v%d", GA1, GA1, y1)
e("s_nop 0")
for d in ("row_shr:1 row_mask:0xf", "row_shr:2 row_mask:0xf", "row_shr:4 row_mask:0xf", "row_shr:8 row_mask:0xf", "row_bcast:15 row_mask:0xa", "row_bcast:31 row_mask:0xc"):
    S("v_add_f32_dpp v%d, v%d, v%d %s bank_mask:0xf", GA0, GA0, GA0, d)
    S("v_add_f32_dpp v%d, v%d, v%d %s bank_mask:0xf", GA1, GA1, GA1, d)
    e("s_nop 0")
S("v_cvt_pk_bf16_f32 v%d, v%d, v%d", x0, GA0, GA1)
S("v_and_b32 v%d, s%d, v%d", GA1, sMASK, x0); S("v_lshlrev_b32 v%d, 16, v%d", GA0, x0)
S("v_mul_f32 v%d, 0x%x, v%d", GA0, LOG2E | 0x80000000, GA0); S("v_mul_f32 v%d, 0x%x, v%d", GA1, LOG2E | 0x80000000, GA1)
S("v_exp_f32 v%d, v%d", GA0, GA0); S("v_exp_f32 v%d, v%d", GA1, GA1)
e("s_nop 0")
S("v_add_f32 v%d, 1.0, v%d", GA0, GA0); S("v_add_f32 v%d, 1.0, v%d", GA1, GA1)
S("v_rcp_f32 v%d, v%d", GA0, GA0); S("v_rcp_f32 v%d, v%d", GA1, GA1)
S("v_cmp_eq_u32 s[%d:%d], 63, v%d", sTP, sTP + 1, vLANE)
S("v_cvt_pk_bf16_f32 v%d, v%d, v%d", x0, GA0, GA1)
S("v_mov_b32 v%d, s%d", GA0 + 1, sTAG); S("v_mov_b32 v%d, s%d", GA1 + 1, sTAG)
S("v_and_b32 v%d, s%d, v%d", GA1, sMASK, x0); S("v_lshlrev_b32 v%d, 16, v%d", GA0, x0)
S("s_lshl_b32 s%d, s%d, 10", sT0, sR); S("s_lshl_b32 s%d, s%d, 8", sT1, sW); S("s_add_u32 s%d, s%d, s%d", sT0, sT0, sT1)
S("s_add_u32 s%d, s%d, %d", sT0, sT0, GOFF)
S("s_lshl_b32 s%d, s%d, 4", sT1, sJ); S("s_add_u32 s%d, s%d, s%d", sT1, sT1, sT0)
S("v_mov_b32 v%d, s%d", y0, sT1)
S("v_cndmask_b32 v%d, v%d, v%d, s[%d:%d]", y0, t3, y0, sTP, sTP + 1)
F.vm("buffer_store_dwordx4 %s, v%d, %s, 0 offen sc1" % (vr(GA0, 4), y0, WSR), "gst")
vTJ, vGA = T + 32, T + 33
S("v_bfe_u32 v%d, v%d, 2, 1", t0, vLANE)
S("v_bfe_u32 v%d, v%d, 3, 2", t1, vLANE)
S("v_and_b32 v%d, 3, v%d", t2, vLANE)
S("v_lshl_add_u32 v%d, v%d, 2, v%d", t1, t1, t2)
S("v_lshl_add_u32 v%d, v%d, 4, v%d", vTJ, t0, t1)
S("v_lshl_add_u32 v%d, v%d, 3, s%d", vGA, vTJ, sT0)
vXD, vDS = 228, 230
sXT = 69
S("s_lshl_b32 s%d, s%d, 8", sT0, sC); S("s_lshl_b32 s%d, s%d, 6", sT1, sQ); S("s_add_u32 s%d, s%d, s%d", sT0, sT0, sT1)
S("v_lshrrev_b32 v%d, 2, v%d", t0, vLANE)
S("v_and_b32 v%d, 3, v%d", t2, vLANE)
S("v_lshlrev_b32 v%d, 4, v%d", t2, t2)
S("v_lshl_add_u32 v%d, v%d, 10, v%d", vXD, t0, t2)
S("v_add_u32 v%d, 15360, v%d", vXD + 1, vXD)
S("s_lshl_b32 s%d, s%d, 17", sT1, sR); S("s_add_u32 s%d, s%d, s%d", sXT, sT0, sT1); S("s_lshl_b32 s%d, s%d, 15", sT1, sW); S("s_add_u32 s%d, s%d, s%d", sXT, sXT, sT1)
S("v_and_b32 v%d, 31, v%d", t2, vLANE)
S("v_lshlrev_b32 v%d, 1, v%d", t2, t2)
S("v_add_u32 v%d, s%d, v%d", vDS, sT0, t2)
nxaddr = len(F.items)
F.wait_vm("small")
a_, b_ = T + 20, T + 21
S("v_lshlrev_b32 v%d, 16, v%d", PD, PD)
S("v_mul_f32 v%d, 0x%x, v%d", PD, LOG2E, PD)
S("v_exp_f32 v%d, v%d", PD, PD)
S("v_lshlrev_b32 v%d, 16, v%d", PL, PL)
S("v_lshlrev_b32 v%d, 16, v%d", PI, PI)
S("v_cvt_pk_bf16_f32 v%d, v%d, v%d", PD, PD, PD)
S("v_lshlrev_b32 v%d, 16, v%d", PD, PD)
S("v_mul_f32 v%d, v%d, v%d", a_, PD, PL)
S("v_mul_f32 v%d, v%d, v%d", b_, PD, PI)
S("v_mul_f32 v%d, 0x%x, v%d", a_, LOG2E, a_)
S("v_mul_f32 v%d, 0x%x, v%d", b_, INV2PI, b_)
S("v_cvt_f32_u32 v%d, v%d", t3, vQ)
def cpow(d, mul):
    if mul is None:
        S("v_exp_f32 v%d, v%d", t0, a_); S("v_fract_f32 v%d, v%d", t1, b_)
    else:
        S("v_mul_f32 v%d, %s, v%d", t0, mul, a_); S("v_mul_f32 v%d, %s, v%d", t1, mul, b_)
        S("v_exp_f32 v%d, v%d", t0, t0); S("v_fract_f32 v%d, v%d", t1, t1)
    S("v_cos_f32 v%d, v%d", d, t1); S("v_sin_f32 v%d, v%d", d + 1, t1)
    e("s_nop 0")
    S("v_mul_f32 v%d, v%d, v%d", d, d, t0); S("v_mul_f32 v%d, v%d, v%d", d + 1, d + 1, t0)
cpow(cL, None)
cpow(cL16, "0x41800000")
cpow(cL1024, "0x44800000")
S("v_mul_f32 v%d, 0x41800000, v%d", t2, t3); cpow(cL16q, "v%d" % t2)
S("v_mul_f32 v%d, 0x43000000, v%d", t2, t3); cpow(cL128q, "v%d" % t2)
S("v_mul_f32 v%d, v%d, v%d", t0, PL, PL)
S("v_fma_f32 v%d, v%d, v%d, v%d", t0, PI, PI, t0)
S("v_rcp_f32 v%d, v%d", t0, t0)
S("v_add_f32 v%d, -1.0, v%d", t1, cL)
S("v_mul_f32 v%d, v%d, v%d", cCO, t1, PL)
S("v_fma_f32 v%d, v%d, v%d, v%d", cCO, cL + 1, PI, cCO)
S("v_mul_f32 v%d, v%d, v%d", cCO + 1, cL + 1, PL)
S("v_fma_f32 v%d, -v%d, v%d, v%d", cCO + 1, t1, PI, cCO + 1)
S("v_add_f32 v%d, v%d, v%d", t0, t0, t0)
S("v_mul_f32 v%d, v%d, v%d", cCO, cCO, t0)
S("v_mul_f32 v%d, v%d, v%d", cCO + 1, cCO + 1, t0)
S("s_lshl_b32 s%d, s%d, 2", sT0, sR); S("s_add_u32 s%d, s%d, s%d", sT0, sT0, sW)
S("s_mul_i32 s%d, s%d, %d", sHF, sT0, TSTRIDE); S("s_add_u32 s%d, s%d, %d", sHF, sHF, HOFF)
S("s_lshl_b32 s%d, s%d, 9", sFL, sT0); S("s_lshl_b32 s%d, s%d, 7", sT1, sQ); S("s_add_u32 s%d, s%d, s%d", sFL, sFL, sT1); S("s_add_u32 s%d, s%d, %d", sFL, sFL, FLAGS)
S("s_mul_i32 s%d, s%d, %d", sHq, sQ, 28 * 1024); S("s_add_u32 s%d, s%d, s%d", sHq, sHq, sHF)
S("s_lshl_b32 s%d, s%d, 10", sHO, sKSW)
S("s_lshl_b32 s%d, s%d, 14", sHS, sQ); S("s_add_u32 s%d, s%d, s%d", sHS, sHS, sHF); S("s_add_u32 s%d, s%d, %d", sHS, sHS, 112 * 1024)
nlate = len(F.items)
rdVW, rdVX, rdCX, rdCB = 10, 2, 18, 22
vSEG, vPUB, vLB0, vLB1 = 204, 205, 206, 207
vGW, vGR = 238, 239
vXD, vDS = 228, 230
sHFa, sHFb = 64, 65
S("v_and_b32 v%d, 3, v%d", t2, vLANE)
S("v_lshl_add_u32 v%d, v%d, 3, v%d", rdVX, t2, vPRE)
S("v_add_u32 v%d, 0x%x, v%d", rdVW, LW, rdVX)
for s_ in range(1, 4):
    S("v_xor_b32 v%d, %d, v%d", rdVX + s_, 64 * s_, rdVX)
    S("v_xor_b32 v%d, %d, v%d", rdVW + s_, 64 * s_, rdVW)
S("v_and_b32 v%d, 31, v%d", t1, vLANE)
S("v_lshlrev_b32 v%d, 3, v%d", t1, t1)
S("v_add_u32 v%d, 0x%x, v%d", vSEG, SCR, t1)
S("v_lshlrev_b32 v%d, 1, v%d", t0, t1)
S("s_lshl_b32 s%d, s%d, 9", sT0, sJ); S("s_lshl_b32 s%d, s%d, 13", sT1, sR); S("s_add_u32 s%d, s%d, s%d", sT0, sT0, sT1); S("s_add_u32 s%d, s%d, %d", sT0, sT0, AGG)
S("v_add_u32 v%d, s%d, v%d", t0, sT0, t0)
S("v_mov_b32 v%d, 0x%x", t3, OOB)
S("v_cmp_eq_u32 s[%d:%d], 7, v%d", sTP, sTP + 1, vQ)
S("v_add_u32 v%d, 1, v%d", t2, vQ)
S("v_cmp_ge_u32 s[%d:%d], s%d, v%d", sV0, sV0 + 1, sR, t2)
S("v_cndmask_b32 v%d, v%d, v%d, s[%d:%d]", vPUB, t3, t0, sTP, sTP + 1)
S("v_lshlrev_b32 v%d, 13, v%d", t1, t2)
S("v_sub_u32 v%d, v%d, v%d", t1, t0, t1)
S("v_add_u32 v%d, 8, v%d", t2, t2)
S("v_cmp_ge_u32 s[%d:%d], s%d, v%d", sV1, sV1 + 1, sR, t2)
S("v_cndmask_b32 v%d, v%d, v%d, s[%d:%d]", vLB0, t3, t1, sV0, sV0 + 1)
S("v_subrev_u32 v%d, 0x10000, v%d", t1, t1)
S("v_mov_b32 v%d, 0", vPRE); S("v_mov_b32 v%d, 0", vPRE + 1)
S("v_cndmask_b32 v%d, v%d, v%d, s[%d:%d]", vLB1, t3, t1, sV1, sV1 + 1)
S("s_lshl_b32 s%d, s%d, 7", sT0, sW); S("s_add_u32 s%d, s%d, %d", sT0, sT0, GT)
S("v_lshl_add_u32 v%d, v%d, 2, s%d", vGW, vTJ, sT0)
S("v_lshrrev_b32 v%d, 5, v%d", t1, vLANE)
S("v_lshl_add_u32 v%d, v%d, 6, s%d", vGR, t1, sT0)
S("s_add_u32 s%d, s%d, s%d", sHFa, sHq, sHO); S("s_add_u32 s%d, s%d, 4096", sHFb, sHFa)
S("s_mov_b32 s%d, 0", sCNT)
e = g.e

def frag(setn, idx):
    return FR + 28 * setn + 4 * idx
def reads(n):
    c, s = n >> 2, n & 3
    k = c & 3; st = n & 1
    L = []
    L.append(("ds_read_b128 %s, v%d offset:%d" % (vr(frag(st, 0), 4), rdA + s, k * 16384), "ds:r%d_0" % n))
    L.append(("ds_read_b128 %s, v%d offset:%d" % (vr(frag(st, 1), 4), rdB + s, k * 8192), "ds:r%d_1" % n))
    L.append(("ds_read_b128 %s, v%d offset:%d" % (vr(frag(st, 2), 4), rdB + s, k * 8192 + 4096), "ds:r%d_2" % n))
    for t in range(4):
        for e2 in range(2):
            L.append(("ds_read_b64_tr_b16 %s, v%d offset:%d" % (vr(frag(st, 3 + t) + 2 * e2, 2), rdW + t, k * 16384 + s * 4096 + 1024 * e2), "ds:r%d_%d" % (n, 3 + t)))
    return L
def mfma1(n, m):
    st = n & 1
    A = vr(frag(st, 0), 4)
    if m < 2:
        acc = (ACC_RE, ACC_IM)[m]
        S("v_mfma_f32_32x32x16_bf16 %s, %s, %s, %s", vr(acc, 16), A, vr(frag(st, 1 + m), 4), "0" if n == 0 else vr(acc, 16))
    else:
        acc = ACC_F + 16 * (m - 2)
        S("v_mfma_f32_32x32x16_bf16 %s, %s, %s, %s", vr(acc, 16), vr(frag(st, 1 + m), 4), A, "0" if n == 0 else vr(acc, 16))

USLOT = {0: ("X", 0), 1: ("W", 0), 2: ("X", 1), 3: ("W", 1), 4: ("X", 2), 5: ("W", 2), 6: ("W", 3), 7: ("X", 3), 8: ("B", 0), 9: ("X", 0), 10: ("X", 1)}
def unit(v):
    L = []
    reg, k = USLOT[v]
    if v < 7:
        if v == 0:
            L.append(("s_add_u32 s%d, s%d, s%d" % (sT3, sW, sKSW), None))
        else:
            L.append(("s_add_u32 s%d, s%d, %d" % (sT3, sW, 4 * v), None))
            L.append(("s_sub_u32 s%d, s%d, 6" % (sT2, sT3), None))
            L.append(("s_cmp_lt_u32 s%d, s%d" % (sT2, sKSW), None))
            L.append(("s_cselect_b32 s%d, s%d, s%d" % (sT2, sT2, sT3), None))
            if v == 1:
                L.append(("s_add_u32 s%d, s%d, s%d" % (sT3, sT3, sKSW), None))
                L.append(("s_cmp_lt_u32 s%d, 2" % sW, None))
                L.append(("s_cselect_b32 s%d, s%d, s%d" % (sT2, sT3, sT2), None))
            L.append(("s_mov_b32 s%d, s%d" % (sT3, sT2), None))
        L.append(("s_lshl_b32 s%d, s%d, 14" % (sT3, sT3), None))
        L.append(("s_add_u32 m0, s%d, %d" % (sMX if reg == "X" else sMW, k * 16384), None))
        L.append(("s_add_u32 s%d, s%d, s%d" % (sT3, sT3, sV2b), None))
        sd, vo, so = SRD_W2, vW2, sT3
    else:
        b = v - 7
        L.append(("s_add_u32 m0, s%d, %d" % (sMX, LB if reg == "B" else k * 16384), None))
        if b & 1:
            L.append(("s_xor_b32 s%d, s%d, 128" % (sT3, sCb), None)); so = sT3
        else:
            L.append(("s_nop 0", None)); so = sCb
        sd, vo = (SRD_CR if b < 2 else SRD_CI), vC
    for n in range(4):
        L.append(("buffer_load_dwordx4 v%d, s[%d:%d], s%d offen offset:%d lds" % (vo + n, sd, sd + 3, so, 1024 * n), "v%d" % v))
    return L

class Spread:
    def __init__(self, items, gaps):
        self.items = list(items)
        n = sum(1 for x in items if x[1])
        self.sched = [int((i + 0.5) * gaps / n) for i in range(n)] if n else []
        self.gi = 0
    def gap(self):
        used = 0
        while self.sched and self.sched[0] <= self.gi:
            self.sched.pop(0)
            while True:
                it = self.items.pop(0); run([it]); used += 1
                if it[1]: break
            if not self.sched:
                run(self.items); used += len(self.items); self.items = []
        self.gi += 1
        return used
    def flush(self):
        run(self.items); self.items = []; self.sched = []

GG = T + 34
DSK = T + 37
def g_load(tag):
    g.vm("buffer_load_dwordx2 %s, v%d, %s, 0 offen sc1" % (vr(GG, 2), vGA, WSR), tag)

stamp()
g.wait_vm("ch0")
e("s_barrier")
stamp()
for it in reads(0):
    if OPT["skip"] and it[1].endswith("_6"): g.e(it[0])
    else: run([it])
def chunk_items(c):
    if c + 2 < 8: return dma_chunk(c + 2)
    if c == 6: return unit(0) + unit(1)
    xdma = [("s_mov_b32 m0, s%d" % sMB, None), ("s_nop 0", None)]
    xdma += [("buffer_load_dwordx4 v%d, s[%d:%d], s%d offen offset:%d lds" % (vXD + n, SRD_X, SRD_X + 3, sXT, 1024 * n), "xr") for n in range(2)]
    xdma += [("global_load_ushort v%d, v%d, s[%d:%d]" % (DSK, vDS, pDSK, pDSK + 1), "xr")]
    return unit(2) + unit(3) + xdma
sp = Spread(chunk_items(0), 18)
nplayed = 0
def wpf_issue():
    g.vm("buffer_load_dword v%d, v%d, s[%d:%d], s%d offen" % (vPF + 2, vPF, SRD_W2, SRD_W2 + 3, sV2b), "wpf")
    g.vm("buffer_load_dword v%d, v%d, s[88:91], s%d offen" % (vPF + 3, vPF + 1, sHS), "wpf")
if OPT["wpf"] and OPT["wpc"] < 0: wpf_issue()
def emit_read(item):
    s_, tag = item
    if OPT["skip"] and tag.endswith("_6"):
        g.e(s_); ph.append(len(g.lgq))
        evq.append(tag)
    else:
        g.ds(s_, tag[3:]); evq.append(tag)
def wait_tile(n, m):
    if OPT["skip"] and m == 5:
        tag = "ds:r%d_6" % n
        k = len(evq) - 1 - max(i for i, t in enumerate(evq) if t == tag)
        g.e("s_waitcnt lgkmcnt(%d)" % k)
    else:
        g.wait_lg("r%d_%d" % (n, m + 1))
ph = []; evq = [x[1] for x in reads(0)]
for n in range(32):
    c, s = n >> 2, n & 3
    nxt = reads(n + 1) if n < 31 else []
    per = [2, 2, 2, 2, 1, 2]
    for m in range(6):
        sk = OPT["skip"] and m == 5
        if sk: e("s_cbranch_vccnz L_sk%d" % n)
        wait_tile(n, m)
        mfma1(n, m)
        if s == 3 and m == 0:
            assert not sp.items
            nstamp_("a%d" % c)
            if c < 7: g.wait_vm("ch%d" % (c + 1))
            e("s_barrier")
            nstamp_("b%d" % c)
            sp = Spread(chunk_items(c + 1) if c < 7 else [], 23)
            if OPT["wpf"] and c == OPT["wpc"]: wpf_issue()
            if c == 5: assert len(F.items) <= ntot - nearly, "staging scalars not ready"
            if c == 6:
                g_load("gl")
                assert len(F.items) <= ntot - nxaddr
        for it in nxt[:per[m]]: emit_read(it)
        nxt = nxt[per[m]:]
        assert len(evq) - max([i for i, t in enumerate(evq) if t.startswith("ds:r%d_" % n)] + [-1]) - 1 <= 11
        if sk: g.label("L_sk%d" % n)
        if s == 3 and m == 0: continue
        used = sp.gap()
        if n == 0: ntot = len(F.items)
        if n >= 1:
            bud = max(0, OPT["fillb"] + (n >= 24) + (2 - per[m]) - used - (1 if sk else 0))
            if n < 24: bud = min(bud, nlate - (ntot - len(F.items)))
            F.play(g, bud)
    assert not nxt
print("fillers left after loop:", len(F.items))
F.flush(g)
stamp()

GREG = 208
OM = T + 36
g.wait_vm("gl")
assert g.vm_count("v1") is None
g.label("L_g_chk")
S("v_cmp_ne_u32 vcc, s%d, v%d", sTAG, GG + 1)
S("s_add_u32 s%d, s%d, 1", sCNT, sCNT)
e("s_cbranch_vccz L_g_ok")
S("s_cmp_ge_u32 s%d, 0x8000", sCNT)
e("s_cbranch_scc1 L_g_ok")
sv = list(g.vmq); g_load("x"); g.vmq = sv
e("s_waitcnt vmcnt(0)")
e("s_branch L_g_chk")
g.label("L_g_ok")
g.ds("ds_write_b32 v%d, v%d" % (vGW, GG), "gw")
for k in range(4):
    g.ds("ds_read_b128 %s, v%d offset:%d" % (vr(GREG + 4 * k, 4), vGR, 16 * k), "gr")
S("v_sub_f32 v%d, 1.0, v%d", OM, GG)
S("v_cvt_pk_bf16_f32 v%d, v%d, v%d", OM, OM, OM)
S("v_lshlrev_b32 v%d, 16, v%d", OM, OM)
PB = 224
S("v_mov_b32 v%d, s%d", PB + 2, sTAG); S("v_mov_b32 v%d, s%d", PB + 3, sTAG)
vOUT = 44
def hstore(t, fr):
    d = ACC_F + 8 * t
    return ("buffer_store_dwordx4 %s, v%d, %s, s%d offen offset:%d%s" % (vr(d + 4 * fr, 4), vL16d if t == 3 else vL16, WSR, sHFa if t < 2 else sHFb, 2048 * (t & 1) + 1024 * fr, HSC), "hf")
pend_st = []
nst = 0
for t in range(4):
    f = ACC_F + 16 * t; d = ACC_F + 8 * t
    for k in range(8):
        S("v_pk_mul_f32 %s, %s, %s op_sel_hi:[1,0]", vr(f + 2 * k, 2), vr(f + 2 * k, 2), vr(OM, 2))
    for fr in range(2):
        for k in range(4 * fr, 4 * fr + 4):
            S("v_cvt_pk_bf16_f32 v%d, v%d, v%d", d + k, f + 2 * k, f + 2 * k + 1)
        for k in range(4 * fr, 4 * fr + 4):
            S("v_pk_max_i16 v%d, v%d, 0", d + k, d + k)
        if nst < OPT["nst0"]: run([hstore(t, fr)])
        else: pend_st.append(hstore(t, fr))
        nst += 1
stamp()
late = Spread(pend_st[:OPT["nst1"]], 7); pend_st = pend_st[OPT["nst1"]:]
H0, H1 = 100, 102
pr, pi = ACC_RE, ACC_IM
for t in range(1, 16):
    d = (H0, H1)[t & 1]
    cfma(d, d + 1, cL, cL + 1, pr, pi, ACC_RE + t, ACC_IM + t)
    pr, pi = d, d + 1
    if t % 2 == 0: late.gap()
OWN = pr
g.ds("ds_write_b64 v%d, %s" % (vTID8, vr(OWN, 2)), "agg")
g.wait_lg_all()
e("s_barrier")
SG = 240
for s_ in range(7):
    g.ds("ds_read_b64 %s, v%d offset:%d" % (vr(SG + 2 * s_, 2), vSEG, 256 * s_), "sg%d" % s_)
for s_ in range(7):
    g.wait_lg("sg%d" % s_)
    S("v_cmpx_lt_u32 vcc, %d, v%d", s_, vQ)
    a = SG + 2 * s_
    if s_ == 0:
        S("v_mov_b32 v%d, v%d", vPRE, a); S("v_mov_b32 v%d, v%d", vPRE + 1, a + 1)
    else:
        S("v_fma_f32 v%d, v%d, v%d, v%d", a, cL16, vPRE, a)
        S("v_fma_f32 v%d, v%d, v%d, v%d", a + 1, cL16, vPRE + 1, a + 1)
        S("v_fma_f32 v%d, -v%d, v%d, v%d", a, cL16 + 1, vPRE + 1, a)
        S("v_fma_f32 v%d, v%d, v%d, v%d", vPRE + 1, cL16 + 1, vPRE, a + 1)
        S("v_mov_b32 v%d, v%d", vPRE, a)
e("s_mov_b64 exec, -1")
cfma(PB, PB + 1, cL16, cL16 + 1, vPRE, vPRE + 1, OWN, OWN + 1)
g.vm("buffer_store_dwordx4 %s, v%d, %s, 0 offen sc1" % (vr(PB, 4), vPUB, WSR), "pub")
stamp()
u6 = unit(6)
A0, A1 = 228, 232
lbl_ = [("buffer_load_dwordx4 %s, v%d, %s, 0 offen sc1" % (vr(A0, 4), vLB0, WSR), "lb"), ("buffer_load_dwordx4 %s, v%d, %s, 0 offen sc1" % (vr(A1, 4), vLB1, WSR), "lb")]
def lb_loads(tag):
    for s_, _ in lbl_: g.vm(s_, tag)
late = Spread(pend_st + unit(4) + lbl_, OPT["lgaps"])

ACC2 = [48, 64, 80, 240]
WF = 168
FULL = set(range(0, 4)) | set(range(8, 12))
def tiles(n): return [0, 1, 2, 3] if n in FULL else [1, 2, 3]
def wread(n, tau, dst):
    v = n >> 2; sg = n & 3
    reg, k = USLOT[v]
    if n < 28:
        base = (rdVX if reg == "X" else rdVW) + tau
        return [("ds_read_b64_tr_b16 %s, v%d offset:%d" % (vr(dst + 2 * e2, 2), base, k * 16384 + sg * 4096 + 1024 * e2), None) for e2 in range(2)]
    base = (rdCX if reg == "X" else rdCB) + sg
    return [("ds_read_b128 %s, v%d offset:%d" % (vr(dst, 4), base, (k * 16384 if reg == "X" else 0) + tau * 4096), None)]
WF3 = [104, 108, 120, 124]
ORDER = list(range(44))
POS = {n: p for p, n in enumerate(ORDER)}
def wfrag(n, tau):
    p = POS[n]
    if p < 6: return WF + 16 * (p & 1) + 4 * tau
    k = p % 3
    return WF + 16 * k + 4 * tau if k < 2 else WF3[tau]
def reads2(n):
    L = []
    for tau in tiles(n):
        for s, _ in wread(n, tau, wfrag(n, tau)):
            L.append((s, "ds:w%d_%d" % (n, tau)))
    return L
TFR, TFI = ACC_RE + 8, ACC_IM + 8
def hfrag(n):
    if n < 6: return vr(ACC_F + 4 * n, 4)
    if n < 28: return ar(4 * (n - 6), 4)
    m = n - 28
    if m in (0, 1): return vr(TFR + 4 * m, 4)
    if m in (8, 9): return vr(TFI + 4 * (m - 8), 4)
    idx = m - 2 if m < 8 else m - 4
    return ar(88 + 4 * idx, 4)
def hload(n):
    L = []
    if n < 28:
        if n % 2 == 0:
            L.append(("s_cmp_gt_u32 s%d, %d" % (sKSW, n - 6), None))
            L.append(("s_cselect_b32 s%d, s%d, s%d" % (sX, sHFa, sHq), None))
            L.append(("s_add_u32 s%d, s%d, %d" % (sX, sX, n * 1024), None))
    else:
        m = n - 28
        if m % 2 == 0:
            L.append(("s_xor_b32 s%d, s%d, %d" % (sX, sC, (m >> 1) & 3), None))
            L.append(("s_lshl_b32 s%d, s%d, 11" % (sX, sX), None))
            L.append(("s_add_u32 s%d, s%d, s%d" % (sX, sX, sHS), None))
            if m >= 8: L.append(("s_add_u32 s%d, s%d, 8192" % (sX, sX), None))
    if OPT["exp"] == 1: return L
    if OPT["exp"] == 2:
        L.append(("buffer_load_dwordx4 %s, v%d, s[%d:%d], 0 offen offset:%d" % (hfrag(n), vL16, SRD_W2, SRD_W2 + 3, 1024 * (n & 3)), "h%d" % n))
        return L
    L.append(("buffer_load_dwordx4 %s, v%d, %s, s%d offen offset:%d%s" % (hfrag(n), vL16, WSR, sX, 1024 * (n & 1), "" if OPT["exp"] == 3 else " sc1"), "h%d" % n))
    return L
started = set()
RQ = []
def issue_reads(cur, ahead, maxn, limit):
    k = 0
    while RQ and k < maxn and RQ[0][0] <= min(cur + ahead, limit) and len(g.lgq) < 15:
        run([RQ.pop(0)[1]]); k += 1
    return k
def step(n, fill=None, pre=None, budget=3, ahead=2, limit=99):
    tl = tiles(n)
    while RQ and RQ[0][0] <= POS[n]:
        if len(g.lgq) >= 15: g.wait_lg(g.lgq[1])
        run([RQ.pop(0)[1]])
    g.wait_vm("h%d" % n)
    for i, tau in enumerate(tl):
        if i == 0 and pre:
            g.wait_lg_all()
        else:
            g.wait_lg("w%d_%d" % (n, tau))
        acc = vr(ACC2[tau], 16)
        S("v_mfma_f32_32x32x16_bf16 %s, %s, %s, %s", acc, hfrag(n), vr(wfrag(n, tau), 4), acc if tau in started else "0")
        started.add(tau)
        if i == 0 and pre: pre()
        k = issue_reads(POS[n], ahead, 3, limit)
        if fill: fill(max(0, budget + 2 - k))

F = Rec(); e = F.e
S("s_and_b32 s%d, s%d, 1", sT0, sC); S("s_lshl_b32 s%d, s%d, 6", sT0, sT0)
S("v_subrev_u32 v%d, 0x%x, v%d", rdCX, LB, rdB)
S("v_xor_b32 v%d, s%d, v%d", rdCX, sT0, rdCX)
S("v_xor_b32 v%d, s%d, v%d", rdCB, sT0, rdB)
for s in range(1, 4):
    S("v_xor_b32 v%d, %d, v%d", rdCX + s, 32 * s, rdCX)
    S("v_xor_b32 v%d, %d, v%d", rdCB + s, 32 * s, rdCB)
for t in range(16):
    ur, ui = ACC_RE + t, ACC_IM + t
    tt = 100 + (t & 1)
    S("v_mul_f32 v%d, v%d, v%d", tt, ur, cCO + 1)
    S("v_mul_f32 v%d, v%d, v%d", ur, ur, cCO)
    S("v_fma_f32 v%d, -v%d, v%d, v%d", ur, ui, cCO + 1, ur)
    S("v_fma_f32 v%d, v%d, v%d, v%d", ui, ui, cCO, tt)
vTW, vTR = 26, 28
vXL, vFLG, FLD = 96, 97, 203
S("s_add_u32 s%d, s%d, %d", sT0, sMB, TRB - LB)
S("v_and_b32 v%d, 31, v%d", t0, vLANE)
S("v_bfe_u32 v%d, v%d, 1, 2", t1, vLANE)
S("v_lshrrev_b32 v%d, 5, v%d", t2, vLANE)
S("v_lshlrev_b32 v%d, 1, v%d", t3, t2)
S("v_xor_b32 v%d, v%d, v%d", t1, t1, t3)
S("v_lshlrev_b32 v%d, 4, v%d", t1, t1)
S("v_lshl_add_u32 v%d, v%d, 6, v%d", t1, t0, t1)
S("v_add_u32 v%d, s%d, v%d", vTW, sT0, t1)
S("v_xor_b32 v%d, 16, v%d", vTW + 1, vTW)
S("v_lshlrev_b32 v%d, 1, v%d", t0, t0)
S("v_lshl_add_u32 v%d, v%d, 10, v%d", vXL, t2, t0)
S("v_add_u32 v%d, s%d, v%d", vXL, sMB, vXL)
S("v_lshl_add_u32 v%d, v%d, 14, v%d", t0, t2, t0)
S("v_add_u32 v%d, s%d, v%d", 98, sXT, t0)
S("v_bfe_u32 v%d, v%d, 2, 2", t0, vLANE)
S("v_lshl_add_u32 v%d, v%d, 3, v%d", t2, t2, t0)
S("v_lshrrev_b32 v%d, 1, v%d", t0, t0)
S("v_and_b32 v%d, 1, v%d", t1, vLANE)
S("v_lshlrev_b32 v%d, 1, v%d", t1, t1)
S("v_bfe_u32 v%d, v%d, 4, 1", t3, vLANE)
S("v_add_u32 v%d, v%d, v%d", t1, t1, t3)
S("v_xor_b32 v%d, v%d, v%d", t1, t1, t0)
S("v_lshlrev_b32 v%d, 4, v%d", t1, t1)
S("v_lshl_add_u32 v%d, v%d, 6, v%d", t1, t2, t1)
S("v_bfe_u32 v%d, v%d, 1, 1", t3, vLANE)
S("v_lshl_add_u32 v%d, v%d, 3, v%d", t1, t3, t1)
S("v_add_u32 v%d, s%d, v%d", vTR, sT0, t1)
S("v_xor_b32 v%d, 32, v%d", vTR + 1, vTR)
S("v_add_u32 v%d, 256, v%d", vTR + 1, vTR + 1)
S("v_and_b32 v%d, 3, v%d", t0, vLANE)
S("v_lshl_add_u32 v%d, v%d, 2, s%d", vFLG, t0, sFL)
S("s_mov_b32 s%d, 32768", sB)
S("s_mov_b32 s%d, 0", sCNT)
S("s_lshl_b32 s%d, s%d, 2", sT1, sC); S("s_add_u32 s%d, s%d, s%d", sFL, sFL, sT1)
e = g.e
for n in range(6): RQ += [(n, x) for x in reads2(n)]
def fill5(b):
    u = late.gap()
    F.play(g, max(0, b - u))
for n in range(6):
    step(n, fill5, budget=2, ahead=1)
late.flush()
F.flush(g)
S("v_lshlrev_b32 v%d, 1, v98", vOUT)
S("s_sub_u32 s%d, s%d, 6144", sHFa, sHq)
stamp()
def flag_load(kind, tag):
    g.vm("buffer_load_dword v%d, v%d, %s, %s offen sc1" % (FLD, vFLG, WSR, "s%d" % sB if kind else "0"), tag)
def flag_check(loader, lbl):
    S("s_mov_b32 s%d, 0", sCNT)
    g.label(lbl + "_chk")
    S("v_cmp_ne_u32 vcc, s%d, v%d", sTAG, FLD)
    S("s_add_u32 s%d, s%d, 1", sCNT, sCNT)
    S("s_cbranch_vccz %s_ok", lbl)
    S("s_cmp_ge_u32 s%d, 0x8000", sCNT)
    S("s_cbranch_scc1 %s_ok", lbl)
    sv = list(g.vmq); loader("x"); g.vmq = sv
    e("s_waitcnt vmcnt(0)")
    S("s_branch %s_chk", lbl)
    g.label(lbl + "_ok")
vorder = [5, 6, 7, 8, 9, 10]
for v in vorder[:OPT["npre"]]: run(unit(v))
vorder = vorder[OPT["npre"]:]
g.wait_vm("hf")
nstamp_("hfdone")
assert g.vm_count("xr") is None
S("v_lshlrev_b32 v205, 16, v%d", DSK)
DSK = 205
e("s_mov_b64 exec, 1")
g.vm("buffer_store_dword v%d, off, %s, s%d sc1" % (vTAG, WSR, sFL), "fl0")
e("s_mov_b64 exec, -1")
g.wait_vm("lb")
g.label("L_lb_chk")
S("v_cmp_ne_u32 vcc, s%d, v%d", sTAG, A0 + 2)
S("v_cmp_ne_u32 s[%d:%d], s%d, v%d", sTP, sTP + 1, sTAG, A1 + 2)
S("s_and_b64 vcc, vcc, s[%d:%d]", sV0, sV0 + 1)
S("s_and_b64 s[%d:%d], s[%d:%d], s[%d:%d]", sTP, sTP + 1, sTP, sTP + 1, sV1, sV1 + 1)
S("s_or_b64 vcc, vcc, s[%d:%d]", sTP, sTP + 1)
e("s_cbranch_scc0 L_lb_ok")
S("s_add_u32 s%d, s%d, 1", sCNT, sCNT)
S("s_cmp_ge_u32 s%d, 0x8000", sCNT)
e("s_cbranch_scc1 L_lb_ok")
sv = list(g.vmq); lb_loads("x"); g.vmq = sv
e("s_waitcnt vmcnt(0)")
e("s_branch L_lb_chk")
g.label("L_lb_ok")
cfma(A0, A0 + 1, cL1024, cL1024 + 1, A1, A1 + 1, A0, A0 + 1)
cmul(A1, A1 + 1, cL128q, cL128q + 1, A0, A0 + 1)
g.ds("ds_write_b64 v%d, %s offset:2048" % (vTID8, vr(A1, 2)), "pw")
assert g.vm_count("v4") is None
g.wait_lg_all()
e("s_barrier")
stamp()
SG = 224
for s_ in range(8):
    g.ds("ds_read_b64 %s, v%d offset:%d" % (vr(SG + 2 * s_, 2), vSEG, 2048 + 256 * s_), "pp%d" % s_)
NH0 = OPT["nh0"]
hq = list(range(6, 6 + NH0))
vs = Spread(sum([unit(v) for v in vorder[:OPT["nscan"]]], []), 8); vorder = vorder[OPT["nscan"]:]
XR = 224
for s_ in range(1, 8):
    g.wait_lg("pp%d" % s_)
    S("v_pk_add_f32 %s, %s, %s", vr(SG, 2), vr(SG, 2), vr(SG + 2 * s_, 2))
cfma(vPRE, vPRE + 1, cL16q, cL16q + 1, SG, SG + 1, vPRE, vPRE + 1)
cmul(100, 101, cCO, cCO + 1, vPRE, vPRE + 1)
pr, pi = 100, 101
for t in range(16):
    cfma(ACC_RE + t, ACC_IM + t, cL, cL + 1, pr, pi, ACC_RE + t, ACC_IM + t)
    pr, pi = ACC_RE + t, ACC_IM + t
    if len(g.lgq) >= 12: g.wait_lg(g.lgq[3])
    g.ds("ds_read_u16 v%d, v%d offset:%d" % (XR + t, vXL, 64 * t), "xl%d" % t)
    vs.gap()
    if t == OPT["pfpos"]: flag_load(0, "pf0")
    if t == OPT["pchk"]:
        g.wait_vm("pf0")
        flag_check(lambda tag: flag_load(0, tag), "L_f0")
        nstamp_("pollok")
        nin = min(NH0, 2 * ((15 - t) // 2))
        vs = Spread(sum([hload(n) for n in hq[:nin]], []), 15 - t); hq = hq[nin:]
stamp()
for x, (acc, tf, ng) in enumerate(((ACC_RE, TFR, ""), (ACC_IM, TFI, "-"))):
    for k in range(8):
        S("v_pk_mul_f32 %s, %s, %s", vr(acc + 2 * k, 2), vr(acc + 2 * k, 2), vr(GREG + 2 * k, 2))
    for k in range(8):
        S("v_cvt_pk_bf16_f32 v%d, %sv%d, %sv%d", acc + k, ng, acc + 2 * k, ng, acc + 2 * k + 1)
    g.wait_lg("xl15")
    for p in range(2):
        g.ds("ds_write_b128 v%d, %s" % (vTW + p, vr(acc + 4 * p, 4)), "tw")
    for f in range(2):
        for e2 in range(2):
            g.ds("ds_read_b64_tr_b16 %s, v%d offset:%d" % (vr(tf + 4 * f + 2 * e2, 2), vTR + e2, 1024 * f), "tr%d%d" % (x, f))
S("s_lshl_b32 s%d, s%d, 11", sT0, sC); S("s_add_u32 s%d, s%d, s%d", sT0, sT0, sHS)
S("s_add_u32 s%d, s%d, 8192", sT1, sT0)
def hs_store(x, f):
    g.wait_lg("tr%d%d" % (x, f))
    g.vm("buffer_store_dwordx4 %s, v%d, %s, s%d offen offset:%d%s" % (vr((TFI if x else TFR) + 4 * f, 4), vL16, WSR, sT1 if x else sT0, 1024 * f, HSC), "hs")
hsq = [(0, 0), (0, 1), (1, 0), (1, 1)]
vs.flush()
for _ in range(OPT["hs0"]): hs_store(*hsq.pop(0))
if OPT["pchk"] > 15:
    g.wait_vm("pf0")
    flag_check(lambda tag: flag_load(0, tag), "L_f0")
    nstamp_("pollok")
stamp()
for n in ORDER[6:]: RQ += [(POS[n], x_) for x_ in reads2(n)]
while hsq or hq:
    for _ in range(2):
        if hq: run(hload(hq.pop(0)))
    if hsq: hs_store(*hsq.pop(0))
    issue_reads(6, 1, 3, 99)
stamp()
vF2S, vF2L = 98, 99
sPS = [66, 67, 68]; sPL = 69
S("s_lshl_b32 s%d, s%d, 4", sT0, sR); S("s_add_u32 s%d, s%d, s%d", sT0, sT0, sC); S("s_lshl_b32 s%d, s%d, 2", sT0, sT0); S("s_add_u32 s%d, s%d, s%d", sT0, sT0, sW)
for tau in range(1, 4):
    S("s_add_u32 s%d, s%d, %d", sT1, sQ, tau); S("s_and_b32 s%d, s%d, 3", sT1, sT1); S("s_lshl_b32 s%d, s%d, 4", sT1, sT1); S("s_add_u32 s%d, s%d, s%d", sT1, sT1, sT0)
    S("s_mul_i32 s%d, s%d, 6144", sPS[tau - 1], sT1); S("s_add_u32 s%d, s%d, %d", sPS[tau - 1], sPS[tau - 1], PART + 2048 * (tau - 1))
S("s_lshl_b32 s%d, s%d, 4", sT1, sQ); S("s_add_u32 s%d, s%d, s%d", sT1, sT1, sT0)
S("s_mul_i32 s%d, s%d, 6144", sPL, sT1); S("s_add_u32 s%d, s%d, %d", sPL, sPL, PART)
S("s_lshl_b32 s%d, s%d, 7", sT1, sT1); S("s_add_u32 s%d, s%d, %d", sT1, sT1, FLAGS2)
S("v_min_u32 v%d, 2, v%d", t0, vLANE)
S("v_lshl_add_u32 v%d, v%d, 2, s%d", vF2L, t0, sT1)
S("v_add_u32 v%d, s%d, v%d", t1, sQ, t0)
S("v_add_u32 v%d, 1, v%d", t1, t1)
S("v_and_b32 v%d, 3, v%d", t1, t1)
S("v_lshlrev_b32 v%d, 11, v%d", t1, t1)
S("v_lshl_add_u32 v%d, v%d, 2, v%d", t1, t0, t1)
S("s_lshl_b32 s%d, s%d, 7", sT0, sT0); S("s_add_u32 s%d, s%d, %d", sT0, sT0, FLAGS2)
S("v_add_u32 v%d, s%d, v%d", vF2S, sT0, t1)
for k in range(8):
    S("v_lshlrev_b32 v%d, 16, v%d", XR + 2 * k, XR + 2 * k); S("v_lshlrev_b32 v%d, 16, v%d", XR + 2 * k + 1, XR + 2 * k + 1)
    S("v_mul_f32 v%d, v%d, v%d", XR + 2 * k, XR + 2 * k, DSK); S("v_mul_f32 v%d, v%d, v%d", XR + 2 * k + 1, XR + 2 * k + 1, DSK)
    S("v_cvt_pk_bf16_f32 v%d, v%d, v%d", XR + 2 * k, XR + 2 * k, XR + 2 * k + 1)
    S("v_and_b32 v%d, s%d, v%d", XR + 2 * k + 1, sMASK, XR + 2 * k)
    S("v_lshlrev_b32 v%d, 16, v%d", XR + 2 * k, XR + 2 * k)
    S("v_fma_f32 v%d, v%d, v%d, v%d", ACC2[0] + 2 * k, XR + 2 * k, GREG + 2 * k, ACC2[0] + 2 * k)
    S("v_fma_f32 v%d, v%d, v%d, v%d", ACC2[0] + 2 * k + 1, XR + 2 * k + 1, GREG + 2 * k + 1, ACC2[0] + 2 * k + 1)
nstamp_("gxd")
pend = list(range(6 + NH0, 28))
pend_s = [n for n in range(28, 44) if (n - 28) not in (0, 1, 8, 9)]
assert not hq
vq = [v for v in vorder if v < 8] + [9, 8, 10]
NV = OPT["npre"] + OPT["nscan"]
vitems = []
def fill2(b):
    pass
PFS = OPT["pfs"]
SY = {11: ("v%d" % (4 + NV), 4 * (5 + NV) - 1), OPT["sy2"]: ("v8", 35), 34: ("v10", 99)}
assert NV <= 3
limit = 19
for n in ORDER[6:]:
    pre = None
    if n in SY:
        def pre(n=n):
            g.wait_vm(SY[n][0])
            e("s_barrier")
        limit = SY[n][1]
    step(n, fill2, pre, budget=0, limit=limit)
    nstamp_("s%d" % n)
    if n == OPT["hsn"]:
        S("s_add_u32 s%d, s%d, 32768", sCI, sFL)
        g.wait_vm("hs")
        e("s_mov_b64 exec, 1")
        g.vm("buffer_store_dword v%d, off, %s, s%d sc1" % (vTAG, WSR, sCI), "fl1")
        e("s_mov_b64 exec, -1")
        e("s_nop 1")
    if n == PFS: flag_load(1, "pf1")
    if not vitems and vq and not (vq[0] in (8, 10) and n < 11):
        vitems = unit(vq.pop(0))
    while vitems:
        it = vitems.pop(0); run([it])
        if it[1]: break
    if pend:
        run(hload(pend.pop(0)))
    else:
        if g.wait_vm("pf1"):
            flag_check(lambda tag: flag_load(1, tag), "L_f1")
        if pend_s: run(hload(pend_s.pop(0)))
        if pend_s and len(pend_s) % 2 == 1: run(hload(pend_s.pop(0)))
assert not pend and not pend_s and not vq and not vitems
stamp()
F = Rec(); e = F.e
for tau in range(1, 4):
    a = ACC2[tau]
    for k in range(8):
        S("v_cvt_pk_bf16_f32 v%d, v%d, v%d", a + k, a + 2 * k, a + 2 * k + 1)
    for p in range(2):
        F.vm("buffer_store_dwordx4 %s, v%d, %s, s%d offen offset:%d%s" % (vr(a + 4 * p, 4), vL16, WSR, sPS[tau - 1], 1024 * p, " sc1" if OPT["psc"] else ""), "ps")
e = g.e
dl = [n for n in range(44) if n not in FULL]
AHEAD = 5
def dread(i):
    for s, _ in wread(dl[i], 0, WF + 4 * (i % 8)):
        g.ds(s, "d%d" % i)
for i in range(AHEAD): dread(i)
e("s_nop 1")
def f2_load(tag):
    g.vm("buffer_load_dword v%d, v%d, %s, 0 offen sc1" % (FLD, vF2L, WSR), tag)
for i, n in enumerate(dl):
    g.wait_lg("d%d" % i)
    acc = vr(ACC2[0], 16)
    S("v_mfma_f32_32x32x16_bf16 %s, %s, %s, %s", acc, hfrag(n), vr(WF + 4 * (i % 8), 4), acc)
    if i + AHEAD < len(dl): dread(i + AHEAD)
    F.play(g, OPT["tb"])
    nstamp_("d%d" % i)
    if i == OPT["fwait"]:
        assert not F.items
        g.wait_vm("ps")
        nstamp_("psdone")
        e("s_mov_b64 exec, 7")
        g.vm("buffer_store_dword v%d, v%d, %s, 0 offen sc1" % (vTAG, vF2S, WSR), "fl2")
        e("s_mov_b64 exec, -1")
        e("s_nop 1")
f2_load("pf2")
stamp()
S("v_mov_b32 v%d, 0x3f80", t0)
S("v_mov_b32 v%d, 0x3f800000", t1)
S("s_cmp_eq_u32 s%d, 15", sR); S("s_cselect_b32 s%d, s%d, 1", sT3, sJ); S("s_or_b32 s%d, s%d, s%d", sT3, sT3, sW)
g.wait_vm("pf2")
flag_check(f2_load, "L_f2")
stamp()
S("s_add_u32 s%d, s%d, 4096", sT0, sPL)
for k in range(3):
    for p in range(2):
        o = 2048 * k + 1024 * p
        g.vm("buffer_load_dwordx4 %s, v%d, %s, s%d offen offset:%d sc1" % (vr(ACC2[k + 1] + 8 + 4 * p, 4), vL16, WSR, sPL if o < 4096 else sT0, o & 4095), "pl%d" % k)
for k in range(3):
    g.wait_vm("pl%d" % k)
    nstamp_("pl%d" % k)
    for i in range(8):
        S("v_dot2c_f32_bf16 v%d, v%d, v%d", ACC2[0] + 2 * i, ACC2[k + 1] + 8 + i, t0)
        S("v_dot2c_f32_bf16 v%d, v%d, v%d", ACC2[0] + 2 * i + 1, ACC2[k + 1] + 8 + i, t1)
e("s_nop 2")
for k in range(16):
    if k % 2 == 0: S("s_mov_b32 s%d, %d", sT0, 2048 * k)
    g.vm("buffer_store_dword v%d, v%d, s[%d:%d], s%d offen offset:%d" % (ACC2[0] + k, vOUT, SRD_OUT, SRD_OUT + 3, sT0, 2048 * (k & 1)) + ("", " sc1", " nt")[OPT["osc"]], "out")
stamp()
if OPT["stamps"]:
    e("s_waitcnt vmcnt(0)")
    stamp()
    if OPT["stamps"] == 6:
        e("s_waitcnt lgkmcnt(0)"); e("s_mov_b64 exec, 1")
        for i, p in enumerate(sused):
            S("v_mov_b32 v252, s%d", p); e("buffer_store_dword v252, off, %s, s101 offset:%d" % (WSR, 4 + 4 * i)); e("s_nop 1")
        e("s_mov_b64 exec, -1")
        print("sgpr stamps", len(sused))
    e("s_memrealtime s[82:83]"); e("s_waitcnt lgkmcnt(0)"); e("v_mov_b32 v252, s82"); e("s_mov_b64 exec, 1")
    e("buffer_store_dword v252, off, %s, s101 offset:124" % WSR)
    e("s_mov_b64 exec, -1")
S("s_cmp_lg_u32 s%d, 0", sT3)
e("s_cbranch_scc1 L_end2")
e("s_mov_b64 exec, 1")
e("buffer_store_dword v%d, off, %s, 0 sc1" % (vTAG, WSR))
g.label("L_end2")
if OPT["diag"] > 0:
    S("s_sub_u32 s%d, s%d, s96", sDG, sDG)
    if OPT["diagcyc"]: S("s_lshr_b32 s%d, s%d, 1", sDG, sDG)
    else: S("s_mul_i32 s%d, s%d, 10", sDG, sDG)
    e("s_memrealtime s[96:97]"); e("s_waitcnt lgkmcnt(0)"); S("s_add_u32 s%d, s%d, s96", sDG, sDG)
    g.label("L_spin")
    e("s_memrealtime s[96:97]"); e("s_waitcnt lgkmcnt(0)"); S("s_sub_u32 s%d, s%d, s96", sDG + 1, sDG); S("s_cmp_gt_i32 s%d, 0", sDG + 1); e("s_cbranch_scc1 L_spin")
g.label("L_end")
e("s_endpgm")
e('.section .rodata,"a"')
e(".p2align 6")
e(".amdhsa_kernel %s_kernel" % NAME)
for l in ("next_free_vgpr 512", "next_free_sgpr 102", "accum_offset 256", "group_segment_fixed_size 0", "kernarg_size 128", "user_sgpr_count 2",
          "user_sgpr_kernarg_segment_ptr 1", "system_sgpr_workgroup_id_x 1"):
    g.lines.append("  .amdhsa_" + l)
e(".end_amdhsa_kernel")

if OPT["nocomp"]:
    g.lines = [l for l in g.lines if not (l.startswith("v_mfma") or l.startswith("ds_read_b64_tr") or l.startswith("ds_read_b128"))]
if OPT["ntin"]:
    def ntf(l):
        if l.startswith("buffer_load_dwordx4") and l.endswith(" lds"):
            p1 = any(("s[%d:%d]" % (b, b + 3)) in l for b in (SRD_X, SRD_B, SRD_W1))
            if (p1 and OPT["ntin"] & 1) or (not p1 and OPT["ntin"] & 2): return l[:-4] + " nt lds"
        return l
    g.lines = [ntf(l) for l in g.lines]
i0 = g.lines.index("%s_kernel:" % NAME) + 1
i1 = g.lines.index("s_endpgm") + 1
body, npad, lastoff = layout(g.lines[i0:i1], 3328, sW, OPT["align"], OPT["page"])
g.lines = g.lines[:i0] + body + g.lines[i1:]
print("pads", npad, "last page bytes", lastoff)
tot = (3328 + 4096 * (npad - 1) + lastoff if npad else lastoff) - 320
stride = (tot // 128) & ~7
g.lines = [l.replace("0x1234", str(stride)).replace("0x4320", str(stride // 2)) for l in g.lines]
errs = check_hazards(g.lines)
for x in errs:
    print("HAZARD", x)
open(sys.argv[1], "w").write(out_hdr + g.text())
print("lines", len(g.lines), "stamps", nstamp[0], "hazards", len(errs))
```

```python
import sys
from asmlib import *

NAME = "gated_mix__ssm_conv_s5__dense_activation_relu__prompt"
OPT = dict(stamps=0, p1map=84, rot1=2, pre=2, fillb=2, diag=-1, diagcyc=0, dstart=0, fwait=22, nh0=8, pfs=17, hsc=1, psc=1, osc=0, lgaps=20, hsn=10, b2=1, wsoff=236, pfpos=4, smask=0, exp=0, lbpos=4, ffpos=0, page=1, align=1, cpf=1, nst0=4, hs0=0, tb=6, nw56=3, pchk=16, sy2=26, nocomp=0, npre=2, nscan=1, nst1=0, skip=1, ntin=0, wpf=1, wpc=2, ppf=0, padn=0, prefill=0)
for a in sys.argv[2:]:
    k, v = a.split("=")
    assert k in OPT, k
    OPT[k] = int(v)

AGG = 4096
GOFF = AGG + 16 * 8192
FLAGS = GOFF + 2048 * 8
FLAGS2 = FLAGS + 65536
HOFF = 393216
TSTRIDE = 176 * 1024
PART = HOFF + 64 * TSTRIDE
WS_SIZE = PART + 256 * 4 * 6144
OOB = 0x80000000
LX, LW, LB = 0, 65536, 131072
SCR = LB + 2 * 8192
GT = SCR + 4096
TRB = LB + 3 * 8192
SRD_X, SRD_B, SRD_W1, SRD_W2, SRD_CR, SRD_CI, SRD_WS, SRD_OUT = 4, 8, 12, 16, 20, 24, 28, 32
sW, sR, sJ, sQ, sC, sTAG, sMASK = 36, 37, 38, 39, 40, 41, 42
sX, sB, sW1 = 43, 44, 45
sMX, sMB, sMW = 46, 47, 48
sT0, sT1, sT2, sT3 = 49, 50, 51, 52
sXb, sBb, sW1b, sCI = 54, 55, 56, 57
sV0, sV1 = 54, 56
sTP = 58
sCNT = 60
sE = 63
pX, pLRE, pLIM, pBRE, pBIM, pCRE, pCIM, pLDT, pDSK, pBX, pW1, pW2, pGATE, pOUT, pDBG, pWS = range(64, 96, 2)
sST = 96
sDUM = 98
sHF, sFL = 99, 100
sV2b, sKSW, sCb, sHO, sHS, sHq = 53, 3, 61, 62, 82, 83
sDG = 84
vLANE, vTID8 = 1, 0
vX = 2; vC = 6; vW1 = 10; vW2 = 14
rdA = 18; rdB = 22; rdW = 26
cL, cL16, cL16q, cL128q, cL1024, cCO = 30, 32, 34, 36, 38, 40
vQ, vL16, vL16d = 42, 43, 44
vTAG = 45
vPRE = 46
FR = 48
ACC_RE, ACC_IM, ACC_F = 104, 120, 136
T = 200
LOG2E = 0x3fb8aa3b
INV2PI = 0x3e22f983

g = Asm()
e = g.e
nstamp = [0]
sidx = [0]; sused = []; SPAIRS = [70, 72, 78, 84, 86, 92, 94, 74, 76, 88, 90]
ndiag = [1]
import os
STN = os.environ.get("ST", "").split(",")
def nstamp_(name):
    if OPT["stamps"] == 6 and name in STN:
        p = SPAIRS[len(sused)]; sused.append(p)
        g.e("s_memtime s[%d:%d]" % (p, p + 1))
def stamp():
    if OPT["diag"] >= 0:
        if ndiag[0] == OPT["diag"]:
            g.e("%s s[%d:%d]" % ("s_memtime" if OPT["diagcyc"] else "s_memrealtime", sDG, sDG + 1)); g.e("s_waitcnt lgkmcnt(0)"); g.lgq = []
        if ndiag[0] == OPT["dstart"]:
            g.e("%s s[96:97]" % ("s_memtime" if OPT["diagcyc"] else "s_memrealtime")); g.e("s_waitcnt lgkmcnt(0)"); g.lgq = []
        ndiag[0] += 1
    if OPT["stamps"] == 6:
        sidx[0] += 1
        if (OPT["smask"] >> sidx[0]) & 1:
            p = SPAIRS[len(sused)]; sused.append(p)
            g.e("s_memtime s[%d:%d]" % (p, p + 1))
        return
    if not OPT["stamps"] or OPT["stamps"] == 5:
        return
    i = nstamp[0]; nstamp[0] += 1
    assert i < 30
    g.e("s_memtime s[%d:%d]" % (sST, sST + 1))
    g.e("s_waitcnt lgkmcnt(0)")
    g.lgq = []
    g.e("v_accvgpr_write_b32 a255, s%d" % sST)
    g.e("s_mov_b64 exec, 1")
    g.vm("buffer_store_dword a255, off, s[%d:%d], s101 offset:%d" % (SRD_WS, SRD_WS + 3, 4 * i), "stamp")
    g.e("s_mov_b64 exec, -1")

def cfma(dr, di, ar_, ai, br, bi, cr, ci):
    e("v_fma_f32 v%d, v%d, v%d, v%d" % (dr, ar_, br, cr))
    e("v_fma_f32 v%d, v%d, v%d, v%d" % (di, ar_, bi, ci))
    e("v_fma_f32 v%d, -v%d, v%d, v%d" % (dr, ai, bi, dr))
    e("v_fma_f32 v%d, v%d, v%d, v%d" % (di, ai, br, di))
def cmul(dr, di, ar_, ai, br, bi):
    e("v_mul_f32 v%d, v%d, v%d" % (dr, ar_, br))
    e("v_mul_f32 v%d, v%d, v%d" % (di, ar_, bi))
    e("v_fma_f32 v%d, -v%d, v%d, v%d" % (dr, ai, bi, dr))
    e("v_fma_f32 v%d, v%d, v%d, v%d" % (di, ai, br, di))
def srd(base, p):
    e("s_mov_b32 s%d, s%d" % (base, p))
    e("s_mov_b32 s%d, s%d" % (base + 1, p + 1))
def S(fmt, *a):
    e(fmt % a)
def run(L):
    for s, tag in L:
        if tag is None: g.e(s)
        elif tag.startswith("ds:"): g.ds(s, tag[3:])
        else: g.vm(s, tag)
WSR = "s[%d:%d]" % (SRD_WS, SRD_WS + 3)
HSC = ("", " sc1", " sc1 nt")[OPT["hsc"]]

hdr = open("cdna_kernels/%s.s.ref" % NAME).read().split("; Override launch")[0]
out_hdr = hdr + "; @launch grid=(256,1,1) block=(256,1,1) lds=163840\n"
e('.amdgcn_target "amdgcn-amd-amdhsa--gfx950"')
e(".text")
e(".globl %s_kernel" % NAME)
e(".p2align 8")
e(".type %s_kernel,@function" % NAME)
g.label("%s_kernel" % NAME)
e("s_cmp_ge_u32 s2, 256")
e("s_cbranch_scc1 L_end")
if OPT["stamps"]:
    e("s_memrealtime s[82:83]"); e("s_memtime s[96:97]"); e("s_waitcnt lgkmcnt(0)"); e("v_mov_b32 v252, s82"); e("v_mov_b32 v253, s96")
if OPT["diag"] >= 0:
    e("%s s[96:97]" % ("s_memtime" if OPT["diagcyc"] else "s_memrealtime"))
e("s_load_dwordx16 s[64:79], s[0:1], 0")
e("s_load_dwordx16 s[80:95], s[0:1], 64")
e("v_lshrrev_b32 v2, 6, v0")
S("v_and_b32 v%d, 63, v0", vLANE)
S("v_readfirstlane_b32 s%d, v2", sW)
t0, t1, t2, t3 = T, T + 1, T + 2, T + 3
S("v_lshrrev_b32 v%d, 3, v%d", t0, vLANE)
S("v_and_b32 v%d, 7, v%d", t1, vLANE)
S("v_lshrrev_b32 v%d, 1, v%d", t2, t0)
S("v_xor_b32 v%d, v%d, v%d", t3, t1, t2)
S("v_lshlrev_b32 v%d, 4, v%d", t3, t3)
S("v_lshl_add_u32 v%d, v%d, 10, v%d", vC, t0, t3)
S("v_lshrrev_b32 v%d, 2, v%d", t1, t0)
S("v_and_b32 v%d, 3, v%d", t2, t0)
S("v_lshl_add_u32 v%d, v%d, 4, v%d", t1, t1, t2)
S("v_lshl_add_u32 v%d, v%d, 10, v%d", vX, t1, t3)
S("v_xor_b32 v%d, 64, v%d", vX + 1, vX)
S("v_add_u32 v%d, 3072, v%d", vX + 1, vX + 1)
S("v_add_u32 v%d, 6144, v%d", vX + 2, vX)
S("v_add_u32 v%d, 6144, v%d", vX + 3, vX + 1)
S("s_bfe_u32 s%d, s2, 0x30003", sT2)
S("s_and_b32 s%d, s2, 1", sR); S("s_lshl_b32 s%d, s%d, 3", sR, sR); S("s_add_u32 s%d, s%d, s%d", sR, sR, sT2)
S("s_lshr_b32 s%d, s2, 6", sC)
S("s_bfe_u32 s%d, s2, 0x20001", sQ)
S("s_mov_b32 s%d, 0x%x", SRD_X + 2, 2048 * 1024); S("s_mov_b32 s%d, 0x20000", SRD_X + 3)
if OPT["rot1"] == 2:
    S("s_add_u32 s%d, s%d, s%d", sCI, sR, sC); S("s_and_b32 s%d, s%d, 1", sCI, sCI); S("s_lshl_b32 s%d, s%d, 2", sCI, sCI)
elif OPT["rot1"] == 4:
    S("s_add_u32 s%d, s%d, s%d", sCI, sR, sC); S("s_and_b32 s%d, s%d, 3", sCI, sCI); S("s_lshl_b32 s%d, s%d, 1", sCI, sCI)
else:
    S("s_mov_b32 s%d, 0", sCI)
S("s_lshl_b32 s%d, s%d, 17", sXb, sR); S("s_lshl_b32 s%d, s%d, 15", sT0, sW); S("s_add_u32 s%d, s%d, s%d", sXb, sXb, sT0)
S("s_lshl_b32 s%d, s%d, 12", sMX, sW)
S("s_lshl_b32 s%d, s%d, 7", sB, sCI)
S("s_mov_b32 m0, s%d", sMX)
S("s_add_u32 s%d, s%d, s%d", sX, sXb, sB)
e("s_waitcnt lgkmcnt(0)")
srd(SRD_X, pX)
for n in range(4):
    g.vm("buffer_load_dwordx4 v%d, s[%d:%d], s%d offen offset:%d lds" % (vX + n, SRD_X, SRD_X + 3, sX, 1024 * n), "ch0")
if OPT["cpf"]:
    S("s_getpc_b64 s[%d:%d]", sTP, sTP + 1)
    S("s_lshr_b32 s%d, s2, 3", sT0); S("s_lshl_b32 s%d, s%d, 2", sT0, sT0); S("s_add_u32 s%d, s%d, s%d", sT0, sT0, sW)
    S("s_mul_i32 s%d, s%d, 0x1234", sT0, sT0)
    S("s_add_u32 s%d, s%d, s%d", sTP, sTP, sT0); S("s_addc_u32 s%d, s%d, 0", sTP + 1, sTP + 1)
    S("s_load_dword s%d, s[%d:%d], 0", sCNT, sTP, sTP + 1)
    S("s_load_dword s%d, s[%d:%d], 0x4320", sCb, sTP, sTP + 1)
if OPT["wsoff"]:
    S("s_add_u32 s%d, s%d, 0x%x", pWS, pWS, OPT["wsoff"] << 20); S("s_addc_u32 s%d, s%d, 0", pWS + 1, pWS + 1)
S("s_load_dword s%d, s[%d:%d], 0", sE, pWS, pWS + 1)
S("s_lshl_b32 s%d, s%d, 2", sJ, sQ); S("s_add_u32 s%d, s%d, s%d", sJ, sJ, sC)
for b_, sz in ((SRD_B, 512 * 1024), (SRD_W1, 512 * 3584)):
    S("s_mov_b32 s%d, 0x%x", b_ + 2, sz)
    S("s_mov_b32 s%d, 0x20000", b_ + 3)
S("v_xor_b32 v%d, 64, v%d", vC + 1, vC)
S("v_add_u32 v%d, 7168, v%d", vC + 1, vC + 1)
S("s_lshl_b32 s%d, s%d, 15", sBb, sJ); S("s_and_b32 s%d, s%d, 1", sT0, sW); S("s_lshl_b32 s%d, s%d, 14", sT0, sT0); S("s_add_u32 s%d, s%d, s%d", sBb, sBb, sT0)
S("s_lshl_b32 s%d, s%d, 11", sMB, sW); S("s_add_u32 s%d, s%d, %d", sMB, sMB, LB)
S("s_cmp_ge_u32 s%d, 2", sW)
S("s_cselect_b32 s%d, s%d, s%d", SRD_B, pBIM, pBRE)
S("s_cselect_b32 s%d, s%d, s%d", SRD_B + 1, pBIM + 1, pBRE + 1)
S("s_mov_b32 m0, s%d", sMB)
S("s_add_u32 s%d, s%d, s%d", sB, sBb, sB)
for n in range(2):
    g.vm("buffer_load_dwordx4 v%d, s[%d:%d], s%d offen offset:%d lds" % (vC + n, SRD_B, SRD_B + 3, sB, 1024 * n), "ch0")
S("v_lshrrev_b32 v%d, 4, v%d", t0, vLANE)
S("v_and_b32 v%d, 15, v%d", t1, vLANE)
S("v_lshlrev_b32 v%d, 2, v%d", t2, t0)
S("v_xor_b32 v%d, v%d, v%d", vW2, t1, t2)
S("v_lshrrev_b32 v%d, 2, v%d", t2, vW2)
S("v_cmp_eq_u32 vcc, 3, v%d", t2)
S("v_mul_u32_u24 v%d, 3584, v%d", t0, t0)
S("v_lshl_add_u32 v%d, v%d, 4, v%d", vW1, vW2, t0)
S("s_lshr_b32 s%d, s%d, 1", sDUM, sC)
S("s_cselect_b64 s[%d:%d], vcc, 0", sTP, sTP + 1)
S("v_mov_b32 v%d, 0x%x", t3, OOB)
S("v_lshlrev_b32 v%d, 4, v%d", vL16, vLANE)
S("v_cndmask_b32 v%d, v%d, v%d, s[%d:%d]", vW1, vW1, t3, sTP, sTP + 1)
for n in range(1, 4):
    S("v_add_u32 v%d, %d, v%d", vW1 + n, 13312 * n, vW1)
S("s_lshl_b32 s%d, s%d, 3", sKSW, sC); S("s_min_u32 s%d, s%d, 22", sKSW, sKSW)
S("s_mul_i32 s%d, s%d, 896", sT0, sQ); S("s_lshl_b32 s%d, s%d, 5", sT1, sKSW); S("s_add_u32 s%d, s%d, s%d", sT0, sT0, sT1)
S("s_mul_i32 s%d, s%d, %d", sW1b, sW, 16 * 3584); S("s_add_u32 s%d, s%d, s%d", sW1b, sW1b, sT0)
S("s_add_u32 s%d, s%d, %d", sMW, sMX, LW)
srd(SRD_W1, pW1)
S("s_mul_i32 s%d, s%d, %d", sW1, sCI, 64 * 3584)
S("s_mov_b32 m0, s%d", sMW)
S("s_add_u32 s%d, s%d, s%d", sW1, sW1, sW1b)
for n in range(4):
    g.vm("buffer_load_dwordx4 v%d, s[%d:%d], s%d offen offset:%d lds" % (vW1 + n, SRD_W1, SRD_W1 + 3, sW1, 1024 * n), "ch0")
S("s_add_u32 s%d, s%d, 1", sCI, sCI)
S("v_and_b32 v%d, 31, v%d", t0, vLANE)
S("v_lshlrev_b32 v%d, 1, v%d", t0, t0)
S("s_lshl_b32 s%d, s%d, 6", sT0, sJ)
S("v_add_u32 v%d, s%d, v%d", t0, sT0, t0)
S("s_lshl_b32 s%d, s%d, 11", sT1, sJ); S("s_add_u32 s%d, s%d, s%d", sT1, sT1, sXb)
S("v_add_u32 v%d, s%d, v%d", t1, sT1, vL16)

def dma_chunk(c):
    k = c & 3
    L = []
    def I(s): L.append((s, None))
    def D(s): L.append((s, "ch%d" % c))
    I("s_lshl_b32 s%d, s%d, 7" % (sB, sCI))
    I("s_add_u32 m0, s%d, %d" % (sMX, k * 16384))
    I("s_add_u32 s%d, s%d, s%d" % (sX, sXb, sB))
    for n in range(4): D("buffer_load_dwordx4 v%d, s[%d:%d], s%d offen offset:%d lds" % (vX + n, SRD_X, SRD_X + 3, sX, 1024 * n))
    I("s_add_u32 m0, s%d, %d" % (sMB, k * 8192))
    I("s_add_u32 s%d, s%d, s%d" % (sB, sBb, sB))
    for n in range(2): D("buffer_load_dwordx4 v%d, s[%d:%d], s%d offen offset:%d lds" % (vC + n, SRD_B, SRD_B + 3, sB, 1024 * n))
    I("s_mul_i32 s%d, s%d, %d" % (sW1, sCI, 64 * 3584))
    I("s_add_u32 m0, s%d, %d" % (sMW, k * 16384))
    I("s_add_u32 s%d, s%d, s%d" % (sW1, sW1, sW1b))
    for n in range(4): D("buffer_load_dwordx4 v%d, s[%d:%d], s%d offen offset:%d lds" % (vW1 + n, SRD_W1, SRD_W1 + 3, sW1, 1024 * n))
    I("s_add_u32 s%d, s%d, 1" % (sCI, sCI))
    I("s_and_b32 s%d, s%d, 7" % (sCI, sCI))
    return L
PL, PI, PD = T + 4, T + 5, T + 6
GX0, GX1, GW = T + 8, T + 12, T + 16
g.vm("global_load_dwordx4 %s, v%d, s[%d:%d]" % (vr(GW, 4), vL16, pGATE, pGATE + 1), "small2")
g.vm("global_load_dwordx4 %s, v%d, s[%d:%d]" % (vr(GX0, 4), t1, pX, pX + 1), "small2")
g.vm("global_load_dwordx4 %s, v%d, s[%d:%d] offset:1024" % (vr(GX1, 4), t1, pX, pX + 1), "small2")
g.vm("global_load_ushort v%d, v%d, s[%d:%d]" % (PD, t0, pLDT, pLDT + 1), "small")
g.vm("global_load_ushort v%d, v%d, s[%d:%d]" % (PL, t0, pLRE, pLRE + 1), "small")
g.vm("global_load_ushort v%d, v%d, s[%d:%d]" % (PI, t0, pLIM, pLIM + 1), "small")
for b, sz in ((SRD_W2, 1792 * 1024), (SRD_CR, 512 * 1024), (SRD_CI, 512 * 1024), (SRD_WS, WS_SIZE + (256 * 4 * 128 if OPT["stamps"] else 0)), (SRD_OUT, 2048 * 2048)):
    S("s_mov_b32 s%d, 0x%x", b + 2, sz)
    S("s_mov_b32 s%d, 0x20000", b + 3)
S("s_mov_b32 s%d, 0xffff0000", sMASK)
srd(SRD_W2, pW2); srd(SRD_CR, pCRE); srd(SRD_CI, pCIM); srd(SRD_WS, pWS); srd(SRD_OUT, pOUT)
if OPT["stamps"]:
    e("s_lshl_b32 s101, s2, 2"); S("s_add_u32 s101, s101, s%d", sW); e("s_lshl_b32 s101, s101, 7"); S("s_add_u32 s101, s101, %d", WS_SIZE)
    e("s_mov_b64 exec, 1")
    g.vm("buffer_store_dword v253, off, %s, s101 offset:0" % WSR, "stamp")
    g.vm("buffer_store_dword v252, off, %s, s101 offset:120" % WSR, "stamp")
    e("s_mov_b64 exec, -1")
    nstamp[0] = 1
stamp()
S("v_and_b32 v%d, 31, v%d", t0, vLANE)
S("v_lshrrev_b32 v%d, 5, v%d", t1, vLANE)
S("v_bfe_u32 v%d, v%d, 1, 3", t2, t0)
S("v_xor_b32 v%d, v%d, v%d", t2, t2, t1)
S("v_lshlrev_b32 v%d, 4, v%d", t2, t2)
S("v_lshl_add_u32 v%d, v%d, 7, v%d", t2, t0, t2)
S("v_add_u32 v%d, s%d, v%d", rdA, sMX, t2)
S("v_add_u32 v%d, 0x%x, v%d", rdB, LB, t2)
for s in range(1, 4):
    S("v_xor_b32 v%d, %d, v%d", rdA + s, 32 * s, rdA)
    S("v_xor_b32 v%d, %d, v%d", rdB + s, 32 * s, rdB)
S("s_lshl_b32 s%d, s%d, 1", sT0, sW)
S("v_add_u32 v%d, s%d, v%d", vQ, sT0, t1)
S("v_bfe_u32 v%d, v%d, 2, 2", t0, vLANE)
S("v_lshl_add_u32 v%d, v%d, 3, v%d", t2, t1, t0)
S("v_lshlrev_b32 v%d, 8, v%d", t2, t2)
S("v_lshl_add_u32 v%d, v%d, 6, v%d", t2, t0, t2)
S("v_bfe_u32 v%d, v%d, 4, 1", t3, vLANE)
S("v_lshl_add_u32 v%d, v%d, 5, v%d", vPRE, t3, t2)
S("v_and_b32 v%d, 1, v%d", t3, vLANE)
S("v_lshl_add_u32 v%d, v%d, 4, v%d", t2, t3, vPRE)
S("v_bfe_u32 v%d, v%d, 1, 1", t3, vLANE)
S("v_lshl_add_u32 v%d, v%d, 3, v%d", t2, t3, t2)
S("v_add_u32 v%d, 0x%x, v%d", rdW, LW, t2)
for s in range(1, 4):
    S("v_xor_b32 v%d, %d, v%d", rdW + s, 64 * s, rdW)
if OPT["ppf"]:
    S("v_lshrrev_b32 v%d, 2, v%d", t0, vLANE); S("v_lshlrev_b32 v%d, 10, v%d", t0, t0)
    S("v_and_b32 v%d, 1, v%d", t1, vLANE); S("v_lshl_add_u32 v%d, v%d, 7, v%d", t0, t1, t0)
    S("v_bfe_u32 v%d, v%d, 1, 1", t1, vLANE); S("v_lshl_add_u32 v%d, v%d, 9, v%d", t0, t1, t0)
    S("v_lshlrev_b32 v%d, 7, v%d", t1, vLANE)
    S("s_lshl_b32 s%d, s2, 2", sT0); S("s_add_u32 s%d, s%d, s%d", sT0, sT0, sW); S("s_lshl_b32 s%d, s%d, 11", sT0, sT0)
    S("s_lshl_b32 s%d, s2, 1", sT1); S("s_and_b32 s%d, s%d, 1", sT2, sW); S("s_add_u32 s%d, s%d, s%d", sT1, sT1, sT2); S("s_lshl_b32 s%d, s%d, 10", sT1, sT1)
    S("s_and_b32 s%d, s2, 127", sT2); S("s_lshr_b32 s%d, s2, 7", sT3); S("s_lshl_b32 s%d, s%d, 8", sT3, sT3); S("s_add_u32 s%d, s%d, s%d", sT2, sT2, sT3)
    S("s_add_u32 s%d, s%d, 128", sT2, sT2); S("s_mul_i32 s%d, s%d, 3584", sT2, sT2); S("s_mul_i32 s%d, s%d, 896", sT3, sW); S("s_add_u32 s%d, s%d, s%d", sT2, sT2, sT3)
    e("s_mov_b64 exec, 0xff")
    g.vm("buffer_load_dword v%d, v%d, s[%d:%d], s%d offen offset:256" % (T + 42, t0, SRD_X, SRD_X + 3, sT0), "ppf")
    e("s_mov_b64 exec, 0x7f")
    g.vm("buffer_load_dword v%d, v%d, s[%d:%d], s%d offen" % (T + 43, t1, SRD_W1, SRD_W1 + 3, sT2), "ppf")
    e("s_mov_b64 exec, 15")
    g.vm("buffer_load_dword v%d, v%d, s[%d:%d], s%d offen offset:256" % (T + 44, t0, SRD_B, SRD_B + 3, sT1), "ppf")
    e("s_mov_b64 exec, -1")
if OPT["page"]: e("TOUCH")
run(dma_chunk(1))
if OPT["wpf"]:
    vPF = T + 38
    S("v_mov_b32 v%d, 0x%x", t3, OOB)
    S("s_mul_i32 s%d, s%d, %d", sV2b, sQ, 448 * 1024); S("s_lshl_b32 s%d, s%d, 8", sT0, sC); S("s_add_u32 s%d, s%d, s%d", sV2b, sV2b, sT0)
    S("s_and_b32 s%d, s%d, 7", sT0, sR); S("s_mul_i32 s%d, s%d, 56", sT1, sT0); S("s_mul_i32 s%d, s%d, 14", sT2, sW); S("s_add_u32 s%d, s%d, s%d", sT1, sT1, sT2)
    S("v_lshrrev_b32 v%d, 1, v%d", t0, vLANE); S("v_add_u32 v%d, s%d, v%d", t0, sT1, t0); S("v_lshlrev_b32 v%d, 10, v%d", t0, t0)
    S("v_and_b32 v%d, 1, v%d", t1, vLANE); S("v_lshl_add_u32 v%d, v%d, 7, v%d", t0, t1, t0)
    S("v_cmp_gt_u32 s[%d:%d], 28, v%d", sTP, sTP + 1, vLANE)
    S("s_lshl_b32 s%d, s%d, 4", sT0, sT0); S("s_and_b32 s%d, s%d, 1", sT1, sW); S("s_lshl_b32 s%d, s%d, 3", sT1, sT1); S("s_add_u32 s%d, s%d, s%d", sT0, sT0, sT1)
    S("v_cndmask_b32 v%d, v%d, v%d, s[%d:%d]", vPF, t3, t0, sTP, sTP + 1)
    S("v_lshrrev_b32 v%d, 1, v%d", t0, vLANE); S("v_add_u32 v%d, s%d, v%d", t0, sT0, t0); S("v_lshlrev_b32 v%d, 10, v%d", t0, t0)
    S("v_lshl_add_u32 v%d, v%d, 7, v%d", t0, t1, t0)
    S("v_cmp_gt_u32 s[%d:%d], 16, v%d", sTP, sTP + 1, vLANE)
    S("s_lshl_b32 s%d, s%d, 17", sT0, sC); S("s_lshl_b32 s%d, s%d, 8", sT1, sQ); S("s_add_u32 s%d, s%d, s%d", sHS, sT0, sT1)
    S("v_cndmask_b32 v%d, v%d, v%d, s[%d:%d]", vPF + 1, t3, t0, sTP, sTP + 1)
    S("s_cmp_ge_u32 s%d, 2\ns_cselect_b32 s%d, s%d, s%d\ns_cselect_b32 s%d, s%d, s%d", sW, 88, pCIM, pCRE, 89, pCIM + 1, pCRE + 1)
    S("s_mov_b32 s90, 0x80000"); S("s_mov_b32 s91, 0x20000")

e("s_waitcnt lgkmcnt(0)")
S("s_mul_i32 s%d, s%d, 0x9e3779b1", sTAG, sE)
S("s_add_u32 s%d, s%d, 0x7f4a7c15", sTAG, sTAG)
S("s_cmp_lg_u32 s%d, 0", sDUM); e("s_cselect_b64 vcc, -1, 0")

F = Rec()
e = F.e
S("v_lshlrev_b32 v%d, 3, v0", vTID8)
S("v_add_u32 v%d, 0x%x, v%d", vTID8, SCR, vTID8)
S("v_mov_b32 v%d, 0x%x", t3, OOB)
S("v_mov_b32 v%d, s%d", vTAG, sTAG)
S("v_cndmask_b32 v%d, v%d, v%d, vcc", vL16d, vL16, t3)
S("v_add_u32 v%d, 14336, v%d", vC + 2, vC); S("v_add_u32 v%d, 14336, v%d", vC + 3, vC + 1)
S("s_lshl_b32 s%d, s%d, 2", sT0, sQ)
S("v_add_u32 v%d, s%d, v%d", vW2, sT0, vW2)
S("v_and_b32 v%d, 15, v%d", vW2, vW2)
S("v_lshlrev_b32 v%d, 4, v%d", vW2, vW2)
S("v_lshrrev_b32 v%d, 4, v%d", t0, vLANE)
S("v_lshl_add_u32 v%d, v%d, 10, v%d", vW2, t0, vW2)
for n in range(1, 4):
    S("v_add_u32 v%d, %d, v%d", vW2 + n, 3072 * n, vW2)
S("s_lshr_b32 s%d, s%d, 1", sT0, sC)
S("s_add_u32 s%d, s%d, s%d", sT1, sW, sQ); S("s_and_b32 s%d, s%d, 3", sT1, sT1); S("s_lshl_b32 s%d, s%d, 15", sT1, sT1)
S("s_lshl_b32 s%d, s%d, 17", sCb, sC); S("s_add_u32 s%d, s%d, s%d", sCb, sCb, sT1)
S("s_lshl_b32 s%d, s%d, 8", sT1, sQ); S("s_add_u32 s%d, s%d, s%d", sCb, sCb, sT1)
S("s_lshl_b32 s%d, s%d, 7", sT0, sT0); S("s_add_u32 s%d, s%d, s%d", sCb, sCb, sT0)
nearly = len(F.items)
F.wait_vm("small2")
GA0, GA1 = T + 22, T + 24
gl, gh, x0, x1, y0, y1 = T + 26, T + 27, T + 28, T + 29, T + 30, T + 31
for k in range(4):
    S("v_lshlrev_b32 v%d, 16, v%d", gl, GW + k); S("v_and_b32 v%d, s%d, v%d", gh, sMASK, GW + k)
    S("v_lshlrev_b32 v%d, 16, v%d", x0, GX0 + k); S("v_and_b32 v%d, s%d, v%d", x1, sMASK, GX0 + k)
    S("v_lshlrev_b32 v%d, 16, v%d", y0, GX1 + k); S("v_and_b32 v%d, s%d, v%d", y1, sMASK, GX1 + k)
    S("v_mul_f32 v%d, v%d, v%d", x0, x0, gl); S("v_mul_f32 v%d, v%d, v%d", x1, x1, gh)
    S("v_mul_f32 v%d, v%d, v%d", y0, y0, gl); S("v_mul_f32 v%d, v%d, v%d", y1, y1, gh)
    S("v_cvt_pk_bf16_f32 v%d, v%d, v%d", x0, x0, x1); S("v_cvt_pk_bf16_f32 v%d, v%d, v%d", y0, y0, y1)
    S("v_and_b32 v%d, s%d, v%d", x1, sMASK, x0); S("v_lshlrev_b32 v%d, 16, v%d", x0, x0)
    S("v_and_b32 v%d, s%d, v%d", y1, sMASK, y0); S("v_lshlrev_b32 v%d, 16, v%d", y0, y0)
    if k == 0:
        S("v_add_f32 v%d, v%d, v%d", GA0, x0, x1); S("v_add_f32 v%d, v%d, v%d", GA1, y0, y1)
    else:
        S("v_add_f32 v%d, v%d, v%d", GA0, GA0, x0); S("v_add_f32 v%d, v%d, v%d", GA1, GA1, y0)
        S("v_add_f32 v%d, v%d, v%d", GA0, GA0, x1); S("v_add_f32 v%d, v%d, v%d", GA1, GA1, y1)
e("s_nop 0")
for d in ("row_shr:1 row_mask:0xf", "row_shr:2 row_mask:0xf", "row_shr:4 row_mask:0xf", "row_shr:8 row_mask:0xf", "row_bcast:15 row_mask:0xa", "row_bcast:31 row_mask:0xc"):
    S("v_add_f32_dpp v%d, v%d, v%d %s bank_mask:0xf", GA0, GA0, GA0, d)
    S("v_add_f32_dpp v%d, v%d, v%d %s bank_mask:0xf", GA1, GA1, GA1, d)
    e("s_nop 0")
S("v_cvt_pk_bf16_f32 v%d, v%d, v%d", x0, GA0, GA1)
S("v_and_b32 v%d, s%d, v%d", GA1, sMASK, x0); S("v_lshlrev_b32 v%d, 16, v%d", GA0, x0)
S("v_mul_f32 v%d, 0x%x, v%d", GA0, LOG2E | 0x80000000, GA0); S("v_mul_f32 v%d, 0x%x, v%d", GA1, LOG2E | 0x80000000, GA1)
S("v_exp_f32 v%d, v%d", GA0, GA0); S("v_exp_f32 v%d, v%d", GA1, GA1)
e("s_nop 0")
S("v_add_f32 v%d, 1.0, v%d", GA0, GA0); S("v_add_f32 v%d, 1.0, v%d", GA1, GA1)
S("v_rcp_f32 v%d, v%d", GA0, GA0); S("v_rcp_f32 v%d, v%d", GA1, GA1)
S("v_cmp_eq_u32 s[%d:%d], 63, v%d", sTP, sTP + 1, vLANE)
S("v_cvt_pk_bf16_f32 v%d, v%d, v%d", x0, GA0, GA1)
S("v_mov_b32 v%d, s%d", GA0 + 1, sTAG); S("v_mov_b32 v%d, s%d", GA1 + 1, sTAG)
S("v_and_b32 v%d, s%d, v%d", GA1, sMASK, x0); S("v_lshlrev_b32 v%d, 16, v%d", GA0, x0)
S("s_lshl_b32 s%d, s%d, 10", sT0, sR); S("s_lshl_b32 s%d, s%d, 8", sT1, sW); S("s_add_u32 s%d, s%d, s%d", sT0, sT0, sT1)
S("s_add_u32 s%d, s%d, %d", sT0, sT0, GOFF)
S("s_lshl_b32 s%d, s%d, 4", sT1, sJ); S("s_add_u32 s%d, s%d, s%d", sT1, sT1, sT0)
S("v_mov_b32 v%d, s%d", y0, sT1)
S("v_cndmask_b32 v%d, v%d, v%d, s[%d:%d]", y0, t3, y0, sTP, sTP + 1)
F.vm("buffer_store_dwordx4 %s, v%d, %s, 0 offen sc1" % (vr(GA0, 4), y0, WSR), "gst")
vTJ, vGA = T + 32, T + 33
S("v_bfe_u32 v%d, v%d, 2, 1", t0, vLANE)
S("v_bfe_u32 v%d, v%d, 3, 2", t1, vLANE)
S("v_and_b32 v%d, 3, v%d", t2, vLANE)
S("v_lshl_add_u32 v%d, v%d, 2, v%d", t1, t1, t2)
S("v_lshl_add_u32 v%d, v%d, 4, v%d", vTJ, t0, t1)
S("v_lshl_add_u32 v%d, v%d, 3, s%d", vGA, vTJ, sT0)
vXD, vDS = 228, 230
sXT = 69
S("s_lshl_b32 s%d, s%d, 8", sT0, sC); S("s_lshl_b32 s%d, s%d, 6", sT1, sQ); S("s_add_u32 s%d, s%d, s%d", sT0, sT0, sT1)
S("v_lshrrev_b32 v%d, 2, v%d", t0, vLANE)
S("v_and_b32 v%d, 3, v%d", t2, vLANE)
S("v_lshlrev_b32 v%d, 4, v%d", t2, t2)
S("v_lshl_add_u32 v%d, v%d, 10, v%d", vXD, t0, t2)
S("v_add_u32 v%d, 15360, v%d", vXD + 1, vXD)
S("s_lshl_b32 s%d, s%d, 17", sT1, sR); S("s_add_u32 s%d, s%d, s%d", sXT, sT0, sT1); S("s_lshl_b32 s%d, s%d, 15", sT1, sW); S("s_add_u32 s%d, s%d, s%d", sXT, sXT, sT1)
S("v_and_b32 v%d, 31, v%d", t2, vLANE)
S("v_lshlrev_b32 v%d, 1, v%d", t2, t2)
S("v_add_u32 v%d, s%d, v%d", vDS, sT0, t2)
nxaddr = len(F.items)
F.wait_vm("small")
a_, b_ = T + 20, T + 21
S("v_lshlrev_b32 v%d, 16, v%d", PD, PD)
S("v_mul_f32 v%d, 0x%x, v%d", PD, LOG2E, PD)
S("v_exp_f32 v%d, v%d", PD, PD)
S("v_lshlrev_b32 v%d, 16, v%d", PL, PL)
S("v_lshlrev_b32 v%d, 16, v%d", PI, PI)
S("v_cvt_pk_bf16_f32 v%d, v%d, v%d", PD, PD, PD)
S("v_lshlrev_b32 v%d, 16, v%d", PD, PD)
S("v_mul_f32 v%d, v%d, v%d", a_, PD, PL)
S("v_mul_f32 v%d, v%d, v%d", b_, PD, PI)
S("v_mul_f32 v%d, 0x%x, v%d", a_, LOG2E, a_)
S("v_mul_f32 v%d, 0x%x, v%d", b_, INV2PI, b_)
S("v_cvt_f32_u32 v%d, v%d", t3, vQ)
def cpow(d, mul):
    if mul is None:
        S("v_exp_f32 v%d, v%d", t0, a_); S("v_fract_f32 v%d, v%d", t1, b_)
    else:
        S("v_mul_f32 v%d, %s, v%d", t0, mul, a_); S("v_mul_f32 v%d, %s, v%d", t1, mul, b_)
        S("v_exp_f32 v%d, v%d", t0, t0); S("v_fract_f32 v%d, v%d", t1, t1)
    S("v_cos_f32 v%d, v%d", d, t1); S("v_sin_f32 v%d, v%d", d + 1, t1)
    e("s_nop 0")
    S("v_mul_f32 v%d, v%d, v%d", d, d, t0); S("v_mul_f32 v%d, v%d, v%d", d + 1, d + 1, t0)
cpow(cL, None)
cpow(cL16, "0x41800000")
cpow(cL1024, "0x44800000")
S("v_mul_f32 v%d, 0x41800000, v%d", t2, t3); cpow(cL16q, "v%d" % t2)
S("v_mul_f32 v%d, 0x43000000, v%d", t2, t3); cpow(cL128q, "v%d" % t2)
S("v_mul_f32 v%d, v%d, v%d", t0, PL, PL)
S("v_fma_f32 v%d, v%d, v%d, v%d", t0, PI, PI, t0)
S("v_rcp_f32 v%d, v%d", t0, t0)
S("v_add_f32 v%d, -1.0, v%d", t1, cL)
S("v_mul_f32 v%d, v%d, v%d", cCO, t1, PL)
S("v_fma_f32 v%d, v%d, v%d, v%d", cCO, cL + 1, PI, cCO)
S("v_mul_f32 v%d, v%d, v%d", cCO + 1, cL + 1, PL)
S("v_fma_f32 v%d, -v%d, v%d, v%d", cCO + 1, t1, PI, cCO + 1)
S("v_add_f32 v%d, v%d, v%d", t0, t0, t0)
S("v_mul_f32 v%d, v%d, v%d", cCO, cCO, t0)
S("v_mul_f32 v%d, v%d, v%d", cCO + 1, cCO + 1, t0)
S("s_lshl_b32 s%d, s%d, 2", sT0, sR); S("s_add_u32 s%d, s%d, s%d", sT0, sT0, sW)
S("s_mul_i32 s%d, s%d, %d", sHF, sT0, TSTRIDE); S("s_add_u32 s%d, s%d, %d", sHF, sHF, HOFF)
S("s_lshl_b32 s%d, s%d, 9", sFL, sT0); S("s_lshl_b32 s%d, s%d, 7", sT1, sQ); S("s_add_u32 s%d, s%d, s%d", sFL, sFL, sT1); S("s_add_u32 s%d, s%d, %d", sFL, sFL, FLAGS)
S("s_mul_i32 s%d, s%d, %d", sHq, sQ, 28 * 1024); S("s_add_u32 s%d, s%d, s%d", sHq, sHq, sHF)
S("s_lshl_b32 s%d, s%d, 10", sHO, sKSW)
S("s_lshl_b32 s%d, s%d, 14", sHS, sQ); S("s_add_u32 s%d, s%d, s%d", sHS, sHS, sHF); S("s_add_u32 s%d, s%d, %d", sHS, sHS, 112 * 1024)
nlate = len(F.items)
rdVW, rdVX, rdCX, rdCB = 10, 2, 18, 22
vSEG, vPUB, vLB0, vLB1 = 204, 205, 206, 207
vGW, vGR = 238, 239
vXD, vDS = 228, 230
sHFa, sHFb = 64, 65
S("v_and_b32 v%d, 3, v%d", t2, vLANE)
S("v_lshl_add_u32 v%d, v%d, 3, v%d", rdVX, t2, vPRE)
S("v_add_u32 v%d, 0x%x, v%d", rdVW, LW, rdVX)
for s_ in range(1, 4):
    S("v_xor_b32 v%d, %d, v%d", rdVX + s_, 64 * s_, rdVX)
    S("v_xor_b32 v%d, %d, v%d", rdVW + s_, 64 * s_, rdVW)
S("v_and_b32 v%d, 31, v%d", t1, vLANE)
S("v_lshlrev_b32 v%d, 3, v%d", t1, t1)
S("v_add_u32 v%d, 0x%x, v%d", vSEG, SCR, t1)
S("v_lshlrev_b32 v%d, 1, v%d", t0, t1)
S("s_lshl_b32 s%d, s%d, 9", sT0, sJ); S("s_lshl_b32 s%d, s%d, 13", sT1, sR); S("s_add_u32 s%d, s%d, s%d", sT0, sT0, sT1); S("s_add_u32 s%d, s%d, %d", sT0, sT0, AGG)
S("v_add_u32 v%d, s%d, v%d", t0, sT0, t0)
S("v_mov_b32 v%d, 0x%x", t3, OOB)
S("v_cmp_eq_u32 s[%d:%d], 7, v%d", sTP, sTP + 1, vQ)
S("v_add_u32 v%d, 1, v%d", t2, vQ)
S("v_cmp_ge_u32 s[%d:%d], s%d, v%d", sV0, sV0 + 1, sR, t2)
S("v_cndmask_b32 v%d, v%d, v%d, s[%d:%d]", vPUB, t3, t0, sTP, sTP + 1)
S("v_lshlrev_b32 v%d, 13, v%d", t1, t2)
S("v_sub_u32 v%d, v%d, v%d", t1, t0, t1)
S("v_add_u32 v%d, 8, v%d", t2, t2)
S("v_cmp_ge_u32 s[%d:%d], s%d, v%d", sV1, sV1 + 1, sR, t2)
S("v_cndmask_b32 v%d, v%d, v%d, s[%d:%d]", vLB0, t3, t1, sV0, sV0 + 1)
S("v_subrev_u32 v%d, 0x10000, v%d", t1, t1)
S("v_mov_b32 v%d, 0", vPRE); S("v_mov_b32 v%d, 0", vPRE + 1)
S("v_cndmask_b32 v%d, v%d, v%d, s[%d:%d]", vLB1, t3, t1, sV1, sV1 + 1)
S("s_lshl_b32 s%d, s%d, 7", sT0, sW); S("s_add_u32 s%d, s%d, %d", sT0, sT0, GT)
S("v_lshl_add_u32 v%d, v%d, 2, s%d", vGW, vTJ, sT0)
S("v_lshrrev_b32 v%d, 5, v%d", t1, vLANE)
S("v_lshl_add_u32 v%d, v%d, 6, s%d", vGR, t1, sT0)
S("s_add_u32 s%d, s%d, s%d", sHFa, sHq, sHO); S("s_add_u32 s%d, s%d, 4096", sHFb, sHFa)
S("s_mov_b32 s%d, 0", sCNT)
e = g.e

def frag(setn, idx):
    return FR + 28 * setn + 4 * idx
def reads(n):
    c, s = n >> 2, n & 3
    k = c & 3; st = n & 1
    L = []
    L.append(("ds_read_b128 %s, v%d offset:%d" % (vr(frag(st, 0), 4), rdA + s, k * 16384), "ds:r%d_0" % n))
    L.append(("ds_read_b128 %s, v%d offset:%d" % (vr(frag(st, 1), 4), rdB + s, k * 8192), "ds:r%d_1" % n))
    L.append(("ds_read_b128 %s, v%d offset:%d" % (vr(frag(st, 2), 4), rdB + s, k * 8192 + 4096), "ds:r%d_2" % n))
    for t in range(4):
        for e2 in range(2):
            L.append(("ds_read_b64_tr_b16 %s, v%d offset:%d" % (vr(frag(st, 3 + t) + 2 * e2, 2), rdW + t, k * 16384 + s * 4096 + 1024 * e2), "ds:r%d_%d" % (n, 3 + t)))
    return L
def mfma1(n, m):
    st = n & 1
    A = vr(frag(st, 0), 4)
    if m < 2:
        acc = (ACC_RE, ACC_IM)[m]
        S("v_mfma_f32_32x32x16_bf16 %s, %s, %s, %s", vr(acc, 16), A, vr(frag(st, 1 + m), 4), "0" if n == 0 else vr(acc, 16))
    else:
        acc = ACC_F + 16 * (m - 2)
        S("v_mfma_f32_32x32x16_bf16 %s, %s, %s, %s", vr(acc, 16), vr(frag(st, 1 + m), 4), A, "0" if n == 0 else vr(acc, 16))

USLOT = {0: ("X", 0), 1: ("W", 0), 2: ("X", 1), 3: ("W", 1), 4: ("X", 2), 5: ("W", 2), 6: ("W", 3), 7: ("X", 3), 8: ("B", 0), 9: ("X", 0), 10: ("X", 1)}
def unit(v):
    L = []
    reg, k = USLOT[v]
    if v < 7:
        if v == 0:
            L.append(("s_add_u32 s%d, s%d, s%d" % (sT3, sW, sKSW), None))
        else:
            L.append(("s_add_u32 s%d, s%d, %d" % (sT3, sW, 4 * v), None))
            L.append(("s_sub_u32 s%d, s%d, 6" % (sT2, sT3), None))
            L.append(("s_cmp_lt_u32 s%d, s%d" % (sT2, sKSW), None))
            L.append(("s_cselect_b32 s%d, s%d, s%d" % (sT2, sT2, sT3), None))
            if v == 1:
                L.append(("s_add_u32 s%d, s%d, s%d" % (sT3, sT3, sKSW), None))
                L.append(("s_cmp_lt_u32 s%d, 2" % sW, None))
                L.append(("s_cselect_b32 s%d, s%d, s%d" % (sT2, sT3, sT2), None))
            L.append(("s_mov_b32 s%d, s%d" % (sT3, sT2), None))
        L.append(("s_lshl_b32 s%d, s%d, 14" % (sT3, sT3), None))
        L.append(("s_add_u32 m0, s%d, %d" % (sMX if reg == "X" else sMW, k * 16384), None))
        L.append(("s_add_u32 s%d, s%d, s%d" % (sT3, sT3, sV2b), None))
        sd, vo, so = SRD_W2, vW2, sT3
    else:
        b = v - 7
        L.append(("s_add_u32 m0, s%d, %d" % (sMX, LB if reg == "B" else k * 16384), None))
        if b & 1:
            L.append(("s_xor_b32 s%d, s%d, 128" % (sT3, sCb), None)); so = sT3
        else:
            L.append(("s_nop 0", None)); so = sCb
        sd, vo = (SRD_CR if b < 2 else SRD_CI), vC
    for n in range(4):
        L.append(("buffer_load_dwordx4 v%d, s[%d:%d], s%d offen offset:%d lds" % (vo + n, sd, sd + 3, so, 1024 * n), "v%d" % v))
    return L

class Spread:
    def __init__(self, items, gaps):
        self.items = list(items)
        n = sum(1 for x in items if x[1])
        self.sched = [int((i + 0.5) * gaps / n) for i in range(n)] if n else []
        self.gi = 0
    def gap(self):
        used = 0
        while self.sched and self.sched[0] <= self.gi:
            self.sched.pop(0)
            while True:
                it = self.items.pop(0); run([it]); used += 1
                if it[1]: break
            if not self.sched:
                run(self.items); used += len(self.items); self.items = []
        self.gi += 1
        return used
    def flush(self):
        run(self.items); self.items = []; self.sched = []

GG = T + 34
DSK = T + 37
def g_load(tag):
    g.vm("buffer_load_dwordx2 %s, v%d, %s, 0 offen sc1" % (vr(GG, 2), vGA, WSR), tag)

ntot = len(F.items)
if OPT["prefill"]: F.play(g, OPT["prefill"])
stamp()
g.wait_vm("ch0")
e("s_barrier")
stamp()
for it in reads(0):
    if OPT["skip"] and it[1].endswith("_6"): g.e(it[0])
    else: run([it])
def chunk_items(c):
    if c + 2 < 8: return dma_chunk(c + 2)
    if c == 6: return unit(0) + unit(1)
    xdma = [("s_mov_b32 m0, s%d" % sMB, None), ("s_nop 0", None)]
    xdma += [("buffer_load_dwordx4 v%d, s[%d:%d], s%d offen offset:%d lds" % (vXD + n, SRD_X, SRD_X + 3, sXT, 1024 * n), "xr") for n in range(2)]
    xdma += [("global_load_ushort v%d, v%d, s[%d:%d]" % (DSK, vDS, pDSK, pDSK + 1), "xr")]
    return unit(2) + unit(3) + xdma
sp = Spread(chunk_items(0), 18)
nplayed = 0
def wpf_issue():
    g.vm("buffer_load_dword v%d, v%d, s[%d:%d], s%d offen" % (vPF + 2, vPF, SRD_W2, SRD_W2 + 3, sV2b), "wpf")
    g.vm("buffer_load_dword v%d, v%d, s[88:91], s%d offen" % (vPF + 3, vPF + 1, sHS), "wpf")
if OPT["wpf"] and OPT["wpc"] < 0: wpf_issue()
def emit_read(item):
    s_, tag = item
    if OPT["skip"] and tag.endswith("_6"):
        g.e(s_); ph.append(len(g.lgq))
        evq.append(tag)
    else:
        g.ds(s_, tag[3:]); evq.append(tag)
def wait_tile(n, m):
    if OPT["skip"] and m == 5:
        tag = "ds:r%d_6" % n
        k = len(evq) - 1 - max(i for i, t in enumerate(evq) if t == tag)
        g.e("s_waitcnt lgkmcnt(%d)" % k)
    else:
        g.wait_lg("r%d_%d" % (n, m + 1))
ph = []; evq = [x[1] for x in reads(0)]
for n in range(32):
    c, s = n >> 2, n & 3
    nxt = reads(n + 1) if n < 31 else []
    per = [2, 2, 2, 2, 1, 2]
    for m in range(6):
        sk = OPT["skip"] and m == 5
        if sk: e("s_cbranch_vccnz L_sk%d" % n)
        wait_tile(n, m)
        mfma1(n, m)
        if s == 3 and m == 0:
            assert not sp.items
            nstamp_("a%d" % c)
            if c < 7: g.wait_vm("ch%d" % (c + 1))
            e("s_barrier")
            nstamp_("b%d" % c)
            sp = Spread(chunk_items(c + 1) if c < 7 else [], 23)
            if OPT["wpf"] and c == OPT["wpc"]: wpf_issue()
            if c == 5: assert len(F.items) <= ntot - nearly, "staging scalars not ready"
            if c == 6:
                g_load("gl")
                assert len(F.items) <= ntot - nxaddr
        for it in nxt[:per[m]]: emit_read(it)
        nxt = nxt[per[m]:]
        assert len(evq) - max([i for i, t in enumerate(evq) if t.startswith("ds:r%d_" % n)] + [-1]) - 1 <= 11
        if sk: g.label("L_sk%d" % n)
        if OPT["padn"] and m == 2: e("s_nop %d" % (OPT["padn"] - 1))
        if s == 3 and m == 0: continue
        used = sp.gap()
        if n >= 1:
            bud = max(0, OPT["fillb"] + (n >= 24) + (2 - per[m]) - used - (1 if sk else 0))
            if n < 24: bud = min(bud, nlate - (ntot - len(F.items)))
            F.play(g, bud)
    assert not nxt
print("fillers left after loop:", len(F.items))
F.flush(g)
stamp()

GREG = 208
OM = T + 36
g.wait_vm("gl")
assert g.vm_count("v1") is None
g.label("L_g_chk")
S("v_cmp_ne_u32 vcc, s%d, v%d", sTAG, GG + 1)
S("s_add_u32 s%d, s%d, 1", sCNT, sCNT)
e("s_cbranch_vccz L_g_ok")
S("s_cmp_ge_u32 s%d, 0x8000", sCNT)
e("s_cbranch_scc1 L_g_ok")
sv = list(g.vmq); g_load("x"); g.vmq = sv
e("s_waitcnt vmcnt(0)")
e("s_branch L_g_chk")
g.label("L_g_ok")
g.ds("ds_write_b32 v%d, v%d" % (vGW, GG), "gw")
for k in range(4):
    g.ds("ds_read_b128 %s, v%d offset:%d" % (vr(GREG + 4 * k, 4), vGR, 16 * k), "gr")
S("v_sub_f32 v%d, 1.0, v%d", OM, GG)
S("v_cvt_pk_bf16_f32 v%d, v%d, v%d", OM, OM, OM)
S("v_lshlrev_b32 v%d, 16, v%d", OM, OM)
PB = 224
S("v_mov_b32 v%d, s%d", PB + 2, sTAG); S("v_mov_b32 v%d, s%d", PB + 3, sTAG)
vOUT = 44
def hstore(t, fr):
    d = ACC_F + 8 * t
    return ("buffer_store_dwordx4 %s, v%d, %s, s%d offen offset:%d%s" % (vr(d + 4 * fr, 4), vL16d if t == 3 else vL16, WSR, sHFa if t < 2 else sHFb, 2048 * (t & 1) + 1024 * fr, HSC), "hf")
pend_st = []
nst = 0
for t in range(4):
    f = ACC_F + 16 * t; d = ACC_F + 8 * t
    for k in range(8):
        S("v_pk_mul_f32 %s, %s, %s op_sel_hi:[1,0]", vr(f + 2 * k, 2), vr(f + 2 * k, 2), vr(OM, 2))
    for fr in range(2):
        for k in range(4 * fr, 4 * fr + 4):
            S("v_cvt_pk_bf16_f32 v%d, v%d, v%d", d + k, f + 2 * k, f + 2 * k + 1)
        for k in range(4 * fr, 4 * fr + 4):
            S("v_pk_max_i16 v%d, v%d, 0", d + k, d + k)
        if nst < OPT["nst0"]: run([hstore(t, fr)])
        else: pend_st.append(hstore(t, fr))
        nst += 1
stamp()
late = Spread(pend_st[:OPT["nst1"]], 7); pend_st = pend_st[OPT["nst1"]:]
H0, H1 = 100, 102
pr, pi = ACC_RE, ACC_IM
for t in range(1, 16):
    d = (H0, H1)[t & 1]
    cfma(d, d + 1, cL, cL + 1, pr, pi, ACC_RE + t, ACC_IM + t)
    pr, pi = d, d + 1
    if t % 2 == 0: late.gap()
OWN = pr
g.ds("ds_write_b64 v%d, %s" % (vTID8, vr(OWN, 2)), "agg")
g.wait_lg_all()
e("s_barrier")
SG = 240
for s_ in range(7):
    g.ds("ds_read_b64 %s, v%d offset:%d" % (vr(SG + 2 * s_, 2), vSEG, 256 * s_), "sg%d" % s_)
for s_ in range(7):
    g.wait_lg("sg%d" % s_)
    S("v_cmpx_lt_u32 vcc, %d, v%d", s_, vQ)
    a = SG + 2 * s_
    if s_ == 0:
        S("v_mov_b32 v%d, v%d", vPRE, a); S("v_mov_b32 v%d, v%d", vPRE + 1, a + 1)
    else:
        S("v_fma_f32 v%d, v%d, v%d, v%d", a, cL16, vPRE, a)
        S("v_fma_f32 v%d, v%d, v%d, v%d", a + 1, cL16, vPRE + 1, a + 1)
        S("v_fma_f32 v%d, -v%d, v%d, v%d", a, cL16 + 1, vPRE + 1, a)
        S("v_fma_f32 v%d, v%d, v%d, v%d", vPRE + 1, cL16 + 1, vPRE, a + 1)
        S("v_mov_b32 v%d, v%d", vPRE, a)
e("s_mov_b64 exec, -1")
cfma(PB, PB + 1, cL16, cL16 + 1, vPRE, vPRE + 1, OWN, OWN + 1)
g.vm("buffer_store_dwordx4 %s, v%d, %s, 0 offen sc1" % (vr(PB, 4), vPUB, WSR), "pub")
stamp()
u6 = unit(6)
A0, A1 = 228, 232
lbl_ = [("buffer_load_dwordx4 %s, v%d, %s, 0 offen sc1" % (vr(A0, 4), vLB0, WSR), "lb"), ("buffer_load_dwordx4 %s, v%d, %s, 0 offen sc1" % (vr(A1, 4), vLB1, WSR), "lb")]
def lb_loads(tag):
    for s_, _ in lbl_: g.vm(s_, tag)
late = Spread(pend_st + unit(4) + lbl_, OPT["lgaps"])

ACC2 = [48, 64, 80, 240]
WF = 168
FULL = set(range(0, 4)) | set(range(8, 12))
def tiles(n): return [0, 1, 2, 3] if n in FULL else [1, 2, 3]
def wread(n, tau, dst):
    v = n >> 2; sg = n & 3
    reg, k = USLOT[v]
    if n < 28:
        base = (rdVX if reg == "X" else rdVW) + tau
        return [("ds_read_b64_tr_b16 %s, v%d offset:%d" % (vr(dst + 2 * e2, 2), base, k * 16384 + sg * 4096 + 1024 * e2), None) for e2 in range(2)]
    base = (rdCX if reg == "X" else rdCB) + sg
    return [("ds_read_b128 %s, v%d offset:%d" % (vr(dst, 4), base, (k * 16384 if reg == "X" else 0) + tau * 4096), None)]
WF3 = [104, 108, 120, 124]
ORDER = list(range(44))
POS = {n: p for p, n in enumerate(ORDER)}
def wfrag(n, tau):
    p = POS[n]
    if p < 6: return WF + 16 * (p & 1) + 4 * tau
    k = p % 3
    return WF + 16 * k + 4 * tau if k < 2 else WF3[tau]
def reads2(n):
    L = []
    for tau in tiles(n):
        for s, _ in wread(n, tau, wfrag(n, tau)):
            L.append((s, "ds:w%d_%d" % (n, tau)))
    return L
TFR, TFI = ACC_RE + 8, ACC_IM + 8
def hfrag(n):
    if n < 6: return vr(ACC_F + 4 * n, 4)
    if n < 28: return ar(4 * (n - 6), 4)
    m = n - 28
    if m in (0, 1): return vr(TFR + 4 * m, 4)
    if m in (8, 9): return vr(TFI + 4 * (m - 8), 4)
    idx = m - 2 if m < 8 else m - 4
    return ar(88 + 4 * idx, 4)
def hload(n):
    L = []
    if n < 28:
        if n % 2 == 0:
            L.append(("s_cmp_gt_u32 s%d, %d" % (sKSW, n - 6), None))
            L.append(("s_cselect_b32 s%d, s%d, s%d" % (sX, sHFa, sHq), None))
            L.append(("s_add_u32 s%d, s%d, %d" % (sX, sX, n * 1024), None))
    else:
        m = n - 28
        if m % 2 == 0:
            L.append(("s_xor_b32 s%d, s%d, %d" % (sX, sC, (m >> 1) & 3), None))
            L.append(("s_lshl_b32 s%d, s%d, 11" % (sX, sX), None))
            L.append(("s_add_u32 s%d, s%d, s%d" % (sX, sX, sHS), None))
            if m >= 8: L.append(("s_add_u32 s%d, s%d, 8192" % (sX, sX), None))
    if OPT["exp"] == 1: return L
    if OPT["exp"] == 2:
        L.append(("buffer_load_dwordx4 %s, v%d, s[%d:%d], 0 offen offset:%d" % (hfrag(n), vL16, SRD_W2, SRD_W2 + 3, 1024 * (n & 3)), "h%d" % n))
        return L
    L.append(("buffer_load_dwordx4 %s, v%d, %s, s%d offen offset:%d%s" % (hfrag(n), vL16, WSR, sX, 1024 * (n & 1), "" if OPT["exp"] == 3 else " sc1"), "h%d" % n))
    return L
started = set()
RQ = []
def issue_reads(cur, ahead, maxn, limit):
    k = 0
    while RQ and k < maxn and RQ[0][0] <= min(cur + ahead, limit) and len(g.lgq) < 15:
        run([RQ.pop(0)[1]]); k += 1
    return k
def step(n, fill=None, pre=None, budget=3, ahead=2, limit=99):
    tl = tiles(n)
    while RQ and RQ[0][0] <= POS[n]:
        if len(g.lgq) >= 15: g.wait_lg(g.lgq[1])
        run([RQ.pop(0)[1]])
    g.wait_vm("h%d" % n)
    for i, tau in enumerate(tl):
        if i == 0 and pre:
            g.wait_lg_all()
        else:
            g.wait_lg("w%d_%d" % (n, tau))
        acc = vr(ACC2[tau], 16)
        S("v_mfma_f32_32x32x16_bf16 %s, %s, %s, %s", acc, hfrag(n), vr(wfrag(n, tau), 4), acc if tau in started else "0")
        started.add(tau)
        if i == 0 and pre: pre()
        k = issue_reads(POS[n], ahead, 3, limit)
        if fill: fill(max(0, budget + 2 - k))

F = Rec(); e = F.e
S("s_and_b32 s%d, s%d, 1", sT0, sC); S("s_lshl_b32 s%d, s%d, 6", sT0, sT0)
S("v_subrev_u32 v%d, 0x%x, v%d", rdCX, LB, rdB)
S("v_xor_b32 v%d, s%d, v%d", rdCX, sT0, rdCX)
S("v_xor_b32 v%d, s%d, v%d", rdCB, sT0, rdB)
for s in range(1, 4):
    S("v_xor_b32 v%d, %d, v%d", rdCX + s, 32 * s, rdCX)
    S("v_xor_b32 v%d, %d, v%d", rdCB + s, 32 * s, rdCB)
for t in range(16):
    ur, ui = ACC_RE + t, ACC_IM + t
    tt = 100 + (t & 1)
    S("v_mul_f32 v%d, v%d, v%d", tt, ur, cCO + 1)
    S("v_mul_f32 v%d, v%d, v%d", ur, ur, cCO)
    S("v_fma_f32 v%d, -v%d, v%d, v%d", ur, ui, cCO + 1, ur)
    S("v_fma_f32 v%d, v%d, v%d, v%d", ui, ui, cCO, tt)
vTW, vTR = 26, 28
vXL, vFLG, FLD = 96, 97, 203
S("s_add_u32 s%d, s%d, %d", sT0, sMB, TRB - LB)
S("v_and_b32 v%d, 31, v%d", t0, vLANE)
S("v_bfe_u32 v%d, v%d, 1, 2", t1, vLANE)
S("v_lshrrev_b32 v%d, 5, v%d", t2, vLANE)
S("v_lshlrev_b32 v%d, 1, v%d", t3, t2)
S("v_xor_b32 v%d, v%d, v%d", t1, t1, t3)
S("v_lshlrev_b32 v%d, 4, v%d", t1, t1)
S("v_lshl_add_u32 v%d, v%d, 6, v%d", t1, t0, t1)
S("v_add_u32 v%d, s%d, v%d", vTW, sT0, t1)
S("v_xor_b32 v%d, 16, v%d", vTW + 1, vTW)
S("v_lshlrev_b32 v%d, 1, v%d", t0, t0)
S("v_lshl_add_u32 v%d, v%d, 10, v%d", vXL, t2, t0)
S("v_add_u32 v%d, s%d, v%d", vXL, sMB, vXL)
S("v_lshl_add_u32 v%d, v%d, 14, v%d", t0, t2, t0)
S("v_add_u32 v%d, s%d, v%d", 98, sXT, t0)
S("v_bfe_u32 v%d, v%d, 2, 2", t0, vLANE)
S("v_lshl_add_u32 v%d, v%d, 3, v%d", t2, t2, t0)
S("v_lshrrev_b32 v%d, 1, v%d", t0, t0)
S("v_and_b32 v%d, 1, v%d", t1, vLANE)
S("v_lshlrev_b32 v%d, 1, v%d", t1, t1)
S("v_bfe_u32 v%d, v%d, 4, 1", t3, vLANE)
S("v_add_u32 v%d, v%d, v%d", t1, t1, t3)
S("v_xor_b32 v%d, v%d, v%d", t1, t1, t0)
S("v_lshlrev_b32 v%d, 4, v%d", t1, t1)
S("v_lshl_add_u32 v%d, v%d, 6, v%d", t1, t2, t1)
S("v_bfe_u32 v%d, v%d, 1, 1", t3, vLANE)
S("v_lshl_add_u32 v%d, v%d, 3, v%d", t1, t3, t1)
S("v_add_u32 v%d, s%d, v%d", vTR, sT0, t1)
S("v_xor_b32 v%d, 32, v%d", vTR + 1, vTR)
S("v_add_u32 v%d, 256, v%d", vTR + 1, vTR + 1)
S("v_and_b32 v%d, 3, v%d", t0, vLANE)
S("v_lshl_add_u32 v%d, v%d, 2, s%d", vFLG, t0, sFL)
S("s_mov_b32 s%d, 32768", sB)
S("s_mov_b32 s%d, 0", sCNT)
S("s_lshl_b32 s%d, s%d, 2", sT1, sC); S("s_add_u32 s%d, s%d, s%d", sFL, sFL, sT1)
e = g.e
for n in range(6): RQ += [(n, x) for x in reads2(n)]
def fill5(b):
    u = late.gap()
    F.play(g, max(0, b - u))
for n in range(6):
    step(n, fill5, budget=2, ahead=1)
late.flush()
F.flush(g)
S("v_lshlrev_b32 v%d, 1, v98", vOUT)
S("s_sub_u32 s%d, s%d, 6144", sHFa, sHq)
stamp()
def flag_load(kind, tag):
    g.vm("buffer_load_dword v%d, v%d, %s, %s offen sc1" % (FLD, vFLG, WSR, "s%d" % sB if kind else "0"), tag)
def flag_check(loader, lbl):
    S("s_mov_b32 s%d, 0", sCNT)
    g.label(lbl + "_chk")
    S("v_cmp_ne_u32 vcc, s%d, v%d", sTAG, FLD)
    S("s_add_u32 s%d, s%d, 1", sCNT, sCNT)
    S("s_cbranch_vccz %s_ok", lbl)
    S("s_cmp_ge_u32 s%d, 0x8000", sCNT)
    S("s_cbranch_scc1 %s_ok", lbl)
    sv = list(g.vmq); loader("x"); g.vmq = sv
    e("s_waitcnt vmcnt(0)")
    S("s_branch %s_chk", lbl)
    g.label(lbl + "_ok")
vorder = [5, 6, 7, 8, 9, 10]
for v in vorder[:OPT["npre"]]: run(unit(v))
vorder = vorder[OPT["npre"]:]
g.wait_vm("hf")
nstamp_("hfdone")
assert g.vm_count("xr") is None
S("v_lshlrev_b32 v205, 16, v%d", DSK)
DSK = 205
e("s_mov_b64 exec, 1")
g.vm("buffer_store_dword v%d, off, %s, s%d sc1" % (vTAG, WSR, sFL), "fl0")
e("s_mov_b64 exec, -1")
g.wait_vm("lb")
g.label("L_lb_chk")
S("v_cmp_ne_u32 vcc, s%d, v%d", sTAG, A0 + 2)
S("v_cmp_ne_u32 s[%d:%d], s%d, v%d", sTP, sTP + 1, sTAG, A1 + 2)
S("s_and_b64 vcc, vcc, s[%d:%d]", sV0, sV0 + 1)
S("s_and_b64 s[%d:%d], s[%d:%d], s[%d:%d]", sTP, sTP + 1, sTP, sTP + 1, sV1, sV1 + 1)
S("s_or_b64 vcc, vcc, s[%d:%d]", sTP, sTP + 1)
e("s_cbranch_scc0 L_lb_ok")
S("s_add_u32 s%d, s%d, 1", sCNT, sCNT)
S("s_cmp_ge_u32 s%d, 0x8000", sCNT)
e("s_cbranch_scc1 L_lb_ok")
sv = list(g.vmq); lb_loads("x"); g.vmq = sv
e("s_waitcnt vmcnt(0)")
e("s_branch L_lb_chk")
g.label("L_lb_ok")
cfma(A0, A0 + 1, cL1024, cL1024 + 1, A1, A1 + 1, A0, A0 + 1)
cmul(A1, A1 + 1, cL128q, cL128q + 1, A0, A0 + 1)
g.ds("ds_write_b64 v%d, %s offset:2048" % (vTID8, vr(A1, 2)), "pw")
assert g.vm_count("v4") is None
g.wait_lg_all()
e("s_barrier")
stamp()
SG = 224
for s_ in range(8):
    g.ds("ds_read_b64 %s, v%d offset:%d" % (vr(SG + 2 * s_, 2), vSEG, 2048 + 256 * s_), "pp%d" % s_)
NH0 = OPT["nh0"]
hq = list(range(6, 6 + NH0))
vs = Spread(sum([unit(v) for v in vorder[:OPT["nscan"]]], []), 8); vorder = vorder[OPT["nscan"]:]
XR = 224
for s_ in range(1, 8):
    g.wait_lg("pp%d" % s_)
    S("v_pk_add_f32 %s, %s, %s", vr(SG, 2), vr(SG, 2), vr(SG + 2 * s_, 2))
cfma(vPRE, vPRE + 1, cL16q, cL16q + 1, SG, SG + 1, vPRE, vPRE + 1)
cmul(100, 101, cCO, cCO + 1, vPRE, vPRE + 1)
pr, pi = 100, 101
for t in range(16):
    cfma(ACC_RE + t, ACC_IM + t, cL, cL + 1, pr, pi, ACC_RE + t, ACC_IM + t)
    pr, pi = ACC_RE + t, ACC_IM + t
    if len(g.lgq) >= 12: g.wait_lg(g.lgq[3])
    g.ds("ds_read_u16 v%d, v%d offset:%d" % (XR + t, vXL, 64 * t), "xl%d" % t)
    vs.gap()
    if t == OPT["pfpos"]: flag_load(0, "pf0")
    if t == OPT["pchk"]:
        g.wait_vm("pf0")
        flag_check(lambda tag: flag_load(0, tag), "L_f0")
        nstamp_("pollok")
        nin = min(NH0, 2 * ((15 - t) // 2))
        vs = Spread(sum([hload(n) for n in hq[:nin]], []), 15 - t); hq = hq[nin:]
stamp()
for x, (acc, tf, ng) in enumerate(((ACC_RE, TFR, ""), (ACC_IM, TFI, "-"))):
    for k in range(8):
        S("v_pk_mul_f32 %s, %s, %s", vr(acc + 2 * k, 2), vr(acc + 2 * k, 2), vr(GREG + 2 * k, 2))
    for k in range(8):
        S("v_cvt_pk_bf16_f32 v%d, %sv%d, %sv%d", acc + k, ng, acc + 2 * k, ng, acc + 2 * k + 1)
    g.wait_lg("xl15")
    for p in range(2):
        g.ds("ds_write_b128 v%d, %s" % (vTW + p, vr(acc + 4 * p, 4)), "tw")
    for f in range(2):
        for e2 in range(2):
            g.ds("ds_read_b64_tr_b16 %s, v%d offset:%d" % (vr(tf + 4 * f + 2 * e2, 2), vTR + e2, 1024 * f), "tr%d%d" % (x, f))
S("s_lshl_b32 s%d, s%d, 11", sT0, sC); S("s_add_u32 s%d, s%d, s%d", sT0, sT0, sHS)
S("s_add_u32 s%d, s%d, 8192", sT1, sT0)
def hs_store(x, f):
    g.wait_lg("tr%d%d" % (x, f))
    g.vm("buffer_store_dwordx4 %s, v%d, %s, s%d offen offset:%d%s" % (vr((TFI if x else TFR) + 4 * f, 4), vL16, WSR, sT1 if x else sT0, 1024 * f, HSC), "hs")
hsq = [(0, 0), (0, 1), (1, 0), (1, 1)]
vs.flush()
for _ in range(OPT["hs0"]): hs_store(*hsq.pop(0))
if OPT["pchk"] > 15:
    g.wait_vm("pf0")
    flag_check(lambda tag: flag_load(0, tag), "L_f0")
    nstamp_("pollok")
stamp()
for n in ORDER[6:]: RQ += [(POS[n], x_) for x_ in reads2(n)]
while hsq or hq:
    for _ in range(2):
        if hq: run(hload(hq.pop(0)))
    if hsq: hs_store(*hsq.pop(0))
    issue_reads(6, 1, 3, 99)
stamp()
vF2S, vF2L = 98, 99
sPS = [66, 67, 68]; sPL = 69
S("s_lshl_b32 s%d, s%d, 4", sT0, sR); S("s_add_u32 s%d, s%d, s%d", sT0, sT0, sC); S("s_lshl_b32 s%d, s%d, 2", sT0, sT0); S("s_add_u32 s%d, s%d, s%d", sT0, sT0, sW)
for tau in range(1, 4):
    S("s_add_u32 s%d, s%d, %d", sT1, sQ, tau); S("s_and_b32 s%d, s%d, 3", sT1, sT1); S("s_lshl_b32 s%d, s%d, 4", sT1, sT1); S("s_add_u32 s%d, s%d, s%d", sT1, sT1, sT0)
    S("s_mul_i32 s%d, s%d, 6144", sPS[tau - 1], sT1); S("s_add_u32 s%d, s%d, %d", sPS[tau - 1], sPS[tau - 1], PART + 2048 * (tau - 1))
S("s_lshl_b32 s%d, s%d, 4", sT1, sQ); S("s_add_u32 s%d, s%d, s%d", sT1, sT1, sT0)
S("s_mul_i32 s%d, s%d, 6144", sPL, sT1); S("s_add_u32 s%d, s%d, %d", sPL, sPL, PART)
S("s_lshl_b32 s%d, s%d, 7", sT1, sT1); S("s_add_u32 s%d, s%d, %d", sT1, sT1, FLAGS2)
S("v_min_u32 v%d, 2, v%d", t0, vLANE)
S("v_lshl_add_u32 v%d, v%d, 2, s%d", vF2L, t0, sT1)
S("v_add_u32 v%d, s%d, v%d", t1, sQ, t0)
S("v_add_u32 v%d, 1, v%d", t1, t1)
S("v_and_b32 v%d, 3, v%d", t1, t1)
S("v_lshlrev_b32 v%d, 11, v%d", t1, t1)
S("v_lshl_add_u32 v%d, v%d, 2, v%d", t1, t0, t1)
S("s_lshl_b32 s%d, s%d, 7", sT0, sT0); S("s_add_u32 s%d, s%d, %d", sT0, sT0, FLAGS2)
S("v_add_u32 v%d, s%d, v%d", vF2S, sT0, t1)
for k in range(8):
    S("v_lshlrev_b32 v%d, 16, v%d", XR + 2 * k, XR + 2 * k); S("v_lshlrev_b32 v%d, 16, v%d", XR + 2 * k + 1, XR + 2 * k + 1)
    S("v_mul_f32 v%d, v%d, v%d", XR + 2 * k, XR + 2 * k, DSK); S("v_mul_f32 v%d, v%d, v%d", XR + 2 * k + 1, XR + 2 * k + 1, DSK)
    S("v_cvt_pk_bf16_f32 v%d, v%d, v%d", XR + 2 * k, XR + 2 * k, XR + 2 * k + 1)
    S("v_and_b32 v%d, s%d, v%d", XR + 2 * k + 1, sMASK, XR + 2 * k)
    S("v_lshlrev_b32 v%d, 16, v%d", XR + 2 * k, XR + 2 * k)
    S("v_fma_f32 v%d, v%d, v%d, v%d", ACC2[0] + 2 * k, XR + 2 * k, GREG + 2 * k, ACC2[0] + 2 * k)
    S("v_fma_f32 v%d, v%d, v%d, v%d", ACC2[0] + 2 * k + 1, XR + 2 * k + 1, GREG + 2 * k + 1, ACC2[0] + 2 * k + 1)
nstamp_("gxd")
pend = list(range(6 + NH0, 28))
pend_s = [n for n in range(28, 44) if (n - 28) not in (0, 1, 8, 9)]
assert not hq
vq = [v for v in vorder if v < 8] + [9, 8, 10]
NV = OPT["npre"] + OPT["nscan"]
vitems = []
def fill2(b):
    pass
PFS = OPT["pfs"]
SY = {11: ("v%d" % (4 + NV), 4 * (5 + NV) - 1), OPT["sy2"]: ("v8", 35), 34: ("v10", 99)}
assert NV <= 3
limit = 19
for n in ORDER[6:]:
    pre = None
    if n in SY:
        def pre(n=n):
            g.wait_vm(SY[n][0])
            e("s_barrier")
        limit = SY[n][1]
    step(n, fill2, pre, budget=0, limit=limit)
    nstamp_("s%d" % n)
    if n == OPT["hsn"]:
        S("s_add_u32 s%d, s%d, 32768", sCI, sFL)
        g.wait_vm("hs")
        e("s_mov_b64 exec, 1")
        g.vm("buffer_store_dword v%d, off, %s, s%d sc1" % (vTAG, WSR, sCI), "fl1")
        e("s_mov_b64 exec, -1")
        e("s_nop 1")
    if n == PFS: flag_load(1, "pf1")
    if not vitems and vq and not (vq[0] in (8, 10) and n < 11):
        vitems = unit(vq.pop(0))
    while vitems:
        it = vitems.pop(0); run([it])
        if it[1]: break
    if pend:
        run(hload(pend.pop(0)))
    else:
        if g.wait_vm("pf1"):
            flag_check(lambda tag: flag_load(1, tag), "L_f1")
        if pend_s: run(hload(pend_s.pop(0)))
        if pend_s and len(pend_s) % 2 == 1: run(hload(pend_s.pop(0)))
assert not pend and not pend_s and not vq and not vitems
stamp()
F = Rec(); e = F.e
for tau in range(1, 4):
    a = ACC2[tau]
    for k in range(8):
        S("v_cvt_pk_bf16_f32 v%d, v%d, v%d", a + k, a + 2 * k, a + 2 * k + 1)
    for p in range(2):
        F.vm("buffer_store_dwordx4 %s, v%d, %s, s%d offen offset:%d%s" % (vr(a + 4 * p, 4), vL16, WSR, sPS[tau - 1], 1024 * p, " sc1" if OPT["psc"] else ""), "ps")
e = g.e
dl = [n for n in range(44) if n not in FULL]
AHEAD = 5
def dread(i):
    for s, _ in wread(dl[i], 0, WF + 4 * (i % 8)):
        g.ds(s, "d%d" % i)
for i in range(AHEAD): dread(i)
e("s_nop 1")
def f2_load(tag):
    g.vm("buffer_load_dword v%d, v%d, %s, 0 offen sc1" % (FLD, vF2L, WSR), tag)
for i, n in enumerate(dl):
    g.wait_lg("d%d" % i)
    acc = vr(ACC2[0], 16)
    S("v_mfma_f32_32x32x16_bf16 %s, %s, %s, %s", acc, hfrag(n), vr(WF + 4 * (i % 8), 4), acc)
    if i + AHEAD < len(dl): dread(i + AHEAD)
    F.play(g, OPT["tb"])
    nstamp_("d%d" % i)
    if i == OPT["fwait"]:
        assert not F.items
        g.wait_vm("ps")
        nstamp_("psdone")
        e("s_mov_b64 exec, 7")
        g.vm("buffer_store_dword v%d, v%d, %s, 0 offen sc1" % (vTAG, vF2S, WSR), "fl2")
        e("s_mov_b64 exec, -1")
        e("s_nop 1")
f2_load("pf2")
stamp()
S("v_mov_b32 v%d, 0x3f80", t0)
S("v_mov_b32 v%d, 0x3f800000", t1)
S("s_cmp_eq_u32 s%d, 15", sR); S("s_cselect_b32 s%d, s%d, 1", sT3, sJ); S("s_or_b32 s%d, s%d, s%d", sT3, sT3, sW)
g.wait_vm("pf2")
flag_check(f2_load, "L_f2")
stamp()
S("s_add_u32 s%d, s%d, 4096", sT0, sPL)
for k in range(3):
    for p in range(2):
        o = 2048 * k + 1024 * p
        g.vm("buffer_load_dwordx4 %s, v%d, %s, s%d offen offset:%d sc1" % (vr(ACC2[k + 1] + 8 + 4 * p, 4), vL16, WSR, sPL if o < 4096 else sT0, o & 4095), "pl%d" % k)
for k in range(3):
    g.wait_vm("pl%d" % k)
    nstamp_("pl%d" % k)
    for i in range(8):
        S("v_dot2c_f32_bf16 v%d, v%d, v%d", ACC2[0] + 2 * i, ACC2[k + 1] + 8 + i, t0)
        S("v_dot2c_f32_bf16 v%d, v%d, v%d", ACC2[0] + 2 * i + 1, ACC2[k + 1] + 8 + i, t1)
e("s_nop 2")
for k in range(16):
    if k % 2 == 0: S("s_mov_b32 s%d, %d", sT0, 2048 * k)
    g.vm("buffer_store_dword v%d, v%d, s[%d:%d], s%d offen offset:%d" % (ACC2[0] + k, vOUT, SRD_OUT, SRD_OUT + 3, sT0, 2048 * (k & 1)) + ("", " sc1", " nt")[OPT["osc"]], "out")
stamp()
if OPT["stamps"]:
    e("s_waitcnt vmcnt(0)")
    stamp()
    if OPT["stamps"] == 6:
        e("s_waitcnt lgkmcnt(0)"); e("s_mov_b64 exec, 1")
        for i, p in enumerate(sused):
            S("v_mov_b32 v252, s%d", p); e("buffer_store_dword v252, off, %s, s101 offset:%d" % (WSR, 4 + 4 * i)); e("s_nop 1")
        e("s_mov_b64 exec, -1")
        print("sgpr stamps", len(sused))
    e("s_memrealtime s[82:83]"); e("s_waitcnt lgkmcnt(0)"); e("v_mov_b32 v252, s82"); e("s_mov_b64 exec, 1")
    e("buffer_store_dword v252, off, %s, s101 offset:124" % WSR)
    e("s_mov_b64 exec, -1")
S("s_cmp_lg_u32 s%d, 0", sT3)
e("s_cbranch_scc1 L_end2")
e("s_mov_b64 exec, 1")
e("buffer_store_dword v%d, off, %s, 0 sc1" % (vTAG, WSR))
g.label("L_end2")
if OPT["diag"] > 0:
    S("s_sub_u32 s%d, s%d, s96", sDG, sDG)
    if OPT["diagcyc"]: S("s_lshr_b32 s%d, s%d, 1", sDG, sDG)
    else: S("s_mul_i32 s%d, s%d, 10", sDG, sDG)
    e("s_memrealtime s[96:97]"); e("s_waitcnt lgkmcnt(0)"); S("s_add_u32 s%d, s%d, s96", sDG, sDG)
    g.label("L_spin")
    e("s_memrealtime s[96:97]"); e("s_waitcnt lgkmcnt(0)"); S("s_sub_u32 s%d, s%d, s96", sDG + 1, sDG); S("s_cmp_gt_i32 s%d, 0", sDG + 1); e("s_cbranch_scc1 L_spin")
g.label("L_end")
e("s_endpgm")
e('.section .rodata,"a"')
e(".p2align 6")
e(".amdhsa_kernel %s_kernel" % NAME)
for l in ("next_free_vgpr 512", "next_free_sgpr 102", "accum_offset 256", "group_segment_fixed_size 0", "kernarg_size 128", "user_sgpr_count 2",
          "user_sgpr_kernarg_segment_ptr 1", "system_sgpr_workgroup_id_x 1"):
    g.lines.append("  .amdhsa_" + l)
e(".end_amdhsa_kernel")

if OPT["nocomp"]:
    g.lines = [l for l in g.lines if not (l.startswith("v_mfma") or l.startswith("ds_read_b64_tr") or l.startswith("ds_read_b128"))]
if OPT["ntin"]:
    def ntf(l):
        if l.startswith("buffer_load_dwordx4") and l.endswith(" lds"):
            p1 = any(("s[%d:%d]" % (b, b + 3)) in l for b in (SRD_X, SRD_B, SRD_W1))
            if (p1 and OPT["ntin"] & 1) or (not p1 and OPT["ntin"] & 2): return l[:-4] + " nt lds"
        return l
    g.lines = [ntf(l) for l in g.lines]
i0 = g.lines.index("%s_kernel:" % NAME) + 1
i1 = g.lines.index("s_endpgm") + 1
body, npad, lastoff = layout(g.lines[i0:i1], 3328, sW, OPT["align"], OPT["page"])
g.lines = g.lines[:i0] + body + g.lines[i1:]
print("pads", npad, "last page bytes", lastoff)
tot = (3328 + 4096 * (npad - 1) + lastoff if npad else lastoff) - 320
stride = (tot // 128) & ~7
g.lines = [l.replace("0x1234", str(stride)).replace("0x4320", str(stride // 2)) for l in g.lines]
errs = check_hazards(g.lines)
for x in errs:
    print("HAZARD", x)
open(sys.argv[1], "w").write(out_hdr + g.text())
print("lines", len(g.lines), "stamps", nstamp[0], "hazards", len(errs))
```

```python
import re
TRANS = ("v_exp_f32", "v_log_f32", "v_rcp_f32", "v_rsq_f32", "v_sqrt_f32", "v_sin_f32", "v_cos_f32")

class Asm:
    def __init__(self):
        self.lines = []
        self.vmq = []
        self.lgq = []

    def e(self, s):
        for l in s.split("\n"):
            l = l.strip()
            if l:
                self.lines.append(l)

    def c(self, s):
        self.lines.append("; " + s)

    def label(self, n):
        self.lines.append(n + ":")

    def vm(self, s, tag):
        self.e(s)
        self.vmq.append(tag)
        assert len(self.vmq) <= 63, "vmcnt overflow %d" % len(self.vmq)

    def vm_count(self, tag):
        idx = [i for i, t in enumerate(self.vmq) if t == tag]
        if not idx:
            return None
        return len(self.vmq) - 1 - idx[-1]

    def wait_vm(self, tag, extra=""):
        n = self.vm_count(tag)
        if n is None:
            return False
        self.e("s_waitcnt vmcnt(%d)%s" % (n, extra))
        self.vmq = self.vmq[len(self.vmq) - n:] if n else []
        return True

    def wait_vm_all(self):
        self.e("s_waitcnt vmcnt(0)")
        self.vmq = []

    def ds(self, s, tag):
        self.e(s)
        self.lgq.append(tag)
        assert len(self.lgq) <= 15, "lgkmcnt overflow"

    def wait_lg(self, tag):
        idx = [i for i, t in enumerate(self.lgq) if t == tag]
        if not idx:
            return False
        n = len(self.lgq) - 1 - idx[-1]
        self.e("s_waitcnt lgkmcnt(%d)" % n)
        self.lgq = self.lgq[len(self.lgq) - n:] if n else []
        return True

    def wait_lg_all(self):
        self.e("s_waitcnt lgkmcnt(0)")
        self.lgq = []

    def text(self):
        out = []
        for l in self.lines:
            out.append(l if (l.endswith(":") or l.startswith(".") or l.startswith(";")) else "    " + l)
        return "\n".join(out) + "\n"


class Rec:
    def __init__(self):
        self.items = []
    def e(self, s):
        for l in s.split("\n"):
            l = l.strip()
            if l:
                cost = 2 if l.startswith(TRANS) else 1
                self.items.append((cost, lambda g, l=l: g.e(l)))
    def vm(self, s, tag):
        self.items.append((1, lambda g: g.vm(s, tag)))
    def ds(self, s, tag):
        self.items.append((1, lambda g: g.ds(s, tag)))
    def wait_vm(self, tag, extra=""):
        self.items.append((1, lambda g: g.wait_vm(tag, extra)))
    def play(self, g, budget):
        while self.items and budget > 0:
            c, f = self.items.pop(0)
            f(g)
            budget -= c
    def flush(self, g):
        self.play(g, 1 << 30)

def vr(a, n=1):
    return "v%d" % a if n == 1 else "v[%d:%d]" % (a, a + n - 1)
def ar(a, n=1):
    return "a%d" % a if n == 1 else "a[%d:%d]" % (a, a + n - 1)
def sr(a, n=1):
    return "s%d" % a if n == 1 else "s[%d:%d]" % (a, a + n - 1)

_reg = re.compile(r"(?<![\w.])(-?abs\()?-?([vas])(?:(\d+)|\[(\d+):(\d+)\])")
def regs_of(op):
    out = set()
    op = op.strip()
    if op in ("vcc",): return {("s", "vcc")}
    if op in ("exec",): return {("s", "exec")}
    if op in ("m0",): return {("s", "m0")}
    for m in _reg.finditer(op):
        k = m.group(2)
        if m.group(3) is not None:
            out.add((k, int(m.group(3))))
        else:
            for i in range(int(m.group(4)), int(m.group(5)) + 1):
                out.add((k, i))
    return out

TRANS = ("v_exp_f32", "v_log_f32", "v_rcp_f32", "v_rsq_f32", "v_sqrt_f32", "v_sin_f32", "v_cos_f32")

def parse(l):
    l = l.split(";")[0].strip()
    if not l or l.endswith(":") or l.startswith("."):
        return None
    p = l.split(None, 1)
    op = p[0]
    args = [a.strip() for a in p[1].split(",")] if len(p) > 1 else []
    d = dict(op=op, txt=l, defs=set(), uses=set(), kind="other")
    def R(i):
        return regs_of(args[i].split()[0]) if i < len(args) else set()
    if op.startswith("v_mfma"):
        d["kind"] = "mfma"; d["defs"] = R(0); d["A"] = R(1); d["B"] = R(2); d["C"] = R(3); d["uses"] = R(1) | R(2) | R(3)
    elif op.startswith("v_cmpx"):
        d["kind"] = "valu"; d["defs"] = R(0) | {("s", "exec")}; d["uses"] = R(1) | R(2)
    elif op.startswith("v_cmp"):
        d["kind"] = "valu"; d["defs"] = R(0); d["uses"] = R(1) | R(2)
    elif op.startswith("v_readfirstlane") or op.startswith("v_readlane"):
        d["kind"] = "valu"; d["defs"] = R(0); d["uses"] = R(1) | R(2); d["rl"] = True
    elif op.startswith("v_permlane"):
        d["kind"] = "valu"; d["defs"] = R(0) | R(1); d["uses"] = R(0) | R(1); d["pl"] = True
    elif op.startswith("v_"):
        d["kind"] = "valu"; d["defs"] = R(0)
        for i in range(1, len(args)): d["uses"] |= R(i)
        if op.startswith("v_fmac") or "dpp" in op: d["uses"] |= R(0)
        if op.startswith("v_cndmask") and len(args) == 3: d["uses"] |= {("s", "vcc")}
        if "dpp" in op: d["dpp"] = True
        if op.startswith(TRANS): d["trans"] = True
    elif op.startswith("ds_read"):
        d["kind"] = "ds"; d["defs"] = R(0); d["uses"] = R(1)
    elif op.startswith("ds_write"):
        d["kind"] = "ds"; d["uses"] = R(0) | R(1) | R(2)
    elif op.startswith("buffer_load"):
        d["kind"] = "vmem"
        if l.rstrip().endswith("lds") or " lds " in l:
            d["uses"] = R(0) | R(1) | R(2) | {("s", "m0")}; d["dma"] = True
        else:
            d["defs"] = R(0); d["uses"] = R(1) | R(2) | R(3)
    elif op.startswith("buffer_store"):
        d["kind"] = "vmem"; d["uses"] = R(0) | R(1) | R(2) | R(3)
        if "x4" in op or "x3" in op: d["wdata"] = R(0)
    elif op.startswith("global_load"):
        d["kind"] = "vmem"; d["defs"] = R(0); d["uses"] = R(1) | R(2)
    elif op.startswith("global_store"):
        d["kind"] = "vmem"; d["uses"] = R(0) | R(1) | R(2)
        if "x4" in op or "x3" in op: d["wdata"] = R(1)
    elif op.startswith("s_"):
        d["kind"] = "salu"
        if op == "s_nop": d["nop"] = int(args[0]) + 1
        elif op.startswith(("s_cmp", "s_waitcnt", "s_barrier", "s_branch", "s_cbranch", "s_endpgm", "s_setprio", "s_sleep")):
            for i in range(len(args)): d["uses"] |= R(i)
        else:
            d["defs"] = R(0)
            for i in range(1, len(args)): d["uses"] |= R(i)
            if "saveexec" in op: d["defs"] |= {("s", "exec")}
    return d

def check_hazards(lines):
    ins = [(i, parse(l)) for i, l in enumerate(lines)]
    ins = [(i, d) for i, d in ins if d]
    errs = []
    for k, (li, d) in enumerate(ins):
        dist = 0
        j = k - 1
        while j >= 0 and dist < 21:
            p = ins[j][1]
            need = 0
            vdefs = {r for r in p["defs"] if r[0] in "va"}
            sdefs = {r for r in p["defs"] if r[0] == "s"}
            if p["kind"] == "mfma":
                if d["kind"] == "mfma":
                    if p["defs"] & (d["A"] | d["B"]): need = 12
                    if (p["defs"] & d["C"]) and p["defs"] != d["C"]: need = max(need, 10)
                elif d["kind"] in ("valu", "ds", "vmem"):
                    if p["defs"] & (d["uses"] | d["defs"]): need = 12
                    if d["kind"] == "valu" and (p["C"] & d["defs"]): need = max(need, 7)
            elif p["kind"] == "valu":
                if d["kind"] == "mfma" and (vdefs & d["uses"]): need = 2
                if d["kind"] == "mfma" and ("s", "exec") in sdefs: need = max(need, 4)
                if d["kind"] == "valu":
                    if d.get("dpp") and (vdefs & d["uses"]): need = max(need, 2)
                    if d.get("dpp") and ("s", "exec") in sdefs: need = max(need, 5)
                    if d.get("pl") and (vdefs & d["uses"]): need = max(need, 2)
                    if d.get("rl") and (vdefs & d["uses"]): need = max(need, 1)
                    if (d.get("rl") or d.get("pl")) and ("s", "exec") in sdefs: need = max(need, 4)
                    if p.get("trans") and not d.get("trans") and (vdefs & d["uses"]): need = max(need, 1)
                    if (sdefs - {("s", "exec")}) & d["uses"]: need = max(need, 4 if d.get("rl") else 2)
                if d["kind"] == "vmem" and (sdefs & d["uses"]): need = max(need, 5)
                if d["kind"] == "salu" and (sdefs & d["uses"]): need = max(need, 1)
            elif p["kind"] == "salu":
                if d.get("dma") and ("s", "m0") in p["defs"]: need = 1
            if p.get("wdata") and d["kind"] == "valu" and (p["wdata"] & d["defs"]): need = max(need, 2)
            if p.get("wdata") and d["kind"] in ("ds", "vmem") and (p["wdata"] & d["defs"]): need = max(need, 1)
            if need > dist:
                errs.append("line %d: '%s' needs %d states after '%s' (has %d)" % (li, d["txt"], need, p["txt"], dist))
            dist += p.get("nop", 1)
            j -= 1
    return errs

import subprocess, tempfile, os
def is_instr(l):
    l = l.split(";")[0].strip()
    return bool(l) and not l.endswith(":") and not l.startswith(".")

def sizes_of(lines):
    body = ['.amdgcn_target "amdgcn-amd-amdhsa--gfx950"', ".text"]
    for l in lines:
        if is_instr(l) or l.strip().endswith(":"):
            body.append(l)
    d = tempfile.mkdtemp()
    open(d + "/a.s", "w").write("\n".join(body) + "\n")
    subprocess.check_call(["clang", "-x", "assembler", "-target", "amdgcn-amd-amdhsa", "-mcpu=gfx950", "-c", d + "/a.s", "-o", d + "/a.o"])
    out = subprocess.check_output(["llvm-objdump", "-d", "--mcpu=gfx950", d + "/a.o"]).decode()
    sz = []
    for l in out.split("\n"):
        m = re.search(r"// [0-9A-F]{12}: ((?:[0-9A-F]{8} ?)+)", l)
        if m: sz.append(4 * len(m.group(1).split()))
    n = sum(1 for l in lines if is_instr(l))
    assert len(sz) == n, (len(sz), n)
    return sz

PROMO = ("v_mov_b32", "v_add_u32", "v_sub_u32", "v_subrev_u32", "v_and_b32", "v_or_b32", "v_xor_b32", "v_lshlrev_b32", "v_lshrrev_b32", "v_mul_f32", "v_add_f32",
         "v_sub_f32", "v_exp_f32", "v_sin_f32", "v_cos_f32", "v_rcp_f32", "v_fract_f32", "v_cvt_f32_u32", "v_min_u32", "v_mul_u32_u24")
def layout(lines, first_budget, touch_reg, align=True, paging=True):
    idx = [i for i, l in enumerate(lines) if is_instr(l) and l.strip() != "TOUCH"]
    sz = sizes_of([l for l in lines if l.strip() != "TOUCH"])
    size = dict(zip(idx, sz))
    TOUCH_BYTES = 32
    out = []
    off = 0; budget = first_budget; npad = 0
    lastpromo = None
    mis_since = 0; al_since = 0
    for i, l in enumerate(lines):
        s = l.strip()
        if s == "TOUCH":
            out.append(["TOUCH", TOUCH_BYTES]); off += TOUCH_BYTES
            continue
        if i not in size:
            out.append([l, 0]); continue
        n = size[i]
        if paging and off + n + 4 + 8 > budget:
            npad += 1
            out.append(["s_branch L_pg%d" % npad, 4]); out.append([".p2align 12", 0]); out.append(["L_pad%d:" % npad, 0])
            out.append(["PAD%d" % npad, 4]); out.append(["s_nop 0", 4]); out.append(["L_pg%d:" % npad, 0])
            off = 8; budget = 4096; lastpromo = None
        if align and n == 8 and off % 8 == 4:
            run = 0
            for k in range(i, min(i + 24, len(lines))):
                if k in size:
                    if size[k] == 8: run += 1
                    else: break
            if lastpromo is not None and al_since <= mis_since + run - 1 and run >= 2:
                p = out[lastpromo]
                op, rest = p[0].strip().split(None, 1)
                p[0] = op + "_e64 " + rest; p[1] = 8
                off += 4; lastpromo = None
            elif run >= 7:
                out.append(["s_nop 0", 4]); off += 4
        out.append([l, n])
        if n == 4 and s.split()[0] in PROMO:
            lastpromo = len(out) - 1; mis_since = 0; al_since = 0
        elif n == 8:
            if off % 8 == 4: mis_since += 1
            else: al_since += 1
        off += n
    res = []
    for l, n in out:
        if l == "TOUCH":
            for w in range(4):
                if w + 1 <= npad:
                    res.append("s_cmp_eq_u32 s%d, %d" % (touch_reg, w)); res.append("s_cbranch_scc1 L_pad%d" % (w + 1))
                else:
                    res.append("s_nop 0"); res.append("s_nop 0")
            res.append("L_touch_ret:")
        elif l.startswith("PAD"):
            k = int(l[3:])
            res.append("s_branch %s" % ("L_pad%d" % (k + 4) if k + 4 <= npad else "L_touch_ret"))
        else:
            res.append(l)
    return res, npad, off

def scc_lint(lines):
    W = ("s_add_", "s_sub_", "s_and_", "s_or_", "s_xor_", "s_lshl", "s_lshr", "s_cmp", "s_bitcmp", "s_min_", "s_max_", "s_bfe", "s_addc", "s_andn2", "s_not")
    last = None; out = []
    for l in lines:
        t = l.strip()
        if t.startswith(("s_cselect", "s_cbranch_scc", "s_addc")):
            if not (last and last.startswith("s_cmp")): out.append((last, t))
        if t.startswith(W): last = t
    return out
```

```python
import sys
from asmlib import *

NAME = "gated_mix__ssm_conv_s5__dense_activation_relu__prompt"
OPT = dict(stamps=0, p1map=84, rot1=4, pre=2, fillb=2, diag=-1, diagcyc=0, dstart=0, fwait=16, nh0=8, pfs=17, hsc=1, psc=1, osc=0, lgaps=20, hsn=10, b2=1, wsoff=236, pfpos=-3, smask=0, exp=0, lbpos=4, ffpos=0, page=1, align=1, cpf=1, nst0=4, hs0=0, tb=3, nw56=3, pchk=6, sy2=28, nocomp=0, npre=1, nscan=1, nst1=0, skip=1, ntin=0, wpf=1, wpc=9, ppf=0, padn=0, prefill=0, gx0=0, v8=14, v9=23, v10=27, ffs=2, tm=8, pf2=1)
for a in sys.argv[2:]:
    k, v = a.split("=")
    assert k in OPT, k
    OPT[k] = int(v)

AGG = 4096
GOFF = AGG + 16 * 8192
FLAGS = GOFF + 2048 * 8
FLAGS2 = FLAGS + 65536
HOFF = 393216
TSTRIDE = 176 * 1024
PART = HOFF + 64 * TSTRIDE
WS_SIZE = PART + 256 * 4 * 6144
assert (OPT["wsoff"] << 20) + WS_SIZE + 256 * 4 * 128 <= 268435456
OOB = 0x80000000
LX, LW, LB = 0, 65536, 131072
SCR = LB + 2 * 8192
GT = SCR + 4096
TRB = LB + 3 * 8192
SRD_X, SRD_B, SRD_W1, SRD_W2, SRD_CR, SRD_CI, SRD_WS, SRD_OUT = 4, 8, 12, 16, 20, 24, 28, 32
sW, sR, sJ, sQ, sC, sTAG, sMASK = 36, 37, 38, 39, 40, 41, 42
sX, sB, sW1 = 43, 44, 45
sMX, sMB, sMW = 46, 47, 48
sT0, sT1, sT2, sT3 = 49, 50, 51, 52
sXb, sBb, sW1b, sCI = 54, 55, 56, 57
sV0, sV1 = 54, 56
sTP = 58
sCNT = 60
sE = 63
pX, pLRE, pLIM, pBRE, pBIM, pCRE, pCIM, pLDT, pDSK, pBX, pW1, pW2, pGATE, pOUT, pDBG, pWS = range(64, 96, 2)
sST = 96
sDUM = 98
sHF, sFL = 99, 71
sV2b, sKSW, sCb, sHO, sHS, sHq = 53, 3, 61, 62, 82, 83
sPAR = 100
sDG = 84
vLANE, vTID8 = 1, 0
vX = 2; vC = 6; vW1 = 10; vW2 = 14
rdA = 18; rdB = 20; rdW = 22
FA = 136
FT = 48
cL, cL16, cL16q, cL128q, cL1024, cCO = 30, 32, 34, 36, 38, 40
vQ, vL16, vL16d = 42, 43, 44
vTAG = 45
vPRE = 46
FR = 48
ACC_RE, ACC_IM, ACC_F = 104, 120, 136
T = 200
LOG2E = 0x3fb8aa3b
INV2PI = 0x3e22f983

g = Asm()
e = g.e
nstamp = [0]
sidx = [0]; sused = []; SPAIRS = [72, 78, 84, 86, 92, 94, 74, 76, 88, 90]
ndiag = [1]
import os
STN = os.environ.get("ST", "").split(",")
def nstamp_(name):
    if OPT["stamps"] == 6 and name in STN:
        p = SPAIRS[len(sused)]; sused.append(p)
        g.e("s_memtime s[%d:%d]" % (p, p + 1))
def probe(name):
    if OPT["stamps"] == 6 and name in STN:
        nstamp_(name); g.wait_vm_all(); nstamp_(name)
def stamp():
    if OPT["diag"] >= 0:
        if ndiag[0] == OPT["diag"]:
            g.e("%s s[%d:%d]" % ("s_memtime" if OPT["diagcyc"] else "s_memrealtime", sDG, sDG + 1)); g.e("s_waitcnt lgkmcnt(0)"); g.lgq = []
        if ndiag[0] == OPT["dstart"]:
            g.e("%s s[96:97]" % ("s_memtime" if OPT["diagcyc"] else "s_memrealtime")); g.e("s_waitcnt lgkmcnt(0)"); g.lgq = []
        ndiag[0] += 1
    if OPT["stamps"] == 6:
        sidx[0] += 1
        if (OPT["smask"] >> sidx[0]) & 1:
            p = SPAIRS[len(sused)]; sused.append(p)
            g.e("s_memtime s[%d:%d]" % (p, p + 1))
        return
    if not OPT["stamps"] or OPT["stamps"] == 5:
        return
    i = nstamp[0]; nstamp[0] += 1
    assert i < 30
    g.e("s_memtime s[%d:%d]" % (sST, sST + 1))
    g.e("s_waitcnt lgkmcnt(0)")
    g.lgq = []
    g.e("v_accvgpr_write_b32 a255, s%d" % sST)
    g.e("s_mov_b64 exec, 1")
    g.vm("buffer_store_dword a255, off, s[%d:%d], s101 offset:%d" % (SRD_WS, SRD_WS + 3, 4 * i), "stamp")
    g.e("s_mov_b64 exec, -1")

def cfma(dr, di, ar_, ai, br, bi, cr, ci):
    e("v_fma_f32 v%d, v%d, v%d, v%d" % (dr, ar_, br, cr))
    e("v_fma_f32 v%d, v%d, v%d, v%d" % (di, ar_, bi, ci))
    e("v_fma_f32 v%d, -v%d, v%d, v%d" % (dr, ai, bi, dr))
    e("v_fma_f32 v%d, v%d, v%d, v%d" % (di, ai, br, di))
def cmul(dr, di, ar_, ai, br, bi):
    e("v_mul_f32 v%d, v%d, v%d" % (dr, ar_, br))
    e("v_mul_f32 v%d, v%d, v%d" % (di, ar_, bi))
    e("v_fma_f32 v%d, -v%d, v%d, v%d" % (dr, ai, bi, dr))
    e("v_fma_f32 v%d, v%d, v%d, v%d" % (di, ai, br, di))
def srd(base, p):
    e("s_mov_b32 s%d, s%d" % (base, p))
    e("s_mov_b32 s%d, s%d" % (base + 1, p + 1))
def S(fmt, *a):
    e(fmt % a)
def run(L):
    for s, tag in L:
        if tag is None: g.e(s)
        elif tag.startswith("ds:"): g.ds(s, tag[3:])
        else: g.vm(s, tag)
WSR = "s[%d:%d]" % (SRD_WS, SRD_WS + 3)
HSC = ("", " sc1", " sc1 nt")[OPT["hsc"]]

hdr = open("cdna_kernels/%s.s.ref" % NAME).read().split("; Override launch")[0]
out_hdr = hdr + "; @launch grid=(256,1,1) block=(256,1,1) lds=163840\n"
e('.amdgcn_target "amdgcn-amd-amdhsa--gfx950"')
e(".text")
e(".globl %s_kernel" % NAME)
e(".p2align 8")
e(".type %s_kernel,@function" % NAME)
g.label("%s_kernel" % NAME)
e("s_cmp_ge_u32 s2, 256")
e("s_cbranch_scc1 L_end")
if OPT["stamps"]:
    e("s_memrealtime s[82:83]"); e("s_memtime s[96:97]"); e("s_waitcnt lgkmcnt(0)"); e("v_mov_b32 v252, s82"); e("v_mov_b32 v253, s96")
if OPT["diag"] >= 0:
    e("%s s[96:97]" % ("s_memtime" if OPT["diagcyc"] else "s_memrealtime"))
e("s_load_dwordx16 s[64:79], s[0:1], 0")
e("s_load_dwordx16 s[80:95], s[0:1], 64")
e("v_lshrrev_b32 v2, 6, v0")
S("v_and_b32 v%d, 63, v0", vLANE)
S("v_readfirstlane_b32 s%d, v2", sW)
t0, t1, t2, t3 = T, T + 1, T + 2, T + 3
S("v_lshrrev_b32 v%d, 3, v%d", t0, vLANE)
S("v_and_b32 v%d, 7, v%d", t1, vLANE)
S("v_lshrrev_b32 v%d, 1, v%d", t2, t0)
S("v_xor_b32 v%d, v%d, v%d", t3, t1, t2)
S("v_lshlrev_b32 v%d, 4, v%d", t3, t3)
S("v_lshl_add_u32 v%d, v%d, 10, v%d", vC, t0, t3)
S("v_lshrrev_b32 v%d, 2, v%d", t1, t0)
S("v_and_b32 v%d, 3, v%d", t2, t0)
S("v_lshl_add_u32 v%d, v%d, 4, v%d", t1, t1, t2)
S("v_lshl_add_u32 v%d, v%d, 10, v%d", vX, t1, t3)
S("v_xor_b32 v%d, 64, v%d", vX + 1, vX)
S("v_add_u32 v%d, %d, v%d", vX + 1, 31 * 1024, vX + 1)
S("v_add_u32 v%d, 2048, v%d", vX + 2, vX)
S("v_add_u32 v%d, 2048, v%d", vX + 3, vX + 1)
S("s_bfe_u32 s%d, s2, 0x30003", sT2)
S("s_and_b32 s%d, s2, 1", sR); S("s_lshl_b32 s%d, s%d, 3", sR, sR); S("s_add_u32 s%d, s%d, s%d", sR, sR, sT2)
S("s_lshr_b32 s%d, s2, 6", sC)
S("s_bfe_u32 s%d, s2, 0x20001", sQ)
S("s_mov_b32 s%d, 0x%x", SRD_X + 2, 2048 * 1024); S("s_mov_b32 s%d, 0x20000", SRD_X + 3)
if OPT["rot1"] == 2:
    S("s_add_u32 s%d, s%d, s%d", sCI, sR, sC); S("s_and_b32 s%d, s%d, 1", sCI, sCI); S("s_lshl_b32 s%d, s%d, 2", sCI, sCI)
elif OPT["rot1"] == 4:
    S("s_add_u32 s%d, s%d, s%d", sCI, sR, sC); S("s_and_b32 s%d, s%d, 3", sCI, sCI); S("s_lshl_b32 s%d, s%d, 1", sCI, sCI)
else:
    S("s_mov_b32 s%d, 0", sCI)
S("s_lshr_b32 s%d, s%d, 1", sHF, sW); S("s_and_b32 s%d, s%d, 1", sPAR, sW)
S("s_lshl_b32 s%d, s%d, 17", sXb, sR); S("s_lshl_b32 s%d, s%d, 16", sT0, sHF); S("s_add_u32 s%d, s%d, s%d", sXb, sXb, sT0)
S("s_lshl_b32 s%d, s%d, 13", sT0, sPAR); S("s_add_u32 s%d, s%d, s%d", sXb, sXb, sT0)
S("s_lshl_b32 s%d, s%d, 12", sMX, sW)
S("s_lshl_b32 s%d, s%d, 7", sB, sCI)
S("s_mov_b32 m0, s%d", sMX)
S("s_add_u32 s%d, s%d, s%d", sX, sXb, sB)
e("s_waitcnt lgkmcnt(0)")
srd(SRD_X, pX)
for n in range(4):
    g.vm("buffer_load_dwordx4 v%d, s[%d:%d], s%d offen offset:%d lds" % (vX + n, SRD_X, SRD_X + 3, sX, 1024 * n), "ch0")
S("s_lshl_b32 s%d, s%d, 2", sJ, sQ); S("s_add_u32 s%d, s%d, s%d", sJ, sJ, sC)
S("v_and_b32 v%d, 15, v%d", t0, vLANE); S("v_lshlrev_b32 v%d, 1, v%d", t0, t0)
S("v_lshlrev_b32 v%d, 4, v%d", vL16, vLANE)
S("s_lshl_b32 s%d, s%d, 6", sT0, sJ); S("s_lshl_b32 s%d, s%d, 5", sT1, sPAR); S("s_add_u32 s%d, s%d, s%d", sT0, sT0, sT1)
S("v_add_u32 v%d, s%d, v%d", t0, sT0, t0)
S("s_lshl_b32 s%d, s%d, 11", sT1, sJ); S("s_lshl_b32 s%d, s%d, 17", sT0, sR); S("s_add_u32 s%d, s%d, s%d", sT1, sT1, sT0); S("s_lshl_b32 s%d, s%d, 15", sT0, sW); S("s_add_u32 s%d, s%d, s%d", sT1, sT1, sT0)
S("v_add_u32 v%d, s%d, v%d", t1, sT1, vL16)

PL, PI, PD = FT + 4, FT + 5, FT + 6
GX0, GX1, GW = FT + 8, FT + 12, FT + 16
g.vm("global_load_dwordx4 %s, v%d, s[%d:%d]" % (vr(GW, 4), vL16, pGATE, pGATE + 1), "small2")
g.vm("global_load_dwordx4 %s, v%d, s[%d:%d]" % (vr(GX0, 4), t1, pX, pX + 1), "small2")
g.vm("global_load_dwordx4 %s, v%d, s[%d:%d] offset:1024" % (vr(GX1, 4), t1, pX, pX + 1), "small2")
g.vm("global_load_ushort v%d, v%d, s[%d:%d]" % (PD, t0, pLDT, pLDT + 1), "small")
g.vm("global_load_ushort v%d, v%d, s[%d:%d]" % (PL, t0, pLRE, pLRE + 1), "small")
g.vm("global_load_ushort v%d, v%d, s[%d:%d]" % (PI, t0, pLIM, pLIM + 1), "small")
if OPT["cpf"]:
    S("s_getpc_b64 s[%d:%d]", sTP, sTP + 1)
    S("s_lshr_b32 s%d, s2, 3", sT0); S("s_lshl_b32 s%d, s%d, 2", sT0, sT0); S("s_add_u32 s%d, s%d, s%d", sT0, sT0, sW)
    S("s_mul_i32 s%d, s%d, 0x1234", sT0, sT0)
    S("s_add_u32 s%d, s%d, s%d", sTP, sTP, sT0); S("s_addc_u32 s%d, s%d, 0", sTP + 1, sTP + 1)
    S("s_load_dword s%d, s[%d:%d], 0", sCNT, sTP, sTP + 1)
    S("s_load_dword s%d, s[%d:%d], 0x4320", sCb, sTP, sTP + 1)
    S("s_load_dword s%d, s[%d:%d], 0x4324", sHO, sTP, sTP + 1)
if OPT["wsoff"]:
    S("s_add_u32 s%d, s%d, 0x%x", pWS, pWS, OPT["wsoff"] << 20); S("s_addc_u32 s%d, s%d, 0", pWS + 1, pWS + 1)
S("s_load_dword s%d, s[%d:%d], 0", sE, pWS, pWS + 1)
for b_, sz in ((SRD_B, 512 * 1024), (SRD_W1, 512 * 3584)):
    S("s_mov_b32 s%d, 0x%x", b_ + 2, sz)
    S("s_mov_b32 s%d, 0x20000", b_ + 3)
S("v_xor_b32 v%d, 64, v%d", vC + 1, vC)
S("v_add_u32 v%d, 7168, v%d", vC + 1, vC + 1)
S("s_lshl_b32 s%d, s%d, 15", sBb, sJ); S("s_lshl_b32 s%d, s%d, 14", sT0, sPAR); S("s_add_u32 s%d, s%d, s%d", sBb, sBb, sT0)
S("s_lshl_b32 s%d, s%d, 11", sMB, sW); S("s_add_u32 s%d, s%d, %d", sMB, sMB, LB)
S("s_cmp_ge_u32 s%d, 2", sW)
S("s_cselect_b32 s%d, s%d, s%d", SRD_B, pBIM, pBRE)
S("s_cselect_b32 s%d, s%d, s%d", SRD_B + 1, pBIM + 1, pBRE + 1)
S("s_mov_b32 m0, s%d", sMB)
S("s_add_u32 s%d, s%d, s%d", sB, sBb, sB)
for n in range(2):
    g.vm("buffer_load_dwordx4 v%d, s[%d:%d], s%d offen offset:%d lds" % (vC + n, SRD_B, SRD_B + 3, sB, 1024 * n), "ch0")
S("v_lshrrev_b32 v%d, 4, v%d", t0, vLANE)
S("v_and_b32 v%d, 15, v%d", t1, vLANE)
S("v_lshlrev_b32 v%d, 2, v%d", t2, t0)
S("v_xor_b32 v%d, v%d, v%d", vW2, t1, t2)
S("v_lshrrev_b32 v%d, 2, v%d", t2, vW2)
S("v_cmp_eq_u32 vcc, 3, v%d", t2)
S("v_mul_u32_u24 v%d, 3584, v%d", t0, t0)
S("v_lshl_add_u32 v%d, v%d, 4, v%d", vW1, vW2, t0)
S("s_lshr_b32 s%d, s%d, 1", sDUM, sC)
S("s_cselect_b64 s[%d:%d], vcc, 0", sTP, sTP + 1)
S("v_mov_b32 v%d, 0x%x", t3, OOB)
e("s_nop 0")
S("v_cndmask_b32 v%d, v%d, v%d, s[%d:%d]", vW1, vW1, t3, sTP, sTP + 1)
S("v_add_u32 v%d, %d, v%d", vW1 + 1, 13312, vW1)
S("v_xor_b32 v%d, 32, v%d", vW1 + 2, vW1)
S("v_add_u32 v%d, %d, v%d", vW1 + 3, 13312 * 3, vW1 + 2)
S("v_add_u32 v%d, %d, v%d", vW1 + 2, 13312 * 2, vW1 + 2)
S("s_lshl_b32 s%d, s%d, 3", sKSW, sC); S("s_min_u32 s%d, s%d, 22", sKSW, sKSW)
S("s_mul_i32 s%d, s%d, 896", sT0, sQ); S("s_lshl_b32 s%d, s%d, 5", sT1, sKSW); S("s_add_u32 s%d, s%d, s%d", sT0, sT0, sT1)
S("s_mul_i32 s%d, s%d, %d", sW1b, sW, 16 * 3584); S("s_add_u32 s%d, s%d, s%d", sW1b, sW1b, sT0)
S("s_add_u32 s%d, s%d, %d", sMW, sMX, LW)
srd(SRD_W1, pW1)
S("s_mul_i32 s%d, s%d, %d", sW1, sCI, 64 * 3584)
S("s_mov_b32 m0, s%d", sMW)
S("s_add_u32 s%d, s%d, s%d", sW1, sW1, sW1b)
for n in range(4):
    g.vm("buffer_load_dwordx4 v%d, s[%d:%d], s%d offen offset:%d lds" % (vW1 + n, SRD_W1, SRD_W1 + 3, sW1, 1024 * n), "ch0")
S("s_add_u32 s%d, s%d, 1", sCI, sCI)

def dma_chunk(c):
    k = c & 3
    L = []
    def I(s): L.append((s, None))
    def D(s): L.append((s, "ch%d" % c))
    I("s_lshl_b32 s%d, s%d, 7" % (sB, sCI))
    I("s_add_u32 m0, s%d, %d" % (sMX, k * 16384))
    I("s_add_u32 s%d, s%d, s%d" % (sX, sXb, sB))
    for n in range(4): D("buffer_load_dwordx4 v%d, s[%d:%d], s%d offen offset:%d lds" % (vX + n, SRD_X, SRD_X + 3, sX, 1024 * n))
    I("s_add_u32 m0, s%d, %d" % (sMB, k * 8192))
    I("s_add_u32 s%d, s%d, s%d" % (sB, sBb, sB))
    for n in range(2): D("buffer_load_dwordx4 v%d, s[%d:%d], s%d offen offset:%d lds" % (vC + n, SRD_B, SRD_B + 3, sB, 1024 * n))
    I("s_mul_i32 s%d, s%d, %d" % (sW1, sCI, 64 * 3584))
    I("s_add_u32 m0, s%d, %d" % (sMW, k * 16384))
    I("s_add_u32 s%d, s%d, s%d" % (sW1, sW1, sW1b))
    for n in range(4): D("buffer_load_dwordx4 v%d, s[%d:%d], s%d offen offset:%d lds" % (vW1 + n, SRD_W1, SRD_W1 + 3, sW1, 1024 * n))
    I("s_add_u32 s%d, s%d, 1" % (sCI, sCI))
    I("s_and_b32 s%d, s%d, 7" % (sCI, sCI))
    return L
for b, sz in ((SRD_W2, 1792 * 1024), (SRD_CR, 512 * 1024), (SRD_CI, 512 * 1024), (SRD_WS, WS_SIZE + (256 * 4 * 128 if OPT["stamps"] else 0)), (SRD_OUT, 2048 * 2048)):
    S("s_mov_b32 s%d, 0x%x", b + 2, sz)
    S("s_mov_b32 s%d, 0x20000", b + 3)
S("s_mov_b32 s%d, 0xffff0000", sMASK)
srd(SRD_W2, pW2); srd(SRD_CR, pCRE); srd(SRD_CI, pCIM); srd(SRD_WS, pWS); srd(SRD_OUT, pOUT)
if OPT["stamps"]:
    e("s_lshl_b32 s101, s2, 2"); S("s_add_u32 s101, s101, s%d", sW); e("s_lshl_b32 s101, s101, 7"); S("s_add_u32 s101, s101, %d", WS_SIZE)
    e("s_mov_b64 exec, 1")
    g.vm("buffer_store_dword v253, off, %s, s101 offset:0" % WSR, "stamp")
    g.vm("buffer_store_dword v252, off, %s, s101 offset:120" % WSR, "stamp")
    e("s_mov_b64 exec, -1")
    nstamp[0] = 1
stamp()
S("v_and_b32 v%d, 15, v%d", t0, vLANE)
S("v_lshrrev_b32 v%d, 4, v%d", t1, vLANE)
S("v_lshrrev_b32 v%d, 1, v%d", t2, t0)
S("v_xor_b32 v%d, v%d, v%d", t2, t2, t1)
S("v_lshlrev_b32 v%d, 4, v%d", t2, t2)
S("v_lshl_add_u32 v%d, v%d, 7, v%d", t2, t0, t2)
S("s_lshl_b32 s%d, s%d, 13", sT0, sHF); S("s_lshl_b32 s%d, s%d, 11", sT1, sPAR); S("s_add_u32 s%d, s%d, %d", sT1, sT1, LB)
S("v_add_u32 v%d, s%d, v%d", rdA, sT0, t2)
S("v_add_u32 v%d, s%d, v%d", rdB, sT1, t2)
S("v_xor_b32 v%d, 64, v%d", rdA + 1, rdA)
S("v_xor_b32 v%d, 64, v%d", rdB + 1, rdB)
S("s_lshl_b32 s%d, s%d, 2", sT0, sHF)
S("v_add_u32 v%d, s%d, v%d", vQ, sT0, t1)
S("v_bfe_u32 v%d, v%d, 2, 2", t0, vLANE)
S("v_lshl_add_u32 v%d, v%d, 3, v%d", t2, t1, t0)
S("v_lshlrev_b32 v%d, 8, v%d", t2, t2)
S("v_lshl_add_u32 v%d, v%d, 6, v%d", t2, t0, t2)
S("v_and_b32 v%d, 1, v%d", t3, t1)
S("v_lshl_add_u32 v%d, v%d, 5, v%d", t2, t3, t2)
S("v_and_b32 v%d, 3, v%d", t3, vLANE)
S("v_lshl_add_u32 v%d, v%d, 3, v%d", t2, t3, t2)
S("v_add_u32 v%d, 0x%x, v%d", t2, LW, t2)
S("s_mul_i32 s%d, s%d, 96", sT0, sPAR)
S("v_xor_b32 v%d, s%d, v%d", rdW, sT0, t2)
S("s_add_u32 s%d, s%d, 32", sT1, sT0); S("v_xor_b32 v%d, s%d, v%d", rdW + 1, sT1, t2)
S("s_add_u32 s%d, s%d, 64", sT1, sT0); S("v_xor_b32 v%d, s%d, v%d", rdW + 2, sT1, t2)
S("s_lshl_b32 s%d, s%d, 5", sT1, sPAR); S("s_add_u32 s%d, s%d, 192", sT1, sT1); S("v_xor_b32 v%d, s%d, v%d", rdW + 3, sT1, t2)
if OPT["ppf"]:
    S("v_lshrrev_b32 v%d, 2, v%d", t0, vLANE); S("v_lshlrev_b32 v%d, 10, v%d", t0, t0)
    S("v_and_b32 v%d, 1, v%d", t1, vLANE); S("v_lshl_add_u32 v%d, v%d, 7, v%d", t0, t1, t0)
    S("v_bfe_u32 v%d, v%d, 1, 1", t1, vLANE); S("v_lshl_add_u32 v%d, v%d, 9, v%d", t0, t1, t0)
    S("v_lshlrev_b32 v%d, 7, v%d", t1, vLANE)
    S("s_lshl_b32 s%d, s2, 2", sT0); S("s_add_u32 s%d, s%d, s%d", sT0, sT0, sW); S("s_lshl_b32 s%d, s%d, 11", sT0, sT0)
    S("s_lshl_b32 s%d, s2, 1", sT1); S("s_and_b32 s%d, s%d, 1", sT2, sW); S("s_add_u32 s%d, s%d, s%d", sT1, sT1, sT2); S("s_lshl_b32 s%d, s%d, 10", sT1, sT1)
    S("s_and_b32 s%d, s2, 127", sT2); S("s_lshr_b32 s%d, s2, 7", sT3); S("s_lshl_b32 s%d, s%d, 8", sT3, sT3); S("s_add_u32 s%d, s%d, s%d", sT2, sT2, sT3)
    S("s_add_u32 s%d, s%d, 128", sT2, sT2); S("s_mul_i32 s%d, s%d, 3584", sT2, sT2); S("s_mul_i32 s%d, s%d, 896", sT3, sW); S("s_add_u32 s%d, s%d, s%d", sT2, sT2, sT3)
    e("s_mov_b64 exec, 0xff")
    g.vm("buffer_load_dword v%d, v%d, s[%d:%d], s%d offen offset:256" % (T + 42, t0, SRD_X, SRD_X + 3, sT0), "ppf")
    e("s_mov_b64 exec, 0x7f")
    g.vm("buffer_load_dword v%d, v%d, s[%d:%d], s%d offen" % (T + 43, t1, SRD_W1, SRD_W1 + 3, sT2), "ppf")
    e("s_mov_b64 exec, 15")
    g.vm("buffer_load_dword v%d, v%d, s[%d:%d], s%d offen offset:256" % (T + 44, t0, SRD_B, SRD_B + 3, sT1), "ppf")
    e("s_mov_b64 exec, -1")
if OPT["page"]: e("TOUCH")
e("s_waitcnt lgkmcnt(0)")
S("s_mul_i32 s%d, s%d, 0x9e3779b1", sTAG, sE)
S("s_add_u32 s%d, s%d, 0x7f4a7c15", sTAG, sTAG)
S("s_cmp_lg_u32 s%d, 0", sDUM); e("s_cselect_b64 vcc, -1, 0")

F = Rec()
e = F.e
vCH = 206
S("s_lshl_b32 s%d, s%d, 4", sT0, sPAR)
S("v_and_b32 v%d, 15, v%d", vCH, vLANE); S("v_add_u32 v%d, s%d, v%d", vCH, sT0, vCH)
S("v_lshl_add_u32 v%d, v%d, 5, v%d", vTID8, vQ, vCH); S("v_lshlrev_b32 v%d, 3, v%d", vTID8, vTID8)
S("v_add_u32 v%d, 0x%x, v%d", vTID8, SCR, vTID8)
S("v_mov_b32 v%d, 0x%x", t3, OOB)
S("v_mov_b32 v%d, s%d", vTAG, sTAG)
S("v_cndmask_b32 v%d, v%d, v%d, vcc", vL16d, vL16, t3)
S("v_add_u32 v%d, 14336, v%d", vC + 2, vC); S("v_add_u32 v%d, 14336, v%d", vC + 3, vC + 1)
S("s_lshl_b32 s%d, s%d, 2", sT0, sQ)
S("v_add_u32 v%d, s%d, v%d", vW2, sT0, vW2)
S("v_and_b32 v%d, 15, v%d", vW2, vW2)
S("v_lshlrev_b32 v%d, 4, v%d", vW2, vW2)
S("v_lshrrev_b32 v%d, 4, v%d", t0, vLANE)
S("v_lshl_add_u32 v%d, v%d, 10, v%d", vW2, t0, vW2)
for n in range(1, 4):
    S("v_add_u32 v%d, %d, v%d", vW2 + n, 3072 * n, vW2)
S("s_lshr_b32 s%d, s%d, 1", sT0, sC)
S("s_add_u32 s%d, s%d, s%d", sT1, sW, sQ); S("s_and_b32 s%d, s%d, 3", sT1, sT1); S("s_lshl_b32 s%d, s%d, 15", sT1, sT1)
S("s_lshl_b32 s%d, s%d, 17", sCb, sC); S("s_add_u32 s%d, s%d, s%d", sCb, sCb, sT1)
S("s_lshl_b32 s%d, s%d, 8", sT1, sQ); S("s_add_u32 s%d, s%d, s%d", sCb, sCb, sT1)
S("s_lshl_b32 s%d, s%d, 7", sT0, sT0); S("s_add_u32 s%d, s%d, s%d", sCb, sCb, sT0)
nearly = len(F.items)
vGA = FT + 33
S("s_lshl_b32 s%d, s%d, 10", sT0, sR); S("s_lshl_b32 s%d, s%d, 9", sT1, sHF); S("s_add_u32 s%d, s%d, s%d", sT0, sT0, sT1); S("s_add_u32 s%d, s%d, %d", sT0, sT0, GOFF)
S("v_lshl_add_u32 v%d, v%d, 3, s%d", vGA, vLANE, sT0)
vXD, vDS = FT + 34, FT + 36
sXT = 69
S("s_lshl_b32 s%d, s%d, 8", sT0, sC); S("s_lshl_b32 s%d, s%d, 6", sT1, sQ); S("s_add_u32 s%d, s%d, s%d", sT0, sT0, sT1)
S("v_bfe_u32 v%d, v%d, 4, 1", t0, vLANE); S("v_lshlrev_b32 v%d, 5, v%d", t0, t0)
S("v_lshrrev_b32 v%d, 5, v%d", t1, vLANE); S("v_lshl_add_u32 v%d, v%d, 2, v%d", t0, t1, t0)
S("v_bfe_u32 v%d, v%d, 2, 2", t1, vLANE); S("v_add_u32 v%d, v%d, v%d", t0, t0, t1)
S("v_and_b32 v%d, 3, v%d", t2, vLANE)
S("v_lshlrev_b32 v%d, 4, v%d", t2, t2)
S("v_lshl_add_u32 v%d, v%d, 10, v%d", vXD, t0, t2)
S("v_add_u32 v%d, 15360, v%d", vXD + 1, vXD)
S("s_add_u32 s%d, s%d, s%d", sXT, sT0, sXb)
S("v_and_b32 v%d, 31, v%d", t2, vLANE)
S("v_lshlrev_b32 v%d, 1, v%d", t2, t2)
S("v_add_u32 v%d, s%d, v%d", vDS, sT0, t2)
vGW, vGW2, vGRO, vGRS, vGRX, vEXW, vEXR, vCBASE = 96, 97, 98, 99, 100, 101, 102, 103
S("s_lshl_b32 s%d, s%d, 9", sT0, sW); S("s_add_u32 s%d, s%d, %d", sT0, sT0, GT)
S("v_lshl_add_u32 v%d, v%d, 2, s%d", vGW, vLANE, sT0)
S("v_lshrrev_b32 v%d, 4, v%d", t0, vLANE); S("v_and_b32 v%d, 3, v%d", t1, vLANE); S("v_lshl_add_u32 v%d, v%d, 2, v%d", t1, t0, t1)
S("v_bfe_u32 v%d, v%d, 2, 2", t2, vLANE); S("v_lshl_add_u32 v%d, v%d, 2, v%d", t1, t1, t2)
S("v_lshl_add_u32 v%d, v%d, 2, s%d", vGW2, t1, sT0)
S("v_lshl_add_u32 v%d, v%d, 6, s%d", vGRS, t0, sT0)
S("v_and_b32 v%d, 15, v%d", t1, vLANE); S("v_lshl_add_u32 v%d, v%d, 4, s%d", vGRO, t1, sT0)
S("s_lshl_b32 s%d, s%d, 5", sT1, sPAR); S("s_add_u32 s%d, s%d, s%d", sT0, sT0, sT1)
S("v_lshrrev_b32 v%d, 5, v%d", t1, vLANE); S("v_lshl_add_u32 v%d, v%d, 6, s%d", vGRX, t1, sT0)
S("s_add_u32 s%d, s%d, 32768", sT0, sMX); S("v_add_u32 v%d, s%d, v%d", vEXR, sT0, vL16); S("v_xor_b32 v%d, 0x1000, v%d", vEXW, vEXR)
S("v_and_b32 v%d, 31, v%d", t0, vLANE); S("v_bfe_u32 v%d, v%d, 1, 3", t2, t0); S("v_xor_b32 v%d, v%d, v%d", t2, t2, t1)
S("v_lshlrev_b32 v%d, 4, v%d", t2, t2); S("v_lshl_add_u32 v%d, v%d, 7, v%d", vCBASE, t0, t2)
S("s_lshl_b32 s%d, s%d, 2", sT0, sR); S("s_add_u32 s%d, s%d, s%d", sT0, sT0, sW)
S("s_mul_i32 s%d, s%d, %d", sE, sT0, TSTRIDE); S("s_add_u32 s%d, s%d, %d", sE, sE, HOFF)
S("s_lshl_b32 s%d, s%d, 9", sFL, sT0); S("s_lshl_b32 s%d, s%d, 7", sT1, sQ); S("s_add_u32 s%d, s%d, s%d", sFL, sFL, sT1); S("s_add_u32 s%d, s%d, %d", sFL, sFL, FLAGS)
S("s_lshl_b32 s%d, s%d, 2", sT1, sC); S("s_add_u32 s68, s%d, s%d", sFL, sT1)
S("s_mul_i32 s%d, s%d, %d", sHq, sQ, 28 * 1024); S("s_add_u32 s%d, s%d, s%d", sHq, sHq, sE)
S("s_lshl_b32 s%d, s%d, 10", sHO, sKSW)
S("s_lshl_b32 s%d, s%d, 14", sHS, sQ); S("s_add_u32 s%d, s%d, s%d", sHS, sHS, sE); S("s_add_u32 s%d, s%d, %d", sHS, sHS, 112 * 1024)
if OPT["wpf"]:
    vPF = 240
    S("v_mov_b32 v%d, 0x%x", t3, OOB)
    S("s_mul_i32 s%d, s%d, %d", sV2b, sQ, 448 * 1024); S("s_lshl_b32 s%d, s%d, 8", sT0, sC); S("s_add_u32 s%d, s%d, s%d", sV2b, sV2b, sT0)
    S("s_and_b32 s%d, s%d, 7", sT0, sR); S("s_mul_i32 s%d, s%d, 56", sT1, sT0); S("s_mul_i32 s%d, s%d, 14", sT2, sW); S("s_add_u32 s%d, s%d, s%d", sT1, sT1, sT2)
    S("v_lshrrev_b32 v%d, 1, v%d", t0, vLANE); S("v_add_u32 v%d, s%d, v%d", t0, sT1, t0); S("v_lshlrev_b32 v%d, 10, v%d", t0, t0)
    S("v_and_b32 v%d, 1, v%d", t1, vLANE); S("v_lshl_add_u32 v%d, v%d, 7, v%d", t0, t1, t0)
    S("v_cmp_gt_u32 s[%d:%d], 28, v%d", sTP, sTP + 1, vLANE)
    S("s_lshl_b32 s%d, s%d, 4", sT0, sT0); S("s_and_b32 s%d, s%d, 1", sT1, sW); S("s_lshl_b32 s%d, s%d, 3", sT1, sT1); S("s_add_u32 s%d, s%d, s%d", sT0, sT0, sT1)
    S("v_cndmask_b32 v%d, v%d, v%d, s[%d:%d]", vPF, t3, t0, sTP, sTP + 1)
    S("v_lshrrev_b32 v%d, 1, v%d", t0, vLANE); S("v_add_u32 v%d, s%d, v%d", t0, sT0, t0); S("v_lshlrev_b32 v%d, 10, v%d", t0, t0)
    S("v_lshl_add_u32 v%d, v%d, 7, v%d", t0, t1, t0)
    S("v_cmp_gt_u32 s[%d:%d], 16, v%d", sTP, sTP + 1, vLANE)
    S("s_lshl_b32 s%d, s%d, 17", sT0, sC); S("s_lshl_b32 s%d, s%d, 8", sT1, sQ); S("s_add_u32 s%d, s%d, s%d", 70, sT0, sT1)
    S("v_cndmask_b32 v%d, v%d, v%d, s[%d:%d]", vPF + 1, t3, t0, sTP, sTP + 1)
    S("s_cmp_ge_u32 s%d, 2\ns_cselect_b32 s%d, s%d, s%d\ns_cselect_b32 s%d, s%d, s%d", sW, 88, pCIM, pCRE, 89, pCIM + 1, pCRE + 1)
    F.items[-3:] = [(3, (lambda a, b, c: (lambda gg: (a(gg), b(gg), c(gg))))(F.items[-3][1], F.items[-2][1], F.items[-1][1]))]
    S("s_mov_b32 s90, 0x80000"); S("s_mov_b32 s91, 0x20000")

F.wait_vm("small2")
GA0, GA1 = FT + 22, FT + 24
gl, gh, x0, x1, y0, y1 = FT + 26, FT + 27, FT + 28, FT + 29, FT + 30, FT + 31
for k in range(4):
    S("v_lshlrev_b32 v%d, 16, v%d", gl, GW + k); S("v_and_b32 v%d, s%d, v%d", gh, sMASK, GW + k)
    S("v_lshlrev_b32 v%d, 16, v%d", x0, GX0 + k); S("v_and_b32 v%d, s%d, v%d", x1, sMASK, GX0 + k)
    S("v_lshlrev_b32 v%d, 16, v%d", y0, GX1 + k); S("v_and_b32 v%d, s%d, v%d", y1, sMASK, GX1 + k)
    S("v_mul_f32 v%d, v%d, v%d", x0, x0, gl); S("v_mul_f32 v%d, v%d, v%d", x1, x1, gh)
    S("v_mul_f32 v%d, v%d, v%d", y0, y0, gl); S("v_mul_f32 v%d, v%d, v%d", y1, y1, gh)
    S("v_cvt_pk_bf16_f32 v%d, v%d, v%d", x0, x0, x1); S("v_cvt_pk_bf16_f32 v%d, v%d, v%d", y0, y0, y1)
    S("v_and_b32 v%d, s%d, v%d", x1, sMASK, x0); S("v_lshlrev_b32 v%d, 16, v%d", x0, x0)
    S("v_and_b32 v%d, s%d, v%d", y1, sMASK, y0); S("v_lshlrev_b32 v%d, 16, v%d", y0, y0)
    if k == 0:
        S("v_add_f32 v%d, v%d, v%d", GA0, x0, x1); S("v_add_f32 v%d, v%d, v%d", GA1, y0, y1)
    else:
        S("v_add_f32 v%d, v%d, v%d", GA0, GA0, x0); S("v_add_f32 v%d, v%d, v%d", GA1, GA1, y0)
        S("v_add_f32 v%d, v%d, v%d", GA0, GA0, x1); S("v_add_f32 v%d, v%d, v%d", GA1, GA1, y1)
e("s_nop 0")
for d in ("row_shr:1 row_mask:0xf", "row_shr:2 row_mask:0xf", "row_shr:4 row_mask:0xf", "row_shr:8 row_mask:0xf", "row_bcast:15 row_mask:0xa", "row_bcast:31 row_mask:0xc"):
    S("v_add_f32_dpp v%d, v%d, v%d %s bank_mask:0xf", GA0, GA0, GA0, d)
    S("v_add_f32_dpp v%d, v%d, v%d %s bank_mask:0xf", GA1, GA1, GA1, d)
    e("s_nop 0")
S("v_cvt_pk_bf16_f32 v%d, v%d, v%d", x0, GA0, GA1)
S("v_and_b32 v%d, s%d, v%d", GA1, sMASK, x0); S("v_lshlrev_b32 v%d, 16, v%d", GA0, x0)
S("v_mul_f32 v%d, 0x%x, v%d", GA0, LOG2E | 0x80000000, GA0); S("v_mul_f32 v%d, 0x%x, v%d", GA1, LOG2E | 0x80000000, GA1)
S("v_exp_f32 v%d, v%d", GA0, GA0); S("v_exp_f32 v%d, v%d", GA1, GA1)
e("s_nop 0")
S("v_add_f32 v%d, 1.0, v%d", GA0, GA0); S("v_add_f32 v%d, 1.0, v%d", GA1, GA1)
S("v_rcp_f32 v%d, v%d", GA0, GA0); S("v_rcp_f32 v%d, v%d", GA1, GA1)
S("v_cmp_eq_u32 s[%d:%d], 63, v%d", sTP, sTP + 1, vLANE)
S("v_cvt_pk_bf16_f32 v%d, v%d, v%d", x0, GA0, GA1)
S("v_mov_b32 v%d, s%d", GA0 + 1, sTAG); S("v_mov_b32 v%d, s%d", GA1 + 1, sTAG)
S("v_and_b32 v%d, s%d, v%d", GA1, sMASK, x0); S("v_lshlrev_b32 v%d, 16, v%d", GA0, x0)
S("s_lshl_b32 s%d, s%d, 10", sT0, sR); S("s_lshl_b32 s%d, s%d, 8", sT1, sW); S("s_add_u32 s%d, s%d, s%d", sT0, sT0, sT1)
S("s_add_u32 s%d, s%d, %d", sT0, sT0, GOFF)
S("s_lshl_b32 s%d, s%d, 4", sT1, sJ); S("s_add_u32 s%d, s%d, s%d", sT1, sT1, sT0)
S("v_mov_b32 v%d, s%d", y0, sT1)
S("v_cndmask_b32 v%d, v%d, v%d, s[%d:%d]", y0, t3, y0, sTP, sTP + 1)
F.vm("buffer_store_dwordx4 %s, v%d, %s, 0 offen sc1" % (vr(GA0, 4), y0, WSR), "gst")
npro = len(F.items)
F.wait_vm("small")
a_, b_ = FT + 20, FT + 21
S("v_lshlrev_b32 v%d, 16, v%d", PD, PD)
S("v_mul_f32 v%d, 0x%x, v%d", PD, LOG2E, PD)
S("v_exp_f32 v%d, v%d", PD, PD)
S("v_lshlrev_b32 v%d, 16, v%d", PL, PL)
S("v_lshlrev_b32 v%d, 16, v%d", PI, PI)
S("v_cvt_pk_bf16_f32 v%d, v%d, v%d", PD, PD, PD)
S("v_lshlrev_b32 v%d, 16, v%d", PD, PD)
S("v_mul_f32 v%d, v%d, v%d", a_, PD, PL)
S("v_mul_f32 v%d, v%d, v%d", b_, PD, PI)
S("v_mul_f32 v%d, 0x%x, v%d", a_, LOG2E, a_)
S("v_mul_f32 v%d, 0x%x, v%d", b_, INV2PI, b_)
S("v_cvt_f32_u32 v%d, v%d", t3, vQ)
def cpow(d, mul):
    if mul is None:
        S("v_exp_f32 v%d, v%d", t0, a_); S("v_fract_f32 v%d, v%d", t1, b_)
    else:
        S("v_mul_f32 v%d, %s, v%d", t0, mul, a_); S("v_mul_f32 v%d, %s, v%d", t1, mul, b_)
        S("v_exp_f32 v%d, v%d", t0, t0); S("v_fract_f32 v%d, v%d", t1, t1)
    S("v_cos_f32 v%d, v%d", d, t1); S("v_sin_f32 v%d, v%d", d + 1, t1)
    e("s_nop 0")
    S("v_mul_f32 v%d, v%d, v%d", d, d, t0); S("v_mul_f32 v%d, v%d, v%d", d + 1, d + 1, t0)
cpow(cL, None)
cpow(cL16, "0x41800000")
cpow(cL1024, "0x44800000")
S("v_mul_f32 v%d, 0x41800000, v%d", t2, t3); cpow(cL16q, "v%d" % t2)
S("v_mul_f32 v%d, 0x43000000, v%d", t2, t3); cpow(cL128q, "v%d" % t2)
S("v_mul_f32 v%d, v%d, v%d", t0, PL, PL)
S("v_fma_f32 v%d, v%d, v%d, v%d", t0, PI, PI, t0)
S("v_rcp_f32 v%d, v%d", t0, t0)
S("v_add_f32 v%d, -1.0, v%d", t1, cL)
S("v_mul_f32 v%d, v%d, v%d", cCO, t1, PL)
S("v_fma_f32 v%d, v%d, v%d, v%d", cCO, cL + 1, PI, cCO)
S("v_mul_f32 v%d, v%d, v%d", cCO + 1, cL + 1, PL)
S("v_fma_f32 v%d, -v%d, v%d, v%d", cCO + 1, t1, PI, cCO + 1)
S("v_add_f32 v%d, v%d, v%d", t0, t0, t0)
S("v_mul_f32 v%d, v%d, v%d", cCO, cCO, t0)
S("v_mul_f32 v%d, v%d, v%d", cCO + 1, cCO + 1, t0)
nlate = len(F.items)
rdVW, rdVX, rdCX, rdCB = 10, 2, 18, 22
vSEG, vPUB, vLB0, vLB1 = 204, 205, 206, 207
sHFa, sHFb, sHFc, sHFd = 64, 65, 66, 67
S("v_lshrrev_b32 v%d, 5, v%d", t1, vLANE)
S("v_bfe_u32 v%d, v%d, 2, 2", t0, vLANE)
S("v_lshl_add_u32 v%d, v%d, 3, v%d", t2, t1, t0)
S("v_lshlrev_b32 v%d, 8, v%d", t2, t2)
S("v_lshl_add_u32 v%d, v%d, 6, v%d", t2, t0, t2)
S("v_bfe_u32 v%d, v%d, 4, 1", t3, vLANE)
S("v_lshl_add_u32 v%d, v%d, 5, v%d", t2, t3, t2)
S("v_and_b32 v%d, 3, v%d", t3, vLANE)
S("v_lshl_add_u32 v%d, v%d, 3, v%d", t2, t3, t2)
S("s_lshl_b32 s%d, s%d, 16", sT0, sPAR)
S("v_add_u32 v%d, s%d, v%d", rdVX, sT0, t2)
S("v_xor_b32 v%d, 0x10000, v%d", rdVW, rdVX)
for s_ in range(1, 4):
    S("v_xor_b32 v%d, %d, v%d", rdVX + s_, 64 * s_, rdVX)
    S("v_xor_b32 v%d, %d, v%d", rdVW + s_, 64 * s_, rdVW)
S("v_lshlrev_b32 v%d, 3, v%d", t1, vCH)
S("v_add_u32 v%d, 0x%x, v%d", vSEG, SCR, t1)
S("v_lshlrev_b32 v%d, 1, v%d", t0, t1)
S("s_lshl_b32 s%d, s%d, 9", sT0, sJ); S("s_lshl_b32 s%d, s%d, 13", sT1, sR); S("s_add_u32 s%d, s%d, s%d", sT0, sT0, sT1); S("s_add_u32 s%d, s%d, %d", sT0, sT0, AGG)
S("v_add_u32 v%d, s%d, v%d", t0, sT0, t0)
S("v_mov_b32 v%d, 0x%x", t3, OOB)
S("v_cmp_eq_u32 s[%d:%d], 7, v%d", sTP, sTP + 1, vQ)
S("v_add_u32 v%d, 1, v%d", t2, vQ)
S("v_cmp_ge_u32 s[%d:%d], s%d, v%d", sV0, sV0 + 1, sR, t2)
S("v_cndmask_b32 v%d, v%d, v%d, s[%d:%d]", vPUB, t3, t0, sTP, sTP + 1)
S("v_lshlrev_b32 v%d, 13, v%d", t1, t2)
S("v_sub_u32 v%d, v%d, v%d", t1, t0, t1)
S("v_add_u32 v%d, 8, v%d", t2, t2)
S("v_cmp_ge_u32 s[%d:%d], s%d, v%d", sV1, sV1 + 1, sR, t2)
S("v_cndmask_b32 v%d, v%d, v%d, s[%d:%d]", vLB0, t3, t1, sV0, sV0 + 1)
S("v_subrev_u32 v%d, 0x10000, v%d", t1, t1)
S("v_mov_b32 v%d, 0", vPRE); S("v_mov_b32 v%d, 0", vPRE + 1)
S("v_cndmask_b32 v%d, v%d, v%d, s[%d:%d]", vLB1, t3, t1, sV1, sV1 + 1)
S("s_add_u32 s%d, s%d, s%d", sT0, sHq, sHO); S("s_mul_i32 s%d, s%d, 3072", sT1, sPAR)
S("s_add_u32 s%d, s%d, s%d", sHFa, sT0, sT1); S("s_sub_u32 s%d, s%d, s%d", sHFb, sT0, sT1); S("s_add_u32 s%d, s%d, 3072", sHFb, sHFb)
S("s_lshl_b32 s%d, s%d, 10", sT1, sPAR); S("s_add_u32 s%d, s%d, 6144", sT0, sT0)
S("s_add_u32 s%d, s%d, s%d", sHFc, sT0, sT1); S("s_sub_u32 s%d, s%d, s%d", sHFd, sT0, sT1); S("s_add_u32 s%d, s%d, 1024", sHFd, sHFd)
S("s_mov_b32 s%d, 0", sCNT)
e = g.e

def fx(n, k): return FA + 40 * (n & 1) + 4 * k
def reads(n):
    c, sp_ = n >> 1, n & 1
    k = c & 3
    L = []
    def X(t): L.append(("ds_read_b128 %s, v%d offset:%d" % (ar(fx(n, t), 4), rdA + sp_, k * 16384 + t * 2048), "ds:r%d_%d" % (n, t)))
    X(0)
    L.append(("ds_read_b128 %s, v%d offset:%d" % (ar(fx(n, 4), 4), rdB + sp_, k * 8192), "ds:r%d_4" % n))
    X(1); X(2); X(3)
    L.append(("ds_read_b128 %s, v%d offset:%d" % (ar(fx(n, 5), 4), rdB + sp_, k * 8192 + 4096), "ds:r%d_5" % n))
    for t in range(4):
        for e2 in range(2):
            L.append(("ds_read_b64_tr_b16 %s, v%d offset:%d" % (ar(fx(n, 6 + t) + 2 * e2, 2), rdW + t, k * 16384 + sp_ * 8192 + 1024 * e2), "ds:r%d_%d" % (n, 6 + t)))
    return L
def mfma1(n, m):
    t = m & 3
    if m < 8:
        acc = (ACC_RE, ACC_IM)[m >> 2] + 4 * t
        A, B = ar(fx(n, t), 4), ar(fx(n, 4 + (m >> 2)), 4)
    else:
        acc = ACC_F + 16 * ((m - 8) >> 2) + 4 * t
        A, B = ar(fx(n, 6 + ((m - 8) >> 2)), 4), ar(fx(n, t), 4)
    S("v_mfma_f32_16x16x32_bf16 %s, %s, %s, %s", vr(acc, 4), A, B, "0" if n == 0 else vr(acc, 4))

USLOT = {0: ("X", 0), 1: ("W", 0), 2: ("X", 1), 3: ("W", 1), 4: ("X", 2), 5: ("W", 2), 6: ("W", 3), 7: ("X", 3), 8: ("B", 0), 9: ("X", 0), 10: ("X", 1)}
def unit(v):
    L = []
    reg, k = USLOT[v]
    if v < 7:
        if v < 2:
            L.append(("s_cmp_gt_u32 s%d, %d" % (sKSW, v), None))
            L.append(("s_cselect_b32 s%d, %d, %d" % (sT2, v, 6 + v), None))
            L.append(("s_add_u32 s%d, s%d, s%d" % (sT3, sW, sKSW), None))
            if v: L.append(("s_add_u32 s%d, s%d, 3" % (sT3, sT3), None))
            L.append(("s_cmp_eq_u32 s%d, 3" % sW, None))
            L.append(("s_cselect_b32 s%d, s%d, s%d" % (sT3, sT2, sT3), None))
        else:
            L.append(("s_add_u32 s%d, s%d, %d" % (sT3, sW, 4 * v), None))
            L.append(("s_sub_u32 s%d, s%d, 6" % (sT2, sT3), None))
            L.append(("s_cmp_lt_u32 s%d, s%d" % (sT2, sKSW), None))
            L.append(("s_cselect_b32 s%d, s%d, s%d" % (sT3, sT2, sT3), None))
        L.append(("s_lshl_b32 s%d, s%d, 14" % (sT3, sT3), None))
        L.append(("s_add_u32 m0, s%d, %d" % (sMX if reg == "X" else sMW, k * 16384), None))
        L.append(("s_add_u32 s%d, s%d, s%d" % (sT3, sT3, sV2b), None))
        sd, vo, so = SRD_W2, vW2, sT3
    else:
        b = v - 7
        L.append(("s_add_u32 m0, s%d, %d" % (sMX, LB if reg == "B" else k * 16384), None))
        if b & 1:
            L.append(("s_xor_b32 s%d, s%d, 128" % (sT3, sCb), None)); so = sT3
        else:
            L.append(("s_nop 0", None)); so = sCb
        sd, vo = (SRD_CR if b < 2 else SRD_CI), vC
    for n in range(4):
        L.append(("buffer_load_dwordx4 v%d, s[%d:%d], s%d offen offset:%d lds" % (vo + n, sd, sd + 3, so, 1024 * n), "v%d" % v))
    return L

class Spread:
    def __init__(self, items, gaps):
        self.items = list(items)
        n = sum(1 for x in items if x[1])
        self.sched = [int((i + 0.5) * gaps / n) for i in range(n)] if n else []
        self.gi = 0
    def gap(self):
        used = 0
        while self.sched and self.sched[0] <= self.gi:
            self.sched.pop(0)
            while True:
                it = self.items.pop(0); run([it]); used += 1
                if it[1]: break
            if not self.sched:
                run(self.items); used += len(self.items); self.items = []
        self.gi += 1
        return used
    def flush(self):
        run(self.items); self.items = []; self.sched = []

class Pace:
    def __init__(self, items, gaps, first=0):
        self.groups = []
        cur = []
        for it in items:
            if it[1] is None and cur and cur[-1][0].startswith(("s_cmp", "s_cselect")) is False and not it[0].startswith("s_cselect"):
                self.groups.append(cur); cur = []
            elif it[1] is not None and cur:
                self.groups.append(cur); cur = []
            elif cur and cur[-1][1] is not None:
                self.groups.append(cur); cur = []
            elif cur and cur[-1][0].startswith("s_cselect") and not it[0].startswith("s_cselect"):
                self.groups.append(cur); cur = []
            cur.append(it)
        if cur: self.groups.append(cur)
        n = sum(1 for x in items if x[1])
        self.sched = [first + int((i + 0.5) * (gaps - first) / n) for i in range(n)] if n else []
        self.gi = 0
    @property
    def items(self): return self.groups
    def gap(self, free):
        used = 0
        while self.groups:
            gr = self.groups[0]
            mem = gr[0][1] is not None
            due = bool(self.sched) and self.sched[0] <= self.gi
            if mem and not due: break
            if used >= free and not (self.sched and self.sched[0] < self.gi - 1) and self.sched: break
            if used >= max(free, 1) and not self.sched: break
            run(gr); used += len(gr); self.groups.pop(0)
            if mem: self.sched.pop(0)
        self.gi += 1
        return used
GG = FT + 38
DSK = 29
def g_load(tag):
    g.vm("buffer_load_dwordx2 %s, v%d, %s, 0 offen sc1" % (vr(GG, 2), vGA, WSR), tag)

ntot = len(F.items)
npf = npro + OPT["prefill"]
sp1 = Spread(dma_chunk(1), npf // 8)
while ntot - len(F.items) < npf:
    sp1.gap()
    F.play(g, min(8, npf - (ntot - len(F.items))))
sp1.flush()
stamp()
g.wait_vm("ch0")
e("s_barrier")
stamp()
for it in reads(0):
    if it[1].endswith("_9"): g.e(it[0])
    else: run([it])
def wpf_items():
    return [("buffer_load_dword v%d, v%d, s[%d:%d], s%d offen" % (vPF + 2, vPF, SRD_W2, SRD_W2 + 3, sV2b), "wpf"),
            ("buffer_load_dword v%d, v%d, s[88:91], s70 offen" % (vPF + 3, vPF + 1), "wpf")]
xdma = [("s_mov_b32 m0, s%d" % sMB, None), ("s_nop 0", None)]
xdma += [("buffer_load_dwordx4 v%d, s[%d:%d], s%d offen offset:%d lds" % (vXD + n, SRD_X, SRD_X + 3, sXT, 1024 * n), "xr") for n in range(2)]
xdma += [("global_load_ushort v%d, v%d, s[%d:%d]" % (DSK, vDS, pDSK, pDSK + 1), "xr")]
def chunk_items(c):
    L = []
    if OPT["wpf"] and OPT["wpc"] == c - 1: L += wpf_items()
    if c + 2 < 8: L += dma_chunk(c + 2)
    if OPT["wpc"] == 9:
        if c == 5: L += wpf_items()
        if c == 7: L += unit(0) + unit(1) + unit(2)
        if c == 8: L += unit(3) + xdma
    else:
        if c == 6: L += unit(0) + unit(1)
        if c == 7: L += unit(2) + unit(3) + xdma
    return L
sp = Pace(chunk_items(0), 19)
GREG = 208
OM = 236
PB = 224
def g_check():
    g.wait_vm("gl")
    g.label("L_g_chk")
    S("v_cmp_ne_u32 s[%d:%d], s%d, v%d", sTP, sTP + 1, sTAG, GG + 1)
    S("s_add_u32 s%d, s%d, 1", sCNT, sCNT)
    S("s_cmp_eq_u64 s[%d:%d], 0", sTP, sTP + 1)
    e("s_cbranch_scc1 L_g_ok")
    S("s_cmp_ge_u32 s%d, 0x8000", sCNT)
    e("s_cbranch_scc1 L_g_ok")
    sv = list(g.vmq); g_load("x"); g.vmq = sv
    e("s_waitcnt vmcnt(0)")
    e("s_branch L_g_chk")
    g.label("L_g_ok")
G2 = Rec()
G2.ds("ds_write_b32 v%d, v%d offset:256" % (vGW2, GG), "gw")
G2.ds("ds_read_b128 %s, v%d offset:256" % (vr(OM, 4), vGRO), "om")
G2.ds("ds_write_b32 v%d, v%d" % (vGW, GG), "gw")
for k in range(4):
    G2.ds("ds_read_b128 %s, v%d offset:%d" % (vr(GREG + 4 * k, 4), vGRS, 16 * k), "gr")
G2.e("v_mov_b32 v%d, s%d" % (PB + 2, sTAG)); G2.e("v_mov_b32 v%d, s%d" % (PB + 3, sTAG))
G2.items.append((1, lambda gg: gg.wait_lg("om")))
for k in range(4): G2.e("v_sub_f32 v%d, 1.0, v%d" % (OM + k, OM + k))
for k in (0, 2):
    G2.e("v_cvt_pk_bf16_f32 v%d, v%d, v%d" % (OM + k, OM + k, OM + k + 1))
    G2.e("v_and_b32 v%d, s%d, v%d" % (OM + k + 1, sMASK, OM + k)); G2.e("v_lshlrev_b32 v%d, 16, v%d" % (OM + k, OM + k))
def emit_read(item):
    s_, tag = item
    if tag.endswith("_9"): g.e(s_)
    else: g.ds(s_, tag[3:])
    evq.append(tag)
evq = [x[1] for x in reads(0)]
WAITS = {0: 5, 8: 8}
RGAPS = [1, 2, 3, 4, 5, 6, 9, 10, 11, 12, 13, 14]
for n in range(14):
    c, sp_ = n >> 1, n & 1
    nxt = reads(n + 1)
    for m in range(24):
        used = 0
        if m == 20:
            e("s_cbranch_vccnz L_sk%d" % n)
            k = len(evq) - 1 - max(i for i, t in enumerate(evq) if t == "ds:r%d_9" % n)
            g.e("s_waitcnt lgkmcnt(%d)" % k)
        if m in WAITS: g.wait_lg("r%d_%d" % (n, WAITS[m]))
        mfma1(n, m)
        if m + 1 in WAITS or m == 23: used += 1
        if m == 19: used += 2
        if sp_ == 1 and m == 0:
            assert not sp.items
            nstamp_("a%d" % c)
            if c < 7: g.wait_vm("ch%d" % (c + 1))
            e("s_barrier")
            nstamp_("b%d" % c)
            sp = Pace(chunk_items(c + 1), 37 if c < 6 else 29)
            print("chunk", c, "played", ntot - len(F.items), "of", ntot, (npro, nlate))
            if c == 5: g_load("gl")

            continue
        if nxt and (m in RGAPS or m in (20, 21)):
            emit_read(nxt.pop(0)); used += 1
            last = max(i for i, t in enumerate(evq) if t.startswith("ds:r%d_" % n))
        if m >= 20:
            if m == 23: g.label("L_sk%d" % n)
            continue
        used += sp.gap(max(0, 2 - used))
        if True:
            bud = max(0, OPT["fillb"] - used)
            if n < 12: bud = min(bud, nlate - (ntot - len(F.items)))
            F.play(g, bud)
    assert not nxt
H0, H1 = 26, 200
AG = Rec(); e = AG.e
pr, pi = ACC_RE, ACC_IM
for t in range(1, 16):
    d = (H0, H1)[t & 1]
    cfma(d, d + 1, cL, cL + 1, pr, pi, ACC_RE + t, ACC_IM + t)
    pr, pi = d, d + 1
OWN = pr
e = g.e
nxt = reads(15)
def skip_wait(n):
    k = len(evq) - 1 - max(i for i, t in enumerate(evq) if t == "ds:r%d_9" % n)
    g.e("s_waitcnt lgkmcnt(%d)" % k)
def tail_gap(first):
    used = 0
    if nxt and not nxt[0][1].endswith("_9"):
        emit_read(nxt.pop(0)); used += 1
    used += sp.gap(max(0, 2 - used))
    first.play(g, max(0, 2 - used))
g.wait_lg("r14_5")
for m in range(8):
    mfma1(14, m); tail_gap(F)
e("s_cbranch_vccnz L_sk14")
skip_wait(14)
for m in range(20, 24): mfma1(14, m)
g.label("L_sk14")
g.wait_lg("r14_8")
for m in range(8, 12):
    mfma1(14, m); tail_gap(F)
e("s_cbranch_vccnz L_sk15a")
while nxt: emit_read(nxt.pop(0))
g.label("L_sk15a")
print("late fillers left:", len(F.items))
F.flush(g)
g.wait_lg("r15_5")
mfma1(15, 0)
assert not sp.items
nstamp_("a7")
e("s_barrier")
nstamp_("b7")
sp = Pace(chunk_items(8), 20)
g_check()
for m in range(1, 8):
    mfma1(15, m); tail_gap(G2)
for m in range(12, 16):
    mfma1(14, m); tail_gap(G2)
G2.flush(g)
e("s_cbranch_vccnz L_sk15")
skip_wait(15)
for m in range(20, 24): mfma1(15, m)
g.label("L_sk15")
for m in range(16, 20):
    mfma1(14, m); tail_gap(AG)
g.wait_lg("r15_8")
for m in range(8, 20):
    mfma1(15, m); tail_gap(AG)
assert not sp.items
print("aggregate instructions left:", len(AG.items))
AG.flush(g)
stamp()

assert not sp.items
g.ds("ds_write_b64 v%d, %s" % (vTID8, vr(OWN, 2)), "agg")
g.wait_lg_all()
e("s_barrier")
SG = 240
for s_ in range(7):
    g.ds("ds_read_b64 %s, v%d offset:%d" % (vr(SG + 2 * s_, 2), vSEG, 256 * s_), "sg%d" % s_)
for s_ in range(7):
    g.wait_lg("sg%d" % s_)
    S("v_cmpx_lt_u32 vcc, %d, v%d", s_, vQ)
    a = SG + 2 * s_
    if s_ == 0:
        S("v_mov_b32 v%d, v%d", vPRE, a); S("v_mov_b32 v%d, v%d", vPRE + 1, a + 1)
    else:
        S("v_fma_f32 v%d, v%d, v%d, v%d", a, cL16, vPRE, a)
        S("v_fma_f32 v%d, v%d, v%d, v%d", a + 1, cL16, vPRE + 1, a + 1)
        S("v_fma_f32 v%d, -v%d, v%d, v%d", a, cL16 + 1, vPRE + 1, a)
        S("v_fma_f32 v%d, v%d, v%d, v%d", vPRE + 1, cL16 + 1, vPRE, a + 1)
        S("v_mov_b32 v%d, v%d", vPRE, a)
e("s_mov_b64 exec, -1")
cfma(PB, PB + 1, cL16, cL16 + 1, vPRE, vPRE + 1, OWN, OWN + 1)
g.vm("buffer_store_dwordx4 %s, v%d, %s, 0 offen sc1" % (vr(PB, 4), vPUB, WSR), "pub")
stamp()
S("s_cmp_lg_u32 s%d, 0", sPAR); e("s_cselect_b64 vcc, -1, 0")
probe("P0")
vOUT = 44
OWNF, PRTF, OTH = ACC_F, ACC_F + 16, 48
def hstore(own, t):
    reg = (OWNF if own else PRTF) + 4 * t
    so = ((sHFa if own else sHFb) if t < 3 else (sHFc if own else sHFd))
    return ("buffer_store_dwordx4 %s, v%d, %s, s%d offen offset:%d%s" % (vr(reg, 4), vL16d if t == 3 else vL16, WSR, so, 1024 * t if t < 3 else 0, HSC), "hf")
for t in range(4):
    f = ACC_F + 16 * t
    for k in range(8):
        rt = k >> 1
        S("v_pk_mul_f32 %s, %s, %s op_sel:[0,%d] op_sel_hi:[1,%d]", vr(f + 2 * k, 2), vr(f + 2 * k, 2), vr(OM + (rt & 2), 2), rt & 1, rt & 1)
    def cv(dst, src):
        for k in range(4): S("v_cvt_pk_bf16_f32 v%d, v%d, v%d", dst + k, src + 2 * k, src + 2 * k + 1)
    S("s_cbranch_vccnz L_fo%d", t)
    cv(OTH + 4 * t, f + 8); cv(OWNF + 4 * t, f)
    S("s_branch L_fj%d", t)
    g.label("L_fo%d" % t)
    cv(OTH + 4 * t, f); cv(OWNF + 4 * t, f + 8)
    g.label("L_fj%d" % t)
    e("s_nop 1")
    for d in (OTH + 4 * t, OWNF + 4 * t):
        S("v_permlane16_swap_b32 v%d, v%d", d, d + 2); S("v_permlane16_swap_b32 v%d, v%d", d + 1, d + 3)
    for d in (OWNF + 4 * t, OTH + 4 * t):
        for k in range(4): S("v_pk_max_i16 v%d, v%d, 0", d + k, d + k)
        if d >= ACC_F: run([hstore(True, t)])
        else: g.ds("ds_write_b128 v%d, %s offset:%d" % (vEXW, vr(d, 4), 1024 * t), "ex")
stamp()
probe("P1")
late = Spread([], 1)
g.wait_vm("v1")
g.wait_lg_all()
e("s_barrier")
for t in range(4):
    g.ds("ds_read_b128 %s, v%d offset:%d" % (vr(PRTF + 4 * t, 4), vEXR, 1024 * t), "exr%d" % t)
for t in range(4):
    g.wait_lg("exr%d" % t)
    run([hstore(False, t)])
stamp()
A0, A1 = 228, 232
lbl_ = [("buffer_load_dwordx4 %s, v%d, %s, 0 offen sc1" % (vr(A0, 4), vLB0, WSR), "lb"), ("buffer_load_dwordx4 %s, v%d, %s, 0 offen sc1" % (vr(A1, 4), vLB1, WSR), "lb")]
def lb_loads(tag):
    for s_, _ in lbl_: g.vm(s_, tag)
late = Spread(lbl_ + unit(4) + unit(5), OPT["lgaps"])

ACC2 = [48, 64, 80, 240]
WF = 168
FULL = set(range(0, 7)) | set(range(8, 12))
def tiles(n): return [0, 1, 2, 3] if n in FULL else [1, 2, 3]
def wread(n, tau, dst):
    v = n >> 2; sg = n & 3
    if n < 8: v, sg = ((n // 3, n % 3) if n < 6 else (n - 6, 3))
    reg, k = USLOT[v]
    if n < 28:
        base = (rdVX if reg == "X" else rdVW) + tau
        return [("ds_read_b64_tr_b16 %s, v%d offset:%d" % (vr(dst + 2 * e2, 2), base, k * 16384 + sg * 4096 + 1024 * e2), None) for e2 in range(2)]
    base = (rdCX if reg == "X" else rdCB) + sg
    return [("ds_read_b128 %s, v%d offset:%d" % (vr(dst, 4), base, (k * 16384 if reg == "X" else 0) + tau * 4096), None)]
WF3 = [104, 108, 120, 124]
ORDER = list(range(44))
POS = {n: p for p, n in enumerate(ORDER)}
def wfrag(n, tau):
    p = POS[n]
    if p < 6: return WF + 16 * (p & 1) + 4 * tau
    k = p % 3
    return WF + 16 * k + 4 * tau if k < 2 else WF3[tau]
def reads2(n):
    L = []
    for tau in tiles(n):
        for s, _ in wread(n, tau, wfrag(n, tau)):
            L.append((s, "ds:w%d_%d" % (n, tau)))
    return L
TFR, TFI = ACC_RE + 8, ACC_IM + 8
def hfrag(n):
    if n < 6: return vr((OWNF if n < 3 else PRTF) + 4 * (n % 3), 4)
    if n < 28: return ar(4 * (n - 6), 4)
    m = n - 28
    if m in (0, 1): return vr(TFR + 4 * m, 4)
    if m in (8, 9): return vr(TFI + 4 * (m - 8), 4)
    idx = m - 2 if m < 8 else m - 4
    return ar(88 + 4 * idx, 4)
def hload(n):
    L = []
    if n < 28:
        if n % 2 == 0:
            L.append(("s_cmp_gt_u32 s%d, %d" % (sKSW, n - 6), None))
            L.append(("s_cselect_b32 s%d, s%d, s%d" % (sX, sHFa, sHq), None))
            L.append(("s_add_u32 s%d, s%d, %d" % (sX, sX, n * 1024), None))
    else:
        m = n - 28
        if m % 2 == 0:
            L.append(("s_xor_b32 s%d, s%d, %d" % (sX, sC, (m >> 1) & 3), None))
            L.append(("s_lshl_b32 s%d, s%d, 11" % (sX, sX), None))
            L.append(("s_add_u32 s%d, s%d, s%d" % (sX, sX, sHS), None))
            if m >= 8: L.append(("s_add_u32 s%d, s%d, 8192" % (sX, sX), None))
    if OPT["exp"] == 1: return L
    if OPT["exp"] == 2:
        L.append(("buffer_load_dwordx4 %s, v%d, s[%d:%d], 0 offen offset:%d" % (hfrag(n), vL16, SRD_W2, SRD_W2 + 3, 1024 * (n & 3)), "h%d" % n))
        return L
    L.append(("buffer_load_dwordx4 %s, v%d, %s, s%d offen offset:%d%s" % (hfrag(n), vL16, WSR, sX, 1024 * (n & 1), "" if OPT["exp"] == 3 else " sc1"), "h%d" % n))
    return L
started = set()
RQ = []
def issue_reads(cur, ahead, maxn, limit):
    k = 0
    while RQ and k < maxn and RQ[0][0] <= min(cur + ahead, limit) and len(g.lgq) < 15:
        run([RQ.pop(0)[1]]); k += 1
    return k
def step(n, fill=None, pre=None, budget=3, ahead=2, limit=99):
    tl = tiles(n)
    while RQ and RQ[0][0] <= POS[n]:
        if len(g.lgq) >= 15: g.wait_lg(g.lgq[1])
        run([RQ.pop(0)[1]])
    g.wait_vm("h%d" % n)
    for i, tau in enumerate(tl):
        if i == 0 and pre:
            g.wait_lg_all()
        else:
            g.wait_lg("w%d_%d" % (n, tau))
        acc = vr(ACC2[tau], 16)
        S("v_mfma_f32_32x32x16_bf16 %s, %s, %s, %s", acc, hfrag(n), vr(wfrag(n, tau), 4), acc if tau in started else "0")
        started.add(tau)
        if i == 0 and pre: pre()
        k = issue_reads(POS[n], ahead, 3, limit)
        if fill: fill(max(0, budget + 2 - k))

F = Rec(); e = F.e
S("s_and_b32 s%d, s%d, 1", sT0, sC); S("s_lshl_b32 s%d, s%d, 6", sT0, sT0)
S("v_xor_b32 v%d, s%d, v%d", rdCX, sT0, vCBASE)
S("v_add_u32 v%d, 0x%x, v%d", rdCB, LB, rdCX)
for s in range(1, 4):
    S("v_xor_b32 v%d, %d, v%d", rdCX + s, 32 * s, rdCX)
    S("v_xor_b32 v%d, %d, v%d", rdCB + s, 32 * s, rdCB)
for t in range(16):
    ur, ui = ACC_RE + t, ACC_IM + t
    tt = t0 + (t & 1)
    S("v_mul_f32 v%d, v%d, v%d", tt, ur, cCO + 1)
    S("v_mul_f32 v%d, v%d, v%d", ur, ur, cCO)
    S("v_fma_f32 v%d, -v%d, v%d, v%d", ur, ui, cCO + 1, ur)
    S("v_fma_f32 v%d, v%d, v%d, v%d", ui, ui, cCO, tt)
vTW, vTR = 26, 101
vXL, vFLG, FLD = 96, 97, 203
S("s_lshl_b32 s%d, s%d, 12", sT0, sHF); S("s_add_u32 s%d, s%d, %d", sT0, sT0, LB + 8192)
S("s_lshl_b32 s%d, s%d, 11", sT1, sPAR); S("s_add_u32 s%d, s%d, s%d", sT1, sT1, sT0)
S("v_bfe_u32 v%d, v%d, 1, 1", t0, vLANE); S("v_and_b32 v%d, 1, v%d", t1, vLANE); S("v_lshl_add_u32 v%d, v%d, 1, v%d", t0, t1, t0)
S("v_and_b32 v%d, 4, v%d", t1, vLANE); S("v_or_b32 v%d, v%d, v%d", t0, t0, t1)
S("v_lshrrev_b32 v%d, 4, v%d", t1, vLANE); S("v_lshlrev_b32 v%d, 1, v%d", t1, t1); S("v_xor_b32 v%d, v%d, v%d", t0, t0, t1)
S("v_lshlrev_b32 v%d, 4, v%d", t0, t0); S("v_and_b32 v%d, 15, v%d", t1, vLANE); S("v_lshl_add_u32 v%d, v%d, 7, v%d", t0, t1, t0)
S("v_add_u32 v%d, s%d, v%d", vTW, sT1, t0)
S("v_xor_b32 v%d, 16, v%d", vTW + 1, vTW)
S("v_lshrrev_b32 v%d, 5, v%d", t2, vLANE)
S("v_and_b32 v%d, 31, v%d", t0, vLANE); S("v_lshlrev_b32 v%d, 1, v%d", t0, t0)
S("v_lshl_add_u32 v%d, v%d, 10, v%d", vXL, t2, t0)
S("v_add_u32 v%d, s%d, v%d", vXL, sMB, vXL)
S("v_lshl_add_u32 v%d, v%d, 14, v%d", t0, t2, t0)
S("v_add_u32 v%d, s%d, v%d", 98, sXT, t0)
S("v_bfe_u32 v%d, v%d, 2, 2", t0, vLANE)
S("v_lshl_add_u32 v%d, v%d, 3, v%d", t2, t2, t0)
S("v_lshrrev_b32 v%d, 1, v%d", t1, t0); S("v_and_b32 v%d, 1, v%d", t0, t0); S("v_lshl_add_u32 v%d, v%d, 1, v%d", t0, t0, t1)
S("v_and_b32 v%d, 3, v%d", t1, vLANE); S("v_lshlrev_b32 v%d, 1, v%d", t1, t1); S("v_add_u32 v%d, s%d, v%d", t1, sPAR, t1)
S("v_xor_b32 v%d, v%d, v%d", t1, t1, t0)
S("v_lshlrev_b32 v%d, 4, v%d", t1, t1)
S("v_lshl_add_u32 v%d, v%d, 7, v%d", t1, t2, t1)
S("v_bfe_u32 v%d, v%d, 4, 1", t3, vLANE)
S("v_lshl_add_u32 v%d, v%d, 3, v%d", t1, t3, t1)
S("v_add_u32 v%d, s%d, v%d", vTR, sT0, t1)
S("v_xor_b32 v%d, 64, v%d", vTR + 1, vTR)
S("v_add_u32 v%d, 512, v%d", vTR + 1, vTR + 1)
S("v_and_b32 v%d, 3, v%d", t0, vLANE)
S("v_lshl_add_u32 v%d, v%d, 2, s%d", vFLG, t0, sFL)
S("s_mov_b32 s%d, 32768", sB)
S("s_mov_b32 s%d, 0", sCNT)
e = g.e
for n in range(6): RQ += [(n, x) for x in reads2(n)]
def fill5(b):
    u = late.gap()
    F.play(g, max(0, b - u))
for n in range(6):
    step(n, fill5, budget=2, ahead=1)
    nstamp_("s%d" % n)
    if n == OPT["ffs"]:
        g.wait_vm("hf")
        nstamp_("hfdone")
        e("s_mov_b64 exec, 1")
        g.vm("buffer_store_dword v%d, off, %s, s68 sc1" % (vTAG, WSR), "fl0")
        e("s_mov_b64 exec, -1")
        e("s_nop 1")
late.flush()
F.flush(g)
S("v_lshlrev_b32 v%d, 1, v98", vOUT)
S("s_lshl_b32 s%d, s%d, 16", sT0, sPAR)
for k in range(4):
    S("v_xor_b32 v%d, s%d, v%d", rdVX + k, sT0, rdVX + k); S("v_xor_b32 v%d, s%d, v%d", rdVW + k, sT0, rdVW + k)
S("s_sub_u32 s%d, s%d, 6144", sHFa, sHq)
stamp()
def flag_load(kind, tag):
    g.vm("buffer_load_dword v%d, v%d, %s, %s offen sc1" % (FLD, vFLG, WSR, "s%d" % sB if kind else "0"), tag)
def flag_check(loader, lbl):
    S("s_mov_b32 s%d, 0", sCNT)
    g.label(lbl + "_chk")
    S("v_cmp_ne_u32 vcc, s%d, v%d", sTAG, FLD)
    S("s_add_u32 s%d, s%d, 1", sCNT, sCNT)
    S("s_cbranch_vccz %s_ok", lbl)
    S("s_cmp_ge_u32 s%d, 0x8000", sCNT)
    S("s_cbranch_scc1 %s_ok", lbl)
    sv = list(g.vmq); loader("x"); g.vmq = sv
    e("s_waitcnt vmcnt(0)")
    S("s_branch %s_chk", lbl)
    g.label(lbl + "_ok")
vorder = [6, 7, 8, 9, 10]
assert g.vm_count("xr") is None
S("v_lshlrev_b32 v%d, 16, v%d", DSK, DSK)
S("s_add_u32 s%d, s68, 32768", sFL)
if OPT["pfpos"] == -3: flag_load(0, "pf0")
for v in vorder[:OPT["npre"]]: run(unit(v))
vorder = vorder[OPT["npre"]:]
g.wait_vm("lb")
g.label("L_lb_chk")
S("v_cmp_ne_u32 vcc, s%d, v%d", sTAG, A0 + 2)
S("v_cmp_ne_u32 s[%d:%d], s%d, v%d", sTP, sTP + 1, sTAG, A1 + 2)
S("s_and_b64 vcc, vcc, s[%d:%d]", sV0, sV0 + 1)
S("s_and_b64 s[%d:%d], s[%d:%d], s[%d:%d]", sTP, sTP + 1, sTP, sTP + 1, sV1, sV1 + 1)
S("s_or_b64 vcc, vcc, s[%d:%d]", sTP, sTP + 1)
e("s_cbranch_scc0 L_lb_ok")
S("s_add_u32 s%d, s%d, 1", sCNT, sCNT)
S("s_cmp_ge_u32 s%d, 0x8000", sCNT)
e("s_cbranch_scc1 L_lb_ok")
sv = list(g.vmq); lb_loads("x"); g.vmq = sv
e("s_waitcnt vmcnt(0)")
e("s_branch L_lb_chk")
g.label("L_lb_ok")
cfma(A0, A0 + 1, cL1024, cL1024 + 1, A1, A1 + 1, A0, A0 + 1)
cmul(A1, A1 + 1, cL128q, cL128q + 1, A0, A0 + 1)
g.ds("ds_write_b64 v%d, %s offset:2048" % (vTID8, vr(A1, 2)), "pw")
g.wait_vm("v5")
g.wait_lg_all()
e("s_barrier")
stamp()
SG = 224
for s_ in range(8):
    g.ds("ds_read_b64 %s, v%d offset:%d" % (vr(SG + 2 * s_, 2), vSEG, 2048 + 256 * s_), "pp%d" % s_)
if OPT["pfpos"] == -2: flag_load(0, "pf0")
NH0 = OPT["nh0"]
hq = list(range(6, 6 + NH0))
vs = Spread(sum([unit(v) for v in vorder[:OPT["nscan"]]], []), 8); vorder = vorder[OPT["nscan"]:]
XR = 224
for s_ in range(1, 8):
    g.wait_lg("pp%d" % s_)
    S("v_pk_add_f32 %s, %s, %s", vr(SG, 2), vr(SG, 2), vr(SG + 2 * s_, 2))
cfma(vPRE, vPRE + 1, cL16q, cL16q + 1, SG, SG + 1, vPRE, vPRE + 1)
cmul(t0, t1, cCO, cCO + 1, vPRE, vPRE + 1)
pr, pi = t0, t1
for t in range(16):
    cfma(ACC_RE + t, ACC_IM + t, cL, cL + 1, pr, pi, ACC_RE + t, ACC_IM + t)
    pr, pi = ACC_RE + t, ACC_IM + t
    if len(g.lgq) >= 12: g.wait_lg(g.lgq[3])
    g.ds("ds_read_u16 v%d, v%d offset:%d" % (XR + t, vXL, 64 * t), "xl%d" % t)
    vs.gap()
    if t == OPT["pfpos"]: flag_load(0, "pf0")
    if t == OPT["pchk"]:
        g.wait_vm("pf0")
        flag_check(lambda tag: flag_load(0, tag), "L_f0")
        nstamp_("pollok")
        nin = min(NH0, 2 * ((15 - t) // 2))
        rest = vs.items
        vs = Spread(rest + sum([hload(n) for n in hq[:nin]], []), 15 - t); hq = hq[nin:]
stamp()
for x, (acc, ng) in enumerate(((ACC_RE, ""), (ACC_IM, "-"))):
    for k in range(8):
        S("v_pk_mul_f32 %s, %s, %s", vr(acc + 2 * k, 2), vr(acc + 2 * k, 2), vr(GREG + 2 * k, 2))
    for k in range(8):
        S("v_cvt_pk_bf16_f32 v%d, %sv%d, %sv%d", acc + k, ng, acc + 2 * k, ng, acc + 2 * k + 1)
    g.wait_lg("xl15")
    for p in range(2):
        g.ds("ds_write_b128 v%d, %s offset:%d" % (vTW + p, vr(acc + 4 * p, 4), 0 if x else 16384), "tw")
g.wait_lg_all()
e("s_barrier")
for x in range(2):
    for f in range(2):
        for e2 in range(2):
            g.ds("ds_read_b64_tr_b16 %s, v%d offset:%d" % (vr((TFI if x else TFR) + 4 * f + 2 * e2, 2), vTR + e2, (0 if x else 16384) + 2048 * f), "tr%d%d" % (x, f))
for a_ in range(4):
    g.ds("ds_read_b128 %s, v%d offset:%d" % (vr(GREG + 4 * a_, 4), vGRX, 128 * (a_ & 1) + 16 * (a_ >> 1)), "gx")
S("s_lshl_b32 s%d, s%d, 11", sT0, sC); S("s_add_u32 s%d, s%d, s%d", sT0, sT0, sHS)
S("s_add_u32 s%d, s%d, 8192", sT1, sT0)
def hs_store(x, f):
    g.wait_lg("tr%d%d" % (x, f))
    g.vm("buffer_store_dwordx4 %s, v%d, %s, s%d offen offset:%d%s" % (vr((TFI if x else TFR) + 4 * f, 4), vL16, WSR, sT1 if x else sT0, 1024 * f, HSC), "hs")
hsq = [(0, 0), (0, 1), (1, 0), (1, 1)]
vs.flush()
for _ in range(OPT["hs0"]): hs_store(*hsq.pop(0))
if OPT["pchk"] > 15:
    g.wait_vm("pf0")
    flag_check(lambda tag: flag_load(0, tag), "L_f0")
    nstamp_("pollok")
stamp()
NTM = 44 - OPT["tm"]
for n in ORDER[6:NTM]: RQ += [(POS[n], x_) for x_ in reads2(n)]
while hsq or hq:
    for _ in range(2):
        if hq: run(hload(hq.pop(0)))
    if hsq: hs_store(*hsq.pop(0))
    issue_reads(6, 1, 3, 99)
stamp()
g.wait_lg("gx")
F = Rec(); e = F.e
vF2S, vF2L = 98, 99
sPS = [66, 67, 68]; sPL = 69
S("s_lshl_b32 s%d, s%d, 4", sT0, sR); S("s_add_u32 s%d, s%d, s%d", sT0, sT0, sC); S("s_lshl_b32 s%d, s%d, 2", sT0, sT0); S("s_add_u32 s%d, s%d, s%d", sT0, sT0, sW)
for tau in range(1, 4):
    S("s_add_u32 s%d, s%d, %d", sT1, sQ, tau); S("s_and_b32 s%d, s%d, 3", sT1, sT1); S("s_lshl_b32 s%d, s%d, 4", sT1, sT1); S("s_add_u32 s%d, s%d, s%d", sT1, sT1, sT0)
    S("s_mul_i32 s%d, s%d, 6144", sPS[tau - 1], sT1); S("s_add_u32 s%d, s%d, %d", sPS[tau - 1], sPS[tau - 1], PART + 2048 * (tau - 1))
S("s_lshl_b32 s%d, s%d, 4", sT1, sQ); S("s_add_u32 s%d, s%d, s%d", sT1, sT1, sT0)
S("s_mul_i32 s%d, s%d, 6144", sPL, sT1); S("s_add_u32 s%d, s%d, %d", sPL, sPL, PART)
S("s_lshl_b32 s%d, s%d, 7", sT1, sT1); S("s_add_u32 s%d, s%d, %d", sT1, sT1, FLAGS2)
S("v_min_u32 v%d, 2, v%d", t0, vLANE)
S("v_lshl_add_u32 v%d, v%d, 2, s%d", vF2L, t0, sT1)
S("v_add_u32 v%d, s%d, v%d", t1, sQ, t0)
S("v_add_u32 v%d, 1, v%d", t1, t1)
S("v_and_b32 v%d, 3, v%d", t1, t1)
S("v_lshlrev_b32 v%d, 11, v%d", t1, t1)
S("v_lshl_add_u32 v%d, v%d, 2, v%d", t1, t0, t1)
S("s_lshl_b32 s%d, s%d, 7", sT0, sT0); S("s_add_u32 s%d, s%d, %d", sT0, sT0, FLAGS2)
S("v_add_u32 v%d, s%d, v%d", vF2S, sT0, t1)
for k in range(8):
    S("v_lshlrev_b32 v%d, 16, v%d", XR + 2 * k, XR + 2 * k); S("v_lshlrev_b32 v%d, 16, v%d", XR + 2 * k + 1, XR + 2 * k + 1)
    S("v_mul_f32 v%d, v%d, v%d", XR + 2 * k, XR + 2 * k, DSK); S("v_mul_f32 v%d, v%d, v%d", XR + 2 * k + 1, XR + 2 * k + 1, DSK)
    S("v_cvt_pk_bf16_f32 v%d, v%d, v%d", XR + 2 * k, XR + 2 * k, XR + 2 * k + 1)
    S("v_and_b32 v%d, s%d, v%d", XR + 2 * k + 1, sMASK, XR + 2 * k)
    S("v_lshlrev_b32 v%d, 16, v%d", XR + 2 * k, XR + 2 * k)
nxc = len(F.items)
for k in range(16):
    S("v_fma_f32 v%d, v%d, v%d, v%d", ACC2[0] + k, XR + k, GREG + k, ACC2[0] + k)
e = g.e
ntot = len(F.items)
F.play(g, OPT["gx0"])
nstamp_("gxd")
pend = list(range(6 + NH0, 28))
pend_s = [n for n in range(28, 44) if (n - 28) not in (0, 1, 8, 9)]
assert not hq
vq = [v for v in vorder if v < 8] + [8, 9, 10]
NV = 1 + OPT["npre"] + OPT["nscan"]
vitems = []
cur = [6]
def fill2(b):
    lim = ntot - len(F.items)
    if cur[0] < 13: b = min(b, nxc - lim)
    F.play(g, b)
PFS = OPT["pfs"]
SY = {11: ("v%d" % (4 + NV), 4 * (5 + NV) - 1), 30: ("v8", 35), 34: ("v10", 99)}
assert NV == 3
VAT = {}
for v, first, stride in ((8, OPT["v8"], 2), (9, OPT["v9"], 1), (10, OPT["v10"], 1)):
    for k in range(4): VAT[first + k * stride] = v
limit = 23
for n in ORDER[6:NTM]:
    cur[0] = n
    pre = None
    if n in SY:
        def pre(n=n):
            g.wait_vm(SY[n][0])
            e("s_barrier")
        limit = SY[n][1]
    step(n, fill2, pre, budget=OPT["b2"], limit=limit)
    nstamp_("s%d" % n)
    if n == OPT["hsn"]:
        g.wait_vm("hs")
        e("s_mov_b64 exec, 1")
        g.vm("buffer_store_dword v%d, off, %s, s%d sc1" % (vTAG, WSR, sFL), "fl1")
        e("s_mov_b64 exec, -1")
        e("s_nop 1")
    if n == PFS: flag_load(1, "pf1")
    if n in VAT and not vitems:
        vitems = unit(vq.pop(0))
    while vitems and n in VAT:
        it = vitems.pop(0); run([it])
        if it[1]: break
    if pend:
        run(hload(pend.pop(0)))
    else:
        if g.wait_vm("pf1"):
            flag_check(lambda tag: flag_load(1, tag), "L_f1")
        if pend_s: run(hload(pend_s.pop(0)))
        if pend_s and len(pend_s) % 2 == 1: run(hload(pend_s.pop(0)))
assert not pend and not pend_s and not vq and not vitems and not F.items
stamp()
g.wait_vm("h43")
def send(tau):
    R = Rec()
    a = ACC2[tau]
    for k in range(8):
        R.e("v_cvt_pk_bf16_f32 v%d, v%d, v%d" % (a + k, a + 2 * k, a + 2 * k + 1))
        if k in (3, 7):
            R.vm("buffer_store_dwordx4 %s, v%d, %s, s%d offen offset:%d sc1" % (vr(a + k - 3, 4), vL16, WSR, sPS[tau - 1], 256 * (k - 3)), "ps")
    return R
dl = [(n, tau) for tau in (1, 2, 3) for n in range(NTM, 44)] + [(n, 0) for n in range(44) if n not in FULL]
AHEAD = 5
def dread(i):
    for s_, _ in wread(dl[i][0], dl[i][1], DW[i % 8]):
        g.ds(s_, "d%d" % i)
used_last = [wfrag(NTM - 1, t) for t in (1, 2, 3)]
DW = [r for r in [WF + 4 * k for k in range(8)] + WF3 if r not in used_last][:8]
for i in range(AHEAD): dread(i)
def f2_load(tag):
    g.vm("buffer_load_dword v%d, v%d, %s, 0 offen sc1" % (FLD, vF2L, WSR), tag)
Q = Rec()
due = {}
for tau in (1, 2, 3): due[tau * OPT["tm"] - 1 + 4] = tau
for i, (n, tau) in enumerate(dl):
    g.wait_lg("d%d" % i)
    acc = vr(ACC2[tau], 16)
    S("v_mfma_f32_32x32x16_bf16 %s, %s, %s, %s", acc, hfrag(n), vr(DW[i % 8], 4), acc)
    if i + AHEAD < len(dl): dread(i + AHEAD)
    if i in due: Q.items += send(due[i]).items
    Q.play(g, OPT["tb"])
    if i == 3 * OPT["tm"] - 1: stamp()
    if i == 3 * OPT["tm"] + OPT["fwait"]:
        assert not Q.items
        g.wait_vm("ps")
        nstamp_("psdone")
        if OPT["pf2"]: f2_load("pf2")
        e("s_mov_b64 exec, 7")
        g.vm("buffer_store_dword v%d, v%d, %s, 0 offen sc1" % (vTAG, vF2S, WSR), "fl2")
        e("s_mov_b64 exec, -1")
        e("s_nop 1")
if not OPT["pf2"]: f2_load("pf2")
stamp()
S("v_mov_b32 v%d, 0x3f80", t0)
S("v_mov_b32 v%d, 0x3f800000", t1)
S("s_cmp_eq_u32 s%d, 15", sR); S("s_cselect_b32 s%d, s%d, 1", sT3, sJ); S("s_or_b32 s%d, s%d, s%d", sT3, sT3, sW)
g.wait_vm("pf2")
flag_check(f2_load, "L_f2")
stamp()
S("s_add_u32 s%d, s%d, 4096", sT0, sPL)
for k in range(3):
    for p in range(2):
        o = 2048 * k + 1024 * p
        g.vm("buffer_load_dwordx4 %s, v%d, %s, s%d offen offset:%d sc1" % (vr(ACC2[k + 1] + 8 + 4 * p, 4), vL16, WSR, sPL if o < 4096 else sT0, o & 4095), "pl%d" % k)
for k in range(3):
    g.wait_vm("pl%d" % k)
    nstamp_("pl%d" % k)
    for i in range(8):
        S("v_dot2c_f32_bf16 v%d, v%d, v%d", ACC2[0] + 2 * i, ACC2[k + 1] + 8 + i, t0)
        S("v_dot2c_f32_bf16 v%d, v%d, v%d", ACC2[0] + 2 * i + 1, ACC2[k + 1] + 8 + i, t1)
e("s_nop 2")
for k in range(16):
    if k % 2 == 0: S("s_mov_b32 s%d, %d", sT0, 2048 * (32 * ((k >> 2) & 1) + 4 * (k >> 3) + (k & 3)))
    g.vm("buffer_store_dword v%d, v%d, s[%d:%d], s%d offen offset:%d" % (ACC2[0] + k, vOUT, SRD_OUT, SRD_OUT + 3, sT0, 2048 * (k & 1)) + ("", " sc1", " nt")[OPT["osc"]], "out")
stamp()
if OPT["stamps"]:
    e("s_waitcnt vmcnt(0)")
    stamp()
    if OPT["stamps"] == 6:
        e("s_waitcnt lgkmcnt(0)"); e("s_mov_b64 exec, 1")
        for i, p in enumerate(sused):
            S("v_mov_b32 v252, s%d", p); e("buffer_store_dword v252, off, %s, s101 offset:%d" % (WSR, 4 + 4 * i)); e("s_nop 1")
        e("s_mov_b64 exec, -1")
        print("sgpr stamps", len(sused))
    e("s_memrealtime s[82:83]"); e("s_waitcnt lgkmcnt(0)"); e("v_mov_b32 v252, s82"); e("s_mov_b64 exec, 1")
    e("buffer_store_dword v252, off, %s, s101 offset:124" % WSR)
    e("s_mov_b64 exec, -1")
S("s_cmp_lg_u32 s%d, 0", sT3)
e("s_cbranch_scc1 L_end2")
e("s_mov_b64 exec, 1")
e("buffer_store_dword v%d, off, %s, 0 sc1" % (vTAG, WSR))
g.label("L_end2")
if OPT["diag"] > 0:
    S("s_sub_u32 s%d, s%d, s96", sDG, sDG)
    if OPT["diagcyc"]: S("s_lshr_b32 s%d, s%d, 1", sDG, sDG)
    else: S("s_mul_i32 s%d, s%d, 10", sDG, sDG)
    e("s_memrealtime s[96:97]"); e("s_waitcnt lgkmcnt(0)"); S("s_add_u32 s%d, s%d, s96", sDG, sDG)
    g.label("L_spin")
    e("s_memrealtime s[96:97]"); e("s_waitcnt lgkmcnt(0)"); S("s_sub_u32 s%d, s%d, s96", sDG + 1, sDG); S("s_cmp_gt_i32 s%d, 0", sDG + 1); e("s_cbranch_scc1 L_spin")
g.label("L_end")
e("s_endpgm")
e('.section .rodata,"a"')
e(".p2align 6")
e(".amdhsa_kernel %s_kernel" % NAME)
for l in ("next_free_vgpr 512", "next_free_sgpr 102", "accum_offset 256", "group_segment_fixed_size 0", "kernarg_size 128", "user_sgpr_count 2",
          "user_sgpr_kernarg_segment_ptr 1", "system_sgpr_workgroup_id_x 1"):
    g.lines.append("  .amdhsa_" + l)
e(".end_amdhsa_kernel")

if OPT["nocomp"]:
    g.lines = [l for l in g.lines if not (l.startswith("v_mfma") or l.startswith("ds_read_b64_tr") or l.startswith("ds_read_b128"))]
if OPT["ntin"]:
    def ntf(l):
        if l.startswith("buffer_load_dwordx4") and l.endswith(" lds"):
            p1 = any(("s[%d:%d]" % (b, b + 3)) in l for b in (SRD_X, SRD_B, SRD_W1))
            if (p1 and OPT["ntin"] & 1) or (not p1 and OPT["ntin"] & 2): return l[:-4] + " nt lds"
        return l
    g.lines = [ntf(l) for l in g.lines]
i0 = g.lines.index("%s_kernel:" % NAME) + 1
i1 = g.lines.index("s_endpgm") + 1
body, npad, lastoff = layout(g.lines[i0:i1], 3328, sW, OPT["align"], OPT["page"])
g.lines = g.lines[:i0] + body + g.lines[i1:]
print("pads", npad, "last page bytes", lastoff)
tot = (3328 + 4096 * (npad - 1) + lastoff if npad else lastoff) - 320
stride = (tot // 128) // 12 * 12 + 12
while 127 * stride + 2 * stride // 3 + 4 > tot + 256: stride -= 12
assert stride <= 192
g.lines = [l.replace("0x1234", str(stride)).replace("0x4324", str(2 * stride // 3)).replace("0x4320", str(stride // 3)) for l in g.lines]
if os.environ.get("LINT"):
    for x in scc_lint(g.lines): print("SCC", x)
errs = check_hazards(g.lines)
for x in errs:
    print("HAZARD", x)
open(sys.argv[1], "w").write(out_hdr + g.text())
print("lines", len(g.lines), "stamps", nstamp[0], "hazards", len(errs))
```
